```python
import torch

def _softmax(x, axis=-1):
    return torch.softmax(x, dim=axis)
def _gelu(x):
    return torch.nn.functional.gelu(x, approximate="tanh")
def _silu(x):
    return torch.nn.functional.silu(x)
def _sigmoid(x):
    return torch.sigmoid(x)
def _layernorm(x, axis=-1, eps=1e-5):
    m = x.mean(dim=axis, keepdim=True)
    v = x.var(dim=axis, keepdim=True, unbiased=False)
    return (x - m) / torch.sqrt(v + eps)
def _scatter_add(tgt, idx, src, axis=0):
    return tgt.clone().index_add_(axis, idx, src)
def _segment_sum(src, seg, n):
    out = torch.zeros((n,) + src.shape[1:], dtype=src.dtype)
    return out.index_add_(0, seg, src)
def _pad(x, pw):
    flat = tuple(v for pair in reversed(pw) for v in pair)
    return torch.nn.functional.pad(x, flat)

kernel_name = 'standalone__mha_block_cached__near_ridge'

def setup_inputs():

    _w = (lambda a: (lambda t: t.to(torch.bfloat16) if t.is_floating_point() else t)(torch.as_tensor(a)))
    B, Sq, D = 16, 160, 448
    H, Sk, Dh = 16, 512, 256
    return {
        "x": _w((lambda *s: torch.randn(*s, dtype=torch.bfloat16) * 0.8)(B, Sq, D)),
        "k_cache": _w((lambda *s: torch.randn(*s, dtype=torch.bfloat16) * 0.8)(B, H, Sk, Dh)),
        "v_cache": _w((lambda *s: torch.randn(*s, dtype=torch.bfloat16) * 0.05)(B, H, Sk, Dh)),
        "wq": _w((lambda *s: torch.randn(*s, dtype=torch.bfloat16) * 0.8)(D, H * Dh) * (D ** -0.5)),
        "wo": _w((lambda *s: torch.randn(*s, dtype=torch.bfloat16) * 0.05)(H * Dh, D) * ((H * Dh) ** -0.5)),
    }

def reference(x, k_cache, v_cache, wq, wo):
    B, Sq, D = x.shape
    H, Dh = 16, 256
    q = (lambda x, *d: x.permute(*d))((x @ wq).reshape(B, Sq, H, Dh), 0, 2, 1, 3)
    scores = torch.einsum("bhqd,bhkd->bhqk", q, k_cache) * (Dh ** -0.5)
    p = _softmax(scores, axis=-1)
    o = torch.einsum("bhqk,bhkd->bhqd", p, v_cache)
    return (lambda x, *d: x.permute(*d))(o, 0, 2, 1, 3).reshape(B, Sq, H * Dh) @ wo
```

```python
import re

def regs_of(tok):
    tok = tok.strip()
    neg = tok.lstrip('-|').rstrip('|')
    m = re.fullmatch(r'([vas])\[(\d+):(\d+)\]', neg)
    if m:
        return [f"{m.group(1)}{i}" for i in range(int(m.group(2)), int(m.group(3)) + 1)]
    m = re.fullmatch(r'([vas])(\d+)', neg)
    if m:
        return [neg]
    if neg in ('m0', 'vcc', 'exec', 'scc'):
        return [neg]
    return []

TRANS = ('v_exp_f32', 'v_log_f32', 'v_rcp_f32', 'v_rsq_f32', 'v_sqrt_f32')

def parse(line):
    s = line.split(';')[0].strip()
    if not s or s.endswith(':') or s.startswith('.'):
        return None
    parts = s.split(None, 1)
    op = parts[0]
    rest = parts[1] if len(parts) > 1 else ''
    ops = [o.strip() for o in rest.split(',')] if rest else []
    toks = []
    for o in ops:
        toks.append(o.split()[0] if o.split() else o)
    d = dict(op=op, w=set(), r=set(), kind='other', c=set(), ab=set())
    R = lambda ts: set(x for t in ts for x in regs_of(t))
    if op.startswith('v_mfma'):
        d['kind'] = 'mfma'; d['w'] = R(toks[:1]); d['ab'] = R(toks[1:3]); d['c'] = R(toks[3:4]); d['r'] = d['ab'] | d['c']
        d['dtok'] = toks[0]; d['ctok'] = toks[3]
    elif op.startswith('v_permlane32_swap') or op.startswith('v_permlane16_swap'):
        d['kind'] = 'valu'; d['perm'] = True; d['w'] = R(toks); d['r'] = R(toks)
    elif op.startswith('v_cmp'):
        d['kind'] = 'valu'; d['w'] = R(toks[:1]); d['r'] = R(toks[1:])
    elif op.startswith('v_readfirstlane') or op.startswith('v_readlane'):
        d['kind'] = 'valu'; d['rfl'] = True; d['w'] = R(toks[:1]); d['r'] = R(toks[1:])
    elif op.startswith('v_'):
        d['kind'] = 'valu'; d['w'] = R(toks[:1]); d['r'] = R(toks[1:])
        if op.startswith('v_fmac') or op.startswith('v_dot2c'):
            d['r'] |= d['w']
        if op.startswith('v_cndmask') and len(toks) == 3:
            d['r'].add('vcc')
        if any(op.startswith(t) for t in TRANS):
            d['trans'] = True
    elif op.startswith('ds_read'):
        d['kind'] = 'ds'; d['w'] = R(toks[:1]); d['r'] = R(toks[1:])
    elif op.startswith('ds_write'):
        d['kind'] = 'ds'; d['r'] = R(toks)
    elif op.startswith('buffer_load') or op.startswith('global_load'):
        d['kind'] = 'vmem'
        if ' lds' in s:
            d['r'] = R(toks) | {'m0'}; d['dma'] = True
        else:
            d['w'] = R(toks[:1]); d['r'] = R(toks[1:])
    elif op.startswith('buffer_store') or op.startswith('buffer_atomic'):
        d['kind'] = 'vmem'; d['r'] = R(toks)
        if 'x4' in op or 'x3' in op:
            d['wide'] = R(toks[:1])
    elif op.startswith('s_nop'):
        d['kind'] = 'nop'; d['n'] = int(toks[0]) + 1
    elif op.startswith('s_'):
        d['kind'] = 'salu'
        if op.startswith(('s_cmp', 's_waitcnt', 's_barrier', 's_cbranch', 's_branch', 's_setprio', 's_endpgm', 's_sleep')):
            d['r'] = R(toks)
        else:
            d['w'] = R(toks[:1]); d['r'] = R(toks[1:])
    return d

def need(p, c):
    n = 0
    pk, ck = p['kind'], c['kind']
    vw = set(x for x in p['w'] if x[0] in 'va' and x not in ('vcc',))
    if pk == 'valu':
        if ck == 'mfma' and vw & c['r']: n = max(n, 2)
        if p.get('trans') and ck == 'valu' and not c.get('trans') and vw & c['r']: n = max(n, 1)
        if p.get('trans') and ck in ('ds', 'vmem') and vw & c['r']: n = max(n, 1)
        if c.get('perm') and vw & c['r']: n = max(n, 2)
        if c.get('rfl') and vw & c['r']: n = max(n, 1)
        sw = set(x for x in p['w'] if x[0] == 's' or x == 'vcc')
        if sw:
            if ck == 'valu' and sw & c['r']: n = max(n, 2)
            if ck == 'vmem' and sw & c['r']: n = max(n, 5)
            if ck == 'salu' and sw & c['r']: n = max(n, 1)
    if pk == 'mfma':
        if ck == 'mfma':
            if p['w'] & c['ab']: n = max(n, 12)
            if p['w'] & c['c'] and p['dtok'] != c['ctok']: n = max(n, 10)
            if p['w'] & c['w'] and p['dtok'] != c['ctok']: n = max(n, 10)
        elif ck in ('valu', 'ds', 'vmem'):
            if p['w'] & (c['r'] | c['w']): n = max(n, 12)
            if ck == 'valu' and p['c'] & c['w']: n = max(n, 7)
    if pk == 'salu' and 'm0' in p['w'] and c.get('dma'): n = max(n, 1)
    if p.get('wide') and (p['wide'] & c['w']):
        n = max(n, 2)
    return n

def pad(lines):
    out = []
    hist = []
    added = 0
    for ln in lines:
        d = parse(ln)
        if d is None:
            out.append(ln)
            continue
        req = 0
        dist = 0
        for p in reversed(hist):
            nn = need(p, d)
            if nn > dist:
                req = max(req, nn - dist)
            dist += p['n'] if p['kind'] == 'nop' else 1
            if dist >= 12:
                break
        while req > 0:
            k = min(req, 8)
            out.append(f"  s_nop {k-1}")
            hist.append(dict(op='s_nop', kind='nop', n=k, w=set(), r=set(), c=set(), ab=set()))
            req -= k; added += k
        out.append(ln)
        hist.append(d)
        hist = hist[-16:]
    return out, added

class K:
    def __init__(self):
        self.L = []
        self.vm = []
        self.lg = []
        self.nst = 0
    def e(self, s):
        for x in s.split('\n'):
            if x.strip():
                self.L.append('  ' + x.strip() if not x.strip().endswith(':') else x.strip())
    def ds(self, s, tag=None):
        self.e(s); self.lg.append(tag)
    def vmem(self, s, tag=None):
        self.e(s); self.vm.append(tag)
    def _cnt(self, q, tags):
        idx = -1
        for i, t in enumerate(q):
            if t in tags: idx = i
        return idx
    def wait(self, lg=None, vm=None, lg0=False, vm0=False):
        parts = []
        if vm0:
            if self.vm: parts.append("vmcnt(0)")
            self.vm = []
        elif vm:
            i = self._cnt(self.vm, set(vm))
            if i >= 0:
                n = len(self.vm) - i - 1
                assert n <= 63, n
                parts.append(f"vmcnt({n})"); self.vm = self.vm[i + 1:]
        if lg0:
            if self.lg: parts.append("lgkmcnt(0)")
            self.lg = []
        elif lg:
            i = self._cnt(self.lg, set(lg))
            if i >= 0:
                n = min(15, len(self.lg) - i - 1)
                parts.append(f"lgkmcnt({n})"); self.lg = self.lg[len(self.lg) - n:] if n else []
        if parts:
            self.e("s_waitcnt " + " ".join(parts))
    def text(self):
        out, added = pad(self.L)
        return "\n".join(out) + "\n", added

def desc(name, vgpr, acc):
    return f""".amdhsa_kernel {name}
  .amdhsa_next_free_vgpr {vgpr}
  .amdhsa_next_free_sgpr 102
  .amdhsa_accum_offset {acc}
  .amdhsa_group_segment_fixed_size 0
  .amdhsa_kernarg_size 64
  .amdhsa_user_sgpr_count 2
  .amdhsa_user_sgpr_kernarg_segment_ptr 1
  .amdhsa_system_sgpr_workgroup_id_x 1
.end_amdhsa_kernel
"""

def write_file(fn, header, launches, kernels):
    s = header
    if len(launches) == 1 and launches[0][0] == "standalone__mha_block_cached__near_ridge_kernel":
        k, g, bl, lds = launches[0]
        s += f"; @launch grid=({g},1,1) block=({bl},1,1) lds={lds}\n"
    else:
        for (k, g, bl, lds) in launches:
            s += f"; @launch kernel={k} grid=({g},1,1) block=({bl},1,1) lds={lds}\n"
    s += '.amdgcn_target "amdgcn-amd-amdhsa--gfx950"\n.text\n'
    for (k, body, vg, acc) in kernels:
        s += f".globl {k}\n.p2align 8\n.type {k},@function\n{k}:\n{body}s_endpgm\n"
    s += '.section .rodata,"a"\n.p2align 6\n'
    for (k, body, vg, acc) in kernels:
        s += desc(k, vg, acc) + ".p2align 6\n"
    open(fn, "w").write(s)
```

```python
from asmlib import parse
_uid = [0]
def uid(p='t'):
    _uid[0] += 1
    return f"{p}{_uid[0]}"

class Step:
    def __init__(self, mf, pre=(), bar=None, hook=None):
        self.mf = mf
        self.pre = list(pre)
        self.bar = bar
        self.hook = hook
        self.need = []

class Fill:
    __slots__ = ('kind', 'text', 'tag', 'cost', 'early', 'dead', 'lgneed', 'vmneed', 'bdead')
    def __init__(self, kind, text, cost=4, early=-1, dead=10**9, tag=None, lgneed=None, vmneed=None, bdead=10**9):
        self.kind = kind; self.text = text; self.tag = tag; self.cost = cost; self.bdead = bdead
        self.early = early; self.dead = dead; self.lgneed = lgneed; self.vmneed = vmneed

def emit_fill(k, f):
    if f.lgneed or f.vmneed:
        k.wait(lg=f.lgneed, vm=f.vmneed)
    if f.kind == 'ds': k.ds(f.text, f.tag)
    elif f.kind == 'vm': k.vmem(f.text, f.tag)
    else: k.e(f.text)

class Eng:
    def __init__(self, k):
        self.k = k
        self.dma = []
        self.fq = []
        self.i = 0
        self.done = 10**9
        self.forced = 0
    def flush_dma(self):
        for grp in self.dma:
            for f in grp: emit_fill(self.k, f)
        self.dma = []
    def flush_fill(self, upto=None, bar=None):
        def must():
            if upto is None and bar is None: return True
            if upto is not None and any(f.dead <= upto for f in self.fq): return True
            if bar is not None and any(f.bdead <= bar for f in self.fq): return True
            return False
        while self.fq and must():
            f = self.fq.pop(0)
            assert f.early <= self.done, (f.text, f.early, self.done)
            self.forced += 1
            emit_fill(self.k, f)
    def run(self, steps, maxlg=13, delay=2, maxrd=2, budget=24, dma_every=2, dma_cost=16, pair=True, extneed=None):
        k = self.k
        n = len(steps)
        writer = dict(extneed or {})
        lastuser = {}
        prev = [-1] * n
        for j, s in enumerate(steps):
            grp = []
            for p in s.pre:
                if p[0] == 'ds':
                    t = uid('r'); d = parse(p[1])
                    for r in d['w']:
                        prev[j] = max(prev[j], lastuser.get(r, -1))
                        writer[r] = t
                    grp.append(('ds', p[1], t))
                else:
                    grp.append(p)
            s.pre = grp
            d = parse(s.mf)
            s.need = sorted(set(writer[r] for r in d['ab'] if r in writer))
            for r in d['ab']: lastuser[r] = j
        st = dict(ri=0, last_rd=-100)
        def issue(i, lim, force=False):
            cost = 0; cnt = 0
            while st['ri'] < n and cnt < lim:
                ri = st['ri']; s = steps[ri]
                nds = sum(1 for p in s.pre if p[0] == 'ds')
                if prev[ri] > i: break
                if not force and nds and s.bar is None and len(k.lg) + nds > maxlg: break
                if s.bar is not None:
                    if not force and ri > i + 2 and i - st['last_rd'] < delay: break
                    self.i = i
                    s.bar(); s.bar = None; cost += 8
                for p in s.pre:
                    if p[0] == 'ds': k.ds(p[1], p[2])
                    else: k.e(p[1])
                    cost += 4
                if nds: cnt += 1; st['last_rd'] = i
                st['ri'] += 1
                force = False
            return cost
        self.done = -1
        issue(-1, 100)
        since_dma = 0
        for i, s in enumerate(steps):
            self.i = i
            while st['ri'] <= i: issue(i - 1, 1, force=True)
            self.flush_fill(upto=i)
            if s.hook: s.hook()
            need = list(s.need)
            c0 = len(k.L)
            if pair and i + 1 < n and any(t in k.lg for t in need) and st['ri'] >= i + 4:
                need += steps[i + 1].need
            k.wait(lg=need)
            used = 4 * (len(k.L) - c0)
            k.e(s.mf)
            self.done = i
            used += issue(i, maxrd)
            since_dma += 1
            if self.dma and since_dma >= dma_every:
                for f in self.dma.pop(0): emit_fill(k, f)
                used += dma_cost; since_dma = 0
            while self.fq and self.fq[0].early <= i and used + self.fq[0].cost <= budget:
                f = self.fq.pop(0); emit_fill(k, f); used += f.cost
        self.done = 10**9
```

```python
import sys, math
sys.path.insert(0, "work")
from asmlib import K, write_file
from eng import Eng, Step, Fill, uid

OPT = dict(arr='N', ts=0, dump='', nt='nt', delay=2, maxlg=13)
for a in sys.argv[2:]:
    kk, vv = a.split('=')
    OPT[kk] = int(vv) if vv.lstrip('-').isdigit() else vv

HEADER = "".join(l for l in open("standalone__mha_block_cached__near_ridge.s.ref").read().splitlines(True)[:11])
MF = "v_mfma_f32_32x32x16_bf16"
def R(p, lo, n): return f"{p}[{lo}:{lo+n-1}]"
SX, SK, SV, SWQ, SWO, SWS = "s[8:11]", "s[12:15]", "s[16:19]", "s[20:23]", "s[24:27]", "s[28:31]"
sW, sB, sH, sKC = "s32", "s33", "s34", "s35"
sT0, sT1, sT2 = "s36", "s37", "s38"
sC = "s39"
sWQO, sXO, sM8, sM4, sKO, sWOO, sWLO = "s40", "s41", "s42", "s43", "s44", "s45", "s46"
sST = 47
sTS = 60
XB = 96 * 1024
S4 = 128 * 1024
SLOT = lambda n: ((n + 1) % 4) * 32768

def main_kernel():
    k = K(); e = k.e
    eng = Eng(k)
    nst = [0]
    def stamp():
        if OPT['ts']:
            k.wait(lg0=True)
            e(f"s_memrealtime s[{sTS+2*nst[0]}:{sTS+1+2*nst[0]}]\ns_waitcnt lgkmcnt(0)")
            nst[0] += 1
    def dump(name, regs):
        if OPT['dump'] != name: return
        eng.flush_dma()
        e("s_nop 7\ns_nop 7\ns_waitcnt vmcnt(0) lgkmcnt(0)")
        e(f"s_mul_i32 {sT0}, {sB}, 64\ns_lshl_b32 {sT1}, {sH}, 2\ns_add_u32 {sT0}, {sT0}, {sT1}\ns_add_u32 {sT0}, {sT0}, {sW}\ns_lshl_b32 {sT0}, {sT0}, 17")
        e("s_add_u32 s56, s4, 0x4000000\ns_addc_u32 s57, s5, 0\ns_mov_b32 s58, 0x8000000\ns_mov_b32 s59, 0x00020000")
        e("v_lshlrev_b32 v0, 2, v7")
        for i, r in enumerate(regs):
            e(f"buffer_store_dword {r}, v0, s[56:59], {sT0} offen\ns_add_u32 {sT0}, {sT0}, 256")
            if i % 32 == 31: e("s_waitcnt vmcnt(0)")
        e("s_waitcnt vmcnt(0)\ns_branch L_exit")

    if OPT['ts']:
        e(f"s_memrealtime s[{sTS}:{sTS+1}]"); nst[0] = 1
    e(f"""
    s_cmp_ge_u32 s2, 256
    s_cbranch_scc1 L_exit
    s_load_dwordx2 s[8:9], s[0:1], 0
    s_load_dwordx2 s[12:13], s[0:1], 8
    s_load_dwordx2 s[16:17], s[0:1], 16
    s_load_dwordx2 s[20:21], s[0:1], 24
    s_load_dwordx2 s[24:25], s[0:1], 32
    s_load_dwordx2 s[4:5], s[0:1], 56
    v_lshrrev_b32 v1, 6, v0
    v_and_b32 v7, 63, v0
    v_readfirstlane_b32 {sW}, v1
    s_and_b32 {sT0}, s2, 7
    s_lshr_b32 {sT1}, s2, 3
    """)
    arr = OPT['arr']
    if arr == 'N':
        e(f"""s_lshr_b32 {sB}, {sT0}, 1
        s_lshl_b32 {sB}, {sB}, 2
        s_lshr_b32 {sT2}, {sT1}, 3
        s_add_u32 {sB}, {sB}, {sT2}
        s_and_b32 {sH}, {sT0}, 1
        s_lshl_b32 {sH}, {sH}, 3
        s_and_b32 {sT2}, {sT1}, 7
        s_add_u32 {sH}, {sH}, {sT2}""")
    elif arr == 'L':
        e(f"""s_lshl_b32 {sB}, {sT0}, 1
        s_lshr_b32 {sT2}, {sT1}, 4
        s_add_u32 {sB}, {sB}, {sT2}
        s_and_b32 {sH}, {sT1}, 15""")
    elif arr == 'M':
        e(f"""s_lshr_b32 {sB}, {sT0}, 2
        s_lshl_b32 {sB}, {sB}, 3
        s_lshr_b32 {sT2}, {sT1}, 2
        s_add_u32 {sB}, {sB}, {sT2}
        s_and_b32 {sH}, {sT0}, 3
        s_lshl_b32 {sH}, {sH}, 2
        s_and_b32 {sT2}, {sT1}, 3
        s_add_u32 {sH}, {sH}, {sT2}""")
    e(f"""s_lshl_b32 {sT0}, {sH}, 1
    s_add_u32 {sT0}, {sT0}, {sB}
    s_mul_i32 {sT1}, {sT0}, 37
    s_lshr_b32 {sT1}, {sT1}, 8
    s_mul_i32 {sT1}, {sT1}, 7
    s_sub_u32 {sKC}, {sT0}, {sT1}
    s_mov_b32 s10, 143360
    s_mov_b32 s11, 0x00020000
    s_mov_b32 s14, 262144
    s_mov_b32 s15, 0x00020000
    s_mov_b32 s18, 262144
    s_mov_b32 s19, 0x00020000
    s_mov_b32 s23, 0x00020000
    s_mov_b32 s26, 229376
    s_mov_b32 s27, 0x00020000
    s_mov_b32 s30, {140*16384}
    s_mov_b32 s31, 0x00020000
    s_mov_b32 {sC}, 0x{f2u(math.log2(math.e)/16):08x}
    s_lshl_b32 {sM8}, {sW}, 13
    s_lshl_b32 {sM4}, {sW}, 12
    s_lshl_b32 {sWQO}, {sW}, 17
    s_mul_i32 {sXO}, {sW}, 7168
    """)
    e(f"""
    v_lshrrev_b32 v14, 5, v7                 ; p>>5
    v_and_b32 v15, 31, v7                    ; p&31
    v_lshlrev_b32 v1, 2, v14
    v_xor_b32 v1, v1, v15                    ; (p&31)^((p>>5)<<2)
    v_lshlrev_b32 v1, 4, v1
    v_lshl_add_u32 v2, v14, 13, v1
    v_xor_b32 v3, 0x80, v2
    v_add_u32 v3, 15360, v3                  ; ii=1
    v_add_u32 v4, 30720, v2                  ; ii=2
    v_add_u32 v5, 30720, v3                  ; ii=3
    v_lshl_add_u32 v12, v14, 9, v1
    v_xor_b32 v13, 0x80, v12
    s_and_b32 {sT2}, {sW}, 1
    s_lshl_b32 {sT0}, {sT2}, 2
    v_lshrrev_b32 v6, 4, v7
    v_xor_b32 v6, {sT0}, v6
    v_and_b32 v1, 7, v7
    v_xor_b32 v6, v6, v1
    v_lshlrev_b32 v6, 4, v6
    v_lshrrev_b32 v1, 3, v7
    v_mul_u32_u24 v1, 896, v1
    v_add_u32 v6, v6, v1                     ; x voff
    s_waitcnt lgkmcnt(0)
    s_mul_i32 {sT0}, {sB}, 143360
    s_add_u32 s8, s8, {sT0}
    s_addc_u32 s9, s9, 0
    s_lshl_b32 {sT0}, {sH}, 9
    s_add_u32 s20, s20, {sT0}
    s_addc_u32 s21, s21, 0
    s_sub_u32 s22, 3670016, {sT0}
    """)
    def dma_stage(i):
        G = []
        tag = f"A{i}"
        slot = (i % 3) * 32768
        xs = XB + (i % 3) * 20480
        for u in range(2):
            for ii in range(4):
                g = []
                if ii == 0:
                    if u == 0:
                        g.append(Fill('e', f"s_lshl_b32 {sT0}, {sKC}, 19\ns_add_u32 {sT0}, {sT0}, {sWQO}"))
                    else:
                        g.append(Fill('e', f"s_add_u32 {sT0}, {sT0}, 65536"))
                    g.append(Fill('e', f"s_add_u32 m0, {sM8}, {slot + u * 4096}"))
                g.append(Fill('vm', f"buffer_load_dwordx4 v{2+ii}, {SWQ}, {sT0} offen offset:{ii*1024} lds", tag=tag))
                G.append(g)
        for u in range(5):
            g = []
            if u == 0:
                g.append(Fill('e', f"s_lshl_b32 {sT1}, {sKC}, 7\ns_add_u32 {sT1}, {sT1}, {sXO}\ns_lshl_b32 {sT2}, {sW}, 10"))
            else:
                g.append(Fill('e', f"s_add_u32 {sT1}, {sT1}, {4*7168}"))
            g.append(Fill('e', f"s_add_u32 m0, {sT2}, {xs + u * 4096}"))
            g.append(Fill('vm', f"buffer_load_dwordx4 v6, {SX}, {sT1} offen lds", tag=tag))
            if u == 4:
                g.append(Fill('e', f"s_add_u32 {sKC}, {sKC}, 1\ns_cmp_eq_u32 {sKC}, 7\ns_cselect_b32 {sKC}, 0, {sKC}"))
            G.append(g)
        return G[8:10] + G[0:4] + G[10:13] + G[4:8] if False else G
    def dma_tile(n):
        G = []
        tag = f"T{n}"
        slot = SLOT(n)
        for u in range(2):
            for ii in range(4):
                g = []
                if n < 16:
                    blk = n % 8
                    if ii == 0:
                        g.append(Fill('e', f"s_add_u32 {sKO}, {sM4}, {blk*32768 + u*16384}\ns_add_u32 m0, {sM4}, {slot + u*16384}"))
                    vo = f"v{8+ii}" if n < 8 else f"v{12+(ii&1)}"
                    srd = SK if n < 8 else SV
                    g.append(Fill('vm', f"buffer_load_dwordx4 {vo}, {srd}, {sKO} offen offset:{ii*1024} {OPT['nt']} lds", tag=tag))
                elif n < 22:
                    gi, dh = (n - 16) // 2, (n - 16) % 2
                    if ii == 0:
                        g.append(Fill('e', f"s_add_u32 {sKO}, {sWOO}, {(dh*128 + 16*u)*896 + gi*256}\ns_add_u32 m0, {sM8}, {slot + u*4096}"))
                    g.append(Fill('vm', f"buffer_load_dwordx4 v{2+ii}, {SWO}, {sKO} offen offset:{ii*1024} lds", tag=tag))
                else:
                    if ii == 0:
                        g.append(Fill('e', f"s_add_u32 {sKO}, {sWLO}, {32*u*896 + 768}\ns_add_u32 m0, {sM8}, {slot + u*4096}"))
                    g.append(Fill('vm', f"buffer_load_dwordx4 v{8+ii}, {SWO}, {sKO} offen offset:{ii*1024} lds", tag=tag))
                G.append(g)
        return G
    eng.dma += dma_stage(0); eng.flush_dma()
    e(f"""
    s_lshl_b32 {sT0}, {sB}, 4
    s_add_u32 {sT0}, {sT0}, {sH}
    s_lshl_b32 {sT0}, {sT0}, 18
    s_add_u32 s12, s12, {sT0}
    s_addc_u32 s13, s13, 0
    s_add_u32 s16, s16, {sT0}
    s_addc_u32 s17, s17, 0
    s_mul_i32 {sT0}, {sH}, 229376
    s_add_u32 s24, s24, {sT0}
    s_addc_u32 s25, s25, 0
    s_mul_i32 {sT0}, {sB}, {140*16384}
    s_lshl_b32 {sT1}, {sH}, 10
    s_add_u32 {sT0}, {sT0}, {sT1}
    s_add_u32 s28, s4, {sT0}
    s_addc_u32 s29, s5, 0
    s_mul_i32 {sWOO}, {sW}, {32*896}
    s_mul_i32 {sWLO}, {sW}, {64*896}
    """)
    eng.dma += dma_stage(1) + dma_stage(2); eng.flush_dma()
    e(f"""
    s_and_b32 {sT2}, {sW}, 1
    s_lshl_b32 {sT0}, {sT2}, 3
    v_xor_b32 v1, v14, v15
    v_xor_b32 v1, {sT0}, v1
    v_lshlrev_b32 v1, 4, v1
    v_lshl_add_u32 v8, v14, 9, v1
    v_xor_b32 v9, 32, v8
    v_xor_b32 v10, 64, v8
    v_xor_b32 v11, 0x60, v8
    """)
    e(f"""
    v_bfe_u32 v63, v7, 2, 2                  ; r
    v_lshl_add_u32 v60, v14, 3, v63          ; 8hh+r
    v_bfe_u32 v1, v7, 4, 1
    v_lshlrev_b32 v62, 5, v1
    v_and_b32 v1, 1, v7
    v_lshl_add_u32 v62, v1, 4, v62
    v_bfe_u32 v1, v7, 1, 1
    v_lshl_add_u32 v62, v1, 3, v62
    v_lshl_add_u32 v61, v63, 6, v62
    s_lshl_b32 {sT0}, {sW}, 6
    v_lshl_add_u32 v16, v60, 9, v61
    v_xor_b32 v16, {sT0}, v16
    v_xor_b32 v17, 64, v16
    v_xor_b32 v18, 0x80, v16
    v_xor_b32 v19, 0xc0, v16
    """)
    e(f"""
    v_bfe_u32 v1, v7, 1, 3
    v_xor_b32 v1, v1, v14
    v_lshlrev_b32 v1, 4, v1
    v_lshl_add_u32 v1, v15, 7, v1
    v_add_u32 v24, {XB + 128*128}, v1
    s_lshl_b32 {sT0}, {sW}, 12
    s_add_u32 {sT0}, {sT0}, {XB}
    v_add_u32 v20, {sT0}, v1
    v_xor_b32 v21, 32, v20
    v_xor_b32 v22, 64, v20
    v_xor_b32 v23, 0x60, v20
    v_xor_b32 v25, 32, v24
    v_xor_b32 v26, 64, v24
    v_xor_b32 v27, 0x60, v24
    v_lshlrev_b32 v1, 4, v7
    """)
    hi = dict(tr=0, k=0, wo=0)
    def toggle(which, regs, want):
        if hi[which] == want: return []
        hi[which] = want
        return [('e', f"v_xor_b32 v{r}, 0x10000, v{r}") for r in regs]
    def barrier(vmtags, after=None, barid=None, st=False):
        def f():
            if barid is not None: eng.flush_fill(bar=barid)
            eng.flush_dma()
            for t in vmtags: assert t in k.vm, t
            k.wait(vm=vmtags, lg0=True)
            e("s_barrier")
            if st: stamp()
            if after: after()
        return f

    JORD = [0, 4, 1, 2, 3, 5, 6, 7]
    steps = []
    ringc = [0]
    def ringA(base, n, p):
        r = base + 4 * (ringc[0] % n); ringc[0] += 1
        return r
    for i in range(7):
        slot = (i % 3) * 32768
        xs = (i % 3) * 20480
        def after(i=i):
            if 1 <= i <= 4: eng.dma += dma_stage(i + 2)
            if i == 5: eng.dma += dma_tile(0)
            if i == 6: eng.dma += dma_tile(1)
        for T in range(4):
            xb = 40 + 8 * ((4 * i + T) % 2)
            for jn, j in enumerate(JORD):
                pre = []
                bar = None
                if T == 0 and jn == 0:
                    bar = barrier([f"A{i}"], after, st=(i in (0, 3)))
                    pre += toggle('tr', range(16, 20), slot >> 16)
                if jn == 0:
                    pre.append(('ds', f"ds_read_b128 {R('v', xb, 4)}, v{20+T} offset:{xs}"))
                r = ringA(224, 8, 'a')
                off = (slot & 0xffff) + (j >> 2) * 256 + T * 8192
                pre.append(('ds', f"ds_read_b64_tr_b16 {R('a', r, 2)}, v{16+(j&3)} offset:{off}"))
                pre.append(('ds', f"ds_read_b64_tr_b16 {R('a', r+2, 2)}, v{16+(j&3)} offset:{off+2048}"))
                acc = R('v', 64 + 16 * j, 16)
                first = (i == 0 and T == 0)
                steps.append(Step(f"{MF} {acc}, {R('a', r, 4)}, {R('v', xb, 4)}, {'0' if first else acc}", pre, bar))
                if j in (0, 4):
                    pre2 = [('ds', f"ds_read_b128 {R('v', xb+4, 4)}, v{24+T} offset:{xs}")] if j == 0 else []
                    acc = R('v', 192 + 16 * (j >> 2), 16)
                    steps.append(Step(f"{MF} {acc}, {R('a', r, 4)}, {R('v', xb+4, 4)}, {'0' if first else acc}", pre2))
    eng.run(steps, maxlg=OPT['maxlg'], delay=OPT['delay'], dma_every=2)
    eng.flush_dma()
    dump('Q', [f"v{r}" for r in range(64, 224)])
    e(f"s_lshl_b32 {sT0}, {sW}, 11\ns_add_u32 {sT0}, {sT0}, {S4}\nv_add_u32 v14, {sT0}, v1")
    for a in range(2):
        for half in range(2):
            src = 192 + 16 * a + 8 * half
            for q in range(4):
                e(f"v_cvt_pk_bf16_f32 v{src+q}, v{src+2*q}, v{src+2*q+1}")
            k.ds(f"ds_write_b128 v14, {R('v', src, 4)} offset:{a*8192 + half*1024}", 'qsh')
    e(f"""
    v_and_b32 v15, 0x13, v7
    v_bfe_u32 v20, v7, 2, 1
    v_lshl_or_b32 v15, v20, 3, v15
    v_bfe_u32 v20, v7, 3, 1
    v_lshl_or_b32 v15, v20, 2, v15           ; key
    v_lshrrev_b32 v20, 5, v7
    s_lshl_b32 {sT0}, {sW}, 2
    v_xor_b32 v20, {sT0}, v20
    v_and_b32 v21, 15, v15
    v_xor_b32 v20, v20, v21
    v_lshlrev_b32 v20, 4, v20
    v_lshl_add_u32 v20, v15, 9, v20
    s_and_b32 {sT0}, {sW}, 1
    s_lshl_b32 {sT0}, {sT0}, 14
    v_add_u32 v28, {sT0}, v20
    """)
    for v in range(1, 8):
        e(f"v_xor_b32 v{20+v}, {v*32}, v20\nv_xor_b32 v{28+v}, {v*32}, v28")
    for j in range(8):
        for q in range(8):
            src = 64 + 16 * j + 2 * q
            e(f"v_cvt_pk_bf16_f32 v{src}, v{src}, v{src+1}")
        for q in range(8):
            src = 64 + 16 * j + 2 * q
            e(f"v_accvgpr_write_b32 a{8*j+q}, v{src}")
    barrier(["T0"], None, st=True)()
    eng.dma += dma_tile(2) + dma_tile(3)
    e("v_xor_b32 v15, 0x800, v14\nv_xor_b32 v56, 0x1000, v14\nv_xor_b32 v57, 0x1800, v14")
    qa = [14, 15, 56, 57]
    ext = {}
    for j in range(8):
        for half in range(2):
            t = uid('q')
            k.ds(f"ds_read_b128 {R('a', 64+8*j+4*half, 4)}, v{qa[j&3]} offset:{(j>>2)*8192 + half*1024}", t)
    k.wait(lg0=True)
    dump('Qf', [f"a{r}" for r in range(128)])

    def Sreg(t):
        if t < 2: return ('v', 224 + 16 * t)
        if t < 12: return ('v', 64 + 16 * (t - 2))
        return ('a', 128 + 16 * (t - 12))
    vMX, vMS = 60, 61
    def max_fill(p, base, dst, first, early, tmp):
        F = []
        if p == 'a':
            for q in range(0, 16, 2):
                F.append(Fill('e', f"v_accvgpr_read_b32 v{tmp}, a{base+q}", early=early))
                F.append(Fill('e', f"v_accvgpr_read_b32 v{tmp+1}, a{base+q+1}", early=early))
                if first and q == 0: F.append(Fill('e', f"v_max_f32 v{dst}, v{tmp}, v{tmp+1}", early=early))
                else: F.append(Fill('e', f"v_max3_f32 v{dst}, v{tmp}, v{tmp+1}, v{dst}", early=early))
        else:
            for q in range(0, 16, 2):
                if first and q == 0: F.append(Fill('e', f"v_max_f32 v{dst}, v{base}, v{base+1}", early=early))
                else: F.append(Fill('e', f"v_max3_f32 v{dst}, v{base+q}, v{base+q+1}, v{dst}", early=early))
        return F
    def phaseS(par):
        steps = []
        ringc[0] = 0
        for blk in range(8):
            slot = SLOT(blk)
            def after(blk=blk):
                eng.dma += dma_tile(blk + 3)
            tiles = [('p', 0), ('p', 1)]
            if (blk & 1) == par: tiles = [('s', 0)] + tiles
            firststep = True
            for kind, kt in tiles:
                if kind == 'p':
                    p, base = Sreg(2 * blk + kt); qb = 0; ab = 20; off0 = kt * 16384
                else:
                    p, base = 'a', 192 + 16 * (blk >> 1); qb = 64; ab = 28; off0 = 0
                acc = R(p, base, 16)
                for j in range(8):
                    for half in range(2):
                        pre = []; bar = None
                        if firststep:
                            if blk > 0: bar = barrier([f"T{blk}"], after, st=(blk == 4))
                            pre += toggle('k', range(20, 36), slot >> 16)
                            firststep = False
                        r = ringA(36, 5, 'v')
                        off = (slot & 0xffff) + (j >> 2) * 256 + off0
                        pre.append(('ds', f"ds_read_b128 {R('v', r, 4)}, v{ab + (j&3)*2 + half} offset:{off}"))
                        first = (j == 0 and half == 0)
                        steps.append(Step(f"{MF} {acc}, {R('v', r, 4)}, {R('a', qb+8*j+4*half, 4)}, {'0' if first else acc}", pre, bar))
                if kind == 'p':
                    eng.fq += max_fill(p, base, vMX, blk == 0 and kt == 0, len(steps) + 1, 56)
                else:
                    eng.fq += max_fill(p, base, vMS, blk < 2, len(steps) + 1, 56)
        eng.run(steps, maxlg=OPT['maxlg'], delay=OPT['delay'], dma_every=2)
        eng.flush_dma()
        eng.flush_fill()
        k.wait(lg0=True)
    e(f"s_cmp_ge_u32 {sW}, 2\ns_cbranch_scc1 L_S1")
    vm0 = list(k.vm); dq = list(eng.dma); hk = dict(hi); ns0 = nst[0]
    phaseS(0)
    e("s_nop 1\ns_branch L_Sdone\nL_S1:\ns_nop 1")
    vm1 = list(k.vm)
    k.vm = vm0; eng.dma = dq; hi.update(hk); nst[0] = ns0
    phaseS(1)
    assert k.vm == vm1
    e("s_nop 1\nL_Sdone:")
    allS = []
    for t in range(16):
        p, b = Sreg(t); allS += [f"{p}{b+q}" for q in range(16)]
    dump('S', allS + [f"a{r}" for r in range(192, 256)] + ['v60', 'v61'])

    MXO = S4 + 31 * 1024
    e(f"""
    v_mov_b32 v56, v60
    v_mov_b32 v57, v61
    v_permlane32_swap_b32 v56, v60
    v_permlane32_swap_b32 v57, v61
    v_max_f32 v60, v56, v60
    v_max_f32 v61, v57, v61
    v_and_b32 v14, 31, v7
    v_lshlrev_b32 v14, 2, v14
    v_add_u32 v14, {MXO}, v14
    s_lshl_b32 {sT0}, {sW}, 7
    v_add_u32 v15, {sT0}, v14
    """)
    k.ds("ds_write_b32 v15, v61", 'mx')
    e(f"""
    v_lshrrev_b32 v56, 4, v7
    v_lshlrev_b32 v57, 2, v56
    v_and_b32 v2, 15, v7
    v_xor_b32 v2, v2, v57
    v_lshlrev_b32 v2, 4, v2
    v_mul_u32_u24 v57, 896, v56
    v_add_u32 v2, v2, v57
    v_add_u32 v3, 2560, v2
    v_add_u32 v4, 5120, v2
    v_add_u32 v5, 7680, v2
    v_and_b32 v56, 1, v56
    v_lshlrev_b32 v56, 2, v56
    v_and_b32 v8, 7, v7
    v_xor_b32 v8, v8, v56
    v_lshlrev_b32 v8, 4, v8
    v_lshrrev_b32 v56, 3, v7
    v_mul_u32_u24 v56, 896, v56
    v_add_u32 v8, v8, v56
    v_add_u32 v9, 6144, v8
    v_add_u32 v10, 12288, v8
    v_add_u32 v11, 18432, v8
    v_mul_f32 v60, {sC}, v60                 ; m*c private
    """)
    barrier([], None, st=True)()
    for w_ in range(4):
        k.ds(f"ds_read_b32 v{56+w_}, v14 offset:{w_*128}", 'mxr')
    eng.dma += dma_tile(11); eng.flush_dma()
    vSP, vSS = 62, 63
    e("v_mov_b32 v6, v62\nv_mov_b32 v0, v63")
    def exp_fill(p, base, n, tmp, mreg, sreg, first, early, dead, dst=None):
        F = []
        kw = dict(early=early, dead=dead)
        for q0 in range(0, n, 8):
            w0 = (tmp + q0) if p == 'a' else (base + q0)
            for q in range(8):
                if p == 'a':
                    F.append(Fill('e', f"v_accvgpr_read_b32 v{w0+q}, a{base+q0+q}", **kw))
            for q in range(8):
                F.append(Fill('e', f"v_fma_f32 v{w0+q}, v{w0+q}, {sC}, -v{mreg}", **kw))
            for q in range(8):
                F.append(Fill('e', f"v_exp_f32 v{w0+q}, v{w0+q}", cost=8, **kw))
                if q >= 1:
                    if first and q0 == 0 and q == 1: F.append(Fill('e', f"v_mov_b32 v{sreg}, v{w0}", **kw))
                    else: F.append(Fill('e', f"v_add_f32 v{sreg}, v{sreg}, v{w0+q-1}", **kw))
            F.append(Fill('e', f"v_cvt_pk_bf16_f32 v{w0}, v{w0}, v{w0+1}", **kw))
            F.append(Fill('e', f"v_add_f32 v{sreg}, v{sreg}, v{w0+7}", **kw))
            for q in range(1, 4):
                F.append(Fill('e', f"v_cvt_pk_bf16_f32 v{w0+q}, v{w0+2*q}, v{w0+2*q+1}", **kw))
        return F
    def Preg(t):
        if t < 12: return Sreg(t)[1]
        return Sreg(t - 12)[1]
    eng.fq += exp_fill('v', Sreg(0)[1], 16, 0, 60, vSP, True, -1, 0); eng.flush_fill()
    k.wait(lg=['mxr'])
    e("v_max3_f32 v61, v56, v57, v58\nv_max_f32 v61, v61, v59")
    e(f"v_mul_f32 v61, {sC}, v61")
    e(f"s_lshl_b32 {sT0}, {sW}, 11\ns_add_u32 {sT0}, {sT0}, {S4}\nv_add_u32 v15, {sT0}, v1\nv_add_u32 v14, {S4}, v1")
    def sh_fill(u, half, early, bdead, first=False):
        F = exp_fill('a', 192 + 16 * u + 8 * half, 8, 28, 61, vSS, first, early, 10**9)
        F.append(Fill('ds', f"ds_write_b128 v15, v[28:31] offset:{u*8192 + half*1024}", cost=8, early=early, tag='psh'))
        for f in F: f.bdead = bdead
        return F
    for u in range(2):
        for half in range(2):
            eng.fq += sh_fill(u, half, -1, 0, first=(u == 0 and half == 0))
    eng.fq += exp_fill('v', Sreg(1)[1], 16, 0, 60, vSP, False, -1, 0)
    eng.flush_fill()

    steps = []
    ringc[0] = 0
    SUMO = 0
    for blk in range(8):
        n = 8 + blk
        slot = SLOT(n)
        s0 = len(steps)
        def after(n=n):
            if n > 8: eng.dma += dma_tile(n + 3)
        for T in range(4):
            pb = Preg(2 * blk + (T >> 1)) + 8 * (T & 1)
            sb = 20 + 4 * (T & 1)
            for jn, j in enumerate(JORD):
                pre = []; bar = None
                if T == 0 and jn == 0:
                    bar = barrier([f"T{n}"], after, barid=blk, st=(blk in (0, 4)))
                    pre += toggle('tr', range(16, 20), slot >> 16)
                r = ringA(36, 5, 'v')
                off = (slot & 0xffff) + (j >> 2) * 256 + T * 8192
                pre.append(('ds', f"ds_read_b64_tr_b16 {R('v', r, 2)}, v{16+(j&3)} offset:{off}"))
                pre.append(('ds', f"ds_read_b64_tr_b16 {R('v', r+2, 2)}, v{16+(j&3)} offset:{off+2048}"))
                acc = R('a', 16 * j, 16)
                first = (blk == 0 and T == 0)
                steps.append(Step(f"{MF} {acc}, {R('v', r, 4)}, {R('v', pb, 4)}, {'0' if first else acc}", pre, bar))
                if j in (0, 4):
                    pre2 = [('ds', f"ds_read_b128 {R('v', sb, 4)}, v14 offset:{(4*blk+T)*1024}")] if j == 0 else []
                    acc = R('a', 192 + 16 * (j >> 2), 16)
                    steps.append(Step(f"{MF} {acc}, {R('v', r, 4)}, {R('v', sb, 4)}, {'0' if first else acc}", pre2))
        if blk < 4:
            eng.fq += sh_fill(2 + (blk >> 1), blk & 1, s0, 4 + 2 * (blk >> 1))
        if blk == 4:
            eng.fq.append(Fill('e', f"v_mov_b32 v28, v{vSS}", early=s0))
            eng.fq.append(Fill('e', f"v_lshrrev_b32 v29, 2, v1", early=s0))
            eng.fq.append(Fill('e', f"v_permlane32_swap_b32 v28, v{vSS}", early=s0))
            eng.fq.append(Fill('e', f"v_add_u32 v29, {S4}, v29", early=s0))
            eng.fq.append(Fill('e', f"s_lshl_b32 {sT0}, {sW}, 8\nv_add_f32 v28, v28, v{vSS}", early=s0))
            eng.fq.append(Fill('e', f"v_add_u32 v30, {sT0}, v29", early=s0))
            eng.fq.append(Fill('ds', f"ds_write_b32 v30, v28", early=s0, bdead=5, tag='sum'))
        if blk == 5:
            for w_ in range(4):
                eng.fq.append(Fill('ds', f"ds_read_b32 v{30+w_}, v29 offset:{w_*256}", early=s0, tag='sumr'))
        if blk == 6:
            eng.fq.append(Fill('e', f"v_add_f32 v30, v30, v31", early=s0, lgneed=['sumr']))
            eng.fq.append(Fill('e', f"v_add_f32 v32, v32, v33", early=s0))
            eng.fq.append(Fill('e', f"v_add_f32 v30, v30, v32", early=s0))
            eng.fq.append(Fill('e', f"v_rcp_f32 v{vSS}, v30", early=s0, cost=8))
        if blk < 7:
            for kt in range(2):
                t = 2 * blk + 2 + kt
                p, base = Sreg(t)
                dead = s0 + 40 + 20 * kt
                eng.fq += exp_fill(p, base, 16, Preg(t), 60, vSP, False, s0, dead)
        if blk == 7:
            eng.fq.append(Fill('e', f"v_mov_b32 v28, v{vSP}", early=s0))
            eng.fq.append(Fill('e', f"s_nop 0\nv_permlane32_swap_b32 v28, v{vSP}", early=s0))
            eng.fq.append(Fill('e', f"v_add_f32 v28, v28, v{vSP}", early=s0))
            eng.fq.append(Fill('e', f"v_rcp_f32 v{vSP}, v28", early=s0, cost=8))
    eng.run(steps, maxlg=OPT['maxlg'], delay=OPT['delay'], dma_every=3)
    eng.flush_dma(); eng.flush_fill()
    dump('O', [f"a{r}" for r in range(128)] + [f"a{r}" for r in range(192, 224)] + [f"v{vSP}", f"v{vSS}"])

    def conv_fill(abase, tmp, dst, inv, early, dead):
        F = []
        kw = dict(early=early, dead=dead)
        for q in range(8): F.append(Fill('e', f"v_accvgpr_read_b32 v{tmp+q}, a{abase+q}", **kw))
        for q in range(8): F.append(Fill('e', f"v_mul_f32 v{tmp+q}, v{tmp+q}, v{inv}", **kw))
        for q in range(4): F.append(Fill('e', f"v_cvt_pk_bf16_f32 v{dst+q}, v{tmp+2*q}, v{tmp+2*q+1}", **kw))
        return F
    for a in range(2):
        for half in range(2):
            eng.fq += conv_fill(192 + 16 * a + 8 * half, 208 + 8 * (2*a+half), 208 + 8 * (2*a+half), vSS, -1, 0)
            eng.fq.append(Fill('ds', f"ds_write_b128 v15, {R('v', 208 + 8*(2*a+half), 4)} offset:{a*8192 + half*1024}", tag='osh'))
    eng.flush_fill()
    e(f"""
    v_lshrrev_b32 v56, 5, v7
    v_lshl_add_u32 v56, v56, 3, v0           ; 8hh+r
    v_lshl_add_u32 v57, v0, 6, v6
    v_lshl_add_u32 v57, v56, 8, v57
    s_mul_i32 {sT0}, {sW}, {8192+64}
    v_xor_b32 v16, {sT0}, v57
    """)
    for j in range(4):
        for t in range(4):
            if j or t: e(f"v_xor_b32 v{16+4*j+t}, {j*8192+t*64}, v16")
    LA = [32, 33, 34, 35, 56, 57, 58, 59]
    e(f"""
    v_lshrrev_b32 v57, 1, v0
    v_lshl_add_u32 v57, v57, 6, v6
    v_lshl_add_u32 v57, v56, 7, v57
    s_and_b32 {sT1}, {sW}, 1
    s_lshl_b32 {sT1}, {sT1}, 6
    s_lshl_b32 {sT0}, {sW}, 12
    s_add_u32 {sT0}, {sT0}, {sT1}
    s_add_u32 {sT0}, {sT0}, {SLOT(22) & 0x10000}
    v_xor_b32 v32, {sT0}, v57
    """)
    for j in range(4):
        for t in range(2):
            if j or t: e(f"v_xor_b32 v{LA[2*j+t]}, {j*4096+t*64}, v32")
    for t in range(4):
        e(f"s_xor_b32 {sT0}, {sW}, {t}\ns_mul_i32 {sT1}, {sW}, 14\ns_add_u32 {sT0}, {sT0}, {sT1}\ns_lshl_b32 s{sST+t}, {sT0}, 15")
    e(f"s_add_u32 {sT0}, {sW}, 56\ns_lshl_b32 s{sST+4}, {sT0}, 15")
    e(f"s_and_b32 {sT2}, {sW}, 1\ns_add_u32 {sT0}, {sT1}, {sT2}\ns_add_u32 {sT0}, {sT0}, 12\ns_lshl_b32 s{sST+5}, {sT0}, 15")
    e(f"s_sub_u32 {sT0}, {sT1}, {sT2}\ns_add_u32 {sT0}, {sT0}, 13\ns_lshl_b32 s{sST+6}, {sT0}, 15")
    e(f"s_add_u32 {sT0}, {sT2}, 68\ns_lshl_b32 s{sST+7}, {sT0}, 15")
    e(f"""v_add_u32 v12, 16384, v1
    s_lshr_b32 {sT0}, {sW}, 1
    s_lshl_b32 {sT0}, {sT0}, 30
    v_add_u32 v13, {sT0}, v1
    v_add_u32 v60, {sT0}, v12""")
    OF = 144
    eng.fq += conv_fill(0, 240, OF, vSP, -1, 0) + conv_fill(8, 248, OF + 4, vSP, -1, 0)
    eng.flush_fill()
    barrier(["T16"], None, st=True)()
    eng.dma += dma_tile(19)
    e("v_xor_b32 v61, 0x800, v15\nv_xor_b32 v14, 0x1000, v15\nv_xor_b32 v6, 0x1800, v15")
    qa = [15, 61, 14, 6]
    hi['wo'] = 0
    steps = []
    ringc[0] = 0
    ACC = [('v', 64), ('a', 0), ('v', 64), ('v', 208)]
    def store_fill(g, early):
        p, base = ACC[g]
        nt = 5 if g < 3 else 3
        F = []
        for t in range(nt):
            for half in range(2):
                src = base + 16 * t + 8 * half
                if p == 'a':
                    tmp = 208 + 8 * ((2 * t + half) % 6)
                    for q in range(8): F.append(Fill('e', f"v_accvgpr_read_b32 v{tmp+q}, a{src+q}", early=early))
                    src = tmp
                for q in range(4): F.append(Fill('e', f"v_cvt_pk_bf16_f32 v{src+q}, v{src+2*q}, v{src+2*q+1}", early=early))
                if g < 3:
                    so = f"s{sST+t}"; vo = 'v1' if half == 0 else 'v12'
                else:
                    so = f"s{sST+5+t}"; vo = ('v1' if half == 0 else 'v12') if t < 2 else ('v13' if half == 0 else 'v60')
                F.append(Fill('vm', f"buffer_store_dwordx4 {R('v', src, 4)}, {vo}, {SWS}, {so} offen", cost=16, early=early, tag='st'))
            if g < 2: F.append(Fill('e', f"s_add_u32 s{sST+t}, s{sST+t}, {4*32768}", early=early))
        return F
    for g in range(4):
        p, base = ACC[g]
        sg = len(steps)
        for j in range(8):
            n = 16 + 2 * g + (j >> 2) if g < 3 else 22
            slot = SLOT(n)
            def after(n=n):
                if n + 3 <= 22: eng.dma += dma_tile(n + 3)
            for half in range(2):
                nt = 4 if g < 3 else 2
                for t in range(nt):
                    pre = []; bar = None
                    if t == 0 and half == 0 and ((j & 3) == 0 if g < 3 else j == 0):
                        if n > 16: bar = barrier([f"T{n}"], after, st=(n in (18, 20, 22)))
                        if g < 3: pre += toggle('wo', range(16, 32), slot >> 16)
                    r = ringA(36, 5, 'v')
                    if g < 3:
                        ar = 16 + 4 * (j & 3) + t; off = (slot & 0xffff) + half * 4096; so = 1024
                    else:
                        ar = LA[2 * (j & 3) + t]; off = (slot & 0xffff) + (j >> 2) * 16384 + half * 2048; so = 512
                    pre.append(('ds', f"ds_read_b64_tr_b16 {R('v', r, 2)}, v{ar} offset:{off}"))
                    pre.append(('ds', f"ds_read_b64_tr_b16 {R('v', r+2, 2)}, v{ar} offset:{off+so}"))
                    acc = R(p, base + 16 * t, 16)
                    first = (j == 0 and half == 0)
                    steps.append(Step(f"{MF} {acc}, {R('v', r, 4)}, {R('v', OF+8*j+4*half, 4)}, {'0' if first else acc}", pre, bar))
                    if t == 0:
                        pre2 = []
                        if g == 0:
                            pre2 = [('ds', f"ds_read_b128 {R('a', 128+8*j+4*half, 4)}, v{qa[j&3]} offset:{(j>>2)*8192 + half*1024}")]
                        acc = R(p, base + 16 * nt, 16)
                        steps.append(Step(f"{MF} {acc}, {R('v', r, 4)}, {R('a', 128+8*j+4*half, 4)}, {'0' if first else acc}", pre2))
                if g == 0 and j < 7:
                    jj = j + 1
                    eng.fq += conv_fill(16 * jj + 8 * half, 240 + 8 * half, OF + 8 * jj + 4 * half, vSP, -1, 10 * jj + 5 * half)
        if g >= 1:
            F = store_fill(g - 1, sg + 1)
            nxt = sg + (80 if g < 3 else 48)
            for f in F: f.dead = nxt
            eng.fq += F
    eng.run(steps, maxlg=OPT['maxlg'], delay=OPT['delay'], dma_every=3)
    eng.flush_dma(); eng.flush_fill()
    eng.fq += store_fill(3, -1); eng.flush_fill()
    if OPT['ts']:
        stamp()
        k.wait(vm0=True)
        stamp()
        e(f"""s_add_u32 s56, s4, 0x0ff00000
        s_addc_u32 s57, s5, 0
        s_mov_b32 s58, 0x100000
        s_mov_b32 s59, 0x00020000
        s_cmp_lg_u32 {sW}, 0
        s_cbranch_scc1 L_exit
        s_mov_b64 exec, 1
        s_lshl_b32 s3, s2, 8
        v_mov_b32 v1, s3
        v_mov_b32 v2, {nst[0]}
        v_mov_b32 v3, 0
        buffer_store_dwordx2 v[2:3], v1, s[56:59], 0 offen""")
        for j in range(nst[0]):
            e(f"v_mov_b32 v4, s{sTS+2*j}\nv_mov_b32 v5, s{sTS+1+2*j}\nbuffer_store_dwordx2 v[4:5], v1, s[56:59], 0 offen offset:{8+8*j}\ns_nop 1")
        e("s_waitcnt vmcnt(0)")
    e("L_exit:")
    txt, added = k.text()
    print(f"main: {len(k.L)} lines, nops added {added}, forced fills {eng.forced}, stamps {nst[0]}", file=sys.stderr)
    return txt

def f2u(x):
    import struct
    return struct.unpack('<I', struct.pack('<f', x))[0]

def reduce_kernel():
    k = K(); e = k.e
    e(f"""
    s_cmp_ge_u32 s2, 560
    s_cbranch_scc1 L_rexit
    s_load_dwordx2 s[8:9], s[0:1], 56
    s_load_dwordx2 s[12:13], s[0:1], 40
    v_lshrrev_b32 v1, 6, v0
    v_and_b32 v2, 63, v0
    v_readfirstlane_b32 s3, v1
    s_lshl_b32 s4, s2, 2
    s_add_u32 s4, s4, s3                     ; gw
    s_mov_b32 s10, {2240*16384}
    s_mov_b32 s11, 0x00020000
    s_mov_b32 s14, 2293760
    s_mov_b32 s15, 0x00020000
    s_lshl_b32 s5, s4, 14
    v_lshlrev_b32 v3, 4, v2
    s_waitcnt lgkmcnt(0)
    """)
    for h in range(16):
        if h % 4 == 0 and h: e("s_add_u32 s5, s5, 4096")
        k.vmem(f"buffer_load_dwordx4 v[{16+4*h}:{19+4*h}], v3, s[8:11], s5 offen offset:{(h%4)*1024}", f"h{h}")
    e(f"""
    s_mul_i32 s6, s4, 2341
    s_lshr_b32 s6, s6, 16
    s_mul_i32 s7, s6, 28
    s_sub_u32 s7, s4, s7
    s_mul_i32 s6, s6, {32*896}
    s_lshl_b32 s7, s7, 5
    s_add_u32 s6, s6, s7
    v_and_b32 v4, 31, v2
    v_mul_u32_u24 v4, 896, v4
    v_lshrrev_b32 v5, 5, v2
    v_lshl_add_u32 v4, v5, 4, v4
    s_mov_b32 s16, 0xffff0000
    """)
    for h in range(16):
        k.wait(vm=[f"h{h}"])
        for q in range(4):
            r = 16 + 4 * h + q
            if h == 0:
                e(f"v_lshlrev_b32 v{8+2*q}, 16, v{r}\nv_and_b32 v{9+2*q}, s16, v{r}")
            else:
                e(f"v_lshlrev_b32 v6, 16, v{r}\nv_and_b32 v7, s16, v{r}\nv_add_f32 v{8+2*q}, v{8+2*q}, v6\nv_add_f32 v{9+2*q}, v{9+2*q}, v7")
    for q in range(4):
        e(f"v_cvt_pk_bf16_f32 v{8+q}, v{8+2*q}, v{9+2*q}")
    e("buffer_store_dwordx4 v[8:11], v4, s[12:15], s6 offen\nL_rexit:")
    txt, added = k.text()
    return txt

if __name__ == "__main__":
    out = sys.argv[1]
    m = main_kernel()
    r = reduce_kernel()
    write_file(out, HEADER, [("mha_main_kernel", 256, 256, 163840), ("mha_reduce_kernel", 560, 256, 0)],
               [("mha_main_kernel", m, 512, 256), ("mha_reduce_kernel", r, 80, 80)])
```

```python
import sys, math
sys.path.insert(0, "work")
from asmlib import K, write_file
from eng import Eng, Step, Fill, uid

OPT = dict(arr='N', ts=0, dump='', nt='nt', delay=2, maxlg=13, diag='')
for a in sys.argv[2:]:
    kk, vv = a.split('=')
    OPT[kk] = int(vv) if vv.lstrip('-').isdigit() else vv

HEADER = "".join(l for l in open("standalone__mha_block_cached__near_ridge.s.ref").read().splitlines(True)[:11])
MF = "v_mfma_f32_32x32x16_bf16"
def R(p, lo, n): return f"{p}[{lo}:{lo+n-1}]"
SX, SK, SV, SWQ, SWO, SWS = "s[8:11]", "s[12:15]", "s[16:19]", "s[20:23]", "s[24:27]", "s[28:31]"
sW, sB, sH, sKC = "s32", "s33", "s34", "s35"
sT0, sT1, sT2 = "s36", "s37", "s38"
sC = "s39"
sWQO, sXO, sM8, sM4, sKO, sWOO, sWLO = "s40", "s41", "s42", "s43", "s44", "s45", "s46"
sST = 47
sTS = 60
XB = 96 * 1024
S4 = 128 * 1024
SLOT = lambda n: ((n + 1) % 4) * 32768

def main_kernel():
    k = K(); e = k.e
    eng = Eng(k)
    nst = [0]
    def stamp():
        if OPT['ts']:
            k.wait(lg0=True)
            e(f"s_memrealtime s[{sTS+2*nst[0]}:{sTS+1+2*nst[0]}]\ns_waitcnt lgkmcnt(0)")
            nst[0] += 1
    def dump(name, regs):
        if OPT['dump'] != name: return
        eng.flush_dma()
        e("s_nop 7\ns_nop 7\ns_waitcnt vmcnt(0) lgkmcnt(0)")
        e(f"s_mul_i32 {sT0}, {sB}, 64\ns_lshl_b32 {sT1}, {sH}, 2\ns_add_u32 {sT0}, {sT0}, {sT1}\ns_add_u32 {sT0}, {sT0}, {sW}\ns_lshl_b32 {sT0}, {sT0}, 17")
        e("s_add_u32 s56, s4, 0x4000000\ns_addc_u32 s57, s5, 0\ns_mov_b32 s58, 0x8000000\ns_mov_b32 s59, 0x00020000")
        e("v_lshlrev_b32 v0, 2, v7")
        for i, r in enumerate(regs):
            e(f"buffer_store_dword {r}, v0, s[56:59], {sT0} offen\ns_add_u32 {sT0}, {sT0}, 256")
            if i % 32 == 31: e("s_waitcnt vmcnt(0)")
        e("s_waitcnt vmcnt(0)\ns_branch L_exit")

    if OPT['ts']:
        e(f"s_memrealtime s[{sTS}:{sTS+1}]"); nst[0] = 1
    e(f"""
    s_cmp_ge_u32 s2, 256
    s_cbranch_scc1 L_exit
    s_load_dwordx2 s[8:9], s[0:1], 0
    s_load_dwordx2 s[12:13], s[0:1], 8
    s_load_dwordx2 s[16:17], s[0:1], 16
    s_load_dwordx2 s[20:21], s[0:1], 24
    s_load_dwordx2 s[24:25], s[0:1], 32
    s_load_dwordx2 s[4:5], s[0:1], 56
    v_lshrrev_b32 v1, 6, v0
    v_and_b32 v7, 63, v0
    v_readfirstlane_b32 {sW}, v1
    s_and_b32 {sT0}, s2, 7
    s_lshr_b32 {sT1}, s2, 3
    """)
    arr = OPT['arr']
    if arr == 'N':
        e(f"""s_lshr_b32 {sB}, {sT0}, 1
        s_lshl_b32 {sB}, {sB}, 2
        s_lshr_b32 {sT2}, {sT1}, 3
        s_add_u32 {sB}, {sB}, {sT2}
        s_and_b32 {sH}, {sT0}, 1
        s_lshl_b32 {sH}, {sH}, 3
        s_and_b32 {sT2}, {sT1}, 7
        s_add_u32 {sH}, {sH}, {sT2}""")
    elif arr == 'L':
        e(f"""s_lshl_b32 {sB}, {sT0}, 1
        s_lshr_b32 {sT2}, {sT1}, 4
        s_add_u32 {sB}, {sB}, {sT2}
        s_and_b32 {sH}, {sT1}, 15""")
    elif arr == 'M':
        e(f"""s_lshr_b32 {sB}, {sT0}, 2
        s_lshl_b32 {sB}, {sB}, 3
        s_lshr_b32 {sT2}, {sT1}, 2
        s_add_u32 {sB}, {sB}, {sT2}
        s_and_b32 {sH}, {sT0}, 3
        s_lshl_b32 {sH}, {sH}, 2
        s_and_b32 {sT2}, {sT1}, 3
        s_add_u32 {sH}, {sH}, {sT2}""")
    e(f"""s_lshl_b32 {sT0}, {sH}, 1
    s_add_u32 {sT0}, {sT0}, {sB}
    s_mul_i32 {sT1}, {sT0}, 37
    s_lshr_b32 {sT1}, {sT1}, 8
    s_mul_i32 {sT1}, {sT1}, 7
    s_sub_u32 {sKC}, {sT0}, {sT1}
    s_mov_b32 s10, 143360
    s_mov_b32 s11, 0x00020000
    s_mov_b32 s14, 262144
    s_mov_b32 s15, 0x00020000
    s_mov_b32 s18, 262144
    s_mov_b32 s19, 0x00020000
    s_mov_b32 s23, 0x00020000
    s_mov_b32 s26, 229376
    s_mov_b32 s27, 0x00020000
    s_mov_b32 s30, {140*16384}
    s_mov_b32 s31, 0x00020000
    s_mov_b32 {sC}, 0x{f2u(math.log2(math.e)/16):08x}
    s_lshl_b32 {sM8}, {sW}, 13
    s_lshl_b32 {sM4}, {sW}, 12
    s_lshl_b32 {sWQO}, {sW}, 17
    s_mul_i32 {sXO}, {sW}, 7168
    """)
    e(f"""
    v_lshrrev_b32 v14, 5, v7                 ; p>>5
    v_and_b32 v15, 31, v7                    ; p&31
    v_lshlrev_b32 v1, 2, v14
    v_xor_b32 v1, v1, v15                    ; (p&31)^((p>>5)<<2)
    v_lshlrev_b32 v1, 4, v1
    v_lshl_add_u32 v2, v14, 13, v1
    v_xor_b32 v3, 0x80, v2
    v_add_u32 v3, 15360, v3                  ; ii=1
    v_add_u32 v4, 30720, v2                  ; ii=2
    v_add_u32 v5, 30720, v3                  ; ii=3
    v_lshl_add_u32 v12, v14, 9, v1
    v_xor_b32 v13, 0x80, v12
    s_and_b32 {sT2}, {sW}, 1
    s_lshl_b32 {sT0}, {sT2}, 2
    v_lshrrev_b32 v6, 4, v7
    v_xor_b32 v6, {sT0}, v6
    v_and_b32 v1, 7, v7
    v_xor_b32 v6, v6, v1
    v_lshlrev_b32 v6, 4, v6
    v_lshrrev_b32 v1, 3, v7
    v_mul_u32_u24 v1, 896, v1
    v_add_u32 v6, v6, v1                     ; x voff
    s_waitcnt lgkmcnt(0)
    s_mul_i32 {sT0}, {sB}, 143360
    s_add_u32 s8, s8, {sT0}
    s_addc_u32 s9, s9, 0
    s_lshl_b32 {sT0}, {sH}, 9
    s_add_u32 s20, s20, {sT0}
    s_addc_u32 s21, s21, 0
    s_sub_u32 s22, 3670016, {sT0}
    """)
    def dma_stage(i):
        G = []
        tag = f"A{i}"
        slot = (i % 3) * 32768
        xs = XB + (i % 3) * 20480
        for u in range(2):
            for ii in range(4):
                g = []
                if ii == 0:
                    if u == 0:
                        g.append(Fill('e', f"s_lshl_b32 {sT0}, {sKC}, 19\ns_add_u32 {sT0}, {sT0}, {sWQO}"))
                    else:
                        g.append(Fill('e', f"s_add_u32 {sT0}, {sT0}, 65536"))
                    g.append(Fill('e', f"s_add_u32 m0, {sM8}, {slot + u * 4096}"))
                g.append(Fill('vm', f"buffer_load_dwordx4 v{2+ii}, {SWQ}, {sT0} offen offset:{ii*1024} lds", tag=tag))
                G.append(g)
        for u in range(5):
            g = []
            if u == 0:
                g.append(Fill('e', f"s_lshl_b32 {sT1}, {sKC}, 7\ns_add_u32 {sT1}, {sT1}, {sXO}\ns_lshl_b32 {sT2}, {sW}, 10"))
            else:
                g.append(Fill('e', f"s_add_u32 {sT1}, {sT1}, {4*7168}"))
            g.append(Fill('e', f"s_add_u32 m0, {sT2}, {xs + u * 4096}"))
            g.append(Fill('vm', f"buffer_load_dwordx4 v6, {SX}, {sT1} offen lds", tag=tag))
            if u == 4:
                g.append(Fill('e', f"s_add_u32 {sKC}, {sKC}, 1\ns_cmp_eq_u32 {sKC}, 7\ns_cselect_b32 {sKC}, 0, {sKC}"))
            G.append(g)
        return G[8:10] + G[0:4] + G[10:13] + G[4:8] if False else G
    def dma_tile(n):
        G = []
        tag = f"T{n}"
        slot = SLOT(n)
        for u in range(2):
            for ii in range(4):
                g = []
                if n < 16:
                    blk = n % 8
                    if ii == 0:
                        g.append(Fill('e', f"s_add_u32 {sKO}, {sM4}, {blk*32768 + u*16384}\ns_add_u32 m0, {sM4}, {slot + u*16384}"))
                    vo = f"v{8+ii}" if n < 8 else f"v{12+(ii&1)}"
                    srd = SK if n < 8 else SV
                    g.append(Fill('vm', f"buffer_load_dwordx4 {vo}, {srd}, {sKO} offen offset:{ii*1024} {OPT['nt']} lds", tag=tag))
                elif n < 22:
                    gi, dh = (n - 16) // 2, (n - 16) % 2
                    if ii == 0:
                        g.append(Fill('e', f"s_add_u32 {sKO}, {sWOO}, {(dh*128 + 16*u)*896 + gi*256}\ns_add_u32 m0, {sM8}, {slot + u*4096}"))
                    g.append(Fill('vm', f"buffer_load_dwordx4 v{2+ii}, {SWO}, {sKO} offen offset:{ii*1024} lds", tag=tag))
                else:
                    if ii == 0:
                        g.append(Fill('e', f"s_add_u32 {sKO}, {sWLO}, {32*u*896 + 768}\ns_add_u32 m0, {sM8}, {slot + u*4096}"))
                    g.append(Fill('vm', f"buffer_load_dwordx4 v{8+ii}, {SWO}, {sKO} offen offset:{ii*1024} lds", tag=tag))
                G.append(g)
        return G
    eng.dma += dma_stage(0); eng.flush_dma()
    e(f"""
    s_lshl_b32 {sT0}, {sB}, 4
    s_add_u32 {sT0}, {sT0}, {sH}
    s_lshl_b32 {sT0}, {sT0}, 18
    s_add_u32 s12, s12, {sT0}
    s_addc_u32 s13, s13, 0
    s_add_u32 s16, s16, {sT0}
    s_addc_u32 s17, s17, 0
    s_mul_i32 {sT0}, {sH}, 229376
    s_add_u32 s24, s24, {sT0}
    s_addc_u32 s25, s25, 0
    s_mul_i32 {sT0}, {sB}, {140*16384}
    s_lshl_b32 {sT1}, {sH}, 10
    s_add_u32 {sT0}, {sT0}, {sT1}
    s_add_u32 s28, s4, {sT0}
    s_addc_u32 s29, s5, 0
    s_mul_i32 {sWOO}, {sW}, {32*896}
    s_mul_i32 {sWLO}, {sW}, {64*896}
    """)
    eng.dma += dma_stage(1) + dma_stage(2); eng.flush_dma()
    e(f"""
    s_and_b32 {sT2}, {sW}, 1
    s_lshl_b32 {sT0}, {sT2}, 3
    v_xor_b32 v1, v14, v15
    v_xor_b32 v1, {sT0}, v1
    v_lshlrev_b32 v1, 4, v1
    v_lshl_add_u32 v8, v14, 9, v1
    v_xor_b32 v9, 32, v8
    v_xor_b32 v10, 64, v8
    v_xor_b32 v11, 0x60, v8
    """)
    e(f"""
    v_bfe_u32 v63, v7, 2, 2                  ; r
    v_lshl_add_u32 v60, v14, 3, v63          ; 8hh+r
    v_bfe_u32 v1, v7, 4, 1
    v_lshlrev_b32 v62, 5, v1
    v_and_b32 v1, 1, v7
    v_lshl_add_u32 v62, v1, 4, v62
    v_bfe_u32 v1, v7, 1, 1
    v_lshl_add_u32 v62, v1, 3, v62
    v_lshl_add_u32 v61, v63, 6, v62
    s_lshl_b32 {sT0}, {sW}, 6
    v_lshl_add_u32 v16, v60, 9, v61
    v_xor_b32 v16, {sT0}, v16
    v_xor_b32 v17, 64, v16
    v_xor_b32 v18, 0x80, v16
    v_xor_b32 v19, 0xc0, v16
    """)
    e(f"""
    v_bfe_u32 v1, v7, 1, 3
    v_xor_b32 v1, v1, v14
    v_lshlrev_b32 v1, 4, v1
    v_lshl_add_u32 v1, v15, 7, v1
    v_add_u32 v24, {XB + 128*128}, v1
    s_lshl_b32 {sT0}, {sW}, 12
    s_add_u32 {sT0}, {sT0}, {XB}
    v_add_u32 v20, {sT0}, v1
    v_xor_b32 v21, 32, v20
    v_xor_b32 v22, 64, v20
    v_xor_b32 v23, 0x60, v20
    v_xor_b32 v25, 32, v24
    v_xor_b32 v26, 64, v24
    v_xor_b32 v27, 0x60, v24
    v_lshlrev_b32 v1, 4, v7
    """)
    hi = dict(tr=0, k=0, wo=0)
    def toggle(which, regs, want):
        if hi[which] == want: return []
        hi[which] = want
        return [('e', f"v_xor_b32 v{r}, 0x10000, v{r}") for r in regs]
    def barrier(vmtags, after=None, barid=None, st=False):
        def f():
            if barid is not None: eng.flush_fill(bar=barid)
            eng.flush_dma()
            for t in vmtags: assert t in k.vm, t
            k.wait(vm=vmtags, lg0=True)
            e("s_barrier")
            if st: stamp()
            if after: after()
        return f

    JORD = [0, 4, 1, 2, 3, 5, 6, 7]
    steps = []
    ringc = [0]
    def ringA(base, n, p):
        r = base + 4 * (ringc[0] % n); ringc[0] += 1
        return r
    for i in range(7):
        slot = (i % 3) * 32768
        xs = (i % 3) * 20480
        def after(i=i):
            if 1 <= i <= 4: eng.dma += dma_stage(i + 2)
            if i == 5: eng.dma += dma_tile(0)
            if i == 6: eng.dma += dma_tile(1)
        for T in range(4):
            xb = 40 + 8 * ((4 * i + T) % 2)
            for jn, j in enumerate(JORD):
                pre = []
                bar = None
                if T == 0 and jn == 0:
                    bar = barrier([f"A{i}"], after, st=(i in (0, 3)))
                    pre += toggle('tr', range(16, 20), slot >> 16)
                if jn == 0:
                    pre.append(('ds', f"ds_read_b128 {R('v', xb, 4)}, v{20+T} offset:{xs}"))
                r = ringA(224, 8, 'a')
                off = (slot & 0xffff) + (j >> 2) * 256 + T * 8192
                pre.append(('ds', f"ds_read_b64_tr_b16 {R('a', r, 2)}, v{16+(j&3)} offset:{off}"))
                pre.append(('ds', f"ds_read_b64_tr_b16 {R('a', r+2, 2)}, v{16+(j&3)} offset:{off+2048}"))
                acc = R('v', 64 + 16 * j, 16)
                first = (i == 0 and T == 0)
                steps.append(Step(f"{MF} {acc}, {R('a', r, 4)}, {R('v', xb, 4)}, {'0' if first else acc}", pre, bar))
                if j in (0, 4):
                    pre2 = [('ds', f"ds_read_b128 {R('v', xb+4, 4)}, v{24+T} offset:{xs}")] if j == 0 else []
                    acc = R('v', 192 + 16 * (j >> 2), 16)
                    steps.append(Step(f"{MF} {acc}, {R('a', r, 4)}, {R('v', xb+4, 4)}, {'0' if first else acc}", pre2))
    eng.run(steps, maxlg=OPT['maxlg'], delay=OPT['delay'], dma_every=2)
    eng.flush_dma()
    dump('Q', [f"v{r}" for r in range(64, 224)])
    e(f"s_lshl_b32 {sT0}, {sW}, 11\ns_add_u32 {sT0}, {sT0}, {S4}\nv_add_u32 v14, {sT0}, v1")
    for a in range(2):
        for half in range(2):
            src = 192 + 16 * a + 8 * half
            for q in range(4):
                e(f"v_cvt_pk_bf16_f32 v{src+q}, v{src+2*q}, v{src+2*q+1}")
            k.ds(f"ds_write_b128 v14, {R('v', src, 4)} offset:{a*8192 + half*1024}", 'qsh')
    e(f"""
    v_and_b32 v15, 0x13, v7
    v_bfe_u32 v20, v7, 2, 1
    v_lshl_or_b32 v15, v20, 3, v15
    v_bfe_u32 v20, v7, 3, 1
    v_lshl_or_b32 v15, v20, 2, v15           ; key
    v_lshrrev_b32 v20, 5, v7
    s_lshl_b32 {sT0}, {sW}, 2
    v_xor_b32 v20, {sT0}, v20
    v_and_b32 v21, 15, v15
    v_xor_b32 v20, v20, v21
    v_lshlrev_b32 v20, 4, v20
    v_lshl_add_u32 v20, v15, 9, v20
    s_and_b32 {sT0}, {sW}, 1
    s_lshl_b32 {sT0}, {sT0}, 14
    v_add_u32 v28, {sT0}, v20
    """)
    for v in range(1, 8):
        e(f"v_xor_b32 v{20+v}, {v*32}, v20\nv_xor_b32 v{28+v}, {v*32}, v28")
    for j in range(8):
        for q in range(8):
            src = 64 + 16 * j + 2 * q
            e(f"v_cvt_pk_bf16_f32 v{src}, v{src}, v{src+1}")
        for q in range(8):
            src = 64 + 16 * j + 2 * q
            e(f"v_accvgpr_write_b32 a{8*j+q}, v{src}")
    barrier(["T0"], None, st=True)()
    eng.dma += dma_tile(2) + dma_tile(3)
    e("v_xor_b32 v15, 0x800, v14\nv_xor_b32 v56, 0x1000, v14\nv_xor_b32 v57, 0x1800, v14")
    qa = [14, 15, 56, 57]
    ext = {}
    for j in range(8):
        for half in range(2):
            t = uid('q')
            k.ds(f"ds_read_b128 {R('a', 64+8*j+4*half, 4)}, v{qa[j&3]} offset:{(j>>2)*8192 + half*1024}", t)
    k.wait(lg0=True)
    dump('Qf', [f"a{r}" for r in range(128)])

    def Sreg(t):
        if t < 2: return ('v', 224 + 16 * t)
        if t < 12: return ('v', 64 + 16 * (t - 2))
        return ('a', 128 + 16 * (t - 12))
    vMX, vMS = 60, 61
    def max_fill(p, base, dst, first, early, tmp):
        F = []
        if p == 'a':
            for q in range(0, 16, 2):
                F.append(Fill('e', f"v_accvgpr_read_b32 v{tmp}, a{base+q}", early=early))
                F.append(Fill('e', f"v_accvgpr_read_b32 v{tmp+1}, a{base+q+1}", early=early))
                if first and q == 0: F.append(Fill('e', f"v_max_f32 v{dst}, v{tmp}, v{tmp+1}", early=early))
                else: F.append(Fill('e', f"v_max3_f32 v{dst}, v{tmp}, v{tmp+1}, v{dst}", early=early))
        else:
            for q in range(0, 16, 2):
                if first and q == 0: F.append(Fill('e', f"v_max_f32 v{dst}, v{base}, v{base+1}", early=early))
                else: F.append(Fill('e', f"v_max3_f32 v{dst}, v{base+q}, v{base+q+1}, v{dst}", early=early))
        return F
    def phaseS(par):
        steps = []
        ringc[0] = 0
        for blk in range(8):
            slot = SLOT(blk)
            def after(blk=blk):
                eng.dma += dma_tile(blk + 3)
            tiles = [('p', 0), ('p', 1)]
            if (blk & 1) == par: tiles = [('s', 0)] + tiles
            firststep = True
            for kind, kt in tiles:
                if kind == 'p':
                    p, base = Sreg(2 * blk + kt); qb = 0; ab = 20; off0 = kt * 16384
                else:
                    p, base = 'a', 192 + 16 * (blk >> 1); qb = 64; ab = 28; off0 = 0
                acc = R(p, base, 16)
                for j in range(8):
                    for half in range(2):
                        pre = []; bar = None
                        if firststep:
                            if blk > 0: bar = barrier([f"T{blk}"], after, st=(blk == 4))
                            pre += toggle('k', range(20, 36), slot >> 16)
                            firststep = False
                        r = ringA(36, 5, 'v')
                        off = (slot & 0xffff) + (j >> 2) * 256 + off0
                        pre.append(('ds', f"ds_read_b128 {R('v', r, 4)}, v{ab + (j&3)*2 + half} offset:{off}"))
                        first = (j == 0 and half == 0)
                        steps.append(Step(f"{MF} {acc}, {R('v', r, 4)}, {R('a', qb+8*j+4*half, 4)}, {'0' if first else acc}", pre, bar))
                if kind == 'p':
                    eng.fq += max_fill(p, base, vMX, blk == 0 and kt == 0, len(steps) + 1, 56)
                else:
                    eng.fq += max_fill(p, base, vMS, blk < 2, len(steps) + 1, 56)
        eng.run(steps, maxlg=OPT['maxlg'], delay=OPT['delay'], dma_every=2)
        eng.flush_dma()
        eng.flush_fill()
        k.wait(lg0=True)
    e(f"s_cmp_ge_u32 {sW}, 2\ns_cbranch_scc1 L_S1")
    vm0 = list(k.vm); dq = list(eng.dma); hk = dict(hi); ns0 = nst[0]
    phaseS(0)
    e("s_nop 1\ns_branch L_Sdone\nL_S1:\ns_nop 1")
    vm1 = list(k.vm)
    k.vm = vm0; eng.dma = dq; hi.update(hk); nst[0] = ns0
    phaseS(1)
    assert k.vm == vm1
    e("s_nop 1\nL_Sdone:")
    allS = []
    for t in range(16):
        p, b = Sreg(t); allS += [f"{p}{b+q}" for q in range(16)]
    dump('S', allS + [f"a{r}" for r in range(192, 256)] + ['v60', 'v61'])

    MXO = S4 + 31 * 1024
    e(f"""
    v_mov_b32 v56, v60
    v_mov_b32 v57, v61
    v_permlane32_swap_b32 v56, v60
    v_permlane32_swap_b32 v57, v61
    v_max_f32 v60, v56, v60
    v_max_f32 v61, v57, v61
    v_and_b32 v14, 31, v7
    v_lshlrev_b32 v14, 2, v14
    v_add_u32 v14, {MXO}, v14
    s_lshl_b32 {sT0}, {sW}, 7
    v_add_u32 v15, {sT0}, v14
    """)
    k.ds("ds_write_b32 v15, v61", 'mx')
    e(f"""
    v_lshrrev_b32 v56, 4, v7
    v_lshlrev_b32 v57, 2, v56
    v_and_b32 v2, 15, v7
    v_xor_b32 v2, v2, v57
    v_lshlrev_b32 v2, 4, v2
    v_mul_u32_u24 v57, 896, v56
    v_add_u32 v2, v2, v57
    v_add_u32 v3, 2560, v2
    v_add_u32 v4, 5120, v2
    v_add_u32 v5, 7680, v2
    v_and_b32 v56, 1, v56
    v_lshlrev_b32 v56, 2, v56
    v_and_b32 v8, 7, v7
    v_xor_b32 v8, v8, v56
    v_lshlrev_b32 v8, 4, v8
    v_lshrrev_b32 v56, 3, v7
    v_mul_u32_u24 v56, 896, v56
    v_add_u32 v8, v8, v56
    v_add_u32 v9, 6144, v8
    v_add_u32 v10, 12288, v8
    v_add_u32 v11, 18432, v8
    v_mul_f32 v60, {sC}, v60                 ; m*c private
    """)
    barrier([], None, st=True)()
    for w_ in range(4):
        k.ds(f"ds_read_b32 v{56+w_}, v14 offset:{w_*128}", 'mxr')
    eng.dma += dma_tile(11); eng.flush_dma()
    vSP, vSS = 62, 63
    e("v_mov_b32 v6, v62\nv_mov_b32 v0, v63")
    def exp_fill(p, base, n, tmp, mreg, sreg, first, early, dead, dst=None):
        F = []
        kw = dict(early=early, dead=dead)
        for q0 in range(0, n, 8):
            w0 = (tmp + q0) if p == 'a' else (base + q0)
            for q in range(8):
                if p == 'a':
                    F.append(Fill('e', f"v_accvgpr_read_b32 v{w0+q}, a{base+q0+q}", **kw))
            for q in range(8):
                F.append(Fill('e', f"v_fma_f32 v{w0+q}, v{w0+q}, {sC}, -v{mreg}", **kw))
            for q in range(8):
                F.append(Fill('e', f"v_exp_f32 v{w0+q}, v{w0+q}", cost=8, **kw))
                if q >= 1:
                    if first and q0 == 0 and q == 1: F.append(Fill('e', f"v_mov_b32 v{sreg}, v{w0}", **kw))
                    else: F.append(Fill('e', f"v_add_f32 v{sreg}, v{sreg}, v{w0+q-1}", **kw))
            F.append(Fill('e', f"v_cvt_pk_bf16_f32 v{w0}, v{w0}, v{w0+1}", **kw))
            F.append(Fill('e', f"v_add_f32 v{sreg}, v{sreg}, v{w0+7}", **kw))
            for q in range(1, 4):
                F.append(Fill('e', f"v_cvt_pk_bf16_f32 v{w0+q}, v{w0+2*q}, v{w0+2*q+1}", **kw))
        return F
    def Preg(t):
        if t < 12: return Sreg(t)[1]
        return Sreg(t - 12)[1]
    eng.fq += exp_fill('v', Sreg(0)[1], 16, 0, 60, vSP, True, -1, 0); eng.flush_fill()
    k.wait(lg=['mxr'])
    e("v_max3_f32 v61, v56, v57, v58\nv_max_f32 v61, v61, v59")
    e(f"v_mul_f32 v61, {sC}, v61")
    e(f"s_lshl_b32 {sT0}, {sW}, 11\ns_add_u32 {sT0}, {sT0}, {S4}\nv_add_u32 v15, {sT0}, v1\nv_add_u32 v14, {S4}, v1")
    def sh_fill(u, half, early, bdead, first=False):
        F = exp_fill('a', 192 + 16 * u + 8 * half, 8, 28, 61, vSS, first, early, 10**9)
        F.append(Fill('ds', f"ds_write_b128 v15, v[28:31] offset:{u*8192 + half*1024}", cost=8, early=early, tag='psh'))
        for f in F: f.bdead = bdead
        return F
    for u in range(2):
        for half in range(2):
            eng.fq += sh_fill(u, half, -1, 0, first=(u == 0 and half == 0))
    eng.fq += exp_fill('v', Sreg(1)[1], 16, 0, 60, vSP, False, -1, 0)
    eng.flush_fill()

    steps = []
    ringc[0] = 0
    SUMO = 0
    for blk in range(8):
        n = 8 + blk
        slot = SLOT(n)
        s0 = len(steps)
        def after(n=n):
            if n > 8: eng.dma += dma_tile(n + 3)
        for T in range(4):
            pb = Preg(2 * blk + (T >> 1)) + 8 * (T & 1)
            sb = 20 + 4 * (T & 1)
            for jn, j in enumerate(JORD):
                pre = []; bar = None
                if T == 0 and jn == 0:
                    bar = barrier([f"T{n}"], after, barid=blk, st=(blk in (0, 4)))
                    pre += toggle('tr', range(16, 20), slot >> 16)
                r = ringA(36, 5, 'v')
                off = (slot & 0xffff) + (j >> 2) * 256 + T * 8192
                pre.append(('ds', f"ds_read_b64_tr_b16 {R('v', r, 2)}, v{16+(j&3)} offset:{off}"))
                pre.append(('ds', f"ds_read_b64_tr_b16 {R('v', r+2, 2)}, v{16+(j&3)} offset:{off+2048}"))
                acc = R('a', 16 * j, 16)
                first = (blk == 0 and T == 0)
                steps.append(Step(f"{MF} {acc}, {R('v', r, 4)}, {R('v', pb, 4)}, {'0' if first else acc}", pre, bar))
                if j in (0, 4):
                    pre2 = [('ds', f"ds_read_b128 {R('v', sb, 4)}, v14 offset:{(4*blk+T)*1024}")] if j == 0 else []
                    acc = R('a', 192 + 16 * (j >> 2), 16)
                    steps.append(Step(f"{MF} {acc}, {R('v', r, 4)}, {R('v', sb, 4)}, {'0' if first else acc}", pre2))
        if blk < 4:
            eng.fq += sh_fill(2 + (blk >> 1), blk & 1, s0, 4 + 2 * (blk >> 1))
        if blk == 4:
            eng.fq.append(Fill('e', f"v_mov_b32 v28, v{vSS}", early=s0))
            eng.fq.append(Fill('e', f"v_lshrrev_b32 v29, 2, v1", early=s0))
            eng.fq.append(Fill('e', f"v_permlane32_swap_b32 v28, v{vSS}", early=s0))
            eng.fq.append(Fill('e', f"v_add_u32 v29, {S4}, v29", early=s0))
            eng.fq.append(Fill('e', f"s_lshl_b32 {sT0}, {sW}, 8\nv_add_f32 v28, v28, v{vSS}", early=s0))
            eng.fq.append(Fill('e', f"v_add_u32 v30, {sT0}, v29", early=s0))
            eng.fq.append(Fill('ds', f"ds_write_b32 v30, v28", early=s0, bdead=5, tag='sum'))
        if blk == 5:
            for w_ in range(4):
                eng.fq.append(Fill('ds', f"ds_read_b32 v{30+w_}, v29 offset:{w_*256}", early=s0, tag='sumr'))
        if blk == 6:
            eng.fq.append(Fill('e', f"v_add_f32 v30, v30, v31", early=s0, lgneed=['sumr']))
            eng.fq.append(Fill('e', f"v_add_f32 v32, v32, v33", early=s0))
            eng.fq.append(Fill('e', f"v_add_f32 v30, v30, v32", early=s0))
            eng.fq.append(Fill('e', f"v_rcp_f32 v{vSS}, v30", early=s0, cost=8))
        if blk < 7:
            for kt in range(2):
                t = 2 * blk + 2 + kt
                p, base = Sreg(t)
                dead = s0 + 40 + 20 * kt
                eng.fq += exp_fill(p, base, 16, Preg(t), 60, vSP, False, s0, dead)
        if blk == 7:
            eng.fq.append(Fill('e', f"v_mov_b32 v28, v{vSP}", early=s0))
            eng.fq.append(Fill('e', f"s_nop 0\nv_permlane32_swap_b32 v28, v{vSP}", early=s0))
            eng.fq.append(Fill('e', f"v_add_f32 v28, v28, v{vSP}", early=s0))
            eng.fq.append(Fill('e', f"v_rcp_f32 v{vSP}, v28", early=s0, cost=8))
    eng.run(steps, maxlg=OPT['maxlg'], delay=OPT['delay'], dma_every=3)
    eng.flush_dma(); eng.flush_fill()
    dump('O', [f"a{r}" for r in range(128)] + [f"a{r}" for r in range(192, 224)] + [f"v{vSP}", f"v{vSS}"])

    def conv_fill(abase, tmp, dst, inv, early, dead):
        F = []
        kw = dict(early=early, dead=dead)
        for q in range(8): F.append(Fill('e', f"v_accvgpr_read_b32 v{tmp+q}, a{abase+q}", **kw))
        for q in range(8): F.append(Fill('e', f"v_mul_f32 v{tmp+q}, v{tmp+q}, v{inv}", **kw))
        for q in range(4): F.append(Fill('e', f"v_cvt_pk_bf16_f32 v{dst+q}, v{tmp+2*q}, v{tmp+2*q+1}", **kw))
        return F
    for a in range(2):
        for half in range(2):
            eng.fq += conv_fill(192 + 16 * a + 8 * half, 208 + 8 * (2*a+half), 208 + 8 * (2*a+half), vSS, -1, 0)
            eng.fq.append(Fill('ds', f"ds_write_b128 v15, {R('v', 208 + 8*(2*a+half), 4)} offset:{a*8192 + half*1024}", tag='osh'))
    eng.flush_fill()
    e(f"""
    v_lshrrev_b32 v56, 5, v7
    v_lshl_add_u32 v56, v56, 3, v0           ; 8hh+r
    v_lshl_add_u32 v57, v0, 6, v6
    v_lshl_add_u32 v57, v56, 8, v57
    s_mul_i32 {sT0}, {sW}, {8192+64}
    v_xor_b32 v16, {sT0}, v57
    """)
    for j in range(4):
        for t in range(4):
            if j or t: e(f"v_xor_b32 v{16+4*j+t}, {j*8192+t*64}, v16")
    LA = [32, 33, 34, 35, 56, 57, 58, 59]
    e(f"""
    v_lshrrev_b32 v57, 1, v0
    v_lshl_add_u32 v57, v57, 6, v6
    v_lshl_add_u32 v57, v56, 7, v57
    s_and_b32 {sT1}, {sW}, 1
    s_lshl_b32 {sT1}, {sT1}, 6
    s_lshl_b32 {sT0}, {sW}, 12
    s_add_u32 {sT0}, {sT0}, {sT1}
    s_add_u32 {sT0}, {sT0}, {SLOT(22) & 0x10000}
    v_xor_b32 v32, {sT0}, v57
    """)
    for j in range(4):
        for t in range(2):
            if j or t: e(f"v_xor_b32 v{LA[2*j+t]}, {j*4096+t*64}, v32")
    for t in range(4):
        e(f"s_xor_b32 {sT0}, {sW}, {t}\ns_mul_i32 {sT1}, {sW}, 14\ns_add_u32 {sT0}, {sT0}, {sT1}\ns_lshl_b32 s{sST+t}, {sT0}, 15")
    e(f"s_add_u32 {sT0}, {sW}, 56\ns_lshl_b32 s{sST+4}, {sT0}, 15")
    e(f"s_and_b32 {sT2}, {sW}, 1\ns_add_u32 {sT0}, {sT1}, {sT2}\ns_add_u32 {sT0}, {sT0}, 12\ns_lshl_b32 s{sST+5}, {sT0}, 15")
    e(f"s_sub_u32 {sT0}, {sT1}, {sT2}\ns_add_u32 {sT0}, {sT0}, 13\ns_lshl_b32 s{sST+6}, {sT0}, 15")
    e(f"s_add_u32 {sT0}, {sT2}, 68\ns_lshl_b32 s{sST+7}, {sT0}, 15")
    e(f"""v_add_u32 v12, 16384, v1
    s_lshr_b32 {sT0}, {sW}, 1
    s_lshl_b32 {sT0}, {sT0}, 30
    v_add_u32 v13, {sT0}, v1
    v_add_u32 v60, {sT0}, v12""")
    OF = 144
    eng.fq += conv_fill(0, 240, OF, vSP, -1, 0) + conv_fill(8, 248, OF + 4, vSP, -1, 0)
    eng.flush_fill()
    barrier(["T16"], None, st=True)()
    eng.dma += dma_tile(19)
    e("v_xor_b32 v61, 0x800, v15\nv_xor_b32 v14, 0x1000, v15\nv_xor_b32 v6, 0x1800, v15")
    qa = [15, 61, 14, 6]
    hi['wo'] = 0
    steps = []
    ringc[0] = 0
    ACC = [('v', 64), ('a', 0), ('v', 64), ('v', 208)]
    def store_fill(g, early):
        p, base = ACC[g]
        nt = 5 if g < 3 else 3
        F = []
        for t in range(nt):
            for half in range(2):
                src = base + 16 * t + 8 * half
                if p == 'a':
                    tmp = 208 + 8 * ((2 * t + half) % 6)
                    for q in range(8): F.append(Fill('e', f"v_accvgpr_read_b32 v{tmp+q}, a{src+q}", early=early))
                    src = tmp
                for q in range(4): F.append(Fill('e', f"v_cvt_pk_bf16_f32 v{src+q}, v{src+2*q}, v{src+2*q+1}", early=early))
                if g < 3:
                    so = f"s{sST+t}"; vo = 'v1' if half == 0 else 'v12'
                else:
                    so = f"s{sST+5+t}"; vo = ('v1' if half == 0 else 'v12') if t < 2 else ('v13' if half == 0 else 'v60')
                F.append(Fill('vm', f"buffer_store_dwordx4 {R('v', src, 4)}, {vo}, {SWS}, {so} offen", cost=16, early=early, tag='st'))
            if g < 2: F.append(Fill('e', f"s_add_u32 s{sST+t}, s{sST+t}, {4*32768}", early=early))
        return F
    for g in range(4):
        p, base = ACC[g]
        sg = len(steps)
        for j in range(8):
            n = 16 + 2 * g + (j >> 2) if g < 3 else 22
            slot = SLOT(n)
            def after(n=n):
                if n + 3 <= 22: eng.dma += dma_tile(n + 3)
            for half in range(2):
                nt = 4 if g < 3 else 2
                for t in range(nt):
                    pre = []; bar = None
                    if t == 0 and half == 0 and ((j & 3) == 0 if g < 3 else j == 0):
                        if n > 16: bar = barrier([f"T{n}"], after, st=(n in (18, 20, 22)))
                        if g < 3: pre += toggle('wo', range(16, 32), slot >> 16)
                    r = ringA(36, 5, 'v')
                    if g < 3:
                        ar = 16 + 4 * (j & 3) + t; off = (slot & 0xffff) + half * 4096; so = 1024
                    else:
                        ar = LA[2 * (j & 3) + t]; off = (slot & 0xffff) + (j >> 2) * 16384 + half * 2048; so = 512
                    pre.append(('ds', f"ds_read_b64_tr_b16 {R('v', r, 2)}, v{ar} offset:{off}"))
                    pre.append(('ds', f"ds_read_b64_tr_b16 {R('v', r+2, 2)}, v{ar} offset:{off+so}"))
                    acc = R(p, base + 16 * t, 16)
                    first = (j == 0 and half == 0)
                    steps.append(Step(f"{MF} {acc}, {R('v', r, 4)}, {R('v', OF+8*j+4*half, 4)}, {'0' if first else acc}", pre, bar))
                    if t == 0:
                        pre2 = []
                        if g == 0:
                            pre2 = [('ds', f"ds_read_b128 {R('a', 128+8*j+4*half, 4)}, v{qa[j&3]} offset:{(j>>2)*8192 + half*1024}")]
                        acc = R(p, base + 16 * nt, 16)
                        steps.append(Step(f"{MF} {acc}, {R('v', r, 4)}, {R('a', 128+8*j+4*half, 4)}, {'0' if first else acc}", pre2))
                if g == 0 and j < 7:
                    jj = j + 1
                    eng.fq += conv_fill(16 * jj + 8 * half, 240 + 8 * half, OF + 8 * jj + 4 * half, vSP, -1, 10 * jj + 5 * half)
        if g >= 1:
            F = store_fill(g - 1, sg + 1)
            nxt = sg + (80 if g < 3 else 48)
            for f in F: f.dead = nxt
            eng.fq += F
    eng.run(steps, maxlg=OPT['maxlg'], delay=OPT['delay'], dma_every=3)
    eng.flush_dma(); eng.flush_fill()
    eng.fq += store_fill(3, -1); eng.flush_fill()
    if OPT['ts']:
        stamp()
        k.wait(vm0=True)
        stamp()
        e(f"""s_add_u32 s56, s4, 0x0ff00000
        s_addc_u32 s57, s5, 0
        s_mov_b32 s58, 0x100000
        s_mov_b32 s59, 0x00020000
        s_cmp_lg_u32 {sW}, 0
        s_cbranch_scc1 L_exit
        s_mov_b64 exec, 1
        s_lshl_b32 s3, s2, 8
        v_mov_b32 v1, s3
        v_mov_b32 v2, {nst[0]}
        v_mov_b32 v3, 0
        buffer_store_dwordx2 v[2:3], v1, s[56:59], 0 offen""")
        for j in range(nst[0]):
            e(f"v_mov_b32 v4, s{sTS+2*j}\nv_mov_b32 v5, s{sTS+1+2*j}\nbuffer_store_dwordx2 v[4:5], v1, s[56:59], 0 offen offset:{8+8*j}\ns_nop 1")
        e("s_waitcnt vmcnt(0)")
    e("L_exit:")
    txt, added = k.text()
    print(f"main: {len(k.L)} lines, nops added {added}, forced fills {eng.forced}, stamps {nst[0]}", file=sys.stderr)
    return txt

def f2u(x):
    import struct
    return struct.unpack('<I', struct.pack('<f', x))[0]

def reduce_kernel():
    k = K(); e = k.e
    if OPT['ts']: e("s_memrealtime s[20:21]")
    e(f"""
    s_cmp_ge_u32 s2, 560
    s_cbranch_scc1 L_rexit
    s_load_dwordx2 s[8:9], s[0:1], 56
    s_load_dwordx2 s[12:13], s[0:1], 40
    v_lshrrev_b32 v1, 6, v0
    v_and_b32 v2, 63, v0
    v_readfirstlane_b32 s3, v1
    s_lshl_b32 s4, s2, 2
    s_add_u32 s4, s4, s3                     ; gw
    s_mov_b32 s10, {2240*16384}
    s_mov_b32 s11, 0x00020000
    s_mov_b32 s14, 2293760
    s_mov_b32 s15, 0x00020000
    s_lshl_b32 s5, s4, 14
    v_lshlrev_b32 v3, 4, v2
    s_waitcnt lgkmcnt(0)
    """)
    for h in range(16):
        if h % 4 == 0 and h: e("s_add_u32 s5, s5, 4096")
        k.vmem(f"buffer_load_dwordx4 v[{16+4*h}:{19+4*h}], v3, s[8:11], s5 offen offset:{(h%4)*1024}", f"h{h}")
    e(f"""
    s_mul_i32 s6, s4, 2341
    s_lshr_b32 s6, s6, 16
    s_mul_i32 s7, s6, 28
    s_sub_u32 s7, s4, s7
    s_mul_i32 s6, s6, {32*896}
    s_lshl_b32 s7, s7, 5
    s_add_u32 s6, s6, s7
    v_and_b32 v4, 31, v2
    v_mul_u32_u24 v4, 896, v4
    v_lshrrev_b32 v5, 5, v2
    v_lshl_add_u32 v4, v5, 4, v4
    s_mov_b32 s16, 0xffff0000
    """)
    for h in range(16):
        k.wait(vm=[f"h{h}"])
        for q in range(4):
            r = 16 + 4 * h + q
            if h == 0:
                e(f"v_lshlrev_b32 v{8+2*q}, 16, v{r}\nv_and_b32 v{9+2*q}, s16, v{r}")
            else:
                e(f"v_lshlrev_b32 v6, 16, v{r}\nv_and_b32 v7, s16, v{r}\nv_add_f32 v{8+2*q}, v{8+2*q}, v6\nv_add_f32 v{9+2*q}, v{9+2*q}, v7")
    for q in range(4):
        e(f"v_cvt_pk_bf16_f32 v{8+q}, v{8+2*q}, v{9+2*q}")
    e("buffer_store_dwordx4 v[8:11], v4, s[12:15], s6 offen")
    if OPT['ts']:
        e("""s_waitcnt vmcnt(0)
        s_memrealtime s[22:23]
        s_add_u32 s8, s8, 0x0ff20000
        s_addc_u32 s9, s9, 0
        s_mov_b32 s10, 0x20000
        s_mov_b64 exec, 1
        s_lshl_b32 s5, s4, 4
        s_waitcnt lgkmcnt(0)
        v_mov_b32 v2, s20
        v_mov_b32 v3, s22
        v_mov_b32 v1, 0
        buffer_store_dwordx2 v[2:3], v1, s[8:11], s5 offen
        s_waitcnt vmcnt(0)""")
    e("L_rexit:")
    txt, added = k.text()
    return txt

def diag_kernel():
    A, B, KK = OPT['diag'].split(',')
    k = K(); e = k.e
    e("""s_memrealtime s[20:21]
    s_cmp_ge_u32 s2, 1
    s_cbranch_scc1 L_dexit
    s_load_dwordx2 s[8:9], s[0:1], 56
    s_mov_b32 s10, 0x100000
    s_mov_b32 s11, 0x00020000
    s_waitcnt lgkmcnt(0)
    s_add_u32 s8, s8, 0x0ff00000
    s_addc_u32 s9, s9, 0""")
    def val(spec, dst):
        if spec == 'now':
            e(f"s_mov_b32 {dst}, s20"); return
        kind = spec[0]; idx = int(spec[1:-3]); op = spec[-3:]
        if kind == 'm': n, stride, off = 4, 256, 8 + 8 * idx
        else: n, stride, off = 35, 16, 0x20000 + 4 * idx
        e(f"v_mul_u32_u24 v1, {stride}, v0\nv_add_u32 v1, {off}, v1")
        for j in range(n):
            e(f"buffer_load_dword v{2+j}, v1, s[8:11], 0 offen\nv_add_u32 v1, {64*stride}, v1")
        e("s_waitcnt vmcnt(0)")
        for j in range(n): e(f"v_subrev_u32 v{2+j}, s20, v{2+j}")
        for j in range(1, n): e(f"v_{op}_i32 v2, v2, v{2+j}")
        e(f"s_nop 1\nv_readlane_b32 {dst}, v2, 0")
        for l in range(1, 64):
            e(f"v_readlane_b32 s30, v2, {l}\ns_{op}_i32 {dst}, {dst}, s30")
        e(f"s_add_u32 {dst}, {dst}, s20")
    val(A, 's24'); val(B, 's25')
    e(f"""s_sub_u32 s24, s25, s24
    s_mul_i32 s24, s24, {KK}
    s_min_u32 s24, s24, 40000
    s_add_u32 s24, s24, 300
    L_spin:
    s_memrealtime s[22:23]
    s_waitcnt lgkmcnt(0)
    s_sub_u32 s22, s22, s20
    s_cmp_lt_u32 s22, s24
    s_cbranch_scc1 L_spin
    L_dexit:""")
    return k.text()[0]

if __name__ == "__main__":
    out = sys.argv[1]
    m = main_kernel()
    r = reduce_kernel()
    L = [("mha_main_kernel", 256, 256, 163840), ("mha_reduce_kernel", 560, 256, 0)]
    KS = [("mha_main_kernel", m, 512, 256), ("mha_reduce_kernel", r, 80, 80)]
    if OPT['diag']:
        L.append(("mha_diag_kernel", 1, 64, 0)); KS.append(("mha_diag_kernel", diag_kernel(), 64, 64))
    write_file(out, HEADER, L, KS)
```

```python
import sys, math
sys.path.insert(0, "work")
from asmlib import K, write_file
from eng import Eng, Step, Fill, uid

OPT = dict(arr='N', ts=0, dump='', nt='nt', delay=2, maxlg=13, diag='', pre='')
for a in sys.argv[2:]:
    kk, vv = a.split('=')
    OPT[kk] = int(vv) if vv.lstrip('-').isdigit() else vv

HEADER = "".join(l for l in open("standalone__mha_block_cached__near_ridge.s.ref").read().splitlines(True)[:11])
MF = "v_mfma_f32_32x32x16_bf16"
def R(p, lo, n): return f"{p}[{lo}:{lo+n-1}]"
SX, SK, SV, SWQ, SWO, SWS = "s[8:11]", "s[12:15]", "s[16:19]", "s[20:23]", "s[24:27]", "s[28:31]"
sW, sB, sH, sKC = "s32", "s33", "s34", "s35"
sT0, sT1, sT2 = "s36", "s37", "s38"
sC = "s39"
sWQO, sXO, sM8, sM4, sKO, sWOO, sWLO = "s40", "s41", "s42", "s43", "s44", "s45", "s46"
sST = 47
sTS = 60
XB = 96 * 1024
S4 = 128 * 1024
SLOT = lambda n: ((n + 1) % 4) * 32768

def main_kernel():
    k = K(); e = k.e
    eng = Eng(k)
    nst = [0]
    def stamp():
        if OPT['ts']:
            k.wait(lg0=True)
            e(f"s_memrealtime s[{sTS+2*nst[0]}:{sTS+1+2*nst[0]}]\ns_waitcnt lgkmcnt(0)")
            nst[0] += 1
    def dump(name, regs):
        if OPT['dump'] != name: return
        eng.flush_dma()
        e("s_nop 7\ns_nop 7\ns_waitcnt vmcnt(0) lgkmcnt(0)")
        e(f"s_mul_i32 {sT0}, {sB}, 64\ns_lshl_b32 {sT1}, {sH}, 2\ns_add_u32 {sT0}, {sT0}, {sT1}\ns_add_u32 {sT0}, {sT0}, {sW}\ns_lshl_b32 {sT0}, {sT0}, 17")
        e("s_add_u32 s56, s4, 0x4000000\ns_addc_u32 s57, s5, 0\ns_mov_b32 s58, 0x8000000\ns_mov_b32 s59, 0x00020000")
        e("v_lshlrev_b32 v0, 2, v7")
        for i, r in enumerate(regs):
            e(f"buffer_store_dword {r}, v0, s[56:59], {sT0} offen\ns_add_u32 {sT0}, {sT0}, 256")
            if i % 32 == 31: e("s_waitcnt vmcnt(0)")
        e("s_waitcnt vmcnt(0)\ns_branch L_exit")

    if OPT['ts']:
        e(f"s_memrealtime s[{sTS}:{sTS+1}]"); nst[0] = 1
    e(f"""
    s_cmp_ge_u32 s2, 256
    s_cbranch_scc1 L_exit
    s_load_dwordx2 s[8:9], s[0:1], 0
    s_load_dwordx2 s[12:13], s[0:1], 8
    s_load_dwordx2 s[16:17], s[0:1], 16
    s_load_dwordx2 s[20:21], s[0:1], 24
    s_load_dwordx2 s[24:25], s[0:1], 32
    s_load_dwordx2 s[4:5], s[0:1], 56
    v_lshrrev_b32 v1, 6, v0
    v_and_b32 v7, 63, v0
    v_readfirstlane_b32 {sW}, v1
    s_and_b32 {sT0}, s2, 7
    s_lshr_b32 {sT1}, s2, 3
    """)
    arr = OPT['arr']
    if arr == 'N':
        e(f"""s_lshr_b32 {sB}, {sT0}, 1
        s_lshl_b32 {sB}, {sB}, 2
        s_lshr_b32 {sT2}, {sT1}, 3
        s_add_u32 {sB}, {sB}, {sT2}
        s_and_b32 {sH}, {sT0}, 1
        s_lshl_b32 {sH}, {sH}, 3
        s_and_b32 {sT2}, {sT1}, 7
        s_add_u32 {sH}, {sH}, {sT2}""")
    elif arr == 'L':
        e(f"""s_lshl_b32 {sB}, {sT0}, 1
        s_lshr_b32 {sT2}, {sT1}, 4
        s_add_u32 {sB}, {sB}, {sT2}
        s_and_b32 {sH}, {sT1}, 15""")
    elif arr == 'M':
        e(f"""s_lshr_b32 {sB}, {sT0}, 2
        s_lshl_b32 {sB}, {sB}, 3
        s_lshr_b32 {sT2}, {sT1}, 2
        s_add_u32 {sB}, {sB}, {sT2}
        s_and_b32 {sH}, {sT0}, 3
        s_lshl_b32 {sH}, {sH}, 2
        s_and_b32 {sT2}, {sT1}, 3
        s_add_u32 {sH}, {sH}, {sT2}""")
    e(f"""s_lshl_b32 {sT0}, {sH}, 1
    s_add_u32 {sT0}, {sT0}, {sB}
    s_mul_i32 {sT1}, {sT0}, 37
    s_lshr_b32 {sT1}, {sT1}, 8
    s_mul_i32 {sT1}, {sT1}, 7
    s_sub_u32 {sKC}, {sT0}, {sT1}
    s_mov_b32 s10, 143360
    s_mov_b32 s11, 0x00020000
    s_mov_b32 s14, 262144
    s_mov_b32 s15, 0x00020000
    s_mov_b32 s18, 262144
    s_mov_b32 s19, 0x00020000
    s_mov_b32 s23, 0x00020000
    s_mov_b32 s26, 229376
    s_mov_b32 s27, 0x00020000
    s_mov_b32 s30, {140*16384}
    s_mov_b32 s31, 0x00020000
    s_mov_b32 {sC}, 0x{f2u(math.log2(math.e)/16):08x}
    s_lshl_b32 {sM8}, {sW}, 13
    s_lshl_b32 {sM4}, {sW}, 12
    s_lshl_b32 {sWQO}, {sW}, 17
    s_mul_i32 {sXO}, {sW}, 7168
    """)
    e(f"""
    v_lshrrev_b32 v14, 5, v7                 ; p>>5
    v_and_b32 v15, 31, v7                    ; p&31
    v_lshlrev_b32 v1, 2, v14
    v_xor_b32 v1, v1, v15                    ; (p&31)^((p>>5)<<2)
    v_lshlrev_b32 v1, 4, v1
    v_lshl_add_u32 v2, v14, 13, v1
    v_xor_b32 v3, 0x80, v2
    v_add_u32 v3, 15360, v3                  ; ii=1
    v_add_u32 v4, 30720, v2                  ; ii=2
    v_add_u32 v5, 30720, v3                  ; ii=3
    v_lshl_add_u32 v12, v14, 9, v1
    v_xor_b32 v13, 0x80, v12
    s_and_b32 {sT2}, {sW}, 1
    s_lshl_b32 {sT0}, {sT2}, 2
    v_lshrrev_b32 v6, 4, v7
    v_xor_b32 v6, {sT0}, v6
    v_and_b32 v1, 7, v7
    v_xor_b32 v6, v6, v1
    v_lshlrev_b32 v6, 4, v6
    v_lshrrev_b32 v1, 3, v7
    v_mul_u32_u24 v1, 896, v1
    v_add_u32 v6, v6, v1                     ; x voff
    s_waitcnt lgkmcnt(0)
    s_mul_i32 {sT0}, {sB}, 143360
    s_add_u32 s8, s8, {sT0}
    s_addc_u32 s9, s9, 0
    s_lshl_b32 {sT0}, {sH}, 9
    s_add_u32 s20, s20, {sT0}
    s_addc_u32 s21, s21, 0
    s_sub_u32 s22, 3670016, {sT0}
    """)
    def dma_stage(i):
        G = []
        tag = f"A{i}"
        slot = (i % 3) * 32768
        xs = XB + (i % 3) * 20480
        for u in range(2):
            for ii in range(4):
                g = []
                if ii == 0:
                    if u == 0:
                        g.append(Fill('e', f"s_lshl_b32 {sT0}, {sKC}, 19\ns_add_u32 {sT0}, {sT0}, {sWQO}"))
                    else:
                        g.append(Fill('e', f"s_add_u32 {sT0}, {sT0}, 65536"))
                    g.append(Fill('e', f"s_add_u32 m0, {sM8}, {slot + u * 4096}"))
                g.append(Fill('vm', f"buffer_load_dwordx4 v{2+ii}, {SWQ}, {sT0} offen offset:{ii*1024} lds", tag=tag))
                G.append(g)
        for u in range(5):
            g = []
            if u == 0:
                g.append(Fill('e', f"s_lshl_b32 {sT1}, {sKC}, 7\ns_add_u32 {sT1}, {sT1}, {sXO}\ns_lshl_b32 {sT2}, {sW}, 10"))
            else:
                g.append(Fill('e', f"s_add_u32 {sT1}, {sT1}, {4*7168}"))
            g.append(Fill('e', f"s_add_u32 m0, {sT2}, {xs + u * 4096}"))
            g.append(Fill('vm', f"buffer_load_dwordx4 v6, {SX}, {sT1} offen lds", tag=tag))
            if u == 4:
                g.append(Fill('e', f"s_add_u32 {sKC}, {sKC}, 1\ns_cmp_eq_u32 {sKC}, 7\ns_cselect_b32 {sKC}, 0, {sKC}"))
            G.append(g)
        return G[8:10] + G[0:4] + G[10:13] + G[4:8] if False else G
    def dma_tile(n):
        G = []
        tag = f"T{n}"
        slot = SLOT(n)
        for u in range(2):
            for ii in range(4):
                g = []
                if n < 16:
                    blk = n % 8
                    if ii == 0:
                        g.append(Fill('e', f"s_add_u32 {sKO}, {sM4}, {blk*32768 + u*16384}\ns_add_u32 m0, {sM4}, {slot + u*16384}"))
                    vo = f"v{8+ii}" if n < 8 else f"v{12+(ii&1)}"
                    srd = SK if n < 8 else SV
                    g.append(Fill('vm', f"buffer_load_dwordx4 {vo}, {srd}, {sKO} offen offset:{ii*1024} {OPT['nt']} lds", tag=tag))
                elif n < 22:
                    gi, dh = (n - 16) // 2, (n - 16) % 2
                    if ii == 0:
                        g.append(Fill('e', f"s_add_u32 {sKO}, {sWOO}, {(dh*128 + 16*u)*896 + gi*256}\ns_add_u32 m0, {sM8}, {slot + u*4096}"))
                    g.append(Fill('vm', f"buffer_load_dwordx4 v{2+ii}, {SWO}, {sKO} offen offset:{ii*1024} lds", tag=tag))
                else:
                    if ii == 0:
                        g.append(Fill('e', f"s_add_u32 {sKO}, {sWLO}, {32*u*896 + 768}\ns_add_u32 m0, {sM8}, {slot + u*4096}"))
                    g.append(Fill('vm', f"buffer_load_dwordx4 v{8+ii}, {SWO}, {sKO} offen offset:{ii*1024} lds", tag=tag))
                G.append(g)
        return G
    eng.dma += dma_stage(0); eng.flush_dma()
    e(f"""
    s_lshl_b32 {sT0}, {sB}, 4
    s_add_u32 {sT0}, {sT0}, {sH}
    s_lshl_b32 {sT0}, {sT0}, 18
    s_add_u32 s12, s12, {sT0}
    s_addc_u32 s13, s13, 0
    s_add_u32 s16, s16, {sT0}
    s_addc_u32 s17, s17, 0
    s_mul_i32 {sT0}, {sH}, 229376
    s_add_u32 s24, s24, {sT0}
    s_addc_u32 s25, s25, 0
    s_mul_i32 {sT0}, {sB}, {140*16384}
    s_lshl_b32 {sT1}, {sH}, 10
    s_add_u32 {sT0}, {sT0}, {sT1}
    s_add_u32 s28, s4, {sT0}
    s_addc_u32 s29, s5, 0
    s_mul_i32 {sWOO}, {sW}, {32*896}
    s_mul_i32 {sWLO}, {sW}, {64*896}
    """)
    eng.dma += dma_stage(1) + dma_stage(2); eng.flush_dma()
    e(f"""
    s_and_b32 {sT2}, {sW}, 1
    s_lshl_b32 {sT0}, {sT2}, 3
    v_xor_b32 v1, v14, v15
    v_xor_b32 v1, {sT0}, v1
    v_lshlrev_b32 v1, 4, v1
    v_lshl_add_u32 v8, v14, 9, v1
    v_xor_b32 v9, 32, v8
    v_xor_b32 v10, 64, v8
    v_xor_b32 v11, 0x60, v8
    """)
    e(f"""
    v_bfe_u32 v63, v7, 2, 2                  ; r
    v_lshl_add_u32 v60, v14, 3, v63          ; 8hh+r
    v_bfe_u32 v1, v7, 4, 1
    v_lshlrev_b32 v62, 5, v1
    v_and_b32 v1, 1, v7
    v_lshl_add_u32 v62, v1, 4, v62
    v_bfe_u32 v1, v7, 1, 1
    v_lshl_add_u32 v62, v1, 3, v62
    v_lshl_add_u32 v61, v63, 6, v62
    s_lshl_b32 {sT0}, {sW}, 6
    v_lshl_add_u32 v16, v60, 9, v61
    v_xor_b32 v16, {sT0}, v16
    v_xor_b32 v17, 64, v16
    v_xor_b32 v18, 0x80, v16
    v_xor_b32 v19, 0xc0, v16
    """)
    e(f"""
    v_bfe_u32 v1, v7, 1, 3
    v_xor_b32 v1, v1, v14
    v_lshlrev_b32 v1, 4, v1
    v_lshl_add_u32 v1, v15, 7, v1
    v_add_u32 v24, {XB + 128*128}, v1
    s_lshl_b32 {sT0}, {sW}, 12
    s_add_u32 {sT0}, {sT0}, {XB}
    v_add_u32 v20, {sT0}, v1
    v_xor_b32 v21, 32, v20
    v_xor_b32 v22, 64, v20
    v_xor_b32 v23, 0x60, v20
    v_xor_b32 v25, 32, v24
    v_xor_b32 v26, 64, v24
    v_xor_b32 v27, 0x60, v24
    v_lshlrev_b32 v1, 4, v7
    """)
    hi = dict(tr=0, k=0, wo=0)
    def toggle(which, regs, want):
        if hi[which] == want: return []
        hi[which] = want
        return [('e', f"v_xor_b32 v{r}, 0x10000, v{r}") for r in regs]
    def barrier(vmtags, after=None, barid=None, st=False):
        def f():
            if barid is not None: eng.flush_fill(bar=barid)
            eng.flush_dma()
            for t in vmtags: assert t in k.vm, t
            k.wait(vm=vmtags, lg0=True)
            e("s_barrier")
            if st: stamp()
            if after: after()
        return f

    JORD = [0, 4, 1, 2, 3, 5, 6, 7]
    steps = []
    ringc = [0]
    def ringA(base, n, p):
        r = base + 4 * (ringc[0] % n); ringc[0] += 1
        return r
    for i in range(7):
        slot = (i % 3) * 32768
        xs = (i % 3) * 20480
        def after(i=i):
            if 1 <= i <= 4: eng.dma += dma_stage(i + 2)
            if i == 5: eng.dma += dma_tile(0)
            if i == 6: eng.dma += dma_tile(1)
        for T in range(4):
            xb = 40 + 8 * ((4 * i + T) % 2)
            for jn, j in enumerate(JORD):
                pre = []
                bar = None
                if T == 0 and jn == 0:
                    bar = barrier([f"A{i}"], after, st=(i in (0, 3)))
                    pre += toggle('tr', range(16, 20), slot >> 16)
                if jn == 0:
                    pre.append(('ds', f"ds_read_b128 {R('v', xb, 4)}, v{20+T} offset:{xs}"))
                r = ringA(224, 8, 'a')
                off = (slot & 0xffff) + (j >> 2) * 256 + T * 8192
                pre.append(('ds', f"ds_read_b64_tr_b16 {R('a', r, 2)}, v{16+(j&3)} offset:{off}"))
                pre.append(('ds', f"ds_read_b64_tr_b16 {R('a', r+2, 2)}, v{16+(j&3)} offset:{off+2048}"))
                acc = R('v', 64 + 16 * j, 16)
                first = (i == 0 and T == 0)
                steps.append(Step(f"{MF} {acc}, {R('a', r, 4)}, {R('v', xb, 4)}, {'0' if first else acc}", pre, bar))
                if j in (0, 4):
                    pre2 = [('ds', f"ds_read_b128 {R('v', xb+4, 4)}, v{24+T} offset:{xs}")] if j == 0 else []
                    acc = R('v', 192 + 16 * (j >> 2), 16)
                    steps.append(Step(f"{MF} {acc}, {R('a', r, 4)}, {R('v', xb+4, 4)}, {'0' if first else acc}", pre2))
    eng.run(steps, maxlg=OPT['maxlg'], delay=OPT['delay'], dma_every=2)
    eng.flush_dma()
    dump('Q', [f"v{r}" for r in range(64, 224)])
    e(f"s_lshl_b32 {sT0}, {sW}, 11\ns_add_u32 {sT0}, {sT0}, {S4}\nv_add_u32 v14, {sT0}, v1")
    for a in range(2):
        for half in range(2):
            src = 192 + 16 * a + 8 * half
            for q in range(4):
                e(f"v_cvt_pk_bf16_f32 v{src+q}, v{src+2*q}, v{src+2*q+1}")
            k.ds(f"ds_write_b128 v14, {R('v', src, 4)} offset:{a*8192 + half*1024}", 'qsh')
    e(f"""
    v_and_b32 v15, 0x13, v7
    v_bfe_u32 v20, v7, 2, 1
    v_lshl_or_b32 v15, v20, 3, v15
    v_bfe_u32 v20, v7, 3, 1
    v_lshl_or_b32 v15, v20, 2, v15           ; key
    v_lshrrev_b32 v20, 5, v7
    s_lshl_b32 {sT0}, {sW}, 2
    v_xor_b32 v20, {sT0}, v20
    v_and_b32 v21, 15, v15
    v_xor_b32 v20, v20, v21
    v_lshlrev_b32 v20, 4, v20
    v_lshl_add_u32 v20, v15, 9, v20
    s_and_b32 {sT0}, {sW}, 1
    s_lshl_b32 {sT0}, {sT0}, 14
    v_add_u32 v28, {sT0}, v20
    """)
    for v in range(1, 8):
        e(f"v_xor_b32 v{20+v}, {v*32}, v20\nv_xor_b32 v{28+v}, {v*32}, v28")
    for j in range(8):
        for q in range(8):
            src = 64 + 16 * j + 2 * q
            e(f"v_cvt_pk_bf16_f32 v{src}, v{src}, v{src+1}")
        for q in range(8):
            src = 64 + 16 * j + 2 * q
            e(f"v_accvgpr_write_b32 a{8*j+q}, v{src}")
    barrier(["T0"], None, st=True)()
    eng.dma += dma_tile(2) + dma_tile(3)
    e("v_xor_b32 v15, 0x800, v14\nv_xor_b32 v56, 0x1000, v14\nv_xor_b32 v57, 0x1800, v14")
    qa = [14, 15, 56, 57]
    ext = {}
    for j in range(8):
        for half in range(2):
            t = uid('q')
            k.ds(f"ds_read_b128 {R('a', 64+8*j+4*half, 4)}, v{qa[j&3]} offset:{(j>>2)*8192 + half*1024}", t)
    k.wait(lg0=True)
    dump('Qf', [f"a{r}" for r in range(128)])

    def Sreg(t):
        if t < 2: return ('v', 224 + 16 * t)
        if t < 12: return ('v', 64 + 16 * (t - 2))
        return ('a', 128 + 16 * (t - 12))
    vMX, vMS = 60, 61
    def max_fill(p, base, dst, first, early, tmp):
        F = []
        if p == 'a':
            for q in range(0, 16, 2):
                F.append(Fill('e', f"v_accvgpr_read_b32 v{tmp}, a{base+q}", early=early))
                F.append(Fill('e', f"v_accvgpr_read_b32 v{tmp+1}, a{base+q+1}", early=early))
                if first and q == 0: F.append(Fill('e', f"v_max_f32 v{dst}, v{tmp}, v{tmp+1}", early=early))
                else: F.append(Fill('e', f"v_max3_f32 v{dst}, v{tmp}, v{tmp+1}, v{dst}", early=early))
        else:
            for q in range(0, 16, 2):
                if first and q == 0: F.append(Fill('e', f"v_max_f32 v{dst}, v{base}, v{base+1}", early=early))
                else: F.append(Fill('e', f"v_max3_f32 v{dst}, v{base+q}, v{base+q+1}, v{dst}", early=early))
        return F
    def phaseS(par):
        steps = []
        ringc[0] = 0
        for blk in range(8):
            slot = SLOT(blk)
            def after(blk=blk):
                eng.dma += dma_tile(blk + 3)
            tiles = [('p', 0), ('p', 1)]
            if (blk & 1) == par: tiles = [('s', 0)] + tiles
            firststep = True
            for kind, kt in tiles:
                if kind == 'p':
                    p, base = Sreg(2 * blk + kt); qb = 0; ab = 20; off0 = kt * 16384
                else:
                    p, base = 'a', 192 + 16 * (blk >> 1); qb = 64; ab = 28; off0 = 0
                acc = R(p, base, 16)
                for j in range(8):
                    for half in range(2):
                        pre = []; bar = None
                        if firststep:
                            if blk > 0: bar = barrier([f"T{blk}"], after, st=(blk == 4))
                            pre += toggle('k', range(20, 36), slot >> 16)
                            firststep = False
                        r = ringA(36, 5, 'v')
                        off = (slot & 0xffff) + (j >> 2) * 256 + off0
                        pre.append(('ds', f"ds_read_b128 {R('v', r, 4)}, v{ab + (j&3)*2 + half} offset:{off}"))
                        first = (j == 0 and half == 0)
                        steps.append(Step(f"{MF} {acc}, {R('v', r, 4)}, {R('a', qb+8*j+4*half, 4)}, {'0' if first else acc}", pre, bar))
                if kind == 'p':
                    eng.fq += max_fill(p, base, vMX, blk == 0 and kt == 0, len(steps) + 1, 56)
                else:
                    eng.fq += max_fill(p, base, vMS, blk < 2, len(steps) + 1, 56)
        eng.run(steps, maxlg=OPT['maxlg'], delay=OPT['delay'], dma_every=2)
        eng.flush_dma()
        eng.flush_fill()
        k.wait(lg0=True)
    e(f"s_cmp_ge_u32 {sW}, 2\ns_cbranch_scc1 L_S1")
    vm0 = list(k.vm); dq = list(eng.dma); hk = dict(hi); ns0 = nst[0]
    phaseS(0)
    e("s_nop 1\ns_branch L_Sdone\nL_S1:\ns_nop 1")
    vm1 = list(k.vm)
    k.vm = vm0; eng.dma = dq; hi.update(hk); nst[0] = ns0
    phaseS(1)
    assert k.vm == vm1
    e("s_nop 1\nL_Sdone:")
    allS = []
    for t in range(16):
        p, b = Sreg(t); allS += [f"{p}{b+q}" for q in range(16)]
    dump('S', allS + [f"a{r}" for r in range(192, 256)] + ['v60', 'v61'])

    MXO = S4 + 31 * 1024
    e(f"""
    v_mov_b32 v56, v60
    v_mov_b32 v57, v61
    v_permlane32_swap_b32 v56, v60
    v_permlane32_swap_b32 v57, v61
    v_max_f32 v60, v56, v60
    v_max_f32 v61, v57, v61
    v_and_b32 v14, 31, v7
    v_lshlrev_b32 v14, 2, v14
    v_add_u32 v14, {MXO}, v14
    s_lshl_b32 {sT0}, {sW}, 7
    v_add_u32 v15, {sT0}, v14
    """)
    k.ds("ds_write_b32 v15, v61", 'mx')
    e(f"""
    v_lshrrev_b32 v56, 4, v7
    v_lshlrev_b32 v57, 2, v56
    v_and_b32 v2, 15, v7
    v_xor_b32 v2, v2, v57
    v_lshlrev_b32 v2, 4, v2
    v_mul_u32_u24 v57, 896, v56
    v_add_u32 v2, v2, v57
    v_add_u32 v3, 2560, v2
    v_add_u32 v4, 5120, v2
    v_add_u32 v5, 7680, v2
    v_and_b32 v56, 1, v56
    v_lshlrev_b32 v56, 2, v56
    v_and_b32 v8, 7, v7
    v_xor_b32 v8, v8, v56
    v_lshlrev_b32 v8, 4, v8
    v_lshrrev_b32 v56, 3, v7
    v_mul_u32_u24 v56, 896, v56
    v_add_u32 v8, v8, v56
    v_add_u32 v9, 6144, v8
    v_add_u32 v10, 12288, v8
    v_add_u32 v11, 18432, v8
    v_mul_f32 v60, {sC}, v60                 ; m*c private
    """)
    barrier([], None, st=True)()
    for w_ in range(4):
        k.ds(f"ds_read_b32 v{56+w_}, v14 offset:{w_*128}", 'mxr')
    eng.dma += dma_tile(11); eng.flush_dma()
    vSP, vSS = 62, 63
    e("v_mov_b32 v6, v62\nv_mov_b32 v0, v63")
    def exp_fill(p, base, n, tmp, mreg, sreg, first, early, dead, dst=None):
        F = []
        kw = dict(early=early, dead=dead)
        for q0 in range(0, n, 8):
            w0 = (tmp + q0) if p == 'a' else (base + q0)
            for q in range(8):
                if p == 'a':
                    F.append(Fill('e', f"v_accvgpr_read_b32 v{w0+q}, a{base+q0+q}", **kw))
            for q in range(8):
                F.append(Fill('e', f"v_fma_f32 v{w0+q}, v{w0+q}, {sC}, -v{mreg}", **kw))
            for q in range(8):
                F.append(Fill('e', f"v_exp_f32 v{w0+q}, v{w0+q}", cost=8, **kw))
                if q >= 1:
                    if first and q0 == 0 and q == 1: F.append(Fill('e', f"v_mov_b32 v{sreg}, v{w0}", **kw))
                    else: F.append(Fill('e', f"v_add_f32 v{sreg}, v{sreg}, v{w0+q-1}", **kw))
            F.append(Fill('e', f"v_cvt_pk_bf16_f32 v{w0}, v{w0}, v{w0+1}", **kw))
            F.append(Fill('e', f"v_add_f32 v{sreg}, v{sreg}, v{w0+7}", **kw))
            for q in range(1, 4):
                F.append(Fill('e', f"v_cvt_pk_bf16_f32 v{w0+q}, v{w0+2*q}, v{w0+2*q+1}", **kw))
        return F
    def Preg(t):
        if t < 12: return Sreg(t)[1]
        return Sreg(t - 12)[1]
    eng.fq += exp_fill('v', Sreg(0)[1], 16, 0, 60, vSP, True, -1, 0); eng.flush_fill()
    k.wait(lg=['mxr'])
    e("v_max3_f32 v61, v56, v57, v58\nv_max_f32 v61, v61, v59")
    e(f"v_mul_f32 v61, {sC}, v61")
    e(f"s_lshl_b32 {sT0}, {sW}, 11\ns_add_u32 {sT0}, {sT0}, {S4}\nv_add_u32 v15, {sT0}, v1\nv_add_u32 v14, {S4}, v1")
    def sh_fill(u, half, early, bdead, first=False):
        F = exp_fill('a', 192 + 16 * u + 8 * half, 8, 28, 61, vSS, first, early, 10**9)
        F.append(Fill('ds', f"ds_write_b128 v15, v[28:31] offset:{u*8192 + half*1024}", cost=8, early=early, tag='psh'))
        for f in F: f.bdead = bdead
        return F
    for u in range(2):
        for half in range(2):
            eng.fq += sh_fill(u, half, -1, 0, first=(u == 0 and half == 0))
    eng.fq += exp_fill('v', Sreg(1)[1], 16, 0, 60, vSP, False, -1, 0)
    eng.flush_fill()

    steps = []
    ringc[0] = 0
    SUMO = 0
    for blk in range(8):
        n = 8 + blk
        slot = SLOT(n)
        s0 = len(steps)
        def after(n=n):
            if n > 8: eng.dma += dma_tile(n + 3)
        for T in range(4):
            pb = Preg(2 * blk + (T >> 1)) + 8 * (T & 1)
            sb = 20 + 4 * (T & 1)
            for jn, j in enumerate(JORD):
                pre = []; bar = None
                if T == 0 and jn == 0:
                    bar = barrier([f"T{n}"], after, barid=blk, st=(blk in (0, 4)))
                    pre += toggle('tr', range(16, 20), slot >> 16)
                r = ringA(36, 5, 'v')
                off = (slot & 0xffff) + (j >> 2) * 256 + T * 8192
                pre.append(('ds', f"ds_read_b64_tr_b16 {R('v', r, 2)}, v{16+(j&3)} offset:{off}"))
                pre.append(('ds', f"ds_read_b64_tr_b16 {R('v', r+2, 2)}, v{16+(j&3)} offset:{off+2048}"))
                acc = R('a', 16 * j, 16)
                first = (blk == 0 and T == 0)
                steps.append(Step(f"{MF} {acc}, {R('v', r, 4)}, {R('v', pb, 4)}, {'0' if first else acc}", pre, bar))
                if j in (0, 4):
                    pre2 = [('ds', f"ds_read_b128 {R('v', sb, 4)}, v14 offset:{(4*blk+T)*1024}")] if j == 0 else []
                    acc = R('a', 192 + 16 * (j >> 2), 16)
                    steps.append(Step(f"{MF} {acc}, {R('v', r, 4)}, {R('v', sb, 4)}, {'0' if first else acc}", pre2))
        if blk < 4:
            eng.fq += sh_fill(2 + (blk >> 1), blk & 1, s0, 4 + 2 * (blk >> 1))
        if blk == 4:
            eng.fq.append(Fill('e', f"v_mov_b32 v28, v{vSS}", early=s0))
            eng.fq.append(Fill('e', f"v_lshrrev_b32 v29, 2, v1", early=s0))
            eng.fq.append(Fill('e', f"v_permlane32_swap_b32 v28, v{vSS}", early=s0))
            eng.fq.append(Fill('e', f"v_add_u32 v29, {S4}, v29", early=s0))
            eng.fq.append(Fill('e', f"s_lshl_b32 {sT0}, {sW}, 8\nv_add_f32 v28, v28, v{vSS}", early=s0))
            eng.fq.append(Fill('e', f"v_add_u32 v30, {sT0}, v29", early=s0))
            eng.fq.append(Fill('ds', f"ds_write_b32 v30, v28", early=s0, bdead=5, tag='sum'))
        if blk == 5:
            for w_ in range(4):
                eng.fq.append(Fill('ds', f"ds_read_b32 v{30+w_}, v29 offset:{w_*256}", early=s0, tag='sumr'))
        if blk == 6:
            eng.fq.append(Fill('e', f"v_add_f32 v30, v30, v31", early=s0, lgneed=['sumr']))
            eng.fq.append(Fill('e', f"v_add_f32 v32, v32, v33", early=s0))
            eng.fq.append(Fill('e', f"v_add_f32 v30, v30, v32", early=s0))
            eng.fq.append(Fill('e', f"v_rcp_f32 v{vSS}, v30", early=s0, cost=8))
        if blk < 7:
            for kt in range(2):
                t = 2 * blk + 2 + kt
                p, base = Sreg(t)
                dead = s0 + 40 + 20 * kt
                eng.fq += exp_fill(p, base, 16, Preg(t), 60, vSP, False, s0, dead)
        if blk == 7:
            eng.fq.append(Fill('e', f"v_mov_b32 v28, v{vSP}", early=s0))
            eng.fq.append(Fill('e', f"s_nop 0\nv_permlane32_swap_b32 v28, v{vSP}", early=s0))
            eng.fq.append(Fill('e', f"v_add_f32 v28, v28, v{vSP}", early=s0))
            eng.fq.append(Fill('e', f"v_rcp_f32 v{vSP}, v28", early=s0, cost=8))
    eng.run(steps, maxlg=OPT['maxlg'], delay=OPT['delay'], dma_every=3)
    eng.flush_dma(); eng.flush_fill()
    dump('O', [f"a{r}" for r in range(128)] + [f"a{r}" for r in range(192, 224)] + [f"v{vSP}", f"v{vSS}"])

    def conv_fill(abase, tmp, dst, inv, early, dead):
        F = []
        kw = dict(early=early, dead=dead)
        for q in range(8): F.append(Fill('e', f"v_accvgpr_read_b32 v{tmp+q}, a{abase+q}", **kw))
        for q in range(8): F.append(Fill('e', f"v_mul_f32 v{tmp+q}, v{tmp+q}, v{inv}", **kw))
        for q in range(4): F.append(Fill('e', f"v_cvt_pk_bf16_f32 v{dst+q}, v{tmp+2*q}, v{tmp+2*q+1}", **kw))
        return F
    for a in range(2):
        for half in range(2):
            eng.fq += conv_fill(192 + 16 * a + 8 * half, 208 + 8 * (2*a+half), 208 + 8 * (2*a+half), vSS, -1, 0)
            eng.fq.append(Fill('ds', f"ds_write_b128 v15, {R('v', 208 + 8*(2*a+half), 4)} offset:{a*8192 + half*1024}", tag='osh'))
    eng.flush_fill()
    e(f"""
    v_lshrrev_b32 v56, 5, v7
    v_lshl_add_u32 v56, v56, 3, v0           ; 8hh+r
    v_lshl_add_u32 v57, v0, 6, v6
    v_lshl_add_u32 v57, v56, 8, v57
    s_mul_i32 {sT0}, {sW}, {8192+64}
    v_xor_b32 v16, {sT0}, v57
    """)
    for j in range(4):
        for t in range(4):
            if j or t: e(f"v_xor_b32 v{16+4*j+t}, {j*8192+t*64}, v16")
    LA = [32, 33, 34, 35, 56, 57, 58, 59]
    e(f"""
    v_lshrrev_b32 v57, 1, v0
    v_lshl_add_u32 v57, v57, 6, v6
    v_lshl_add_u32 v57, v56, 7, v57
    s_and_b32 {sT1}, {sW}, 1
    s_lshl_b32 {sT1}, {sT1}, 6
    s_lshl_b32 {sT0}, {sW}, 12
    s_add_u32 {sT0}, {sT0}, {sT1}
    s_add_u32 {sT0}, {sT0}, {SLOT(22) & 0x10000}
    v_xor_b32 v32, {sT0}, v57
    """)
    for j in range(4):
        for t in range(2):
            if j or t: e(f"v_xor_b32 v{LA[2*j+t]}, {j*4096+t*64}, v32")
    for t in range(4):
        e(f"s_xor_b32 {sT0}, {sW}, {t}\ns_mul_i32 {sT1}, {sW}, 14\ns_add_u32 {sT0}, {sT0}, {sT1}\ns_lshl_b32 s{sST+t}, {sT0}, 15")
    e(f"s_add_u32 {sT0}, {sW}, 56\ns_lshl_b32 s{sST+4}, {sT0}, 15")
    e(f"s_and_b32 {sT2}, {sW}, 1\ns_add_u32 {sT0}, {sT1}, {sT2}\ns_add_u32 {sT0}, {sT0}, 12\ns_lshl_b32 s{sST+5}, {sT0}, 15")
    e(f"s_sub_u32 {sT0}, {sT1}, {sT2}\ns_add_u32 {sT0}, {sT0}, 13\ns_lshl_b32 s{sST+6}, {sT0}, 15")
    e(f"s_add_u32 {sT0}, {sT2}, 68\ns_lshl_b32 s{sST+7}, {sT0}, 15")
    e(f"""v_add_u32 v12, 16384, v1
    s_lshr_b32 {sT0}, {sW}, 1
    s_lshl_b32 {sT0}, {sT0}, 30
    v_add_u32 v13, {sT0}, v1
    v_add_u32 v60, {sT0}, v12""")
    OF = 144
    eng.fq += conv_fill(0, 240, OF, vSP, -1, 0) + conv_fill(8, 248, OF + 4, vSP, -1, 0)
    eng.flush_fill()
    barrier(["T16"], None, st=True)()
    eng.dma += dma_tile(19)
    e("v_xor_b32 v61, 0x800, v15\nv_xor_b32 v14, 0x1000, v15\nv_xor_b32 v6, 0x1800, v15")
    qa = [15, 61, 14, 6]
    hi['wo'] = 0
    steps = []
    ringc[0] = 0
    ACC = [('v', 64), ('a', 0), ('v', 64), ('v', 208)]
    def store_fill(g, early):
        p, base = ACC[g]
        nt = 5 if g < 3 else 3
        F = []
        for t in range(nt):
            for half in range(2):
                src = base + 16 * t + 8 * half
                if p == 'a':
                    tmp = 208 + 8 * ((2 * t + half) % 6)
                    for q in range(8): F.append(Fill('e', f"v_accvgpr_read_b32 v{tmp+q}, a{src+q}", early=early))
                    src = tmp
                for q in range(4): F.append(Fill('e', f"v_cvt_pk_bf16_f32 v{src+q}, v{src+2*q}, v{src+2*q+1}", early=early))
                if g < 3:
                    so = f"s{sST+t}"; vo = 'v1' if half == 0 else 'v12'
                else:
                    so = f"s{sST+5+t}"; vo = ('v1' if half == 0 else 'v12') if t < 2 else ('v13' if half == 0 else 'v60')
                F.append(Fill('vm', f"buffer_store_dwordx4 {R('v', src, 4)}, {vo}, {SWS}, {so} offen", cost=16, early=early, tag='st'))
            if g < 2: F.append(Fill('e', f"s_add_u32 s{sST+t}, s{sST+t}, {4*32768}", early=early))
        return F
    for g in range(4):
        p, base = ACC[g]
        sg = len(steps)
        for j in range(8):
            n = 16 + 2 * g + (j >> 2) if g < 3 else 22
            slot = SLOT(n)
            def after(n=n):
                if n + 3 <= 22: eng.dma += dma_tile(n + 3)
            for half in range(2):
                nt = 4 if g < 3 else 2
                for t in range(nt):
                    pre = []; bar = None
                    if t == 0 and half == 0 and ((j & 3) == 0 if g < 3 else j == 0):
                        if n > 16: bar = barrier([f"T{n}"], after, st=(n in (18, 20, 22)))
                        if g < 3: pre += toggle('wo', range(16, 32), slot >> 16)
                    r = ringA(36, 5, 'v')
                    if g < 3:
                        ar = 16 + 4 * (j & 3) + t; off = (slot & 0xffff) + half * 4096; so = 1024
                    else:
                        ar = LA[2 * (j & 3) + t]; off = (slot & 0xffff) + (j >> 2) * 16384 + half * 2048; so = 512
                    pre.append(('ds', f"ds_read_b64_tr_b16 {R('v', r, 2)}, v{ar} offset:{off}"))
                    pre.append(('ds', f"ds_read_b64_tr_b16 {R('v', r+2, 2)}, v{ar} offset:{off+so}"))
                    acc = R(p, base + 16 * t, 16)
                    first = (j == 0 and half == 0)
                    steps.append(Step(f"{MF} {acc}, {R('v', r, 4)}, {R('v', OF+8*j+4*half, 4)}, {'0' if first else acc}", pre, bar))
                    if t == 0:
                        pre2 = []
                        if g == 0:
                            pre2 = [('ds', f"ds_read_b128 {R('a', 128+8*j+4*half, 4)}, v{qa[j&3]} offset:{(j>>2)*8192 + half*1024}")]
                        acc = R(p, base + 16 * nt, 16)
                        steps.append(Step(f"{MF} {acc}, {R('v', r, 4)}, {R('a', 128+8*j+4*half, 4)}, {'0' if first else acc}", pre2))
                if g == 0 and j < 7:
                    jj = j + 1
                    eng.fq += conv_fill(16 * jj + 8 * half, 240 + 8 * half, OF + 8 * jj + 4 * half, vSP, -1, 10 * jj + 5 * half)
        if g >= 1:
            F = store_fill(g - 1, sg + 1)
            nxt = sg + (80 if g < 3 else 48)
            for f in F: f.dead = nxt
            eng.fq += F
    eng.run(steps, maxlg=OPT['maxlg'], delay=OPT['delay'], dma_every=3)
    eng.flush_dma(); eng.flush_fill()
    eng.fq += store_fill(3, -1); eng.flush_fill()
    if OPT['ts']:
        stamp()
        k.wait(vm0=True)
        stamp()
        e(f"""s_add_u32 s56, s4, 0x0ff00000
        s_addc_u32 s57, s5, 0
        s_mov_b32 s58, 0x100000
        s_mov_b32 s59, 0x00020000
        s_cmp_lg_u32 {sW}, 0
        s_cbranch_scc1 L_exit
        s_mov_b64 exec, 1
        s_lshl_b32 s3, s2, 8
        v_mov_b32 v1, s3
        v_mov_b32 v2, {nst[0]}
        v_mov_b32 v3, 0
        buffer_store_dwordx2 v[2:3], v1, s[56:59], 0 offen""")
        for j in range(nst[0]):
            e(f"v_mov_b32 v4, s{sTS+2*j}\nv_mov_b32 v5, s{sTS+1+2*j}\nbuffer_store_dwordx2 v[4:5], v1, s[56:59], 0 offen offset:{8+8*j}\ns_nop 1")
        e("s_waitcnt vmcnt(0)")
    e("L_exit:")
    txt, added = k.text()
    print(f"main: {len(k.L)} lines, nops added {added}, forced fills {eng.forced}, stamps {nst[0]}", file=sys.stderr)
    return txt

def f2u(x):
    import struct
    return struct.unpack('<I', struct.pack('<f', x))[0]

def reduce_kernel():
    k = K(); e = k.e
    if OPT['ts']: e("s_memrealtime s[20:21]")
    e(f"""
    s_cmp_ge_u32 s2, 560
    s_cbranch_scc1 L_rexit
    s_load_dwordx2 s[8:9], s[0:1], 56
    s_load_dwordx2 s[12:13], s[0:1], 40
    v_lshrrev_b32 v1, 6, v0
    v_and_b32 v2, 63, v0
    v_readfirstlane_b32 s3, v1
    s_lshl_b32 s4, s2, 2
    s_add_u32 s4, s4, s3                     ; gw
    s_mov_b32 s10, {2240*16384}
    s_mov_b32 s11, 0x00020000
    s_mov_b32 s14, 2293760
    s_mov_b32 s15, 0x00020000
    s_lshl_b32 s5, s4, 14
    v_lshlrev_b32 v3, 4, v2
    s_waitcnt lgkmcnt(0)
    """)
    for h in range(16):
        if h % 4 == 0 and h: e("s_add_u32 s5, s5, 4096")
        k.vmem(f"buffer_load_dwordx4 v[{16+4*h}:{19+4*h}], v3, s[8:11], s5 offen offset:{(h%4)*1024}", f"h{h}")
    e(f"""
    s_mul_i32 s6, s4, 2341
    s_lshr_b32 s6, s6, 16
    s_mul_i32 s7, s6, 28
    s_sub_u32 s7, s4, s7
    s_mul_i32 s6, s6, {32*896}
    s_lshl_b32 s7, s7, 5
    s_add_u32 s6, s6, s7
    v_and_b32 v4, 31, v2
    v_mul_u32_u24 v4, 896, v4
    v_lshrrev_b32 v5, 5, v2
    v_lshl_add_u32 v4, v5, 4, v4
    s_mov_b32 s16, 0xffff0000
    """)
    for h in range(16):
        k.wait(vm=[f"h{h}"])
        for q in range(4):
            r = 16 + 4 * h + q
            if h == 0:
                e(f"v_lshlrev_b32 v{8+2*q}, 16, v{r}\nv_and_b32 v{9+2*q}, s16, v{r}")
            else:
                e(f"v_lshlrev_b32 v6, 16, v{r}\nv_and_b32 v7, s16, v{r}\nv_add_f32 v{8+2*q}, v{8+2*q}, v6\nv_add_f32 v{9+2*q}, v{9+2*q}, v7")
    for q in range(4):
        e(f"v_cvt_pk_bf16_f32 v{8+q}, v{8+2*q}, v{9+2*q}")
    e("buffer_store_dwordx4 v[8:11], v4, s[12:15], s6 offen")
    if OPT['ts']:
        e("""s_waitcnt vmcnt(0)
        s_memrealtime s[22:23]
        s_add_u32 s8, s8, 0x0ff20000
        s_addc_u32 s9, s9, 0
        s_mov_b32 s10, 0x20000
        s_mov_b64 exec, 1
        s_lshl_b32 s5, s4, 4
        s_waitcnt lgkmcnt(0)
        v_mov_b32 v2, s20
        v_mov_b32 v3, s22
        v_mov_b32 v1, 0
        buffer_store_dwordx2 v[2:3], v1, s[8:11], s5 offen
        s_waitcnt vmcnt(0)""")
    e("L_rexit:")
    txt, added = k.text()
    return txt

def diag_kernel():
    A, B, KK = OPT['diag'].split(',')
    k = K(); e = k.e
    e("""s_memrealtime s[20:21]
    s_cmp_ge_u32 s2, 1
    s_cbranch_scc1 L_dexit
    s_load_dwordx2 s[8:9], s[0:1], 56
    s_mov_b32 s10, 0x100000
    s_mov_b32 s11, 0x00020000
    s_waitcnt lgkmcnt(0)
    s_add_u32 s8, s8, 0x0ff00000
    s_addc_u32 s9, s9, 0""")
    def val(spec, dst):
        if spec == 'now':
            e(f"s_mov_b32 {dst}, s20"); return
        kind = spec[0]; idx = int(spec[1:-3]); op = spec[-3:]
        if kind == 'm': n, stride, off = 4, 256, 8 + 8 * idx
        elif kind == 'p': n, stride, off = 4, 16, 0x40000 + 4 * idx
        else: n, stride, off = 35, 16, 0x20000 + 4 * idx
        e(f"v_mul_u32_u24 v1, {stride}, v0\nv_add_u32 v1, {off}, v1")
        for j in range(n):
            e(f"buffer_load_dword v{2+j}, v1, s[8:11], 0 offen\nv_add_u32 v1, {64*stride}, v1")
        e("s_waitcnt vmcnt(0)")
        for j in range(n): e(f"v_subrev_u32 v{2+j}, s20, v{2+j}")
        for j in range(1, n): e(f"v_{op}_i32 v2, v2, v{2+j}")
        e(f"s_nop 1\nv_readlane_b32 {dst}, v2, 0")
        for l in range(1, 64):
            e(f"v_readlane_b32 s30, v2, {l}\ns_{op}_i32 {dst}, {dst}, s30")
        e(f"s_add_u32 {dst}, {dst}, s20")
    val(A, 's24'); val(B, 's25')
    e(f"""s_sub_u32 s24, s25, s24
    s_mul_i32 s24, s24, {KK}
    s_min_u32 s24, s24, 40000
    s_add_u32 s24, s24, 300
    L_spin:
    s_memrealtime s[22:23]
    s_waitcnt lgkmcnt(0)
    s_sub_u32 s22, s22, s20
    s_cmp_lt_u32 s22, s24
    s_cbranch_scc1 L_spin
    L_dexit:""")
    return k.text()[0]

def pre_kernel():
    mods, infl, order = OPT['pre'].split(':'); infl = int(infl)
    k = K(); e = k.e
    e("""s_memrealtime s[20:21]
    s_cmp_ge_u32 s2, 256
    s_cbranch_scc1 L_pexit
    s_load_dwordx2 s[12:13], s[0:1], 8
    s_load_dwordx2 s[16:17], s[0:1], 16
    s_load_dwordx2 s[8:9], s[0:1], 56
    s_mov_b32 s14, 0x4000000
    s_mov_b32 s15, 0x00020000
    s_mov_b32 s18, 0x4000000
    s_mov_b32 s19, 0x00020000
    s_mov_b32 s10, 0x100000
    s_mov_b32 s11, 0x00020000
    v_lshrrev_b32 v1, 6, v0
    v_and_b32 v2, 63, v0
    v_readfirstlane_b32 s28, v1
    v_lshlrev_b32 v2, 4, v2
    s_lshl_b32 s3, s2, 18
    s_lshl_b32 s29, s28, 12
    s_add_u32 s3, s3, s29
    s_mul_i32 s32, s28, 40960
    s_waitcnt lgkmcnt(0)
    s_add_u32 s8, s8, 0x0ff40000
    s_addc_u32 s9, s9, 0""")
    i = 0
    for t in order:
        srd = "s[12:15]" if t == 'K' else "s[16:19]"
        for blk in range(16):
            e(f"s_add_u32 s33, s3, {blk*16384}\ns_add_u32 m0, s32, {(i % 10)*4096}")
            for ii in range(4):
                e(f"s_waitcnt vmcnt({infl-1})\nbuffer_load_dwordx4 v2, {srd}, s33 offen offset:{ii*1024} {mods} lds")
            i += 1
            if i == 16 + infl // 4 or (i == 16 and len(order) == 1): e("s_memrealtime s[22:23]")
    e("""s_waitcnt vmcnt(0)
    s_barrier
    s_memrealtime s[24:25]
    s_cmp_lg_u32 s28, 0
    s_cbranch_scc1 L_pexit
    s_mov_b64 exec, 1
    s_lshl_b32 s5, s2, 4
    s_waitcnt lgkmcnt(0)
    v_mov_b32 v4, s20
    v_mov_b32 v5, s22
    v_mov_b32 v6, s24
    v_mov_b32 v7, 0
    v_mov_b32 v1, 0
    buffer_store_dwordx4 v[4:7], v1, s[8:11], s5 offen
    s_waitcnt vmcnt(0)
    L_pexit:""")
    return k.text()[0]

if __name__ == "__main__":
    out = sys.argv[1]
    m = main_kernel()
    r = reduce_kernel()
    L = [("mha_main_kernel", 256, 256, 163840), ("mha_reduce_kernel", 560, 256, 0)]
    KS = [("mha_main_kernel", m, 512, 256), ("mha_reduce_kernel", r, 80, 80)]
    if OPT['pre']:
        L.insert(0, ("mha_pre_kernel", 256, 256, 163840)); KS.append(("mha_pre_kernel", pre_kernel(), 64, 64))
    if OPT['diag']:
        L.append(("mha_diag_kernel", 1, 64, 0)); KS.append(("mha_diag_kernel", diag_kernel(), 64, 64))
    write_file(out, HEADER, L, KS)
```

```python
import sys, math
sys.path.insert(0, "work")
from asmlib import K, write_file
from eng import Eng, Step, Fill, uid

OPT = dict(arr='N', ts=0, dump='', nt='nt', delay=2, maxlg=13, diag='', pre='', red=0, st='', ld='sc1')
for a in sys.argv[2:]:
    kk, vv = a.split('=')
    OPT[kk] = int(vv) if vv.lstrip('-').isdigit() else vv

HEADER = "".join(l for l in open("standalone__mha_block_cached__near_ridge.s.ref").read().splitlines(True)[:11])
MF = "v_mfma_f32_32x32x16_bf16"
def R(p, lo, n): return f"{p}[{lo}:{lo+n-1}]"
SX, SK, SV, SWQ, SWO, SWS = "s[8:11]", "s[12:15]", "s[16:19]", "s[20:23]", "s[24:27]", "s[28:31]"
sW, sB, sH, sKC = "s32", "s33", "s34", "s35"
sT0, sT1, sT2 = "s36", "s37", "s38"
sC = "s39"
sWQO, sXO, sM8, sM4, sKO, sWOO, sWLO = "s40", "s41", "s42", "s43", "s44", "s45", "s46"
sST = 47
sTS = 60
XB = 96 * 1024
S4 = 128 * 1024
SLOT = lambda n: ((n + 1) % 4) * 32768

def main_kernel():
    k = K(); e = k.e
    eng = Eng(k)
    nst = [0]
    def stamp():
        if OPT['ts']:
            k.wait(lg0=True)
            e(f"s_memrealtime s[{sTS+2*nst[0]}:{sTS+1+2*nst[0]}]\ns_waitcnt lgkmcnt(0)")
            nst[0] += 1
    def dump(name, regs):
        if OPT['dump'] != name: return
        eng.flush_dma()
        e("s_nop 7\ns_nop 7\ns_waitcnt vmcnt(0) lgkmcnt(0)")
        e(f"s_mul_i32 {sT0}, {sB}, 64\ns_lshl_b32 {sT1}, {sH}, 2\ns_add_u32 {sT0}, {sT0}, {sT1}\ns_add_u32 {sT0}, {sT0}, {sW}\ns_lshl_b32 {sT0}, {sT0}, 17")
        e("s_add_u32 s56, s4, 0x4000000\ns_addc_u32 s57, s5, 0\ns_mov_b32 s58, 0x8000000\ns_mov_b32 s59, 0x00020000")
        e("v_lshlrev_b32 v0, 2, v7")
        for i, r in enumerate(regs):
            e(f"buffer_store_dword {r}, v0, s[56:59], {sT0} offen\ns_add_u32 {sT0}, {sT0}, 256")
            if i % 32 == 31: e("s_waitcnt vmcnt(0)")
        e("s_waitcnt vmcnt(0)\ns_branch L_exit")

    if OPT['ts']:
        e(f"s_memrealtime s[{sTS}:{sTS+1}]"); nst[0] = 1
    e(f"""
    s_cmp_ge_u32 s2, 256
    s_cbranch_scc1 L_exit
    s_load_dwordx2 s[8:9], s[0:1], 0
    s_load_dwordx2 s[12:13], s[0:1], 8
    s_load_dwordx2 s[16:17], s[0:1], 16
    s_load_dwordx2 s[20:21], s[0:1], 24
    s_load_dwordx2 s[24:25], s[0:1], 32
    s_load_dwordx2 s[4:5], s[0:1], 56
    v_lshrrev_b32 v1, 6, v0
    v_and_b32 v7, 63, v0
    v_readfirstlane_b32 {sW}, v1
    s_and_b32 {sT0}, s2, 7
    s_lshr_b32 {sT1}, s2, 3
    """)
    arr = OPT['arr']
    if arr == 'N':
        e(f"""s_lshr_b32 {sB}, {sT0}, 1
        s_lshl_b32 {sB}, {sB}, 2
        s_lshr_b32 {sT2}, {sT1}, 3
        s_add_u32 {sB}, {sB}, {sT2}
        s_and_b32 {sH}, {sT0}, 1
        s_lshl_b32 {sH}, {sH}, 3
        s_and_b32 {sT2}, {sT1}, 7
        s_add_u32 {sH}, {sH}, {sT2}""")
    elif arr == 'L':
        e(f"""s_lshl_b32 {sB}, {sT0}, 1
        s_lshr_b32 {sT2}, {sT1}, 4
        s_add_u32 {sB}, {sB}, {sT2}
        s_and_b32 {sH}, {sT1}, 15""")
    elif arr == 'M':
        e(f"""s_lshr_b32 {sB}, {sT0}, 2
        s_lshl_b32 {sB}, {sB}, 3
        s_lshr_b32 {sT2}, {sT1}, 2
        s_add_u32 {sB}, {sB}, {sT2}
        s_and_b32 {sH}, {sT0}, 3
        s_lshl_b32 {sH}, {sH}, 2
        s_and_b32 {sT2}, {sT1}, 3
        s_add_u32 {sH}, {sH}, {sT2}""")
    e(f"""s_lshl_b32 {sT0}, {sH}, 1
    s_add_u32 {sT0}, {sT0}, {sB}
    s_mul_i32 {sT1}, {sT0}, 37
    s_lshr_b32 {sT1}, {sT1}, 8
    s_mul_i32 {sT1}, {sT1}, 7
    s_sub_u32 {sKC}, {sT0}, {sT1}
    s_mov_b32 s10, 143360
    s_mov_b32 s11, 0x00020000
    s_mov_b32 s14, 262144
    s_mov_b32 s15, 0x00020000
    s_mov_b32 s18, 262144
    s_mov_b32 s19, 0x00020000
    s_mov_b32 s23, 0x00020000
    s_mov_b32 s26, 229376
    s_mov_b32 s27, 0x00020000
    s_mov_b32 s30, {140*16384}
    s_mov_b32 s31, 0x00020000
    s_mov_b32 {sC}, 0x{f2u(math.log2(math.e)/16):08x}
    s_lshl_b32 {sM8}, {sW}, 13
    s_lshl_b32 {sM4}, {sW}, 12
    s_lshl_b32 {sWQO}, {sW}, 17
    s_mul_i32 {sXO}, {sW}, 7168
    """)
    e(f"""
    v_lshrrev_b32 v14, 5, v7                 ; p>>5
    v_and_b32 v15, 31, v7                    ; p&31
    v_lshlrev_b32 v1, 2, v14
    v_xor_b32 v1, v1, v15                    ; (p&31)^((p>>5)<<2)
    v_lshlrev_b32 v1, 4, v1
    v_lshl_add_u32 v2, v14, 13, v1
    v_xor_b32 v3, 0x80, v2
    v_add_u32 v3, 15360, v3                  ; ii=1
    v_add_u32 v4, 30720, v2                  ; ii=2
    v_add_u32 v5, 30720, v3                  ; ii=3
    v_lshl_add_u32 v12, v14, 9, v1
    v_xor_b32 v13, 0x80, v12
    s_and_b32 {sT2}, {sW}, 1
    s_lshl_b32 {sT0}, {sT2}, 2
    v_lshrrev_b32 v6, 4, v7
    v_xor_b32 v6, {sT0}, v6
    v_and_b32 v1, 7, v7
    v_xor_b32 v6, v6, v1
    v_lshlrev_b32 v6, 4, v6
    v_lshrrev_b32 v1, 3, v7
    v_mul_u32_u24 v1, 896, v1
    v_add_u32 v6, v6, v1                     ; x voff
    s_waitcnt lgkmcnt(0)
    s_mul_i32 {sT0}, {sB}, 143360
    s_add_u32 s8, s8, {sT0}
    s_addc_u32 s9, s9, 0
    s_lshl_b32 {sT0}, {sH}, 9
    s_add_u32 s20, s20, {sT0}
    s_addc_u32 s21, s21, 0
    s_sub_u32 s22, 3670016, {sT0}
    """)
    def dma_stage(i):
        G = []
        tag = f"A{i}"
        slot = (i % 3) * 32768
        xs = XB + (i % 3) * 20480
        for u in range(2):
            for ii in range(4):
                g = []
                if ii == 0:
                    if u == 0:
                        g.append(Fill('e', f"s_lshl_b32 {sT0}, {sKC}, 19\ns_add_u32 {sT0}, {sT0}, {sWQO}"))
                    else:
                        g.append(Fill('e', f"s_add_u32 {sT0}, {sT0}, 65536"))
                    g.append(Fill('e', f"s_add_u32 m0, {sM8}, {slot + u * 4096}"))
                g.append(Fill('vm', f"buffer_load_dwordx4 v{2+ii}, {SWQ}, {sT0} offen offset:{ii*1024} lds", tag=tag))
                G.append(g)
        for u in range(5):
            g = []
            if u == 0:
                g.append(Fill('e', f"s_lshl_b32 {sT1}, {sKC}, 7\ns_add_u32 {sT1}, {sT1}, {sXO}\ns_lshl_b32 {sT2}, {sW}, 10"))
            else:
                g.append(Fill('e', f"s_add_u32 {sT1}, {sT1}, {4*7168}"))
            g.append(Fill('e', f"s_add_u32 m0, {sT2}, {xs + u * 4096}"))
            g.append(Fill('vm', f"buffer_load_dwordx4 v6, {SX}, {sT1} offen lds", tag=tag))
            if u == 4:
                g.append(Fill('e', f"s_add_u32 {sKC}, {sKC}, 1\ns_cmp_eq_u32 {sKC}, 7\ns_cselect_b32 {sKC}, 0, {sKC}"))
            G.append(g)
        return G[8:10] + G[0:4] + G[10:13] + G[4:8] if False else G
    def dma_tile(n):
        G = []
        tag = f"T{n}"
        slot = SLOT(n)
        for u in range(2):
            for ii in range(4):
                g = []
                if n < 16:
                    blk = n % 8
                    if ii == 0:
                        g.append(Fill('e', f"s_add_u32 {sKO}, {sM4}, {blk*32768 + u*16384}\ns_add_u32 m0, {sM4}, {slot + u*16384}"))
                    vo = f"v{8+ii}" if n < 8 else f"v{12+(ii&1)}"
                    srd = SK if n < 8 else SV
                    g.append(Fill('vm', f"buffer_load_dwordx4 {vo}, {srd}, {sKO} offen offset:{ii*1024} {OPT['nt']} lds", tag=tag))
                elif n < 22:
                    gi, dh = (n - 16) // 2, (n - 16) % 2
                    if ii == 0:
                        g.append(Fill('e', f"s_add_u32 {sKO}, {sWOO}, {(dh*128 + 16*u)*896 + gi*256}\ns_add_u32 m0, {sM8}, {slot + u*4096}"))
                    g.append(Fill('vm', f"buffer_load_dwordx4 v{2+ii}, {SWO}, {sKO} offen offset:{ii*1024} lds", tag=tag))
                else:
                    if ii == 0:
                        g.append(Fill('e', f"s_add_u32 {sKO}, {sWLO}, {32*u*896 + 768}\ns_add_u32 m0, {sM8}, {slot + u*4096}"))
                    g.append(Fill('vm', f"buffer_load_dwordx4 v{8+ii}, {SWO}, {sKO} offen offset:{ii*1024} lds", tag=tag))
                G.append(g)
        return G
    eng.dma += dma_stage(0); eng.flush_dma()
    e(f"""
    s_lshl_b32 {sT0}, {sB}, 4
    s_add_u32 {sT0}, {sT0}, {sH}
    s_lshl_b32 {sT0}, {sT0}, 18
    s_add_u32 s12, s12, {sT0}
    s_addc_u32 s13, s13, 0
    s_add_u32 s16, s16, {sT0}
    s_addc_u32 s17, s17, 0
    s_mul_i32 {sT0}, {sH}, 229376
    s_add_u32 s24, s24, {sT0}
    s_addc_u32 s25, s25, 0
    s_mul_i32 {sT0}, {sB}, {140*16384}
    s_lshl_b32 {sT1}, {sH}, 10
    s_add_u32 {sT0}, {sT0}, {sT1}
    s_add_u32 s28, s4, {sT0}
    s_addc_u32 s29, s5, 0
    s_mul_i32 {sWOO}, {sW}, {32*896}
    s_mul_i32 {sWLO}, {sW}, {64*896}
    """)
    eng.dma += dma_stage(1) + dma_stage(2); eng.flush_dma()
    e(f"""
    s_and_b32 {sT2}, {sW}, 1
    s_lshl_b32 {sT0}, {sT2}, 3
    v_xor_b32 v1, v14, v15
    v_xor_b32 v1, {sT0}, v1
    v_lshlrev_b32 v1, 4, v1
    v_lshl_add_u32 v8, v14, 9, v1
    v_xor_b32 v9, 32, v8
    v_xor_b32 v10, 64, v8
    v_xor_b32 v11, 0x60, v8
    """)
    e(f"""
    v_bfe_u32 v63, v7, 2, 2                  ; r
    v_lshl_add_u32 v60, v14, 3, v63          ; 8hh+r
    v_bfe_u32 v1, v7, 4, 1
    v_lshlrev_b32 v62, 5, v1
    v_and_b32 v1, 1, v7
    v_lshl_add_u32 v62, v1, 4, v62
    v_bfe_u32 v1, v7, 1, 1
    v_lshl_add_u32 v62, v1, 3, v62
    v_lshl_add_u32 v61, v63, 6, v62
    s_lshl_b32 {sT0}, {sW}, 6
    v_lshl_add_u32 v16, v60, 9, v61
    v_xor_b32 v16, {sT0}, v16
    v_xor_b32 v17, 64, v16
    v_xor_b32 v18, 0x80, v16
    v_xor_b32 v19, 0xc0, v16
    """)
    e(f"""
    v_bfe_u32 v1, v7, 1, 3
    v_xor_b32 v1, v1, v14
    v_lshlrev_b32 v1, 4, v1
    v_lshl_add_u32 v1, v15, 7, v1
    v_add_u32 v24, {XB + 128*128}, v1
    s_lshl_b32 {sT0}, {sW}, 12
    s_add_u32 {sT0}, {sT0}, {XB}
    v_add_u32 v20, {sT0}, v1
    v_xor_b32 v21, 32, v20
    v_xor_b32 v22, 64, v20
    v_xor_b32 v23, 0x60, v20
    v_xor_b32 v25, 32, v24
    v_xor_b32 v26, 64, v24
    v_xor_b32 v27, 0x60, v24
    v_lshlrev_b32 v1, 4, v7
    """)
    hi = dict(tr=0, k=0, wo=0)
    def toggle(which, regs, want):
        if hi[which] == want: return []
        hi[which] = want
        return [('e', f"v_xor_b32 v{r}, 0x10000, v{r}") for r in regs]
    def barrier(vmtags, after=None, barid=None, st=False):
        def f():
            if barid is not None: eng.flush_fill(bar=barid)
            eng.flush_dma()
            for t in vmtags: assert t in k.vm, t
            k.wait(vm=vmtags, lg0=True)
            e("s_barrier")
            if st: stamp()
            if after: after()
        return f

    JORD = [0, 4, 1, 2, 3, 5, 6, 7]
    steps = []
    ringc = [0]
    def ringA(base, n, p):
        r = base + 4 * (ringc[0] % n); ringc[0] += 1
        return r
    for i in range(7):
        slot = (i % 3) * 32768
        xs = (i % 3) * 20480
        def after(i=i):
            if 1 <= i <= 4: eng.dma += dma_stage(i + 2)
            if i == 5: eng.dma += dma_tile(0)
            if i == 6: eng.dma += dma_tile(1)
        for T in range(4):
            xb = 40 + 8 * ((4 * i + T) % 2)
            for jn, j in enumerate(JORD):
                pre = []
                bar = None
                if T == 0 and jn == 0:
                    bar = barrier([f"A{i}"], after, st=(i in (0, 3)))
                    pre += toggle('tr', range(16, 20), slot >> 16)
                if jn == 0:
                    pre.append(('ds', f"ds_read_b128 {R('v', xb, 4)}, v{20+T} offset:{xs}"))
                r = ringA(224, 8, 'a')
                off = (slot & 0xffff) + (j >> 2) * 256 + T * 8192
                pre.append(('ds', f"ds_read_b64_tr_b16 {R('a', r, 2)}, v{16+(j&3)} offset:{off}"))
                pre.append(('ds', f"ds_read_b64_tr_b16 {R('a', r+2, 2)}, v{16+(j&3)} offset:{off+2048}"))
                acc = R('v', 64 + 16 * j, 16)
                first = (i == 0 and T == 0)
                steps.append(Step(f"{MF} {acc}, {R('a', r, 4)}, {R('v', xb, 4)}, {'0' if first else acc}", pre, bar))
                if j in (0, 4):
                    pre2 = [('ds', f"ds_read_b128 {R('v', xb+4, 4)}, v{24+T} offset:{xs}")] if j == 0 else []
                    acc = R('v', 192 + 16 * (j >> 2), 16)
                    steps.append(Step(f"{MF} {acc}, {R('a', r, 4)}, {R('v', xb+4, 4)}, {'0' if first else acc}", pre2))
    eng.run(steps, maxlg=OPT['maxlg'], delay=OPT['delay'], dma_every=2)
    eng.flush_dma()
    dump('Q', [f"v{r}" for r in range(64, 224)])
    e(f"s_lshl_b32 {sT0}, {sW}, 11\ns_add_u32 {sT0}, {sT0}, {S4}\nv_add_u32 v14, {sT0}, v1")
    for a in range(2):
        for half in range(2):
            src = 192 + 16 * a + 8 * half
            for q in range(4):
                e(f"v_cvt_pk_bf16_f32 v{src+q}, v{src+2*q}, v{src+2*q+1}")
            k.ds(f"ds_write_b128 v14, {R('v', src, 4)} offset:{a*8192 + half*1024}", 'qsh')
    e(f"""
    v_and_b32 v15, 0x13, v7
    v_bfe_u32 v20, v7, 2, 1
    v_lshl_or_b32 v15, v20, 3, v15
    v_bfe_u32 v20, v7, 3, 1
    v_lshl_or_b32 v15, v20, 2, v15           ; key
    v_lshrrev_b32 v20, 5, v7
    s_lshl_b32 {sT0}, {sW}, 2
    v_xor_b32 v20, {sT0}, v20
    v_and_b32 v21, 15, v15
    v_xor_b32 v20, v20, v21
    v_lshlrev_b32 v20, 4, v20
    v_lshl_add_u32 v20, v15, 9, v20
    s_and_b32 {sT0}, {sW}, 1
    s_lshl_b32 {sT0}, {sT0}, 14
    v_add_u32 v28, {sT0}, v20
    """)
    for v in range(1, 8):
        e(f"v_xor_b32 v{20+v}, {v*32}, v20\nv_xor_b32 v{28+v}, {v*32}, v28")
    for j in range(8):
        for q in range(8):
            src = 64 + 16 * j + 2 * q
            e(f"v_cvt_pk_bf16_f32 v{src}, v{src}, v{src+1}")
        for q in range(8):
            src = 64 + 16 * j + 2 * q
            e(f"v_accvgpr_write_b32 a{8*j+q}, v{src}")
    barrier(["T0"], None, st=True)()
    eng.dma += dma_tile(2) + dma_tile(3)
    e("v_xor_b32 v15, 0x800, v14\nv_xor_b32 v56, 0x1000, v14\nv_xor_b32 v57, 0x1800, v14")
    qa = [14, 15, 56, 57]
    ext = {}
    for j in range(8):
        for half in range(2):
            t = uid('q')
            k.ds(f"ds_read_b128 {R('a', 64+8*j+4*half, 4)}, v{qa[j&3]} offset:{(j>>2)*8192 + half*1024}", t)
    k.wait(lg0=True)
    dump('Qf', [f"a{r}" for r in range(128)])

    def Sreg(t):
        if t < 2: return ('v', 224 + 16 * t)
        if t < 12: return ('v', 64 + 16 * (t - 2))
        return ('a', 128 + 16 * (t - 12))
    vMX, vMS = 60, 61
    def max_fill(p, base, dst, first, early, tmp):
        F = []
        if p == 'a':
            for q in range(0, 16, 2):
                F.append(Fill('e', f"v_accvgpr_read_b32 v{tmp}, a{base+q}", early=early))
                F.append(Fill('e', f"v_accvgpr_read_b32 v{tmp+1}, a{base+q+1}", early=early))
                if first and q == 0: F.append(Fill('e', f"v_max_f32 v{dst}, v{tmp}, v{tmp+1}", early=early))
                else: F.append(Fill('e', f"v_max3_f32 v{dst}, v{tmp}, v{tmp+1}, v{dst}", early=early))
        else:
            for q in range(0, 16, 2):
                if first and q == 0: F.append(Fill('e', f"v_max_f32 v{dst}, v{base}, v{base+1}", early=early))
                else: F.append(Fill('e', f"v_max3_f32 v{dst}, v{base+q}, v{base+q+1}, v{dst}", early=early))
        return F
    def phaseS(par):
        steps = []
        ringc[0] = 0
        for blk in range(8):
            slot = SLOT(blk)
            def after(blk=blk):
                eng.dma += dma_tile(blk + 3)
            tiles = [('p', 0), ('p', 1)]
            if (blk & 1) == par: tiles = [('s', 0)] + tiles
            firststep = True
            for kind, kt in tiles:
                if kind == 'p':
                    p, base = Sreg(2 * blk + kt); qb = 0; ab = 20; off0 = kt * 16384
                else:
                    p, base = 'a', 192 + 16 * (blk >> 1); qb = 64; ab = 28; off0 = 0
                acc = R(p, base, 16)
                for j in range(8):
                    for half in range(2):
                        pre = []; bar = None
                        if firststep:
                            if blk > 0: bar = barrier([f"T{blk}"], after, st=(blk == 4))
                            pre += toggle('k', range(20, 36), slot >> 16)
                            firststep = False
                        r = ringA(36, 5, 'v')
                        off = (slot & 0xffff) + (j >> 2) * 256 + off0
                        pre.append(('ds', f"ds_read_b128 {R('v', r, 4)}, v{ab + (j&3)*2 + half} offset:{off}"))
                        first = (j == 0 and half == 0)
                        steps.append(Step(f"{MF} {acc}, {R('v', r, 4)}, {R('a', qb+8*j+4*half, 4)}, {'0' if first else acc}", pre, bar))
                if kind == 'p':
                    eng.fq += max_fill(p, base, vMX, blk == 0 and kt == 0, len(steps) + 1, 56)
                else:
                    eng.fq += max_fill(p, base, vMS, blk < 2, len(steps) + 1, 56)
        eng.run(steps, maxlg=OPT['maxlg'], delay=OPT['delay'], dma_every=2)
        eng.flush_dma()
        eng.flush_fill()
        k.wait(lg0=True)
    e(f"s_cmp_ge_u32 {sW}, 2\ns_cbranch_scc1 L_S1")
    vm0 = list(k.vm); dq = list(eng.dma); hk = dict(hi); ns0 = nst[0]
    phaseS(0)
    e("s_nop 1\ns_branch L_Sdone\nL_S1:\ns_nop 1")
    vm1 = list(k.vm)
    k.vm = vm0; eng.dma = dq; hi.update(hk); nst[0] = ns0
    phaseS(1)
    assert k.vm == vm1
    e("s_nop 1\nL_Sdone:")
    allS = []
    for t in range(16):
        p, b = Sreg(t); allS += [f"{p}{b+q}" for q in range(16)]
    dump('S', allS + [f"a{r}" for r in range(192, 256)] + ['v60', 'v61'])

    MXO = S4 + 31 * 1024
    e(f"""
    v_mov_b32 v56, v60
    v_mov_b32 v57, v61
    v_permlane32_swap_b32 v56, v60
    v_permlane32_swap_b32 v57, v61
    v_max_f32 v60, v56, v60
    v_max_f32 v61, v57, v61
    v_and_b32 v14, 31, v7
    v_lshlrev_b32 v14, 2, v14
    v_add_u32 v14, {MXO}, v14
    s_lshl_b32 {sT0}, {sW}, 7
    v_add_u32 v15, {sT0}, v14
    """)
    k.ds("ds_write_b32 v15, v61", 'mx')
    e(f"""
    v_lshrrev_b32 v56, 4, v7
    v_lshlrev_b32 v57, 2, v56
    v_and_b32 v2, 15, v7
    v_xor_b32 v2, v2, v57
    v_lshlrev_b32 v2, 4, v2
    v_mul_u32_u24 v57, 896, v56
    v_add_u32 v2, v2, v57
    v_add_u32 v3, 2560, v2
    v_add_u32 v4, 5120, v2
    v_add_u32 v5, 7680, v2
    v_and_b32 v56, 1, v56
    v_lshlrev_b32 v56, 2, v56
    v_and_b32 v8, 7, v7
    v_xor_b32 v8, v8, v56
    v_lshlrev_b32 v8, 4, v8
    v_lshrrev_b32 v56, 3, v7
    v_mul_u32_u24 v56, 896, v56
    v_add_u32 v8, v8, v56
    v_add_u32 v9, 6144, v8
    v_add_u32 v10, 12288, v8
    v_add_u32 v11, 18432, v8
    v_mul_f32 v60, {sC}, v60                 ; m*c private
    """)
    barrier([], None, st=True)()
    for w_ in range(4):
        k.ds(f"ds_read_b32 v{56+w_}, v14 offset:{w_*128}", 'mxr')
    eng.dma += dma_tile(11); eng.flush_dma()
    vSP, vSS = 62, 63
    e("v_mov_b32 v6, v62\nv_mov_b32 v0, v63")
    def exp_fill(p, base, n, tmp, mreg, sreg, first, early, dead, dst=None):
        F = []
        kw = dict(early=early, dead=dead)
        for q0 in range(0, n, 8):
            w0 = (tmp + q0) if p == 'a' else (base + q0)
            for q in range(8):
                if p == 'a':
                    F.append(Fill('e', f"v_accvgpr_read_b32 v{w0+q}, a{base+q0+q}", **kw))
            for q in range(8):
                F.append(Fill('e', f"v_fma_f32 v{w0+q}, v{w0+q}, {sC}, -v{mreg}", **kw))
            for q in range(8):
                F.append(Fill('e', f"v_exp_f32 v{w0+q}, v{w0+q}", cost=8, **kw))
                if q >= 1:
                    if first and q0 == 0 and q == 1: F.append(Fill('e', f"v_mov_b32 v{sreg}, v{w0}", **kw))
                    else: F.append(Fill('e', f"v_add_f32 v{sreg}, v{sreg}, v{w0+q-1}", **kw))
            F.append(Fill('e', f"v_cvt_pk_bf16_f32 v{w0}, v{w0}, v{w0+1}", **kw))
            F.append(Fill('e', f"v_add_f32 v{sreg}, v{sreg}, v{w0+7}", **kw))
            for q in range(1, 4):
                F.append(Fill('e', f"v_cvt_pk_bf16_f32 v{w0+q}, v{w0+2*q}, v{w0+2*q+1}", **kw))
        return F
    def Preg(t):
        if t < 12: return Sreg(t)[1]
        return Sreg(t - 12)[1]
    eng.fq += exp_fill('v', Sreg(0)[1], 16, 0, 60, vSP, True, -1, 0); eng.flush_fill()
    k.wait(lg=['mxr'])
    e("v_max3_f32 v61, v56, v57, v58\nv_max_f32 v61, v61, v59")
    e(f"v_mul_f32 v61, {sC}, v61")
    e(f"s_lshl_b32 {sT0}, {sW}, 11\ns_add_u32 {sT0}, {sT0}, {S4}\nv_add_u32 v15, {sT0}, v1\nv_add_u32 v14, {S4}, v1")
    def sh_fill(u, half, early, bdead, first=False):
        F = exp_fill('a', 192 + 16 * u + 8 * half, 8, 28, 61, vSS, first, early, 10**9)
        F.append(Fill('ds', f"ds_write_b128 v15, v[28:31] offset:{u*8192 + half*1024}", cost=8, early=early, tag='psh'))
        for f in F: f.bdead = bdead
        return F
    for u in range(2):
        for half in range(2):
            eng.fq += sh_fill(u, half, -1, 0, first=(u == 0 and half == 0))
    eng.fq += exp_fill('v', Sreg(1)[1], 16, 0, 60, vSP, False, -1, 0)
    eng.flush_fill()

    steps = []
    ringc[0] = 0
    SUMO = 0
    for blk in range(8):
        n = 8 + blk
        slot = SLOT(n)
        s0 = len(steps)
        def after(n=n):
            if n > 8: eng.dma += dma_tile(n + 3)
        for T in range(4):
            pb = Preg(2 * blk + (T >> 1)) + 8 * (T & 1)
            sb = 20 + 4 * (T & 1)
            for jn, j in enumerate(JORD):
                pre = []; bar = None
                if T == 0 and jn == 0:
                    bar = barrier([f"T{n}"], after, barid=blk, st=(blk in (0, 4)))
                    pre += toggle('tr', range(16, 20), slot >> 16)
                r = ringA(36, 5, 'v')
                off = (slot & 0xffff) + (j >> 2) * 256 + T * 8192
                pre.append(('ds', f"ds_read_b64_tr_b16 {R('v', r, 2)}, v{16+(j&3)} offset:{off}"))
                pre.append(('ds', f"ds_read_b64_tr_b16 {R('v', r+2, 2)}, v{16+(j&3)} offset:{off+2048}"))
                acc = R('a', 16 * j, 16)
                first = (blk == 0 and T == 0)
                steps.append(Step(f"{MF} {acc}, {R('v', r, 4)}, {R('v', pb, 4)}, {'0' if first else acc}", pre, bar))
                if j in (0, 4):
                    pre2 = [('ds', f"ds_read_b128 {R('v', sb, 4)}, v14 offset:{(4*blk+T)*1024}")] if j == 0 else []
                    acc = R('a', 192 + 16 * (j >> 2), 16)
                    steps.append(Step(f"{MF} {acc}, {R('v', r, 4)}, {R('v', sb, 4)}, {'0' if first else acc}", pre2))
        if blk < 4:
            eng.fq += sh_fill(2 + (blk >> 1), blk & 1, s0, 4 + 2 * (blk >> 1))
        if blk == 4:
            eng.fq.append(Fill('e', f"v_mov_b32 v28, v{vSS}", early=s0))
            eng.fq.append(Fill('e', f"v_lshrrev_b32 v29, 2, v1", early=s0))
            eng.fq.append(Fill('e', f"v_permlane32_swap_b32 v28, v{vSS}", early=s0))
            eng.fq.append(Fill('e', f"v_add_u32 v29, {S4}, v29", early=s0))
            eng.fq.append(Fill('e', f"s_lshl_b32 {sT0}, {sW}, 8\nv_add_f32 v28, v28, v{vSS}", early=s0))
            eng.fq.append(Fill('e', f"v_add_u32 v30, {sT0}, v29", early=s0))
            eng.fq.append(Fill('ds', f"ds_write_b32 v30, v28", early=s0, bdead=5, tag='sum'))
        if blk == 5:
            for w_ in range(4):
                eng.fq.append(Fill('ds', f"ds_read_b32 v{30+w_}, v29 offset:{w_*256}", early=s0, tag='sumr'))
        if blk == 6:
            eng.fq.append(Fill('e', f"v_add_f32 v30, v30, v31", early=s0, lgneed=['sumr']))
            eng.fq.append(Fill('e', f"v_add_f32 v32, v32, v33", early=s0))
            eng.fq.append(Fill('e', f"v_add_f32 v30, v30, v32", early=s0))
            eng.fq.append(Fill('e', f"v_rcp_f32 v{vSS}, v30", early=s0, cost=8))
        if blk < 7:
            for kt in range(2):
                t = 2 * blk + 2 + kt
                p, base = Sreg(t)
                dead = s0 + 40 + 20 * kt
                eng.fq += exp_fill(p, base, 16, Preg(t), 60, vSP, False, s0, dead)
        if blk == 7:
            eng.fq.append(Fill('e', f"v_mov_b32 v28, v{vSP}", early=s0))
            eng.fq.append(Fill('e', f"s_nop 0\nv_permlane32_swap_b32 v28, v{vSP}", early=s0))
            eng.fq.append(Fill('e', f"v_add_f32 v28, v28, v{vSP}", early=s0))
            eng.fq.append(Fill('e', f"v_rcp_f32 v{vSP}, v28", early=s0, cost=8))
    eng.run(steps, maxlg=OPT['maxlg'], delay=OPT['delay'], dma_every=3)
    eng.flush_dma(); eng.flush_fill()
    dump('O', [f"a{r}" for r in range(128)] + [f"a{r}" for r in range(192, 224)] + [f"v{vSP}", f"v{vSS}"])

    def conv_fill(abase, tmp, dst, inv, early, dead):
        F = []
        kw = dict(early=early, dead=dead)
        for q in range(8): F.append(Fill('e', f"v_accvgpr_read_b32 v{tmp+q}, a{abase+q}", **kw))
        for q in range(8): F.append(Fill('e', f"v_mul_f32 v{tmp+q}, v{tmp+q}, v{inv}", **kw))
        for q in range(4): F.append(Fill('e', f"v_cvt_pk_bf16_f32 v{dst+q}, v{tmp+2*q}, v{tmp+2*q+1}", **kw))
        return F
    for a in range(2):
        for half in range(2):
            eng.fq += conv_fill(192 + 16 * a + 8 * half, 208 + 8 * (2*a+half), 208 + 8 * (2*a+half), vSS, -1, 0)
            eng.fq.append(Fill('ds', f"ds_write_b128 v15, {R('v', 208 + 8*(2*a+half), 4)} offset:{a*8192 + half*1024}", tag='osh'))
    eng.flush_fill()
    e(f"""
    v_lshrrev_b32 v56, 5, v7
    v_lshl_add_u32 v56, v56, 3, v0           ; 8hh+r
    v_lshl_add_u32 v57, v0, 6, v6
    v_lshl_add_u32 v57, v56, 8, v57
    s_mul_i32 {sT0}, {sW}, {8192+64}
    v_xor_b32 v16, {sT0}, v57
    """)
    for j in range(4):
        for t in range(4):
            if j or t: e(f"v_xor_b32 v{16+4*j+t}, {j*8192+t*64}, v16")
    LA = [32, 33, 34, 35, 56, 57, 58, 59]
    e(f"""
    v_lshrrev_b32 v57, 1, v0
    v_lshl_add_u32 v57, v57, 6, v6
    v_lshl_add_u32 v57, v56, 7, v57
    s_and_b32 {sT1}, {sW}, 1
    s_lshl_b32 {sT1}, {sT1}, 6
    s_lshl_b32 {sT0}, {sW}, 12
    s_add_u32 {sT0}, {sT0}, {sT1}
    s_add_u32 {sT0}, {sT0}, {SLOT(22) & 0x10000}
    v_xor_b32 v32, {sT0}, v57
    """)
    for j in range(4):
        for t in range(2):
            if j or t: e(f"v_xor_b32 v{LA[2*j+t]}, {j*4096+t*64}, v32")
    for t in range(4):
        e(f"s_xor_b32 {sT0}, {sW}, {t}\ns_mul_i32 {sT1}, {sW}, 14\ns_add_u32 {sT0}, {sT0}, {sT1}\ns_lshl_b32 s{sST+t}, {sT0}, 15")
    e(f"s_add_u32 {sT0}, {sW}, 56\ns_lshl_b32 s{sST+4}, {sT0}, 15")
    e(f"s_and_b32 {sT2}, {sW}, 1\ns_add_u32 {sT0}, {sT1}, {sT2}\ns_add_u32 {sT0}, {sT0}, 12\ns_lshl_b32 s{sST+5}, {sT0}, 15")
    e(f"s_sub_u32 {sT0}, {sT1}, {sT2}\ns_add_u32 {sT0}, {sT0}, 13\ns_lshl_b32 s{sST+6}, {sT0}, 15")
    e(f"s_add_u32 {sT0}, {sT2}, 68\ns_lshl_b32 s{sST+7}, {sT0}, 15")
    e(f"""v_add_u32 v12, 16384, v1
    s_lshr_b32 {sT0}, {sW}, 1
    s_lshl_b32 {sT0}, {sT0}, 30
    v_add_u32 v13, {sT0}, v1
    v_add_u32 v60, {sT0}, v12""")
    OF = 144
    eng.fq += conv_fill(0, 240, OF, vSP, -1, 0) + conv_fill(8, 248, OF + 4, vSP, -1, 0)
    eng.flush_fill()
    barrier(["T16"], None, st=True)()
    eng.dma += dma_tile(19)
    e("v_xor_b32 v61, 0x800, v15\nv_xor_b32 v14, 0x1000, v15\nv_xor_b32 v6, 0x1800, v15")
    qa = [15, 61, 14, 6]
    hi['wo'] = 0
    steps = []
    ringc[0] = 0
    ACC = [('v', 64), ('a', 0), ('v', 64), ('v', 208)]
    def store_fill(g, early):
        p, base = ACC[g]
        nt = 5 if g < 3 else 3
        F = []
        for t in range(nt):
            for half in range(2):
                src = base + 16 * t + 8 * half
                if p == 'a':
                    tmp = 208 + 8 * ((2 * t + half) % 6)
                    for q in range(8): F.append(Fill('e', f"v_accvgpr_read_b32 v{tmp+q}, a{src+q}", early=early))
                    src = tmp
                for q in range(4): F.append(Fill('e', f"v_cvt_pk_bf16_f32 v{src+q}, v{src+2*q}, v{src+2*q+1}", early=early))
                if g < 3:
                    so = f"s{sST+t}"; vo = 'v1' if half == 0 else 'v12'
                else:
                    so = f"s{sST+5+t}"; vo = ('v1' if half == 0 else 'v12') if t < 2 else ('v13' if half == 0 else 'v60')
                F.append(Fill('vm', f"buffer_store_dwordx4 {R('v', src, 4)}, {vo}, {SWS}, {so} offen {OPT['st']}", cost=16, early=early, tag='st'))
            if g < 2: F.append(Fill('e', f"s_add_u32 s{sST+t}, s{sST+t}, {4*32768}", early=early))
        return F
    for g in range(4):
        p, base = ACC[g]
        sg = len(steps)
        for j in range(8):
            n = 16 + 2 * g + (j >> 2) if g < 3 else 22
            slot = SLOT(n)
            def after(n=n):
                if n + 3 <= 22: eng.dma += dma_tile(n + 3)
            for half in range(2):
                nt = 4 if g < 3 else 2
                for t in range(nt):
                    pre = []; bar = None
                    if t == 0 and half == 0 and ((j & 3) == 0 if g < 3 else j == 0):
                        if n > 16: bar = barrier([f"T{n}"], after, st=(n in (18, 20, 22)))
                        if g < 3: pre += toggle('wo', range(16, 32), slot >> 16)
                    r = ringA(36, 5, 'v')
                    if g < 3:
                        ar = 16 + 4 * (j & 3) + t; off = (slot & 0xffff) + half * 4096; so = 1024
                    else:
                        ar = LA[2 * (j & 3) + t]; off = (slot & 0xffff) + (j >> 2) * 16384 + half * 2048; so = 512
                    pre.append(('ds', f"ds_read_b64_tr_b16 {R('v', r, 2)}, v{ar} offset:{off}"))
                    pre.append(('ds', f"ds_read_b64_tr_b16 {R('v', r+2, 2)}, v{ar} offset:{off+so}"))
                    acc = R(p, base + 16 * t, 16)
                    first = (j == 0 and half == 0)
                    steps.append(Step(f"{MF} {acc}, {R('v', r, 4)}, {R('v', OF+8*j+4*half, 4)}, {'0' if first else acc}", pre, bar))
                    if t == 0:
                        pre2 = []
                        if g == 0:
                            pre2 = [('ds', f"ds_read_b128 {R('a', 128+8*j+4*half, 4)}, v{qa[j&3]} offset:{(j>>2)*8192 + half*1024}")]
                        acc = R(p, base + 16 * nt, 16)
                        steps.append(Step(f"{MF} {acc}, {R('v', r, 4)}, {R('a', 128+8*j+4*half, 4)}, {'0' if first else acc}", pre2))
                if g == 0 and j < 7:
                    jj = j + 1
                    eng.fq += conv_fill(16 * jj + 8 * half, 240 + 8 * half, OF + 8 * jj + 4 * half, vSP, -1, 10 * jj + 5 * half)
        if g >= 1:
            F = store_fill(g - 1, sg + 1)
            nxt = sg + (80 if g < 3 else 48)
            for f in F: f.dead = nxt
            eng.fq += F
    eng.run(steps, maxlg=OPT['maxlg'], delay=OPT['delay'], dma_every=3)
    eng.flush_dma(); eng.flush_fill()
    eng.fq += store_fill(3, -1); eng.flush_fill()
    if OPT['red'] == 1:
        stamp()
        e(f"""s_load_dwordx2 s[56:57], s[0:1], 48
        s_load_dwordx2 s[8:9], s[0:1], 40
        s_mov_b32 s58, 256
        s_mov_b32 s59, 0x00020000
        s_lshl_b32 {sT0}, {sH}, 10
        s_sub_u32 s28, s28, {sT0}
        s_subb_u32 s29, s29, 0
        s_lshl_b32 {sT0}, {sH}, 2
        s_add_u32 {sT0}, {sT0}, {sW}
        s_mul_i32 {sT0}, {sT0}, 140
        v_add_u32 v2, {sT0}, v7                  ; u
        v_lshrrev_b32 v3, 6, v2                  ; f
        v_and_b32 v2, 63, v2                     ; l'
        v_lshlrev_b32 v4, 4, v2
        v_lshl_add_u32 v4, v3, 14, v4
        v_add_u32 v5, 16384, v4
        v_add_u32 v6, 32768, v4
        v_cmp_gt_u32 vcc, 12, v7
        v_mov_b32 v8, 0x40000000
        v_cndmask_b32 v6, v8, v6, vcc
        v_and_b32 v9, 31, v2
        v_mul_u32_u24 v9, 896, v9
        v_lshrrev_b32 v2, 5, v2
        v_lshl_add_u32 v9, v2, 4, v9             ; (l'&31)*896 + 16*(l'>>5)
        """)
        for p in range(3):
            e(f"""v_add_u32 v2, {p}, v3
            v_mul_u32_u24 v13, 2341, v2
            v_lshrrev_b32 v13, 16, v13               ; qt
            v_mul_u32_u24 v14, 28, v13
            v_sub_u32 v2, v2, v14
            v_mul_u32_u24 v13, {32*896}, v13
            v_lshl_add_u32 v13, v2, 5, v13
            v_add_u32 v{10+p}, v13, v9""")
        e(f"""v_cndmask_b32 v12, v8, v12, vcc
        v_and_b32 v2, 31, v7                     ; m
        v_lshrrev_b32 v3, 3, v2
        v_lshlrev_b32 v3, 1, v3
        v_bfe_u32 v13, v2, 1, 1
        v_or_b32 v3, v3, v13                     ; j>>1 (>=4 when m>=16)
        v_bfe_u32 v13, v2, 2, 1
        v_lshrrev_b32 v14, 5, v7
        v_xor_b32 v13, v13, v14
        v_lshl_or_b32 v3, v13, 3, v3
        v_and_b32 v2, 1, v2
        v_lshlrev_b32 v2, 4, v2
        v_mov_b32 v13, 0x3f80
        v_lshlrev_b32 v2, v2, v13""")
        for r in range(4):
            e(f"v_cmp_eq_u32 vcc, {r}, v3\nv_cndmask_b32 v{16+r}, 0, v2, vcc")
        e(f"""s_waitcnt lgkmcnt(0)
        s_mul_i32 {sT0}, {sB}, 143360
        s_add_u32 s8, s8, {sT0}
        s_addc_u32 s9, s9, 0""")
        k.wait(vm0=True)
        stamp()
        e(f"""s_barrier
        s_cmp_lg_u32 {sW}, 0
        s_cbranch_scc1 L_polled
        s_mov_b64 exec, 1
        s_lshl_b32 {sT0}, {sB}, 4
        v_mov_b32 v2, 1
        v_mov_b32 v3, {sT0}
        buffer_atomic_add v2, v3, s[56:59], 0 offen sc1
        s_mov_b32 {sT1}, 0
        L_poll:
        buffer_load_dword v2, v3, s[56:59], 0 offen sc1
        s_add_u32 {sT1}, {sT1}, 1
        s_cmp_gt_u32 {sT1}, 20000
        s_cbranch_scc1 L_pollx
        s_waitcnt vmcnt(0)
        v_readfirstlane_b32 {sT0}, v2
        s_cmp_lt_u32 {sT0}, 16
        s_cbranch_scc1 L_poll
        L_pollx:
        s_mov_b64 exec, -1
        L_polled:
        s_barrier""")
        stamp()
        for p in range(3):
            for h in range(16):
                if h % 4 == 0: e(f"s_mov_b32 {sT0}, {h*1024}")
                r = 64 * p + 4 * h
                k.vmem(f"buffer_load_dwordx4 {R('a', r, 4)}, v{4+p}, {SWS}, {sT0} offen offset:{(h%4)*1024} {OPT['ld']}", f"r{p}_{h}")
        for p in range(3):
            acc = R('v', 64 + 16 * p, 16)
            for h in range(16):
                k.wait(vm=[f"r{p}_{h}"])
                e(f"{MF} {acc}, v[16:19], {R('a', 64*p+4*h, 4)}, {'0' if h == 0 else acc}")
        for p in range(3):
            for q in range(4):
                e(f"v_cvt_pk_bf16_f32 v{64+16*p+q}, v{64+16*p+2*q}, v{64+16*p+2*q+1}")
            k.vmem(f"buffer_store_dwordx4 {R('v', 64+16*p, 4)}, v{10+p}, {SX}, 0 offen", 'o')
    if OPT['ts']:
        stamp()
        k.wait(vm0=True)
        stamp()
        e(f"""s_add_u32 s56, s4, 0x0ff00000
        s_addc_u32 s57, s5, 0
        s_mov_b32 s58, 0x100000
        s_mov_b32 s59, 0x00020000
        s_cmp_lg_u32 {sW}, 0
        s_cbranch_scc1 L_exit
        s_mov_b64 exec, 1
        s_lshl_b32 s3, s2, 8
        v_mov_b32 v1, s3
        v_mov_b32 v2, {nst[0]}
        v_mov_b32 v3, 0
        buffer_store_dwordx2 v[2:3], v1, s[56:59], 0 offen""")
        for j in range(nst[0]):
            e(f"v_mov_b32 v4, s{sTS+2*j}\nv_mov_b32 v5, s{sTS+1+2*j}\nbuffer_store_dwordx2 v[4:5], v1, s[56:59], 0 offen offset:{8+8*j}\ns_nop 1")
        e("s_waitcnt vmcnt(0)")
    e("L_exit:")
    txt, added = k.text()
    print(f"main: {len(k.L)} lines, nops added {added}, forced fills {eng.forced}, stamps {nst[0]}", file=sys.stderr)
    return txt

def f2u(x):
    import struct
    return struct.unpack('<I', struct.pack('<f', x))[0]

def reduce_kernel():
    k = K(); e = k.e
    if OPT['ts']: e("s_memrealtime s[20:21]")
    e(f"""
    s_cmp_ge_u32 s2, 560
    s_cbranch_scc1 L_rexit
    s_load_dwordx2 s[8:9], s[0:1], 56
    s_load_dwordx2 s[12:13], s[0:1], 40
    v_lshrrev_b32 v1, 6, v0
    v_and_b32 v2, 63, v0
    v_readfirstlane_b32 s3, v1
    s_lshl_b32 s4, s2, 2
    s_add_u32 s4, s4, s3                     ; gw
    s_mov_b32 s10, {2240*16384}
    s_mov_b32 s11, 0x00020000
    s_mov_b32 s14, 2293760
    s_mov_b32 s15, 0x00020000
    s_lshl_b32 s5, s4, 14
    v_lshlrev_b32 v3, 4, v2
    s_waitcnt lgkmcnt(0)
    """)
    for h in range(16):
        if h % 4 == 0 and h: e("s_add_u32 s5, s5, 4096")
        k.vmem(f"buffer_load_dwordx4 v[{16+4*h}:{19+4*h}], v3, s[8:11], s5 offen offset:{(h%4)*1024}", f"h{h}")
    e(f"""
    s_mul_i32 s6, s4, 2341
    s_lshr_b32 s6, s6, 16
    s_mul_i32 s7, s6, 28
    s_sub_u32 s7, s4, s7
    s_mul_i32 s6, s6, {32*896}
    s_lshl_b32 s7, s7, 5
    s_add_u32 s6, s6, s7
    v_and_b32 v4, 31, v2
    v_mul_u32_u24 v4, 896, v4
    v_lshrrev_b32 v5, 5, v2
    v_lshl_add_u32 v4, v5, 4, v4
    s_mov_b32 s16, 0xffff0000
    """)
    for h in range(16):
        k.wait(vm=[f"h{h}"])
        for q in range(4):
            r = 16 + 4 * h + q
            if h == 0:
                e(f"v_lshlrev_b32 v{8+2*q}, 16, v{r}\nv_and_b32 v{9+2*q}, s16, v{r}")
            else:
                e(f"v_lshlrev_b32 v6, 16, v{r}\nv_and_b32 v7, s16, v{r}\nv_add_f32 v{8+2*q}, v{8+2*q}, v6\nv_add_f32 v{9+2*q}, v{9+2*q}, v7")
    for q in range(4):
        e(f"v_cvt_pk_bf16_f32 v{8+q}, v{8+2*q}, v{9+2*q}")
    e("buffer_store_dwordx4 v[8:11], v4, s[12:15], s6 offen")
    if OPT['ts']:
        e("""s_waitcnt vmcnt(0)
        s_memrealtime s[22:23]
        s_add_u32 s8, s8, 0x0ff20000
        s_addc_u32 s9, s9, 0
        s_mov_b32 s10, 0x20000
        s_mov_b64 exec, 1
        s_lshl_b32 s5, s4, 4
        s_waitcnt lgkmcnt(0)
        v_mov_b32 v2, s20
        v_mov_b32 v3, s22
        v_mov_b32 v1, 0
        buffer_store_dwordx2 v[2:3], v1, s[8:11], s5 offen
        s_waitcnt vmcnt(0)""")
    e("L_rexit:")
    txt, added = k.text()
    return txt

def diag_kernel():
    A, B, KK = OPT['diag'].split(',')
    k = K(); e = k.e
    e("""s_memrealtime s[20:21]
    s_cmp_ge_u32 s2, 1
    s_cbranch_scc1 L_dexit
    s_load_dwordx2 s[8:9], s[0:1], 56
    s_mov_b32 s10, 0x100000
    s_mov_b32 s11, 0x00020000
    s_waitcnt lgkmcnt(0)
    s_add_u32 s8, s8, 0x0ff00000
    s_addc_u32 s9, s9, 0""")
    def val(spec, dst):
        if spec == 'now':
            e(f"s_mov_b32 {dst}, s20"); return
        kind = spec[0]; idx = int(spec[1:-3]); op = spec[-3:]
        if kind == 'm': n, stride, off = 4, 256, 8 + 8 * idx
        elif kind == 'p': n, stride, off = 4, 16, 0x40000 + 4 * idx
        else: n, stride, off = 35, 16, 0x20000 + 4 * idx
        e(f"v_mul_u32_u24 v1, {stride}, v0\nv_add_u32 v1, {off}, v1")
        for j in range(n):
            e(f"buffer_load_dword v{2+j}, v1, s[8:11], 0 offen\nv_add_u32 v1, {64*stride}, v1")
        e("s_waitcnt vmcnt(0)")
        for j in range(n): e(f"v_subrev_u32 v{2+j}, s20, v{2+j}")
        for j in range(1, n): e(f"v_{op}_i32 v2, v2, v{2+j}")
        e(f"s_nop 1\nv_readlane_b32 {dst}, v2, 0")
        for l in range(1, 64):
            e(f"v_readlane_b32 s30, v2, {l}\ns_{op}_i32 {dst}, {dst}, s30")
        e(f"s_add_u32 {dst}, {dst}, s20")
    val(A, 's24'); val(B, 's25')
    e(f"""s_sub_u32 s24, s25, s24
    s_mul_i32 s24, s24, {KK}
    s_min_u32 s24, s24, 40000
    s_add_u32 s24, s24, 300
    L_spin:
    s_memrealtime s[22:23]
    s_waitcnt lgkmcnt(0)
    s_sub_u32 s22, s22, s20
    s_cmp_lt_u32 s22, s24
    s_cbranch_scc1 L_spin
    L_dexit:""")
    return k.text()[0]

def pre_kernel():
    mods, infl, order = OPT['pre'].split(':'); infl = int(infl)
    k = K(); e = k.e
    e("""s_memrealtime s[20:21]
    s_cmp_ge_u32 s2, 256
    s_cbranch_scc1 L_pexit
    s_load_dwordx2 s[12:13], s[0:1], 8
    s_load_dwordx2 s[16:17], s[0:1], 16
    s_load_dwordx2 s[8:9], s[0:1], 56
    s_mov_b32 s14, 0x4000000
    s_mov_b32 s15, 0x00020000
    s_mov_b32 s18, 0x4000000
    s_mov_b32 s19, 0x00020000
    s_mov_b32 s10, 0x100000
    s_mov_b32 s11, 0x00020000
    v_lshrrev_b32 v1, 6, v0
    v_and_b32 v2, 63, v0
    v_readfirstlane_b32 s28, v1
    v_lshlrev_b32 v2, 4, v2
    s_lshl_b32 s3, s2, 18
    s_lshl_b32 s29, s28, 12
    s_add_u32 s3, s3, s29
    s_mul_i32 s32, s28, 40960
    s_waitcnt lgkmcnt(0)
    s_add_u32 s8, s8, 0x0ff40000
    s_addc_u32 s9, s9, 0""")
    i = 0
    for t in order:
        srd = "s[12:15]" if t == 'K' else "s[16:19]"
        for blk in range(16):
            e(f"s_add_u32 s33, s3, {blk*16384}\ns_add_u32 m0, s32, {(i % 10)*4096}")
            for ii in range(4):
                e(f"s_waitcnt vmcnt({infl-1})\nbuffer_load_dwordx4 v2, {srd}, s33 offen offset:{ii*1024} {mods} lds")
            i += 1
            if i == 16 + infl // 4 or (i == 16 and len(order) == 1): e("s_memrealtime s[22:23]")
    e("""s_waitcnt vmcnt(0)
    s_barrier
    s_memrealtime s[24:25]
    s_cmp_lg_u32 s28, 0
    s_cbranch_scc1 L_pexit
    s_mov_b64 exec, 1
    s_lshl_b32 s5, s2, 4
    s_waitcnt lgkmcnt(0)
    v_mov_b32 v4, s20
    v_mov_b32 v5, s22
    v_mov_b32 v6, s24
    v_mov_b32 v7, 0
    v_mov_b32 v1, 0
    buffer_store_dwordx4 v[4:7], v1, s[8:11], s5 offen
    s_waitcnt vmcnt(0)
    L_pexit:""")
    return k.text()[0]

if __name__ == "__main__":
    out = sys.argv[1]
    m = main_kernel()
    r = reduce_kernel()
    L = [("mha_main_kernel", 256, 256, 163840), ("mha_reduce_kernel", 560, 256, 0)]
    KS = [("mha_main_kernel", m, 512, 256), ("mha_reduce_kernel", r, 80, 80)]
    if OPT['red']:
        L = L[:1]; KS = KS[:1]
    if OPT['pre']:
        L.insert(0, ("mha_pre_kernel", 256, 256, 163840)); KS.append(("mha_pre_kernel", pre_kernel(), 64, 64))
    if OPT['diag']:
        L.append(("mha_diag_kernel", 1, 64, 0)); KS.append(("mha_diag_kernel", diag_kernel(), 64, 64))
    write_file(out, HEADER, L, KS)
```

```python
import sys, math
sys.path.insert(0, "work")
from asmlib import K, write_file
from eng import Eng, Step, Fill, uid

OPT = dict(arr='N', ts=0, dump='', nt='nt', delay=2, maxlg=13, diag='', pre='', red=0, st='', ld='sc1', pf='', pfs=128, pfm='', rot=1, dA=2, dS=2, dP=3, dO=3, dc=16)
for a in sys.argv[2:]:
    kk, vv = a.split('=')
    OPT[kk] = int(vv) if vv.lstrip('-').isdigit() else vv

HEADER = "".join(l for l in open("standalone__mha_block_cached__near_ridge.s.ref").read().splitlines(True)[:11])
MF = "v_mfma_f32_32x32x16_bf16"
def R(p, lo, n): return f"{p}[{lo}:{lo+n-1}]"
SX, SK, SV, SWQ, SWO, SWS = "s[8:11]", "s[12:15]", "s[16:19]", "s[20:23]", "s[24:27]", "s[28:31]"
sW, sB, sH, sKC = "s32", "s33", "s34", "s35"
sT0, sT1, sT2 = "s36", "s37", "s38"
sC = "s39"
sWQO, sXO, sM8, sM4, sKO, sWOO, sWLO = "s40", "s41", "s42", "s43", "s44", "s45", "s46"
sST = 47
sTS = 60
XB = 96 * 1024
S4 = 128 * 1024
SLOT = lambda n: ((n + 1) % 4) * 32768

def main_kernel():
    k = K(); e = k.e
    eng = Eng(k)
    nst = [0]
    def stamp():
        if OPT['ts']:
            k.wait(lg0=True)
            e(f"{'s_memtime' if OPT['ts'] == 2 else 's_memrealtime'} s[{sTS+2*nst[0]}:{sTS+1+2*nst[0]}]\ns_waitcnt lgkmcnt(0)")
            nst[0] += 1
    def dump(name, regs):
        if OPT['dump'] != name: return
        eng.flush_dma()
        e("s_nop 7\ns_nop 7\ns_waitcnt vmcnt(0) lgkmcnt(0)")
        e(f"s_mul_i32 {sT0}, {sB}, 64\ns_lshl_b32 {sT1}, {sH}, 2\ns_add_u32 {sT0}, {sT0}, {sT1}\ns_add_u32 {sT0}, {sT0}, {sW}\ns_lshl_b32 {sT0}, {sT0}, 17")
        e("s_add_u32 s56, s4, 0x4000000\ns_addc_u32 s57, s5, 0\ns_mov_b32 s58, 0x8000000\ns_mov_b32 s59, 0x00020000")
        e("v_lshlrev_b32 v0, 2, v7")
        for i, r in enumerate(regs):
            e(f"buffer_store_dword {r}, v0, s[56:59], {sT0} offen\ns_add_u32 {sT0}, {sT0}, 256")
            if i % 32 == 31: e("s_waitcnt vmcnt(0)")
        e("s_waitcnt vmcnt(0)\ns_branch L_exit")

    if OPT['ts']:
        e(f"{'s_memtime' if OPT['ts'] == 2 else 's_memrealtime'} s[{sTS}:{sTS+1}]"); nst[0] = 1
    e(f"""
    s_cmp_ge_u32 s2, 256
    s_cbranch_scc1 L_exit
    s_load_dwordx2 s[8:9], s[0:1], 0
    s_load_dwordx2 s[12:13], s[0:1], 8
    s_load_dwordx2 s[16:17], s[0:1], 16
    s_load_dwordx2 s[20:21], s[0:1], 24
    s_load_dwordx2 s[24:25], s[0:1], 32
    s_load_dwordx2 s[4:5], s[0:1], 56
    v_lshrrev_b32 v1, 6, v0
    v_and_b32 v7, 63, v0
    v_readfirstlane_b32 {sW}, v1
    s_and_b32 {sT0}, s2, 7
    s_lshr_b32 {sT1}, s2, 3
    """)
    arr = OPT['arr']
    if arr == 'N':
        e(f"""s_lshr_b32 {sB}, {sT0}, 1
        s_lshl_b32 {sB}, {sB}, 2
        s_lshr_b32 {sT2}, {sT1}, 3
        s_add_u32 {sB}, {sB}, {sT2}
        s_and_b32 {sH}, {sT0}, 1
        s_lshl_b32 {sH}, {sH}, 3
        s_and_b32 {sT2}, {sT1}, 7
        s_add_u32 {sH}, {sH}, {sT2}""")
    elif arr == 'L':
        e(f"""s_lshl_b32 {sB}, {sT0}, 1
        s_lshr_b32 {sT2}, {sT1}, 4
        s_add_u32 {sB}, {sB}, {sT2}
        s_and_b32 {sH}, {sT1}, 15""")
    elif arr == 'M':
        e(f"""s_lshr_b32 {sB}, {sT0}, 2
        s_lshl_b32 {sB}, {sB}, 3
        s_lshr_b32 {sT2}, {sT1}, 2
        s_add_u32 {sB}, {sB}, {sT2}
        s_and_b32 {sH}, {sT0}, 3
        s_lshl_b32 {sH}, {sH}, 2
        s_and_b32 {sT2}, {sT1}, 3
        s_add_u32 {sH}, {sH}, {sT2}""")
    e(f"""s_lshl_b32 {sT0}, {sH}, 1
    s_add_u32 {sT0}, {sT0}, {sB}
    s_mul_i32 {sT1}, {sT0}, 37
    s_lshr_b32 {sT1}, {sT1}, 8
    s_mul_i32 {sT1}, {sT1}, 7
    s_sub_u32 {sKC}, {sT0}, {sT1}
    {'' if OPT['rot'] else f's_mov_b32 {sKC}, 0'}
    s_mov_b32 s10, 143360
    s_mov_b32 s11, 0x00020000
    s_mov_b32 s14, 262144
    s_mov_b32 s15, 0x00020000
    s_mov_b32 s18, 262144
    s_mov_b32 s19, 0x00020000
    s_mov_b32 s23, 0x00020000
    s_mov_b32 s26, 229376
    s_mov_b32 s27, 0x00020000
    s_mov_b32 s30, {140*16384}
    s_mov_b32 s31, 0x00020000
    s_mov_b32 {sC}, 0x{f2u(math.log2(math.e)/16):08x}
    s_lshl_b32 {sM8}, {sW}, 13
    s_lshl_b32 {sM4}, {sW}, 12
    s_lshl_b32 {sWQO}, {sW}, 17
    s_mul_i32 {sXO}, {sW}, 7168
    """)
    e(f"""
    v_lshrrev_b32 v14, 5, v7                 ; p>>5
    v_and_b32 v15, 31, v7                    ; p&31
    v_lshlrev_b32 v1, 2, v14
    v_xor_b32 v1, v1, v15                    ; (p&31)^((p>>5)<<2)
    v_lshlrev_b32 v1, 4, v1
    v_lshl_add_u32 v2, v14, 13, v1
    v_xor_b32 v3, 0x80, v2
    v_add_u32 v3, 15360, v3                  ; ii=1
    v_add_u32 v4, 30720, v2                  ; ii=2
    v_add_u32 v5, 30720, v3                  ; ii=3
    v_lshl_add_u32 v12, v14, 9, v1
    v_xor_b32 v13, 0x80, v12
    s_and_b32 {sT2}, {sW}, 1
    s_lshl_b32 {sT0}, {sT2}, 2
    v_lshrrev_b32 v6, 4, v7
    v_xor_b32 v6, {sT0}, v6
    v_and_b32 v1, 7, v7
    v_xor_b32 v6, v6, v1
    v_lshlrev_b32 v6, 4, v6
    v_lshrrev_b32 v1, 3, v7
    v_mul_u32_u24 v1, 896, v1
    v_add_u32 v6, v6, v1                     ; x voff
    s_waitcnt lgkmcnt(0)
    s_mul_i32 {sT0}, {sB}, 143360
    s_add_u32 s8, s8, {sT0}
    s_addc_u32 s9, s9, 0
    s_lshl_b32 {sT0}, {sH}, 9
    s_add_u32 s20, s20, {sT0}
    s_addc_u32 s21, s21, 0
    s_sub_u32 s22, 3670016, {sT0}
    """)
    def dma_stage(i):
        G = []
        tag = f"A{i}"
        slot = (i % 3) * 32768
        xs = XB + (i % 3) * 20480
        for u in range(2):
            for ii in range(4):
                g = []
                if ii == 0:
                    if u == 0:
                        g.append(Fill('e', f"s_lshl_b32 {sT0}, {sKC}, 19\ns_add_u32 {sT0}, {sT0}, {sWQO}"))
                    else:
                        g.append(Fill('e', f"s_add_u32 {sT0}, {sT0}, 65536"))
                    g.append(Fill('e', f"s_add_u32 m0, {sM8}, {slot + u * 4096}"))
                g.append(Fill('vm', f"buffer_load_dwordx4 v{2+ii}, {SWQ}, {sT0} offen offset:{ii*1024} lds", tag=tag))
                G.append(g)
        for u in range(5):
            g = []
            if u == 0:
                g.append(Fill('e', f"s_lshl_b32 {sT1}, {sKC}, 7\ns_add_u32 {sT1}, {sT1}, {sXO}\ns_lshl_b32 {sT2}, {sW}, 10"))
            else:
                g.append(Fill('e', f"s_add_u32 {sT1}, {sT1}, {4*7168}"))
            g.append(Fill('e', f"s_add_u32 m0, {sT2}, {xs + u * 4096}"))
            g.append(Fill('vm', f"buffer_load_dwordx4 v6, {SX}, {sT1} offen lds", tag=tag))
            if u == 4:
                g.append(Fill('e', f"s_add_u32 {sKC}, {sKC}, 1\ns_cmp_eq_u32 {sKC}, 7\ns_cselect_b32 {sKC}, 0, {sKC}"))
            G.append(g)
        return G[8:10] + G[0:4] + G[10:13] + G[4:8] if False else G
    def dma_tile(n):
        G = []
        tag = f"T{n}"
        slot = SLOT(n)
        for u in range(2):
            for ii in range(4):
                g = []
                if n < 16:
                    blk = n % 8
                    if ii == 0:
                        g.append(Fill('e', f"s_add_u32 {sKO}, {sM4}, {blk*32768 + u*16384}\ns_add_u32 m0, {sM4}, {slot + u*16384}"))
                    vo = f"v{8+ii}" if n < 8 else f"v{12+(ii&1)}"
                    srd = SK if n < 8 else SV
                    g.append(Fill('vm', f"buffer_load_dwordx4 {vo}, {srd}, {sKO} offen offset:{ii*1024} {OPT['nt']} lds", tag=tag))
                elif n < 22:
                    gi, dh = (n - 16) // 2, (n - 16) % 2
                    if ii == 0:
                        g.append(Fill('e', f"s_add_u32 {sKO}, {sWOO}, {(dh*128 + 16*u)*896 + gi*256}\ns_add_u32 m0, {sM8}, {slot + u*4096}"))
                    g.append(Fill('vm', f"buffer_load_dwordx4 v{2+ii}, {SWO}, {sKO} offen offset:{ii*1024} lds", tag=tag))
                else:
                    if ii == 0:
                        g.append(Fill('e', f"s_add_u32 {sKO}, {sWLO}, {32*u*896 + 768}\ns_add_u32 m0, {sM8}, {slot + u*4096}"))
                    g.append(Fill('vm', f"buffer_load_dwordx4 v{8+ii}, {SWO}, {sKO} offen offset:{ii*1024} lds", tag=tag))
                G.append(g)
        return G
    PF = {}
    if OPT['pf']:
        for it in str(OPT['pf']).split(','):
            a_, b_ = it.split(':'); PF.setdefault(a_, []).append(int(b_))
    def touch(ev):
        G = []
        for t in PF.get(ev, []):
            srd = SK if t < 8 else SV
            for u in range(128 // OPT['pfs']):
                G.append([Fill('e', f"s_add_u32 s55, {sM8}, {(t % 8) * 32768 + u * 4096}"),
                          Fill('vm', f"buffer_load_dword v58, v59, {srd}, s55 offen {OPT['pfm']}", tag='pf')])
        return G
    eng.dma += dma_stage(0); eng.flush_dma()
    e(f"""
    s_lshl_b32 {sT0}, {sB}, 4
    s_add_u32 {sT0}, {sT0}, {sH}
    s_lshl_b32 {sT0}, {sT0}, 18
    s_add_u32 s12, s12, {sT0}
    s_addc_u32 s13, s13, 0
    s_add_u32 s16, s16, {sT0}
    s_addc_u32 s17, s17, 0
    s_mul_i32 {sT0}, {sH}, 229376
    s_add_u32 s24, s24, {sT0}
    s_addc_u32 s25, s25, 0
    s_mul_i32 {sT0}, {sB}, {140*16384}
    s_lshl_b32 {sT1}, {sH}, 10
    s_add_u32 {sT0}, {sT0}, {sT1}
    s_add_u32 s28, s4, {sT0}
    s_addc_u32 s29, s5, 0
    s_mul_i32 {sWOO}, {sW}, {32*896}
    s_mul_i32 {sWLO}, {sW}, {64*896}
    """)
    e(f"v_mul_u32_u24 v59, {OPT['pfs']}, v7")
    eng.dma += dma_stage(1) + dma_stage(2) + touch('p'); eng.flush_dma()
    e(f"""
    s_and_b32 {sT2}, {sW}, 1
    s_lshl_b32 {sT0}, {sT2}, 3
    v_xor_b32 v1, v14, v15
    v_xor_b32 v1, {sT0}, v1
    v_lshlrev_b32 v1, 4, v1
    v_lshl_add_u32 v8, v14, 9, v1
    v_xor_b32 v9, 32, v8
    v_xor_b32 v10, 64, v8
    v_xor_b32 v11, 0x60, v8
    """)
    e(f"""
    v_bfe_u32 v63, v7, 2, 2                  ; r
    v_lshl_add_u32 v60, v14, 3, v63          ; 8hh+r
    v_bfe_u32 v1, v7, 4, 1
    v_lshlrev_b32 v62, 5, v1
    v_and_b32 v1, 1, v7
    v_lshl_add_u32 v62, v1, 4, v62
    v_bfe_u32 v1, v7, 1, 1
    v_lshl_add_u32 v62, v1, 3, v62
    v_lshl_add_u32 v61, v63, 6, v62
    s_lshl_b32 {sT0}, {sW}, 6
    v_lshl_add_u32 v16, v60, 9, v61
    v_xor_b32 v16, {sT0}, v16
    v_xor_b32 v17, 64, v16
    v_xor_b32 v18, 0x80, v16
    v_xor_b32 v19, 0xc0, v16
    """)
    e(f"""
    v_bfe_u32 v1, v7, 1, 3
    v_xor_b32 v1, v1, v14
    v_lshlrev_b32 v1, 4, v1
    v_lshl_add_u32 v1, v15, 7, v1
    v_add_u32 v24, {XB + 128*128}, v1
    s_lshl_b32 {sT0}, {sW}, 12
    s_add_u32 {sT0}, {sT0}, {XB}
    v_add_u32 v20, {sT0}, v1
    v_xor_b32 v21, 32, v20
    v_xor_b32 v22, 64, v20
    v_xor_b32 v23, 0x60, v20
    v_xor_b32 v25, 32, v24
    v_xor_b32 v26, 64, v24
    v_xor_b32 v27, 0x60, v24
    v_lshlrev_b32 v1, 4, v7
    """)
    hi = dict(tr=0, k=0, wo=0)
    def toggle(which, regs, want):
        if hi[which] == want: return []
        hi[which] = want
        return [('e', f"v_xor_b32 v{r}, 0x10000, v{r}") for r in regs]
    def barrier(vmtags, after=None, barid=None, st=False):
        def f():
            if barid is not None: eng.flush_fill(bar=barid)
            eng.flush_dma()
            for t in vmtags: assert t in k.vm, t
            k.wait(vm=vmtags, lg0=True)
            e("s_barrier")
            if st: stamp()
            if after: after()
        return f

    JORD = [0, 4, 1, 2, 3, 5, 6, 7]
    steps = []
    ringc = [0]
    def ringA(base, n, p):
        r = base + 4 * (ringc[0] % n); ringc[0] += 1
        return r
    for i in range(7):
        slot = (i % 3) * 32768
        xs = (i % 3) * 20480
        def after(i=i):
            if 1 <= i <= 4: eng.dma += dma_stage(i + 2)
            if i == 5: eng.dma += dma_tile(0)
            if i == 6: eng.dma += dma_tile(1)
            eng.dma += touch(str(i))
        for T in range(4):
            xb = 40 + 8 * ((4 * i + T) % 2)
            for jn, j in enumerate(JORD):
                pre = []
                bar = None
                if T == 0 and jn == 0:
                    bar = barrier([f"A{i}"], after, st=(i in (0, 3)))
                    pre += toggle('tr', range(16, 20), slot >> 16)
                if jn == 0:
                    pre.append(('ds', f"ds_read_b128 {R('v', xb, 4)}, v{20+T} offset:{xs}"))
                r = ringA(224, 8, 'a')
                off = (slot & 0xffff) + (j >> 2) * 256 + T * 8192
                pre.append(('ds', f"ds_read_b64_tr_b16 {R('a', r, 2)}, v{16+(j&3)} offset:{off}"))
                pre.append(('ds', f"ds_read_b64_tr_b16 {R('a', r+2, 2)}, v{16+(j&3)} offset:{off+2048}"))
                acc = R('v', 64 + 16 * j, 16)
                first = (i == 0 and T == 0)
                steps.append(Step(f"{MF} {acc}, {R('a', r, 4)}, {R('v', xb, 4)}, {'0' if first else acc}", pre, bar))
                if j in (0, 4):
                    pre2 = [('ds', f"ds_read_b128 {R('v', xb+4, 4)}, v{24+T} offset:{xs}")] if j == 0 else []
                    acc = R('v', 192 + 16 * (j >> 2), 16)
                    steps.append(Step(f"{MF} {acc}, {R('a', r, 4)}, {R('v', xb+4, 4)}, {'0' if first else acc}", pre2))
    eng.run(steps, maxlg=OPT['maxlg'], delay=OPT['delay'], dma_cost=OPT['dc'], dma_every=OPT['dA'])
    eng.flush_dma()
    dump('Q', [f"v{r}" for r in range(64, 224)])
    e(f"s_lshl_b32 {sT0}, {sW}, 11\ns_add_u32 {sT0}, {sT0}, {S4}\nv_add_u32 v14, {sT0}, v1")
    for a in range(2):
        for half in range(2):
            src = 192 + 16 * a + 8 * half
            for q in range(4):
                e(f"v_cvt_pk_bf16_f32 v{src+q}, v{src+2*q}, v{src+2*q+1}")
            k.ds(f"ds_write_b128 v14, {R('v', src, 4)} offset:{a*8192 + half*1024}", 'qsh')
    e(f"""
    v_and_b32 v15, 0x13, v7
    v_bfe_u32 v20, v7, 2, 1
    v_lshl_or_b32 v15, v20, 3, v15
    v_bfe_u32 v20, v7, 3, 1
    v_lshl_or_b32 v15, v20, 2, v15           ; key
    v_lshrrev_b32 v20, 5, v7
    s_lshl_b32 {sT0}, {sW}, 2
    v_xor_b32 v20, {sT0}, v20
    v_and_b32 v21, 15, v15
    v_xor_b32 v20, v20, v21
    v_lshlrev_b32 v20, 4, v20
    v_lshl_add_u32 v20, v15, 9, v20
    s_and_b32 {sT0}, {sW}, 1
    s_lshl_b32 {sT0}, {sT0}, 14
    v_add_u32 v28, {sT0}, v20
    """)
    for v in range(1, 8):
        e(f"v_xor_b32 v{20+v}, {v*32}, v20\nv_xor_b32 v{28+v}, {v*32}, v28")
    for j in range(8):
        for q in range(8):
            src = 64 + 16 * j + 2 * q
            e(f"v_cvt_pk_bf16_f32 v{src}, v{src}, v{src+1}")
        for q in range(8):
            src = 64 + 16 * j + 2 * q
            e(f"v_accvgpr_write_b32 a{8*j+q}, v{src}")
    barrier(["T0"], None, st=True)()
    eng.dma += dma_tile(2) + dma_tile(3) + touch('k0')
    e("v_xor_b32 v15, 0x800, v14\nv_xor_b32 v56, 0x1000, v14\nv_xor_b32 v57, 0x1800, v14")
    qa = [14, 15, 56, 57]
    ext = {}
    for j in range(8):
        for half in range(2):
            t = uid('q')
            k.ds(f"ds_read_b128 {R('a', 64+8*j+4*half, 4)}, v{qa[j&3]} offset:{(j>>2)*8192 + half*1024}", t)
    k.wait(lg0=True)
    dump('Qf', [f"a{r}" for r in range(128)])

    def Sreg(t):
        if t < 2: return ('v', 224 + 16 * t)
        if t < 12: return ('v', 64 + 16 * (t - 2))
        return ('a', 128 + 16 * (t - 12))
    vMX, vMS = 60, 61
    def max_fill(p, base, dst, first, early, tmp):
        F = []
        if p == 'a':
            for q in range(0, 16, 2):
                F.append(Fill('e', f"v_accvgpr_read_b32 v{tmp}, a{base+q}", early=early))
                F.append(Fill('e', f"v_accvgpr_read_b32 v{tmp+1}, a{base+q+1}", early=early))
                if first and q == 0: F.append(Fill('e', f"v_max_f32 v{dst}, v{tmp}, v{tmp+1}", early=early))
                else: F.append(Fill('e', f"v_max3_f32 v{dst}, v{tmp}, v{tmp+1}, v{dst}", early=early))
        else:
            for q in range(0, 16, 2):
                if first and q == 0: F.append(Fill('e', f"v_max_f32 v{dst}, v{base}, v{base+1}", early=early))
                else: F.append(Fill('e', f"v_max3_f32 v{dst}, v{base+q}, v{base+q+1}, v{dst}", early=early))
        return F
    def phaseS(par):
        steps = []
        ringc[0] = 0
        for blk in range(8):
            slot = SLOT(blk)
            def after(blk=blk):
                eng.dma += dma_tile(blk + 3) + touch(f"k{blk}")
            tiles = [('p', 0), ('p', 1)]
            if (blk & 1) == par: tiles = [('s', 0)] + tiles
            firststep = True
            for kind, kt in tiles:
                if kind == 'p':
                    p, base = Sreg(2 * blk + kt); qb = 0; ab = 20; off0 = kt * 16384
                else:
                    p, base = 'a', 192 + 16 * (blk >> 1); qb = 64; ab = 28; off0 = 0
                acc = R(p, base, 16)
                for j in range(8):
                    for half in range(2):
                        pre = []; bar = None
                        if firststep:
                            if blk > 0: bar = barrier([f"T{blk}"], after, st=(blk == 4))
                            pre += toggle('k', range(20, 36), slot >> 16)
                            firststep = False
                        r = ringA(36, 5, 'v')
                        off = (slot & 0xffff) + (j >> 2) * 256 + off0
                        pre.append(('ds', f"ds_read_b128 {R('v', r, 4)}, v{ab + (j&3)*2 + half} offset:{off}"))
                        first = (j == 0 and half == 0)
                        steps.append(Step(f"{MF} {acc}, {R('v', r, 4)}, {R('a', qb+8*j+4*half, 4)}, {'0' if first else acc}", pre, bar))
                if kind == 'p':
                    eng.fq += max_fill(p, base, vMX, blk == 0 and kt == 0, len(steps) + 1, 56)
                else:
                    eng.fq += max_fill(p, base, vMS, blk < 2, len(steps) + 1, 56)
        eng.run(steps, maxlg=OPT['maxlg'], delay=OPT['delay'], dma_cost=OPT['dc'], dma_every=OPT['dS'])
        eng.flush_dma()
        eng.flush_fill()
        k.wait(lg0=True)
    e(f"s_cmp_ge_u32 {sW}, 2\ns_cbranch_scc1 L_S1")
    vm0 = list(k.vm); dq = list(eng.dma); hk = dict(hi); ns0 = nst[0]
    phaseS(0)
    e("s_nop 1\ns_branch L_Sdone\nL_S1:\ns_nop 1")
    vm1 = list(k.vm)
    k.vm = vm0; eng.dma = dq; hi.update(hk); nst[0] = ns0
    phaseS(1)
    assert k.vm == vm1
    e("s_nop 1\nL_Sdone:")
    allS = []
    for t in range(16):
        p, b = Sreg(t); allS += [f"{p}{b+q}" for q in range(16)]
    dump('S', allS + [f"a{r}" for r in range(192, 256)] + ['v60', 'v61'])

    MXO = S4 + 31 * 1024
    e(f"""
    v_mov_b32 v56, v60
    v_mov_b32 v57, v61
    v_permlane32_swap_b32 v56, v60
    v_permlane32_swap_b32 v57, v61
    v_max_f32 v60, v56, v60
    v_max_f32 v61, v57, v61
    v_and_b32 v14, 31, v7
    v_lshlrev_b32 v14, 2, v14
    v_add_u32 v14, {MXO}, v14
    s_lshl_b32 {sT0}, {sW}, 7
    v_add_u32 v15, {sT0}, v14
    """)
    k.ds("ds_write_b32 v15, v61", 'mx')
    e(f"""
    v_lshrrev_b32 v56, 4, v7
    v_lshlrev_b32 v57, 2, v56
    v_and_b32 v2, 15, v7
    v_xor_b32 v2, v2, v57
    v_lshlrev_b32 v2, 4, v2
    v_mul_u32_u24 v57, 896, v56
    v_add_u32 v2, v2, v57
    v_add_u32 v3, 2560, v2
    v_add_u32 v4, 5120, v2
    v_add_u32 v5, 7680, v2
    v_and_b32 v56, 1, v56
    v_lshlrev_b32 v56, 2, v56
    v_and_b32 v8, 7, v7
    v_xor_b32 v8, v8, v56
    v_lshlrev_b32 v8, 4, v8
    v_lshrrev_b32 v56, 3, v7
    v_mul_u32_u24 v56, 896, v56
    v_add_u32 v8, v8, v56
    v_add_u32 v9, 6144, v8
    v_add_u32 v10, 12288, v8
    v_add_u32 v11, 18432, v8
    v_mul_f32 v60, {sC}, v60                 ; m*c private
    """)
    barrier([], None, st=True)()
    for w_ in range(4):
        k.ds(f"ds_read_b32 v{28+w_}, v14 offset:{w_*128}", 'mxr')
    eng.dma += dma_tile(11) + touch('b1'); eng.flush_dma()
    vSP, vSS = 62, 63
    e("v_mov_b32 v6, v62\nv_mov_b32 v0, v63")
    def exp_fill(p, base, n, tmp, mreg, sreg, first, early, dead, dst=None):
        F = []
        kw = dict(early=early, dead=dead)
        for q0 in range(0, n, 8):
            w0 = (tmp + q0) if p == 'a' else (base + q0)
            for q in range(8):
                if p == 'a':
                    F.append(Fill('e', f"v_accvgpr_read_b32 v{w0+q}, a{base+q0+q}", **kw))
            for q in range(8):
                F.append(Fill('e', f"v_fma_f32 v{w0+q}, v{w0+q}, {sC}, -v{mreg}", **kw))
            for q in range(8):
                F.append(Fill('e', f"v_exp_f32 v{w0+q}, v{w0+q}", cost=8, **kw))
                if q >= 1:
                    if first and q0 == 0 and q == 1: F.append(Fill('e', f"v_mov_b32 v{sreg}, v{w0}", **kw))
                    else: F.append(Fill('e', f"v_add_f32 v{sreg}, v{sreg}, v{w0+q-1}", **kw))
            F.append(Fill('e', f"v_cvt_pk_bf16_f32 v{w0}, v{w0}, v{w0+1}", **kw))
            F.append(Fill('e', f"v_add_f32 v{sreg}, v{sreg}, v{w0+7}", **kw))
            for q in range(1, 4):
                F.append(Fill('e', f"v_cvt_pk_bf16_f32 v{w0+q}, v{w0+2*q}, v{w0+2*q+1}", **kw))
        return F
    def Preg(t):
        if t < 12: return Sreg(t)[1]
        return Sreg(t - 12)[1]
    eng.fq += exp_fill('v', Sreg(0)[1], 16, 0, 60, vSP, True, -1, 0); eng.flush_fill()
    k.wait(lg=['mxr'])
    e("v_max3_f32 v61, v28, v29, v30\nv_max_f32 v61, v61, v31")
    e(f"v_mul_f32 v61, {sC}, v61")
    e(f"s_lshl_b32 {sT0}, {sW}, 11\ns_add_u32 {sT0}, {sT0}, {S4}\nv_add_u32 v15, {sT0}, v1\nv_add_u32 v14, {S4}, v1")
    def sh_fill(u, half, early, bdead, first=False):
        F = exp_fill('a', 192 + 16 * u + 8 * half, 8, 28, 61, vSS, first, early, 10**9)
        F.append(Fill('ds', f"ds_write_b128 v15, v[28:31] offset:{u*8192 + half*1024}", cost=8, early=early, tag='psh'))
        for f in F: f.bdead = bdead
        return F
    for u in range(2):
        for half in range(2):
            eng.fq += sh_fill(u, half, -1, 0, first=(u == 0 and half == 0))
    eng.fq += exp_fill('v', Sreg(1)[1], 16, 0, 60, vSP, False, -1, 0)
    eng.flush_fill()

    steps = []
    ringc[0] = 0
    SUMO = 0
    for blk in range(8):
        n = 8 + blk
        slot = SLOT(n)
        s0 = len(steps)
        def after(n=n):
            if n > 8: eng.dma += dma_tile(n + 3)
            eng.dma += touch(f"v{n-8}")
        for T in range(4):
            pb = Preg(2 * blk + (T >> 1)) + 8 * (T & 1)
            sb = 20 + 4 * (T & 1)
            for jn, j in enumerate(JORD):
                pre = []; bar = None
                if T == 0 and jn == 0:
                    bar = barrier([f"T{n}"], after, barid=blk, st=(blk in (0, 4)))
                    pre += toggle('tr', range(16, 20), slot >> 16)
                r = ringA(36, 5, 'v')
                off = (slot & 0xffff) + (j >> 2) * 256 + T * 8192
                pre.append(('ds', f"ds_read_b64_tr_b16 {R('v', r, 2)}, v{16+(j&3)} offset:{off}"))
                pre.append(('ds', f"ds_read_b64_tr_b16 {R('v', r+2, 2)}, v{16+(j&3)} offset:{off+2048}"))
                acc = R('a', 16 * j, 16)
                first = (blk == 0 and T == 0)
                steps.append(Step(f"{MF} {acc}, {R('v', r, 4)}, {R('v', pb, 4)}, {'0' if first else acc}", pre, bar))
                if j in (0, 4):
                    pre2 = [('ds', f"ds_read_b128 {R('v', sb, 4)}, v14 offset:{(4*blk+T)*1024}")] if j == 0 else []
                    acc = R('a', 192 + 16 * (j >> 2), 16)
                    steps.append(Step(f"{MF} {acc}, {R('v', r, 4)}, {R('v', sb, 4)}, {'0' if first else acc}", pre2))
        if blk < 4:
            eng.fq += sh_fill(2 + (blk >> 1), blk & 1, s0, 4 + 2 * (blk >> 1))
        if blk == 4:
            eng.fq.append(Fill('e', f"v_mov_b32 v28, v{vSS}", early=s0))
            eng.fq.append(Fill('e', f"v_lshrrev_b32 v29, 2, v1", early=s0))
            eng.fq.append(Fill('e', f"v_permlane32_swap_b32 v28, v{vSS}", early=s0))
            eng.fq.append(Fill('e', f"v_add_u32 v29, {S4}, v29", early=s0))
            eng.fq.append(Fill('e', f"s_lshl_b32 {sT0}, {sW}, 8\nv_add_f32 v28, v28, v{vSS}", early=s0))
            eng.fq.append(Fill('e', f"v_add_u32 v30, {sT0}, v29", early=s0))
            eng.fq.append(Fill('ds', f"ds_write_b32 v30, v28", early=s0, bdead=5, tag='sum'))
        if blk == 5:
            for w_ in range(4):
                eng.fq.append(Fill('ds', f"ds_read_b32 v{30+w_}, v29 offset:{w_*256}", early=s0, tag='sumr'))
        if blk == 6:
            eng.fq.append(Fill('e', f"v_add_f32 v30, v30, v31", early=s0, lgneed=['sumr']))
            eng.fq.append(Fill('e', f"v_add_f32 v32, v32, v33", early=s0))
            eng.fq.append(Fill('e', f"v_add_f32 v30, v30, v32", early=s0))
            eng.fq.append(Fill('e', f"v_rcp_f32 v{vSS}, v30", early=s0, cost=8))
        if blk < 7:
            for kt in range(2):
                t = 2 * blk + 2 + kt
                p, base = Sreg(t)
                dead = s0 + 40 + 20 * kt
                eng.fq += exp_fill(p, base, 16, Preg(t), 60, vSP, False, s0, dead)
        if blk == 7:
            eng.fq.append(Fill('e', f"v_mov_b32 v28, v{vSP}", early=s0))
            eng.fq.append(Fill('e', f"s_nop 0\nv_permlane32_swap_b32 v28, v{vSP}", early=s0))
            eng.fq.append(Fill('e', f"v_add_f32 v28, v28, v{vSP}", early=s0))
            eng.fq.append(Fill('e', f"v_rcp_f32 v{vSP}, v28", early=s0, cost=8))
    eng.run(steps, maxlg=OPT['maxlg'], delay=OPT['delay'], dma_cost=OPT['dc'], dma_every=OPT['dP'])
    eng.flush_dma(); eng.flush_fill()
    dump('O', [f"a{r}" for r in range(128)] + [f"a{r}" for r in range(192, 224)] + [f"v{vSP}", f"v{vSS}"])

    def conv_fill(abase, tmp, dst, inv, early, dead):
        F = []
        kw = dict(early=early, dead=dead)
        for q in range(8): F.append(Fill('e', f"v_accvgpr_read_b32 v{tmp+q}, a{abase+q}", **kw))
        for q in range(8): F.append(Fill('e', f"v_mul_f32 v{tmp+q}, v{tmp+q}, v{inv}", **kw))
        for q in range(4): F.append(Fill('e', f"v_cvt_pk_bf16_f32 v{dst+q}, v{tmp+2*q}, v{tmp+2*q+1}", **kw))
        return F
    for a in range(2):
        for half in range(2):
            eng.fq += conv_fill(192 + 16 * a + 8 * half, 208 + 8 * (2*a+half), 208 + 8 * (2*a+half), vSS, -1, 0)
            eng.fq.append(Fill('ds', f"ds_write_b128 v15, {R('v', 208 + 8*(2*a+half), 4)} offset:{a*8192 + half*1024}", tag='osh'))
    eng.flush_fill()
    e(f"""
    v_lshrrev_b32 v56, 5, v7
    v_lshl_add_u32 v56, v56, 3, v0           ; 8hh+r
    v_lshl_add_u32 v57, v0, 6, v6
    v_lshl_add_u32 v57, v56, 8, v57
    s_mul_i32 {sT0}, {sW}, {8192+64}
    v_xor_b32 v16, {sT0}, v57
    """)
    for j in range(4):
        for t in range(4):
            if j or t: e(f"v_xor_b32 v{16+4*j+t}, {j*8192+t*64}, v16")
    LA = [32, 33, 34, 35, 56, 57, 58, 59]
    e(f"""
    v_lshrrev_b32 v57, 1, v0
    v_lshl_add_u32 v57, v57, 6, v6
    v_lshl_add_u32 v57, v56, 7, v57
    s_and_b32 {sT1}, {sW}, 1
    s_lshl_b32 {sT1}, {sT1}, 6
    s_lshl_b32 {sT0}, {sW}, 12
    s_add_u32 {sT0}, {sT0}, {sT1}
    s_add_u32 {sT0}, {sT0}, {SLOT(22) & 0x10000}
    v_xor_b32 v32, {sT0}, v57
    """)
    for j in range(4):
        for t in range(2):
            if j or t: e(f"v_xor_b32 v{LA[2*j+t]}, {j*4096+t*64}, v32")
    for t in range(4):
        e(f"s_xor_b32 {sT0}, {sW}, {t}\ns_mul_i32 {sT1}, {sW}, 14\ns_add_u32 {sT0}, {sT0}, {sT1}\ns_lshl_b32 s{sST+t}, {sT0}, 15")
    e(f"s_add_u32 {sT0}, {sW}, 56\ns_lshl_b32 s{sST+4}, {sT0}, 15")
    e(f"s_and_b32 {sT2}, {sW}, 1\ns_add_u32 {sT0}, {sT1}, {sT2}\ns_add_u32 {sT0}, {sT0}, 12\ns_lshl_b32 s{sST+5}, {sT0}, 15")
    e(f"s_sub_u32 {sT0}, {sT1}, {sT2}\ns_add_u32 {sT0}, {sT0}, 13\ns_lshl_b32 s{sST+6}, {sT0}, 15")
    e(f"s_add_u32 {sT0}, {sT2}, 68\ns_lshl_b32 s{sST+7}, {sT0}, 15")
    e(f"""v_add_u32 v12, 16384, v1
    s_lshr_b32 {sT0}, {sW}, 1
    s_lshl_b32 {sT0}, {sT0}, 30
    v_add_u32 v13, {sT0}, v1
    v_add_u32 v60, {sT0}, v12""")
    OF = 144
    eng.fq += conv_fill(0, 240, OF, vSP, -1, 0) + conv_fill(8, 248, OF + 4, vSP, -1, 0)
    eng.flush_fill()
    barrier(["T16"], None, st=True)()
    eng.dma += dma_tile(19)
    e("v_xor_b32 v61, 0x800, v15\nv_xor_b32 v14, 0x1000, v15\nv_xor_b32 v6, 0x1800, v15")
    qa = [15, 61, 14, 6]
    hi['wo'] = 0
    steps = []
    ringc[0] = 0
    ACC = [('v', 64), ('a', 0), ('v', 64), ('v', 208)]
    def store_fill(g, early):
        p, base = ACC[g]
        nt = 5 if g < 3 else 3
        F = []
        for t in range(nt):
            for half in range(2):
                src = base + 16 * t + 8 * half
                if p == 'a':
                    tmp = 208 + 8 * ((2 * t + half) % 6)
                    for q in range(8): F.append(Fill('e', f"v_accvgpr_read_b32 v{tmp+q}, a{src+q}", early=early))
                    src = tmp
                for q in range(4): F.append(Fill('e', f"v_cvt_pk_bf16_f32 v{src+q}, v{src+2*q}, v{src+2*q+1}", early=early))
                if g < 3:
                    so = f"s{sST+t}"; vo = 'v1' if half == 0 else 'v12'
                else:
                    so = f"s{sST+5+t}"; vo = ('v1' if half == 0 else 'v12') if t < 2 else ('v13' if half == 0 else 'v60')
                F.append(Fill('vm', f"buffer_store_dwordx4 {R('v', src, 4)}, {vo}, {SWS}, {so} offen {OPT['st']}", cost=16, early=early, tag='st'))
            if g < 2: F.append(Fill('e', f"s_add_u32 s{sST+t}, s{sST+t}, {4*32768}", early=early))
        return F
    for g in range(4):
        p, base = ACC[g]
        sg = len(steps)
        for j in range(8):
            n = 16 + 2 * g + (j >> 2) if g < 3 else 22
            slot = SLOT(n)
            def after(n=n):
                if n + 3 <= 22: eng.dma += dma_tile(n + 3)
            for half in range(2):
                nt = 4 if g < 3 else 2
                for t in range(nt):
                    pre = []; bar = None
                    if t == 0 and half == 0 and ((j & 3) == 0 if g < 3 else j == 0):
                        if n > 16: bar = barrier([f"T{n}"], after, st=(n in (18, 20, 22)))
                        if g < 3: pre += toggle('wo', range(16, 32), slot >> 16)
                    r = ringA(36, 5, 'v')
                    if g < 3:
                        ar = 16 + 4 * (j & 3) + t; off = (slot & 0xffff) + half * 4096; so = 1024
                    else:
                        ar = LA[2 * (j & 3) + t]; off = (slot & 0xffff) + (j >> 2) * 16384 + half * 2048; so = 512
                    pre.append(('ds', f"ds_read_b64_tr_b16 {R('v', r, 2)}, v{ar} offset:{off}"))
                    pre.append(('ds', f"ds_read_b64_tr_b16 {R('v', r+2, 2)}, v{ar} offset:{off+so}"))
                    acc = R(p, base + 16 * t, 16)
                    first = (j == 0 and half == 0)
                    steps.append(Step(f"{MF} {acc}, {R('v', r, 4)}, {R('v', OF+8*j+4*half, 4)}, {'0' if first else acc}", pre, bar))
                    if t == 0:
                        pre2 = []
                        if g == 0:
                            pre2 = [('ds', f"ds_read_b128 {R('a', 128+8*j+4*half, 4)}, v{qa[j&3]} offset:{(j>>2)*8192 + half*1024}")]
                        acc = R(p, base + 16 * nt, 16)
                        steps.append(Step(f"{MF} {acc}, {R('v', r, 4)}, {R('a', 128+8*j+4*half, 4)}, {'0' if first else acc}", pre2))
                if g == 0 and j < 7:
                    jj = j + 1
                    eng.fq += conv_fill(16 * jj + 8 * half, 240 + 8 * half, OF + 8 * jj + 4 * half, vSP, -1, 10 * jj + 5 * half)
        if g >= 1:
            F = store_fill(g - 1, sg + 1)
            nxt = sg + (80 if g < 3 else 48)
            for f in F: f.dead = nxt
            eng.fq += F
    eng.run(steps, maxlg=OPT['maxlg'], delay=OPT['delay'], dma_cost=OPT['dc'], dma_every=OPT['dO'])
    eng.flush_dma(); eng.flush_fill()
    eng.fq += store_fill(3, -1); eng.flush_fill()
    if OPT['red'] == 1:
        stamp()
        e(f"""s_load_dwordx2 s[56:57], s[0:1], 48
        s_load_dwordx2 s[8:9], s[0:1], 40
        s_mov_b32 s58, 256
        s_mov_b32 s59, 0x00020000
        s_lshl_b32 {sT0}, {sH}, 10
        s_sub_u32 s28, s28, {sT0}
        s_subb_u32 s29, s29, 0
        s_lshl_b32 {sT0}, {sH}, 2
        s_add_u32 {sT0}, {sT0}, {sW}
        s_mul_i32 {sT0}, {sT0}, 140
        v_add_u32 v2, {sT0}, v7                  ; u
        v_lshrrev_b32 v3, 6, v2                  ; f
        v_and_b32 v2, 63, v2                     ; l'
        v_lshlrev_b32 v4, 4, v2
        v_lshl_add_u32 v4, v3, 14, v4
        v_add_u32 v5, 16384, v4
        v_add_u32 v6, 32768, v4
        v_cmp_gt_u32 vcc, 12, v7
        v_mov_b32 v8, 0x40000000
        v_cndmask_b32 v6, v8, v6, vcc
        v_and_b32 v9, 31, v2
        v_mul_u32_u24 v9, 896, v9
        v_lshrrev_b32 v2, 5, v2
        v_lshl_add_u32 v9, v2, 4, v9             ; (l'&31)*896 + 16*(l'>>5)
        """)
        for p in range(3):
            e(f"""v_add_u32 v2, {p}, v3
            v_mul_u32_u24 v13, 2341, v2
            v_lshrrev_b32 v13, 16, v13               ; qt
            v_mul_u32_u24 v14, 28, v13
            v_sub_u32 v2, v2, v14
            v_mul_u32_u24 v13, {32*896}, v13
            v_lshl_add_u32 v13, v2, 5, v13
            v_add_u32 v{10+p}, v13, v9""")
        e(f"""v_cndmask_b32 v12, v8, v12, vcc
        v_and_b32 v2, 31, v7                     ; m
        v_lshrrev_b32 v3, 3, v2
        v_lshlrev_b32 v3, 1, v3
        v_bfe_u32 v13, v2, 1, 1
        v_or_b32 v3, v3, v13                     ; j>>1 (>=4 when m>=16)
        v_bfe_u32 v13, v2, 2, 1
        v_lshrrev_b32 v14, 5, v7
        v_xor_b32 v13, v13, v14
        v_lshl_or_b32 v3, v13, 3, v3
        v_and_b32 v2, 1, v2
        v_lshlrev_b32 v2, 4, v2
        v_mov_b32 v13, 0x3f80
        v_lshlrev_b32 v2, v2, v13""")
        for r in range(4):
            e(f"v_cmp_eq_u32 vcc, {r}, v3\nv_cndmask_b32 v{16+r}, 0, v2, vcc")
        e(f"""s_waitcnt lgkmcnt(0)
        s_mul_i32 {sT0}, {sB}, 143360
        s_add_u32 s8, s8, {sT0}
        s_addc_u32 s9, s9, 0""")
        k.wait(vm0=True)
        stamp()
        e(f"""s_barrier
        s_cmp_lg_u32 {sW}, 0
        s_cbranch_scc1 L_polled
        s_mov_b64 exec, 1
        s_lshl_b32 {sT0}, {sB}, 4
        v_mov_b32 v2, 1
        v_mov_b32 v3, {sT0}
        buffer_atomic_add v2, v3, s[56:59], 0 offen sc1
        s_mov_b32 {sT1}, 0
        L_poll:
        buffer_load_dword v2, v3, s[56:59], 0 offen sc1
        s_add_u32 {sT1}, {sT1}, 1
        s_cmp_gt_u32 {sT1}, 20000
        s_cbranch_scc1 L_pollx
        s_waitcnt vmcnt(0)
        v_readfirstlane_b32 {sT0}, v2
        s_cmp_lt_u32 {sT0}, 16
        s_cbranch_scc1 L_poll
        L_pollx:
        s_mov_b64 exec, -1
        L_polled:
        s_barrier""")
        stamp()
        for p in range(3):
            for h in range(16):
                if h % 4 == 0: e(f"s_mov_b32 {sT0}, {h*1024}")
                r = 64 * p + 4 * h
                k.vmem(f"buffer_load_dwordx4 {R('a', r, 4)}, v{4+p}, {SWS}, {sT0} offen offset:{(h%4)*1024} {OPT['ld']}", f"r{p}_{h}")
        for p in range(3):
            acc = R('v', 64 + 16 * p, 16)
            for h in range(16):
                k.wait(vm=[f"r{p}_{h}"])
                e(f"{MF} {acc}, v[16:19], {R('a', 64*p+4*h, 4)}, {'0' if h == 0 else acc}")
        for p in range(3):
            for q in range(4):
                e(f"v_cvt_pk_bf16_f32 v{64+16*p+q}, v{64+16*p+2*q}, v{64+16*p+2*q+1}")
            k.vmem(f"buffer_store_dwordx4 {R('v', 64+16*p, 4)}, v{10+p}, {SX}, 0 offen", 'o')
    if OPT['ts']:
        stamp()
        k.wait(vm0=True)
        stamp()
        e(f"""s_add_u32 s56, s4, 0x0ff00000
        s_addc_u32 s57, s5, 0
        s_mov_b32 s58, 0x100000
        s_mov_b32 s59, 0x00020000
        s_cmp_lg_u32 {sW}, 0
        s_cbranch_scc1 L_exit
        s_mov_b64 exec, 1
        s_lshl_b32 s3, s2, 8
        v_mov_b32 v1, s3
        v_mov_b32 v2, {nst[0]}
        v_mov_b32 v3, 0
        buffer_store_dwordx2 v[2:3], v1, s[56:59], 0 offen""")
        for j in range(nst[0]):
            e(f"v_mov_b32 v4, s{sTS+2*j}\nv_mov_b32 v5, s{sTS+1+2*j}\nbuffer_store_dwordx2 v[4:5], v1, s[56:59], 0 offen offset:{8+8*j}\ns_nop 1")
        e("s_waitcnt vmcnt(0)")
    e("L_exit:")
    txt, added = k.text()
    print(f"main: {len(k.L)} lines, nops added {added}, forced fills {eng.forced}, stamps {nst[0]}", file=sys.stderr)
    return txt

def f2u(x):
    import struct
    return struct.unpack('<I', struct.pack('<f', x))[0]

def reduce_kernel():
    k = K(); e = k.e
    if OPT['ts']: e("s_memrealtime s[20:21]")
    e(f"""
    s_cmp_ge_u32 s2, 560
    s_cbranch_scc1 L_rexit
    s_load_dwordx2 s[8:9], s[0:1], 56
    s_load_dwordx2 s[12:13], s[0:1], 40
    v_lshrrev_b32 v1, 6, v0
    v_and_b32 v2, 63, v0
    v_readfirstlane_b32 s3, v1
    s_lshl_b32 s4, s2, 2
    s_add_u32 s4, s4, s3                     ; gw
    s_mov_b32 s10, {2240*16384}
    s_mov_b32 s11, 0x00020000
    s_mov_b32 s14, 2293760
    s_mov_b32 s15, 0x00020000
    s_lshl_b32 s5, s4, 14
    v_lshlrev_b32 v3, 4, v2
    s_waitcnt lgkmcnt(0)
    """)
    for h in range(16):
        if h % 4 == 0 and h: e("s_add_u32 s5, s5, 4096")
        k.vmem(f"buffer_load_dwordx4 v[{16+4*h}:{19+4*h}], v3, s[8:11], s5 offen offset:{(h%4)*1024}", f"h{h}")
    e(f"""
    s_mul_i32 s6, s4, 2341
    s_lshr_b32 s6, s6, 16
    s_mul_i32 s7, s6, 28
    s_sub_u32 s7, s4, s7
    s_mul_i32 s6, s6, {32*896}
    s_lshl_b32 s7, s7, 5
    s_add_u32 s6, s6, s7
    v_and_b32 v4, 31, v2
    v_mul_u32_u24 v4, 896, v4
    v_lshrrev_b32 v5, 5, v2
    v_lshl_add_u32 v4, v5, 4, v4
    s_mov_b32 s16, 0xffff0000
    """)
    for h in range(16):
        k.wait(vm=[f"h{h}"])
        for q in range(4):
            r = 16 + 4 * h + q
            if h == 0:
                e(f"v_lshlrev_b32 v{8+2*q}, 16, v{r}\nv_and_b32 v{9+2*q}, s16, v{r}")
            else:
                e(f"v_lshlrev_b32 v6, 16, v{r}\nv_and_b32 v7, s16, v{r}\nv_add_f32 v{8+2*q}, v{8+2*q}, v6\nv_add_f32 v{9+2*q}, v{9+2*q}, v7")
    for q in range(4):
        e(f"v_cvt_pk_bf16_f32 v{8+q}, v{8+2*q}, v{9+2*q}")
    e("buffer_store_dwordx4 v[8:11], v4, s[12:15], s6 offen")
    if OPT['ts']:
        e("""s_waitcnt vmcnt(0)
        s_memrealtime s[22:23]
        s_add_u32 s8, s8, 0x0ff20000
        s_addc_u32 s9, s9, 0
        s_mov_b32 s10, 0x20000
        s_mov_b64 exec, 1
        s_lshl_b32 s5, s4, 4
        s_waitcnt lgkmcnt(0)
        v_mov_b32 v2, s20
        v_mov_b32 v3, s22
        v_mov_b32 v1, 0
        buffer_store_dwordx2 v[2:3], v1, s[8:11], s5 offen
        s_waitcnt vmcnt(0)""")
    e("L_rexit:")
    txt, added = k.text()
    return txt

def diag_kernel():
    A, B, KK = OPT['diag'].split(',')
    k = K(); e = k.e
    e("""s_memrealtime s[20:21]
    s_cmp_ge_u32 s2, 1
    s_cbranch_scc1 L_dexit
    s_load_dwordx2 s[8:9], s[0:1], 56
    s_mov_b32 s10, 0x100000
    s_mov_b32 s11, 0x00020000
    s_waitcnt lgkmcnt(0)
    s_add_u32 s8, s8, 0x0ff00000
    s_addc_u32 s9, s9, 0""")
    def val(spec, dst):
        if spec == 'now':
            e(f"s_mov_b32 {dst}, s20"); return
        kind = spec[0]; idx = int(spec[1:-3]); op = spec[-3:]
        if kind == 'm': n, stride, off = 4, 256, 8 + 8 * idx
        elif kind == 'p': n, stride, off = 4, 16, 0x40000 + 4 * idx
        else: n, stride, off = 35, 16, 0x20000 + 4 * idx
        e(f"v_mul_u32_u24 v1, {stride}, v0\nv_add_u32 v1, {off}, v1")
        for j in range(n):
            e(f"buffer_load_dword v{2+j}, v1, s[8:11], 0 offen\nv_add_u32 v1, {64*stride}, v1")
        e("s_waitcnt vmcnt(0)")
        for j in range(n): e(f"v_subrev_u32 v{2+j}, s20, v{2+j}")
        for j in range(1, n): e(f"v_{op}_i32 v2, v2, v{2+j}")
        e(f"s_nop 1\nv_readlane_b32 {dst}, v2, 0")
        for l in range(1, 64):
            e(f"v_readlane_b32 s30, v2, {l}\ns_{op}_i32 {dst}, {dst}, s30")
        e(f"s_add_u32 {dst}, {dst}, s20")
    val(A, 's24'); val(B, 's25')
    e(f"""s_sub_u32 s24, s25, s24
    s_mul_i32 s24, s24, {KK}
    s_min_u32 s24, s24, 40000
    s_add_u32 s24, s24, 300
    L_spin:
    s_memrealtime s[22:23]
    s_waitcnt lgkmcnt(0)
    s_sub_u32 s22, s22, s20
    s_cmp_lt_u32 s22, s24
    s_cbranch_scc1 L_spin
    L_dexit:""")
    return k.text()[0]

def pre_kernel():
    mods, infl, order = OPT['pre'].split(':'); infl = int(infl)
    k = K(); e = k.e
    e("""s_memrealtime s[20:21]
    s_cmp_ge_u32 s2, 256
    s_cbranch_scc1 L_pexit
    s_load_dwordx2 s[12:13], s[0:1], 8
    s_load_dwordx2 s[16:17], s[0:1], 16
    s_load_dwordx2 s[8:9], s[0:1], 56
    s_mov_b32 s14, 0x4000000
    s_mov_b32 s15, 0x00020000
    s_mov_b32 s18, 0x4000000
    s_mov_b32 s19, 0x00020000
    s_mov_b32 s10, 0x100000
    s_mov_b32 s11, 0x00020000
    v_lshrrev_b32 v1, 6, v0
    v_and_b32 v2, 63, v0
    v_readfirstlane_b32 s28, v1
    v_lshlrev_b32 v2, 4, v2
    s_lshl_b32 s3, s2, 18
    s_lshl_b32 s29, s28, 12
    s_add_u32 s3, s3, s29
    s_mul_i32 s32, s28, 40960
    s_waitcnt lgkmcnt(0)
    s_add_u32 s8, s8, 0x0ff40000
    s_addc_u32 s9, s9, 0""")
    i = 0
    for t in order:
        srd = "s[12:15]" if t == 'K' else "s[16:19]"
        for blk in range(16):
            e(f"s_add_u32 s33, s3, {blk*16384}\ns_add_u32 m0, s32, {(i % 10)*4096}")
            for ii in range(4):
                e(f"s_waitcnt vmcnt({infl-1})\nbuffer_load_dwordx4 v2, {srd}, s33 offen offset:{ii*1024} {mods} lds")
            i += 1
            if i == 16 + infl // 4 or (i == 16 and len(order) == 1): e("s_memrealtime s[22:23]")
    e("""s_waitcnt vmcnt(0)
    s_barrier
    s_memrealtime s[24:25]
    s_cmp_lg_u32 s28, 0
    s_cbranch_scc1 L_pexit
    s_mov_b64 exec, 1
    s_lshl_b32 s5, s2, 4
    s_waitcnt lgkmcnt(0)
    v_mov_b32 v4, s20
    v_mov_b32 v5, s22
    v_mov_b32 v6, s24
    v_mov_b32 v7, 0
    v_mov_b32 v1, 0
    buffer_store_dwordx4 v[4:7], v1, s[8:11], s5 offen
    s_waitcnt vmcnt(0)
    L_pexit:""")
    return k.text()[0]

if __name__ == "__main__":
    out = sys.argv[1]
    m = main_kernel()
    r = reduce_kernel()
    L = [("mha_main_kernel", 256, 256, 163840), ("mha_reduce_kernel", 560, 256, 0)]
    KS = [("mha_main_kernel", m, 512, 256), ("mha_reduce_kernel", r, 80, 80)]
    if OPT['red']:
        L = L[:1]; KS = KS[:1]
    if OPT['pre']:
        L.insert(0, ("mha_pre_kernel", 256, 256, 163840)); KS.append(("mha_pre_kernel", pre_kernel(), 64, 64))
    if OPT['diag']:
        L.append(("mha_diag_kernel", 1, 64, 0)); KS.append(("mha_diag_kernel", diag_kernel(), 64, 64))
    write_file(out, HEADER, L, KS)
```

```python
import heapq, sys
from asmlib import parse, need

INF = 10 ** 9

class Op:
    __slots__ = ('id', 'kind', 'text', 'cost', 'R', 'W', 'early', 'ab', 'bb', 'preds', 'succs', 'lst', 'done',
                 'fn', 'tag', 'asyncw', 'idx', 'gap', 'lat', 'dl', 'np', 'first', 'name', 'rd', 'bw', 'dur', 'minage', 'pre', 'lgage')
    def __init__(self, kind, text, cost=4, early=-1, ab=None, bb=None, R=(), W=(), fn=None, lat=None, dl=None,
                 chain=None, rd=False, name=None, dur=32, minage=None, pre=False, lgage=None):
        self.pre = pre; self.lgage = lgage
        self.kind = kind; self.text = text; self.cost = cost; self.early = early
        self.ab = ab; self.bb = bb; self.fn = fn; self.lat = lat; self.dl = dl
        self.R = set(R); self.W = set(W); self.asyncw = set(); self.first = None
        self.preds = []; self.succs = []; self.lst = INF; self.done = False; self.tag = None
        self.idx = None; self.gap = None; self.name = name; self.rd = rd; self.bw = []; self.dur = dur
        self.minage = minage
        for ln in text.split('\n'):
            d = parse(ln)
            if d is None: continue
            if self.first is None: self.first = d
            self.R |= d['r']; self.W |= d['w']
            if d['kind'] in ('ds', 'vmem'): self.asyncw |= d['w']
        self.R.discard('scc'); self.W.discard('scc')
        if chain:
            for c in chain.split(','):
                self.R.add('#' + c); self.W.add('#' + c)

class Sched:
    def __init__(self, k):
        self.k = k
        self.prog = []
        self.bars = {}
        self.nmf = 0
        self.pend = {}
        self.hist = []
        self.stats = []
        self.forced = 0
    def add(self, op):
        op.id = len(self.prog); self.prog.append(op)
        if op.kind == 'mf':
            op.idx = self.nmf; self.nmf += 1
        return op
    def mf(self, text, dur=32): return self.add(Op('mf', text, chain='mf', dur=dur))
    def rd(self, text, **kw): return self.add(Op('ds', text, chain='rd', rd=True, **kw))
    def e(self, text, **kw):
        if 'cost' not in kw: kw['cost'] = sum((8 if ('exp' in l or 'rcp' in l) else 4) for l in text.split('\n') if l.strip() and not l.strip().endswith(':'))
        return self.add(Op('e', text, **kw))
    def es(self, text, **kw):
        for l in text.split('\n'):
            l = l.split(';')[0].strip()
            if l: self.e(l, **kw)
    def ds(self, text, **kw): return self.add(Op('ds', text, **kw))
    def vm(self, text, **kw): return self.add(Op('vm', text, **kw))
    def bar(self, name, fn=None, **kw):
        op = self.add(Op('bar', 's_barrier', cost=8, chain='bar', name=name, fn=fn, **kw))
        self.bars[name] = op
        return op
    def build(self, rdlat=200, dslat=128, vmlat=2500):
        lw = {}; rs = {}
        def edge(a, b):
            if a is b or (a.kind == 'mf' and b.kind == 'mf'): return
            if a not in b.preds:
                b.preds.append(a); a.succs.append(b)
        for op in self.prog:
            for r in op.R | op.W:
                if r in lw: edge(lw[r], op)
            for r in op.W:
                for x in rs.get(r, ()): edge(x, op)
            for r in op.W:
                lw[r] = op; rs[r] = []
            for r in op.R - op.W:
                lst = rs.setdefault(r, [])
                if op.kind == 'mf':
                    lst[:] = [x for x in lst if x.kind != 'mf']
                lst.append(op)
        for op in self.prog:
            if op.ab is not None: edge(self.bars[op.ab], op)
            if op.bb is not None:
                edge(op, self.bars[op.bb]); self.bars[op.bb].bw.append(op)
        mfs = [o for o in self.prog if o.kind == 'mf']
        self.mfs = mfs
        t = 0; self.T = []
        for m in mfs:
            self.T.append(t); m.lst = t; t += m.dur
        self.T.append(t)
        indeg = {o.id: len(o.preds) + (1 if o.kind == 'mf' and o.idx > 0 else 0) for o in self.prog}
        q = [o for o in self.prog if indeg[o.id] == 0]; topo = []
        while q:
            o = q.pop(); topo.append(o)
            nx = list(o.succs)
            if o.kind == 'mf' and o.idx + 1 < len(mfs): nx.append(mfs[o.idx + 1])
            for s in nx:
                indeg[s.id] -= 1
                if indeg[s.id] == 0: q.append(s)
        if len(topo) != len(self.prog):
            bad = [o for o in self.prog if indeg[o.id] > 0]
            print("CYCLE; first stuck ops:", file=sys.stderr)
            for o in bad[:12]: print("  ", o.id, o.kind, o.name, o.text.split('\n')[0], [p.id for p in o.preds if indeg[p.id] > 0], file=sys.stderr)
            raise SystemExit(1)
        for o in reversed(topo):
            if o.kind == 'mf': continue
            l = INF
            for s in o.succs:
                if s.lst >= INF: continue
                lat = 0
                if o.kind in ('ds', 'vm') and ((o.asyncw & (s.R | s.W)) or (s.kind == 'bar' and o in s.bw)):
                    lat = o.lat if o.lat is not None else ((rdlat if o.rd else dslat) if o.kind == 'ds' else vmlat)
                    if s.kind == 'bar' and o.kind == 'ds': lat = 64
                l = min(l, s.lst - lat)
            if l < INF: l -= o.cost * 4 // 3
            if o.dl is not None: l = min(l, self.T[min(o.dl, len(mfs))])
            o.lst = l
    def _sync_hist(self, n0):
        for ln in self.k.L[n0:]:
            d = parse(ln)
            if d is not None: self.hist.append(d)
        self.hist = self.hist[-16:]
    def hazard(self, op):
        d = op.first
        if d is None: return 0
        if op.kind == 'e' and (op.R | op.W) != (d['r'] | d['w']):
            d = dict(d); d['r'] = op.R; d['w'] = op.W
            if d['kind'] == 'salu' and any(x[0] in 'va' for x in op.R | op.W): d['kind'] = 'valu'
        req = 0; dist = 0
        for p in reversed(self.hist):
            nn = need(p, d)
            if nn > dist: req = max(req, nn - dist)
            dist += p['n'] if p['kind'] == 'nop' else 1
            if dist >= 12: break
        return req
    def needs(self, op):
        lg = set(); vm = set()
        for r in op.R | op.W:
            x = self.pend.get(r)
            if x is None: continue
            if x[0] == 'lg':
                if x[1] in self.k.lg: lg.add(x[1])
            elif x[1] in self.k.vm: vm.add(x[1])
        if op.kind == 'bar':
            for p in op.bw:
                if p.kind == 'ds' and p.tag in self.k.lg: lg.add(p.tag)
                if p.kind == 'vm' and p.tag in self.k.vm: vm.add(p.tag)
        return lg, vm
    def emit(self, op, i, extra_lg=()):
        k = self.k; n0 = len(k.L)
        assert not op.done
        lg, vm = self.needs(op)
        lg |= set(extra_lg)
        k.wait(lg=lg, vm=vm)
        c = 4 * (len(k.L) - n0)
        op.tag = ('t', op.id)
        if op.kind == 'bar':
            k.e('s_barrier')
            if op.fn: op.fn()
        elif op.fn:
            op.fn(op)
        else:
            for ln in op.text.split('\n'):
                d = parse(ln)
                if d is not None and d['kind'] == 'ds': k.ds(ln, op.tag)
                elif d is not None and d['kind'] == 'vmem': k.vmem(ln, op.tag)
                else: k.e(ln)
        for r in op.asyncw: self.pend[r] = ('lg' if op.kind == 'ds' else 'vm', op.tag)
        op.done = True; op.gap = i
        self.tagop[op.tag] = op
        for s in op.succs:
            s.np -= 1
            if s.np == 0 and s.kind != 'mf': heapq.heappush(self.ready, (s.lst, s.id))
        self._sync_hist(n0)
        return c + op.cost
    def force(self, op, i):
        c = 0
        stack = [op]; todo = []
        seen = set()
        while stack:
            o = stack.pop()
            for p in o.preds:
                if not p.done and p.id not in seen:
                    assert p.kind != 'mf', ("needs future mfma", o.text, p.text, p.idx, i)
                    seen.add(p.id); todo.append(p); stack.append(p)
        todo.sort(key=lambda o: (o.lst, o.id))
        while todo:
            cand = [o for o in todo if o.np == 0]
            pick = None
            for o in cand:
                if self.hazard(o) == 0: pick = o; break
            if pick is None: pick = cand[0]
            todo.remove(pick)
            c += self.emit(pick, i); self.forced += 1
        return c
    def eligible(self, o, i, now, maxlg, delay, dsage):
        if o.early > i: return False
        urgent = o.lst <= now
        if o.kind == 'ds' and len(self.k.lg) + o.text.count('ds_') > maxlg: return False
        if self.hazard(o) > 0: return False
        lg, vm = self.needs(o)
        if not urgent or o.kind == 'bar':
            age = delay if o.kind == 'bar' else dsage
            if o.lgage is not None: age = o.lgage
            if o.kind == 'bar' and o.lst + 96 <= now: age = 0
            for t in lg:
                if i - self.tagop[t].gap < age: return False
        if o.minage is not None:
            for t in vm:
                if i - self.tagop[t].gap < o.minage: return False
        return True
    def run(self, budget=24, maxlg=14, delay=2, dsage=4, maxds=3, pairage=3, verbose=False):
        k = self.k
        self.tagop = {}
        self.ready = []
        for o in self.prog:
            o.np = len(o.preds)
            if o.np == 0 and o.kind != 'mf': heapq.heappush(self.ready, (o.lst, o.id))
        mfs = self.mfs; n = len(mfs)
        est = []
        def fill(i, used, bud, now):
            nds = 0; nvm = 0
            while True:
                skipped = []; pick = None
                while self.ready:
                    it = heapq.heappop(self.ready); o = self.prog[it[1]]
                    if o.done: continue
                    ok = self.eligible(o, i, now, maxlg, delay, dsage)
                    if ok and o.kind == 'ds' and nds + o.text.count('ds_') > maxds and nds: ok = False
                    if ok and o.kind == 'vm' and nvm: ok = False
                    if ok and used + o.cost > bud and not (o.lst <= now): ok = False
                    if ok: pick = o; break
                    skipped.append(it)
                    if len(skipped) > 200: break
                for it in skipped: heapq.heappush(self.ready, it)
                if pick is None: break
                used += self.emit(pick, i)
                if pick.kind == 'ds': nds += pick.text.count('ds_')
                if pick.kind == 'vm': nvm += 1
            return used
        for o in self.prog:
            if o.pre:
                assert o.np == 0, ("pre op has pending preds", o.text, [p.text for p in o.preds if not p.done])
                self.emit(o, -1)
        for i, m in enumerate(mfs):
            used = self.force(m, i - 1)
            if i == 0:
                for _ in range(4): fill(-1, 0, 0, 0)
            extra = []
            lg, _ = self.needs(m)
            if lg and i + 1 < n and mfs[i + 1].np == 0:
                lg2, _ = self.needs(mfs[i + 1])
                if lg2 and all(i - 1 - self.tagop[t].gap >= pairage for t in lg2): extra = list(lg2)
            used += 4 * self.hazard(m)
            used += self.emit(m, i, extra) - m.cost
            if est: est[-1] += used
            bud = budget - (32 - m.dur)
            u = fill(i, 0, bud - 4 if self._will_wait(i + 1) else bud, self.T[i + 1])
            est.append(u)
        while True:
            rem = [o for o in self.prog if not o.done]
            if not rem: break
            cand = sorted([o for o in rem if o.np == 0], key=lambda o: (o.lst, o.id))
            pick = None
            for o in cand:
                if self.hazard(o) == 0 and not any(self.needs(o)): pick = o; break
            if pick is None: pick = cand[0]
            est[-1] += self.emit(pick, n)
        self.est = [max(m.dur, 8 + u) for m, u in zip(mfs, est)]
        self.use = est
    def _will_wait(self, j):
        if j >= len(self.mfs): return False
        lg, vm = self.needs(self.mfs[j])
        return bool(lg or vm)
```

```python
import sys, math, struct
sys.path.insert(0, "work")
from asmlib import K, write_file
from sch import Sched, Op

OPT = dict(arr='N', ts=0, dump='', nt='nt', st='', bud=24, maxlg=14, delay=3, dsage=4, maxds=3,
           rb=9, wb=0, wage=6, dc=16, wc=16, lc=12,
           kpre=0, k0=0, kp=65, kp2=0, ksw=999, pair=1, tp=0, tpm='', stamps='RA0,RA3,RS0,RS2,RS4,RS6,RS8,RS10,RS12,RS14,RS16,RS18,RS20,RS22',
           w0=14, wp=2,
           dp=2, vp=3, verbose=0, red=0, lo=-20, hi=30)
for a in sys.argv[2:]:
    kk, vv = a.split('=')
    assert kk in OPT, kk
    OPT[kk] = int(vv) if vv.lstrip('-').isdigit() else vv

HEADER = "".join(l for l in open("standalone__mha_block_cached__near_ridge.s.ref").read().splitlines(True)[:11])
MF = "v_mfma_f32_32x32x16_bf16"
def R(p, lo, n): return f"{p}[{lo}:{lo+n-1}]"
def f2u(x): return struct.unpack('<I', struct.pack('<f', x))[0]
SX, SK, SV, SWQ, SWO, SWS = "s[8:11]", "s[12:15]", "s[16:19]", "s[20:23]", "s[24:27]", "s[28:31]"
sW, sB, sH = "s32", "s33", "s34"
sT0, sT1, sT2 = "s36", "s37", "s38"
sC = "s39"
sWQO, sXO, sM8, sM1, sW16, sWOO, sWLO = "s40", "s41", "s42", "s43", "s44", "s45", "s46"
sST = 47
sD, sL, sS = "s55", "s56", "s35"
sPASS, sLO, sRNG = "s57", "s58", "s59"
sTS = 60
XB = 96 * 1024
S4 = 128 * 1024
SL = dict(a=32768, b=65536, c=0, d=98304)
def B(i): return 48 + 16 * i
vSP, vSS, vMP, vMS = 38, 39, 40, 41

def main_kernel():
    k = K(); e = k.e
    s = Sched(k)
    nst = [0]
    TSI = 's_memtime' if OPT['ts'] == 2 else 's_memrealtime'
    def stamp():
        if OPT['ts']:
            k.wait(lg0=True)
            e(f"{TSI} s[{sTS+2*nst[0]}:{sTS+1+2*nst[0]}]\ns_waitcnt lgkmcnt(0)")
            nst[0] += 1
    def dump(name, regs):
        if OPT['dump'] != name: return
        def fn(op):
            e("s_nop 7\ns_nop 7\ns_waitcnt vmcnt(0) lgkmcnt(0)")
            e(f"s_mul_i32 {sT0}, {sB}, 64\ns_lshl_b32 {sT1}, {sH}, 2\ns_add_u32 {sT0}, {sT0}, {sT1}\ns_add_u32 {sT0}, {sT0}, {sW}\ns_lshl_b32 {sT0}, {sT0}, 17")
            e("s_add_u32 s8, s4, 0x4000000\ns_addc_u32 s9, s5, 0\ns_mov_b32 s10, 0x8000000\ns_mov_b32 s11, 0x00020000")
            e("v_lshlrev_b32 v0, 2, v0")
            for i, r in enumerate(regs):
                e(f"buffer_store_dword {r}, v0, s[8:11], {sT0} offen\ns_add_u32 {sT0}, {sT0}, 256")
                if i % 32 == 31: e("s_waitcnt vmcnt(0)")
            e("s_waitcnt vmcnt(0)\ns_branch L_exit")
        s.add(Op('e', 's_nop 0', R=regs, W=regs, fn=fn, dl=s.nmf))

    if OPT['ts']:
        e(f"{TSI} s[{sTS}:{sTS+1}]"); nst[0] = 1
    e(f"""
    s_cmp_ge_u32 s2, 256
    s_cbranch_scc1 L_exit
    v_lshrrev_b32 v1, 6, v0
    v_and_b32 v0, 63, v0
    s_mov_b32 {sPASS}, 0
    v_readfirstlane_b32 {sW}, v1
    s_mov_b64 vcc, 0
    s_mov_b32 {sLO}, 0x{(127 + OPT['lo']) << 23:08x}
    s_mov_b32 {sRNG}, 0x{(OPT['hi'] - OPT['lo']) << 23:08x}
    L_start:
    s_load_dwordx2 s[8:9], s[0:1], 0
    s_load_dwordx2 s[20:21], s[0:1], 24
    s_load_dwordx2 s[12:13], s[0:1], 8
    s_load_dwordx2 s[16:17], s[0:1], 16
    s_load_dwordx2 s[24:25], s[0:1], 32
    s_load_dwordx2 s[4:5], s[0:1], 56
    s_and_b32 {sT0}, s2, 7
    s_lshr_b32 {sT1}, s2, 3
    """)
    arr = OPT['arr']
    if arr == 'N':
        e(f"""s_lshr_b32 {sB}, {sT0}, 1
        s_lshl_b32 {sB}, {sB}, 2
        s_lshr_b32 {sT2}, {sT1}, 3
        s_add_u32 {sB}, {sB}, {sT2}
        s_and_b32 {sH}, {sT0}, 1
        s_lshl_b32 {sH}, {sH}, 3
        s_and_b32 {sT2}, {sT1}, 7
        s_add_u32 {sH}, {sH}, {sT2}""")
    elif arr == 'L':
        e(f"""s_lshl_b32 {sB}, {sT0}, 1
        s_lshr_b32 {sT2}, {sT1}, 4
        s_add_u32 {sB}, {sB}, {sT2}
        s_and_b32 {sH}, {sT1}, 15""")
    elif arr == 'M':
        e(f"""s_lshr_b32 {sB}, {sT0}, 2
        s_lshl_b32 {sB}, {sB}, 3
        s_lshr_b32 {sT2}, {sT1}, 2
        s_add_u32 {sB}, {sB}, {sT2}
        s_and_b32 {sH}, {sT0}, 3
        s_lshl_b32 {sH}, {sH}, 2
        s_and_b32 {sT2}, {sT1}, 3
        s_add_u32 {sH}, {sH}, {sT2}""")
    e(f"""
    s_mov_b32 s10, 143360
    s_mov_b32 s11, 0x00020000
    s_mov_b32 s23, 0x00020000
    s_lshl_b32 {sM8}, {sW}, 13
    s_lshl_b32 {sM1}, {sW}, 10
    s_lshl_b32 {sWQO}, {sW}, 17
    s_mul_i32 {sXO}, {sW}, 7168
    v_lshrrev_b32 v44, 5, v0                 ; hh
    v_and_b32 v45, 31, v0                    ; c
    v_lshlrev_b32 v1, 2, v44
    v_xor_b32 v1, v1, v45
    v_lshlrev_b32 v1, 4, v1
    v_lshl_add_u32 v2, v44, 13, v1
    v_xor_b32 v3, 0x80, v2
    v_add_u32 v3, 15360, v3
    v_add_u32 v4, 30720, v2
    v_add_u32 v5, 30720, v3
    s_and_b32 {sT2}, {sW}, 1
    s_lshl_b32 {sT0}, {sT2}, 2
    v_lshrrev_b32 v6, 4, v0
    v_xor_b32 v6, {sT0}, v6
    v_and_b32 v1, 7, v0
    v_xor_b32 v6, v6, v1
    v_lshlrev_b32 v6, 4, v6
    v_lshrrev_b32 v1, 3, v0
    v_mul_u32_u24 v1, 896, v1
    v_add_u32 v6, v6, v1                     ; x voff
    s_mul_i32 {sT0}, {sB}, 143360
    s_lshl_b32 {sT1}, {sH}, 9
    s_waitcnt lgkmcnt(0)
    s_add_u32 s8, s8, {sT0}
    s_addc_u32 s9, s9, 0
    s_add_u32 s20, s20, {sT1}
    s_addc_u32 s21, s21, 0
    s_sub_u32 s22, 3670016, {sT1}
    """)
    dc, lc = OPT['dc'], OPT['lc']
    def vmop(text, **kw):
        n = text.count('\n')
        return s.vm(text, cost=kw.pop('cost', dc) + 4 * n, chain='vm', **kw)
    def pace(e0, p):
        i = 0
        while True:
            x = e0 + int(i * p)
            yield dict(early=x, dl=x + 2)
            i += 1
    def dma_stage(i, pc=None, **kw):
        L = []
        slot = (i % 3) * 32768; xs = XB + (i % 3) * 20480
        for u in range(2):
            for ii in range(4):
                t = f"s_add_u32 m0, {sM8}, {slot + u*4096}\ns_add_u32 {sD}, {sWQO}, {(i << 19) + u*65536}\n" if ii == 0 else ""
                L.append(t + f"buffer_load_dwordx4 v{2+ii}, {SWQ}, {sD} offen offset:{ii*1024} lds")
        X = []
        for u in range(5):
            X.append(f"s_add_u32 m0, {sM1}, {xs + u*4096}\ns_add_u32 {sD}, {sXO}, {i*128 + u*4*7168}\nbuffer_load_dwordx4 v6, {SX}, {sD} offen lds")
        return [(t, dict(bb=f"RA{i}", **kw)) for t in L + X]
    def dma_tile(n, slot, **kw):
        L = []
        for u in range(2):
            for ii in range(4):
                if n < 16:
                    i, dh = (n >> 1, n & 1) if n < 8 else ((n - 8) & 3, (n - 8) >> 2)
                    so = f"{sW16}, {i*65536 + dh*256 + u*8192}"; vo = (8 if n < 8 else 2) + ii; srd = SK if n < 8 else SV; m = OPT['nt']
                elif n < 22:
                    g, dh = (n - 16) >> 1, (n - 16) & 1
                    so = f"{sWOO}, {(dh*128 + 16*u)*896 + g*256}"; vo = 2 + ii; srd = SWO; m = ''
                else:
                    so = f"{sWLO}, {32*u*896 + 768}"; vo = 8 + ii; srd = SWO; m = ''
                t = f"s_add_u32 m0, {sM8}, {SL[slot] + u*4096}\ns_add_u32 {sD}, {so}\n" if ii == 0 else ""
                L.append(t + f"buffer_load_dwordx4 v{vo}, {srd}, {sD} offen offset:{ii*1024} {m} lds")
        return [(t, dict(bb=f"RS{n}", **kw)) for t in L]
    def stage_load(tiles, **kw):
        L = []
        for u in range(2):
            for ii in range(4):
                for x, (n, r) in enumerate(tiles):
                    i, dh = (n >> 1, n & 1) if n < 8 else ((n - 8) & 3, (n - 8) >> 2)
                    t = f"s_add_u32 {sL}, {sW16}, {i*65536 + u*8192}\n" if ii == 0 and x == 0 else ""
                    vo = (8 if n < 8 else 2) + ii; srd = SK if n < 8 else SV
                    L.append(t + f"buffer_load_dwordx4 {R('a', 32*r + 16*u + 4*ii, 4)}, v{vo}, {srd}, {sL} offen offset:{ii*1024 + dh*256} {OPT['nt']}")
        return [(t, dict(cost=lc, **kw)) for t in L]
    def issue(L, pc=None, **kw):
        for t, a in L:
            a = dict(a); a.update(kw)
            if pc is not None: a.update(next(pc))
            vmop(t, **a)
    wbase = [32768]
    def stage_write(n, r, slot, ab, p0):
        for u in range(2):
            for ii in range(4):
                off = SL[slot] - wbase[0] + u * 4096 + ii * 1024
                assert 0 <= off < 65536
                x = p0 + OPT['w0'] + OPT['wp'] * (4 * u + ii)
                s.ds(f"ds_write_b128 v7, {R('a', 32*r + 16*u + 4*ii, 4)} offset:{off}", cost=OPT['wc'], ab=ab, bb=f"RS{n}", early=x, dl=x + 1)
    P = dict(pre=True)
    issue(dma_stage(0), **P)
    s.es(f"""
    s_lshl_b32 {sT0}, {sB}, 4
    s_add_u32 {sT0}, {sT0}, {sH}
    s_lshl_b32 {sT0}, {sT0}, 18""", **P)
    s.e(f"s_add_u32 s16, s16, {sT0}\ns_addc_u32 s17, s17, 0\ns_add_u32 s12, s12, {sT0}\ns_addc_u32 s13, s13, 0", **P)
    s.es(f"""
    s_mov_b32 s14, 262144
    s_mov_b32 s15, 0x00020000
    s_mov_b32 s18, 262144
    s_mov_b32 s19, 0x00020000
    s_lshl_b32 {sW16}, {sW}, 14""", **P)
    issue(dma_stage(1), **P)
    s.es(f"""
    v_bfe_u32 v1, v0, 4, 1
    v_and_b32 v8, 7, v0
    v_xor_b32 v8, v8, v1
    v_lshlrev_b32 v8, 4, v8
    v_lshl_add_u32 v8, v44, 7, v8
    v_bfe_u32 v1, v0, 3, 2
    v_lshl_add_u32 v8, v1, 9, v8
    v_xor_b32 v9, {1024+32}, v8
    v_xor_b32 v10, {2048+64}, v8
    v_xor_b32 v11, {3072+96}, v8""".replace(f"v_xor_b32 v9, {1024+32}, v8", "v_xor_b32 v9, 32, v8\nv_add_u32 v9, 1024, v9")
       .replace(f"v_xor_b32 v10, {2048+64}, v8", "v_xor_b32 v10, 64, v8\nv_add_u32 v10, 2048, v10")
       .replace(f"v_xor_b32 v11, {3072+96}, v8", "v_xor_b32 v11, 0x60, v8\nv_add_u32 v11, 3072, v11"), **P)
    KL = stage_load([(0, 0), (1, 1)]) + stage_load([(2, 2), (3, 3)]) + stage_load([(4, 4), (5, 5)]) + stage_load([(6, 6)])
    if not OPT['pair']: KL = sum([stage_load([(n, n)]) for n in range(7)], [])
    if OPT['tp']:
        s.es(f"v_and_b32 v241, 15, v0\nv_lshlrev_b32 v241, 12, v241\ns_lshl_b32 {sL}, {sW}, 16", **P)
        vmop(f"buffer_load_dword v240, v241, {SK}, {sL} offen {OPT['tpm']}", **P)
        if OPT['tp'] > 1: vmop(f"buffer_load_dword v242, v241, {SV}, {sL} offen {OPT['tpm']}", **P)
    issue(KL[:OPT['kpre']], **P)
    KL = KL[OPT['kpre']:]
    s.e(f"s_mul_i32 {sT0}, {sH}, 229376\ns_add_u32 s24, s24, {sT0}\ns_addc_u32 s25, s25, 0", **P)
    s.e(f"s_mul_i32 {sT0}, {sB}, {140*16384}\ns_lshl_b32 {sT1}, {sH}, 10\ns_add_u32 {sT0}, {sT0}, {sT1}\ns_add_u32 s28, s4, {sT0}\ns_addc_u32 s29, s5, 0", **P)
    s.es(f"""
    s_mov_b32 s26, 229376
    s_mov_b32 s27, 0x00020000
    s_mov_b32 s30, {140*16384}
    s_mov_b32 s31, 0x00020000
    s_mov_b32 {sC}, 0x{f2u(math.log2(math.e)/16):08x}
    s_mul_i32 {sWOO}, {sW}, {32*896}
    s_mul_i32 {sWLO}, {sW}, {64*896}
    """, **P)
    s.es(f"""
    v_bfe_u32 v47, v0, 2, 2
    v_lshl_add_u32 v43, v44, 3, v47
    v_bfe_u32 v1, v0, 4, 1
    v_lshlrev_b32 v46, 5, v1
    v_and_b32 v1, 1, v0
    v_lshl_add_u32 v46, v1, 4, v46
    v_bfe_u32 v1, v0, 1, 1
    v_lshl_add_u32 v46, v1, 3, v46
    v_lshl_add_u32 v1, v47, 6, v46
    s_lshl_b32 {sT0}, {sW}, 6
    v_lshl_add_u32 v12, v43, 9, v1
    v_xor_b32 v12, {sT0}, v12
    v_xor_b32 v13, 64, v12
    v_xor_b32 v14, 0x80, v12
    v_xor_b32 v15, 0xc0, v12
    v_bfe_u32 v1, v0, 1, 3
    v_xor_b32 v1, v1, v44
    v_lshlrev_b32 v1, 4, v1
    v_lshl_add_u32 v1, v45, 7, v1
    v_add_u32 v20, {XB + 128*128}, v1
    s_lshl_b32 {sT0}, {sW}, 12
    s_add_u32 {sT0}, {sT0}, {XB}
    v_add_u32 v16, {sT0}, v1
    v_xor_b32 v17, 32, v16
    v_xor_b32 v18, 64, v16
    v_xor_b32 v19, 0x60, v16
    v_xor_b32 v21, 32, v20
    v_xor_b32 v22, 64, v20
    v_xor_b32 v23, 0x60, v20
    """, **P)
    s.es(f"""
    v_and_b32 v42, 0x13, v0
    v_bfe_u32 v1, v0, 2, 1
    v_lshl_or_b32 v42, v1, 3, v42
    v_bfe_u32 v1, v0, 3, 1
    v_lshl_or_b32 v42, v1, 2, v42
    v_bfe_u32 v1, v42, 1, 3
    v_xor_b32 v1, v1, v44
    v_lshlrev_b32 v1, 4, v1
    v_and_b32 v24, 3, v42
    v_lshl_add_u32 v1, v24, 7, v1
    v_lshrrev_b32 v24, 2, v42
    v_lshl_add_u32 v1, v24, 10, v1
    s_add_u32 {sT0}, {sM8}, 32768
    v_add_u32 v32, {sT0}, v1
    v_xor_b32 v33, 32, v32
    v_xor_b32 v34, 64, v32
    v_xor_b32 v35, 0x60, v32
    s_lshr_b32 {sT1}, {sW}, 1
    s_lshl_b32 {sT1}, {sT1}, 9
    s_and_b32 {sT2}, {sW}, 1
    s_lshl_b32 {sT2}, {sT2}, 6
    s_add_u32 {sT1}, {sT1}, {sT2}
    s_add_u32 {sT1}, {sT1}, 32768
    v_xor_b32 v24, {sT1}, v1
    """, **P)
    for jj in range(4):
        for half in range(2):
            if jj or half: s.e(f"v_xor_b32 v{24+2*jj+half}, {(jj>>1)*512 + (jj&1)*64 + half*32}, v24", **P)
    s.es(f"""
    v_lshlrev_b32 v1, 4, v0
    v_add_u32 v7, {sT0}, v1
    v_add_u32 v36, {S4}, v1
    s_lshl_b32 {sT0}, {sW}, 11
    v_add_u32 v37, {sT0}, v36
    """, **P)
    s.e(f"s_mul_i32 {sT1}, {sW}, 14", **P)
    for t in range(4):
        s.es(f"s_xor_b32 {sT0}, {sW}, {t}\ns_add_u32 {sT0}, {sT0}, {sT1}\ns_lshl_b32 s{sST+t}, {sT0}, 15", **P)
    s.es(f"""s_add_u32 {sT0}, {sW}, 56
    s_lshl_b32 s{sST+4}, {sT0}, 15
    s_and_b32 {sT2}, {sW}, 1
    s_add_u32 {sT0}, {sT1}, {sT2}
    s_add_u32 {sT0}, {sT0}, 12
    s_lshl_b32 s{sST+5}, {sT0}, 15
    s_sub_u32 {sT0}, {sT1}, {sT2}
    s_add_u32 {sT0}, {sT0}, 13
    s_lshl_b32 s{sST+6}, {sT0}, 15
    s_add_u32 {sT0}, {sT2}, 68
    s_lshl_b32 s{sST+7}, {sT0}, 15""", **P)

    ringc = [0]
    def ring():
        r = 224 + 4 * (ringc[0] % 8); ringc[0] += 1
        return r
    STAMPS = set(OPT['stamps'].split(','))
    def RB(name):
        s.bar(name, fn=(stamp if name in STAMPS else None), early=s.nmf - OPT['rb'])
    def WB(name, p0):
        s.bar(name, early=p0 + OPT['wb'], lgage=OPT['wage'], dl=p0 + OPT['wb'] + 2)
    def rebase(regs, delta):
        for r in regs:
            s.e(f"v_add_u32 v{r}, {delta}, v{r}" if delta > 0 else f"v_subrev_u32 v{r}, {-delta}, v{r}")
    def tr(ar, off, d2, **kw):
        r = ring()
        s.rd(f"ds_read_b64_tr_b16 {R('a', r, 2)}, v{ar} offset:{off}", **kw)
        s.rd(f"ds_read_b64_tr_b16 {R('a', r+2, 2)}, v{ar} offset:{off+d2}", **kw)
        return R('a', r, 4)
    def rd128(ar, off, dst=None, **kw):
        if dst is None: dst = R('a', ring(), 4)
        s.rd(f"ds_read_b128 {dst}, v{ar} offset:{off}", **kw)
        return dst
    def mf(acc, a, b, first): s.mf(f"{MF} {acc}, {a}, {b}, {'0' if first else acc}")

    def qconv(src, j):
        for q in range(16): s.e(f"v_mul_f32 v{src+q}, {sC}, v{src+q}")
        for q in range(8): s.e(f"v_cvt_pk_bf16_f32 v{src+2*q}, v{src+2*q}, v{src+2*q+1}")
        for q in range(8): s.e(f"v_accvgpr_write_b32 a{8*j+q}, v{src+2*q}")
    def pack_write(src, off, ab, bb):
        for q in range(8): s.e(f"v_cvt_pk_bf16_f32 v{src+q}, v{src+2*q}, v{src+2*q+1}")
        for half in range(2):
            s.ds(f"ds_write_b128 v37, {R('v', src+4*half, 4)} offset:{off + half*1024}", cost=OPT['wc'], ab=ab, bb=bb)
    JORD = [0, 4, 1, 2, 3, 5, 6, 7]
    trb = 0
    gx = [float(OPT['k0']), 0]
    def gpace(e0):
        while True:
            gx[0] = max(gx[0], e0)
            x = int(gx[0]); gx[1] += 1
            gx[0] += (OPT['kp'] if gx[1] + OPT['kpre'] < OPT['ksw'] else OPT['kp2']) / 10
            yield dict(early=x, dl=x + 2)
    kpc = gpace(0)
    kq = [(t, dict(a, **next(kpc))) for t, a in KL]
    def merged(L, upto):
        M = list(L)
        while kq and kq[0][1]['early'] < upto: M.append(kq.pop(0))
        M.sort(key=lambda x: x[1]['early'])
        issue(M)
    for i in range(7):
        p0 = s.nmf
        slot = (i % 3) * 32768; xs = (i % 3) * 20480
        RB(f"RA{i}")
        if i >= 1: WB(f"WA{i}", p0)
        L = []
        if i <= 4:
            pc = pace(p0 + (1 if i else -1), OPT['dp'])
            L = [(t, dict(a, **next(pc))) for t, a in dma_stage(i + 2, ab=(f"WA{i}" if i else None))]
        merged(L, p0 + 40 if i < 6 else 10**9)
        if i == 5: stage_write(0, 0, 'a', 'WA5', p0)
        if i == 6: stage_write(1, 1, 'b', 'WA6', p0 - OPT['w0'] + 2)
        want = slot & 0x10000
        if want != trb: rebase(range(12, 16), want - trb); trb = want
        kw = dict(ab=f"RA{i}", bb=(f"WA{i+1}" if i < 6 else "WS0"))
        def step(j, T, newx):
            xb = B(10) + 8 * T
            if newx: rd128(16 + T, xs, R('v', xb, 4), **kw)
            a = tr(12 + (j & 3), slot - trb + (j >> 2) * 256 + T * 8192, 2048, **kw)
            mf(R('v', B(j), 16), a, R('v', xb, 4), i == 0 and T == 0)
            if j in (0, 4):
                if newx: rd128(20 + T, xs, R('v', xb + 4, 4), **kw)
                mf(R('v', B(8 + (j >> 2)), 16), a, R('v', xb + 4, 4), i == 0 and T == 0)
        if i < 6:
            for T in range(4):
                for j in JORD: step(j, T, j == 0)
        else:
            for j in range(8):
                for T in range(4): step(j, T, j == 0)
                if OPT['dump'] == 'Q': continue
                if j in (0, 4):
                    sh = B(8 + (j >> 2))
                    for q in range(16): s.e(f"v_mul_f32 v{sh+q}, {sC}, v{sh+q}")
                    pack_write(sh, 16384 + (j >> 2) * 8192, 'WA6', f"RS{j>>2}")
                qconv(B(j), j)
    dump('Q', [f"v{r}" for r in range(B(0), B(10))])
    s.es(f"""
    v_lshrrev_b32 v42, 4, v0
    v_lshlrev_b32 v3, 2, v42
    v_and_b32 v2, 15, v0
    v_xor_b32 v2, v2, v3
    v_lshlrev_b32 v2, 4, v2
    v_lshl_add_u32 v2, v42, 9, v2
    v_add_u32 v3, 1024, v2
    v_add_u32 v4, 2048, v2
    v_add_u32 v5, 3072, v2
    v_lshl_add_u32 v45, v47, 6, v46
    v_lshl_add_u32 v45, v43, 8, v45
    s_lshl_b32 {sT0}, {sW}, 6
    s_add_u32 {sT0}, {sT0}, 65536
    v_xor_b32 v12, {sT0}, v45
    v_xor_b32 v13, 64, v12
    v_xor_b32 v14, 0x80, v12
    v_xor_b32 v15, 0xc0, v12
    """)

    SLOT = {0: 'a', 1: 'b', 2: 'a', 3: 'b', 4: 'a', 5: 'b', 6: 'a', 7: 'c', 8: 'd', 9: 'b', 10: 'd', 11: 'b', 12: 'a', 13: 'c', 14: 'd', 15: 'b',
            16: 'a', 17: 'c', 18: 'd', 19: 'b', 20: 'a', 21: 'c', 22: 'd'}
    TB = [[12, 11, 8, 10, 0], [1, 2, 3, 4, 5], [6, 7, 9, 11, 0], [5, 2, 4, 7, 10]]
    hooks = []
    firsts = {vSP: True, vSS: True}
    def softmax(g, t):
        src = B(TB[g][t]); regs = [f"v{src+q}" for q in range(16)]
        mx, sm = (vMP, vSP) if t < 4 else (vMS, vSS)
        h = len(hooks); hooks.append((src, mx))
        s.add(Op('e', f"s_cbranch_vccnz L_fix{h}\nL_ret{h}:", cost=8, R=regs + ['vcc', f"v{mx}"], W=regs + [f"v{mx}"]))
        for q in range(16):
            s.e(f"v_exp_f32 v{src+q}, v{src+q}")
        for q in range(16):
            if firsts[sm]:
                if q == 0: continue
                s.e(f"v_add_f32 v{sm}, v{src}, v{src+1}"); firsts[sm] = False
            else: s.e(f"v_add_f32 v{sm}, v{sm}, v{src+q}")
        if t < 4:
            dst = B(TB[g][t & 2]) + 8 * (t & 1)
            for q in range(8): s.e(f"v_cvt_pk_bf16_f32 v{dst+q}, v{src+2*q}, v{src+2*q+1}")
        else:
            pack_write(src, g * 8192, ['RS0', 'RS0', 'WS7', 'WS8'][g], f"RS{8+g}")
    def Pfrag(g, ks): return R('v', B(TB[g][(ks >> 1) & 2]) + 4 * (ks & 3), 4)
    kb = 32768
    vp = OPT['vp']
    for n in range(8):
        p0 = s.nmf
        g, dh = n >> 1, n & 1
        RB(f"RS{n}")
        if n != 6: WB(f"WS{n}", p0)
        if n == 0: issue(dma_tile(7, 'c', ab='WS0') + dma_tile(8, 'd', ab='WS0'), gpace(p0 + 1))
        if 1 <= n <= 5: stage_write(n + 1, n + 1, SLOT[n + 1], f"WS{n}", p0)
        if 1 <= n <= 3: issue(stage_load([(8 + n, n + 1)]), gpace(p0 + OPT['w0'] + 6))
        if n == 5: rebase([7], 32768); wbase[0] = 65536
        if n == 7: issue(dma_tile(12, 'a', ab='WS7'), gpace(p0 + 1))
        off0 = SL[SLOT[n]] - kb
        if not 0 <= off0 < 65536 - 32767:
            rebase(range(24, 36), off0); kb += off0; off0 = 0
        kw = dict(ab=f"RS{n}", bb=(f"WS{n+1}" if n != 5 else "RS7"))
        qkw = dict(ab=f"RS{n}", bb=(f"WS{n+1}" if n >= 6 else None))
        def step(t, ks):
            acc = R('v', B(TB[g][t]), 16); first = (dh == 0 and ks == 0)
            if t < 4:
                a = rd128(24 + ks, off0 + t * 8192, **kw)
                mf(acc, a, R('a', 32 * dh + 4 * ks, 4), first)
            else:
                a = rd128(32 + (ks & 3), off0 + (ks >> 2) * 512, **kw)
                b = rd128(36, 16384 + dh * 8192 + ks * 1024, **qkw)
                mf(acc, a, b, first)
        if n < 2:
            for ks in range(8):
                for t in range(5): step(t, ks)
            if dh and OPT['dump'] != 'S0':
                for t in (4, 0, 1, 2, 3): softmax(g, t)
        else:
            for t in (4, 0, 1, 2, 3):
                for ks in range(8): step(t, ks)
                if dh: softmax(g, t)
        if n == 1: dump('S0', [f"v{B(b)+q}" for b in TB[0] for q in range(16)])
    dump('P', [f"v{B(TB[g][t])+q}" for g in range(4) for t in (0, 2) for q in range(16)] + [f"v{vSP}", f"v{vSS}"])
    s.es(f"s_mul_i32 {sT0}, {sW}, {8192+64}\nv_xor_b32 v16, {sT0}, v45")
    for jj in range(4):
        for t in range(4):
            if jj or t: s.e(f"v_xor_b32 v{16+4*jj+t}, {jj*8192+t*64}, v16")
    s.es(f"""
    v_lshrrev_b32 v32, 1, v47
    v_lshl_add_u32 v32, v32, 6, v46
    v_lshl_add_u32 v32, v43, 7, v32
    s_and_b32 {sT1}, {sW}, 1
    s_lshl_b32 {sT1}, {sT1}, 6
    s_lshl_b32 {sT0}, {sW}, 12
    s_add_u32 {sT0}, {sT0}, {sT1}
    s_add_u32 {sT0}, {sT0}, {SL['d']}
    v_xor_b32 v32, {sT0}, v32
    v_xor_b32 v33, 64, v32
    v_xor_b32 v34, 4096, v32
    v_xor_b32 v35, {4096+64}, v32
    v_lshrrev_b32 v42, 4, v0
    v_and_b32 v42, 1, v42
    v_lshlrev_b32 v42, 2, v42
    v_and_b32 v8, 7, v0
    v_xor_b32 v8, v8, v42
    v_lshlrev_b32 v8, 4, v8
    v_lshrrev_b32 v42, 3, v0
    v_mul_u32_u24 v42, 896, v42
    v_add_u32 v8, v8, v42
    v_add_u32 v9, 6144, v8
    v_add_u32 v10, 12288, v8
    v_add_u32 v11, 18432, v8
    """)
    s.es(f"""
    v_mov_b32 v42, v{vSP}
    v_mov_b32 v43, v{vSS}
    v_permlane32_swap_b32 v42, v{vSP}
    v_permlane32_swap_b32 v43, v{vSS}
    v_add_f32 v{vSP}, v42, v{vSP}
    v_add_f32 v{vSS}, v43, v{vSS}
    v_subrev_u32 v42, {sLO}, v{vSP}
    v_mov_b32 v43, 0x7f800000
    v_cmp_le_u32 vcc, {sRNG}, v42
    v_cndmask_b32 v{vSS}, v{vSS}, v43, vcc
    v_rcp_f32 v{vSP}, v{vSP}
    v_lshlrev_b32 v6, 2, v0
    v_add_u32 v6, {S4}, v6
    s_lshl_b32 {sT0}, {sW}, 8
    v_add_u32 v42, {sT0}, v6
    """)
    s.ds(f"ds_write_b32 v42, v{vSS}", ab='WS13', bb='RS14')

    OA = [[R('a', 16 * j, 16) for j in range(4)] + [R('a', 192, 16)], [R('v', B(b), 16) for b in (0, 11, 2, 7, 10)]]
    tmpc = [0]
    def oconv_a(abase, dst, inv):
        for q in range(8):
            t = 42 + 2 * (tmpc[0] % 3); tmpc[0] += 1
            s.es(f"""v_accvgpr_read_b32 v{t}, a{abase+2*q}
            v_accvgpr_read_b32 v{t+1}, a{abase+2*q+1}
            v_mul_f32 v{t}, v{t}, v{inv}
            v_mul_f32 v{t+1}, v{t+1}, v{inv}
            v_cvt_pk_bf16_f32 v{dst+q}, v{t}, v{t+1}""")
    def oconv_v(src, dst, inv):
        for q in range(16): s.e(f"v_mul_f32 v{src+q}, v{src+q}, v{inv}")
        if dst is not None:
            for q in range(8): s.e(f"v_cvt_pk_bf16_f32 v{dst+q}, v{src+2*q}, v{src+2*q+1}")
    vb = 65536
    for n in range(8, 16):
        p0 = s.nmf
        dh, g = (n - 8) >> 2, (n - 8) & 3
        RB(f"RS{n}")
        if n != 11: WB(f"WS{n}", p0)
        if n == 8:
            stage_write(9, 2, 'b', 'RS7', p0)
            issue(dma_tile(13, 'c', ab='WS8') + stage_load([(14, 5)]), gpace(p0 + 1))
        if n == 9: stage_write(10, 3, 'd', 'WS9', p0)
        if n == 10: stage_write(11, 4, 'b', 'WS10', p0)
        if n == 12:
            issue(dma_tile(15, 'b', ab='WS12'), gpace(p0 + 1))
            s.es(f"""
            v_lshrrev_b32 v6, 4, v0
            v_mul_u32_u24 v6, {896-512}, v6
            v_add_u32 v2, v2, v6
            v_add_u32 v3, 2560, v2
            v_add_u32 v4, 5120, v2
            v_add_u32 v5, 7680, v2
            v_lshlrev_b32 v6, 2, v0
            v_add_u32 v6, {S4}, v6""")
        if n == 13: stage_write(14, 5, 'd', 'RS12', p0)
        if n >= 13: issue(dma_tile(n + 3, SLOT[n + 3], ab=f"WS{n}"), pace(p0 + 1, vp))
        if n == 14:
            for w_ in range(4): s.ds(f"ds_read_b32 v{44+w_}, v6 offset:{w_*256}", ab='RS14')
            s.es(f"""v_add_f32 v44, v44, v45
            v_add_f32 v46, v46, v47
            v_add_f32 v{vSS}, v44, v46
            v_subrev_u32 v44, {sLO}, v{vSS}""")
            s.add(Op('e', f"v_cmp_le_u32 vcc, {sRNG}, v44\ns_nop 1\ns_cbranch_vccnz L_slow\nL_checked:", cost=16, R=[f"v{vMP}", f"v{vMS}"], W=['#chk'], ab='RS14', bb='RS15'))
            s.e(f"v_rcp_f32 v{vSS}, v{vSS}")
            s.es(f"v_xor_b32 v6, 0x800, v37\nv_xor_b32 v40, 0x1000, v37\nv_xor_b32 v41, 0x1800, v37")
            oconv_a(192, B(1), vSS)
            for half in range(2):
                s.ds(f"ds_write_b128 v37, {R('v', B(1)+4*half, 4)} offset:{8192 + half*1024}", cost=OPT['wc'], ab='WS14', bb='RS16')
        off0 = SL[SLOT[n]] - vb
        if not 0 <= off0 <= 32768:
            nb = SL[SLOT[n]] & 0x10000
            rebase(range(12, 16), nb - vb); vb = nb; off0 = SL[SLOT[n]] - vb
        kw = dict(ab=f"RS{n}", bb=(f"WS{n+1}" if n != 10 else "RS12"))
        pkw = dict(ab=f"RS{n}", bb=(f"WS{n+1}" if n >= 12 else None))
        for j in range(4):
            for ks in range(8):
                a = tr(12 + j, off0 + ks * 4096, 1024, **kw)
                mf(OA[dh][j], a, Pfrag(g, ks), g == 0 and ks == 0)
                if j == 0:
                    b = rd128(36, g * 8192 + ks * 1024, **pkw)
                    mf(OA[dh][4], a, b, g == 0 and ks == 0)
            if n == 15 and OPT['dump'] != 'O':
                if j == 0:
                    oconv_v(B(10), None, vSS)
                    pack_write(B(10), 16384, 'WS15', 'RS17')
                oconv_v(B((0, 11, 2, 7)[j]), B((0, 2)[j >> 1]) + 8 * (j & 1), vSP)
        if n == 12:
            for j in range(4): oconv_a(16 * j, B((12, 8)[j >> 1]) + 8 * (j & 1), vSP)
    dump('O', [f"a{r}" for r in range(64)] + [f"v{B(b)+q}" for b in (0, 11, 2, 7) for q in range(16)] + [f"a{r}" for r in range(192, 208)]
         + [f"v{B(10)+q}" for q in range(16)] + [f"v{vSP}", f"v{vSS}"])

    s.es(f"v_xor_b32 v12, 8192, v32\nv_xor_b32 v13, 8192, v33\nv_xor_b32 v14, 8192, v34\nv_xor_b32 v15, 8192, v35")
    s.es(f"s_lshr_b32 {sT0}, {sW}, 1\ns_lshl_b32 {sT0}, {sT0}, 30\nv_add_u32 v7, {sT0}, v1")
    LA = [32, 33, 34, 35, 12, 13, 14, 15]
    OB = [[1, 3, 6, 9, 5], [4, 11, 7, 1, 10], [5, 6, 9, 4, 3], [10, 7, None, None, 11]]
    def Ofrag(dh, jj, half): return R('v', B(((12, 8), (0, 2))[dh][jj >> 1]) + 8 * (jj & 1) + 4 * half, 4)
    def Osh(dh, jj, half): return R('a', 96 + 32 * dh + 8 * jj + 4 * half, 4)
    QA = [37, 6, 40, 41]
    def store(g, t):
        src = B(OB[g][t])
        for q in range(8): s.e(f"v_cvt_pk_bf16_f32 v{src+q}, v{src+2*q}, v{src+2*q+1}")
        for half in range(2):
            if g < 3: sb = sST + t; off = g * 4 * 32768; vo = 1
            else: sb = sST + (5, 6, 0, 0, 7)[t]; off = 0; vo = 7 if t == 4 else 1
            s.vm(f"s_add_u32 {sS}, s{sb}, {off + half*16384}\nbuffer_store_dwordx4 {R('v', src+4*half, 4)}, v{vo}, {SWS}, {sS} offen {OPT['st']}",
                 cost=20, R=['#chk'], dl=s.nmf + 6)
    wb = 0
    for n in range(16, 23):
        p0 = s.nmf
        g, dh = (n - 16) >> 1, (n - 16) & 1
        RB(f"RS{n}")
        if n <= 19:
            WB(f"WS{n}", p0)
            issue(dma_tile(n + 3, SLOT[n + 3], ab=f"WS{n}"), pace(p0 + 1, vp))
        kw = dict(ab=f"RS{n}", bb=(f"WS{n+1}" if n <= 18 else None))
        if n < 22:
            nb = SL[SLOT[n]] & 0x10000
            if nb != wb: rebase(range(16, 32), nb - wb); wb = nb
            off0 = SL[SLOT[n]] - wb
            for t in range(4):
                for jj in range(4):
                    for half in range(2):
                        first = dh == 0 and jj == 0 and half == 0
                        a = tr(16 + 4 * jj + t, off0 + half * 4096, 1024, **kw)
                        mf(R('v', B(OB[g][t]), 16), a, Ofrag(dh, jj, half), first)
                        if t == 0:
                            if g == 0: rd128(QA[jj], 8192 + dh * 8192 + half * 1024, Osh(dh, jj, half), ab=f"RS{n}")
                            mf(R('v', B(OB[g][4]), 16), a, Osh(dh, jj, half), first)
                if dh:
                    store(g, t)
                    if t == 0: store(g, 4)
        else:
            for t in range(2):
                for d2 in range(2):
                    for jj in range(4):
                        for half in range(2):
                            first = d2 == 0 and jj == 0 and half == 0
                            a = tr(LA[2 * jj + t], d2 * 16384 + half * 2048, 512, **kw)
                            mf(R('v', B(OB[3][t]), 16), a, Ofrag(d2, jj, half), first)
                            if t == 0: mf(R('v', B(OB[3][4]), 16), a, Osh(d2, jj, half), first)
                store(3, t)
                if t == 0: store(3, 4)
    s.build()
    s.run(budget=OPT['bud'], maxlg=OPT['maxlg'], delay=OPT['delay'], dsage=OPT['dsage'], maxds=OPT['maxds'])
    if OPT['ts']:
        stamp()
        k.wait(vm0=True)
        stamp()
        e(f"""s_add_u32 s8, s4, 0x0ff00000
        s_addc_u32 s9, s5, 0
        s_mov_b32 s10, 0x100000
        s_cmp_lg_u32 {sW}, 0
        s_cbranch_scc1 L_exit
        s_mov_b64 exec, 1
        s_lshl_b32 s3, s2, 8
        v_mov_b32 v1, s3
        v_mov_b32 v2, {nst[0]}
        v_mov_b32 v3, 0
        buffer_store_dwordx2 v[2:3], v1, s[8:11], 0 offen""")
        for j in range(nst[0]):
            e(f"v_mov_b32 v4, s{sTS+2*j}\nv_mov_b32 v5, s{sTS+1+2*j}\nbuffer_store_dwordx2 v[4:5], v1, s[8:11], 0 offen offset:{8+8*j}\ns_nop 1")
        e("s_waitcnt vmcnt(0)")
    e("L_exit:\ns_endpgm")
    for h, (src, mx) in enumerate(hooks):
        e(f"L_fix{h}:\ns_nop 7\ns_nop 7\ns_cmp_eq_u32 {sPASS}, 2\ns_cbranch_scc1 L_sub{h}")
        for q in range(0, 16, 2): e(f"v_max3_f32 v{mx}, v{src+q}, v{src+q+1}, v{mx}")
        e(f"s_branch L_ret{h}\nL_sub{h}:")
        for q in range(16): e(f"v_sub_f32 v{src+q}, v{src+q}, v{mx}")
        e(f"s_branch L_ret{h}")
    e(f"""L_slow:
    s_cmp_eq_u32 {sPASS}, 2
    s_cbranch_scc1 L_checked
    s_nop 7
    s_nop 7
    s_waitcnt vmcnt(0) lgkmcnt(0)
    s_barrier
    s_mov_b64 vcc, -1
    s_cmp_eq_u32 {sPASS}, 1
    s_cbranch_scc1 L_slow2
    s_mov_b32 {sPASS}, 1
    s_mov_b32 {sRNG}, 0
    v_mov_b32 v{vMP}, 0xff800000
    v_mov_b32 v{vMS}, 0xff800000
    s_branch L_start
    L_slow2:
    s_mov_b32 {sPASS}, 2
    s_mov_b32 {sLO}, 0
    s_mov_b32 {sRNG}, -1
    v_mov_b32 v42, v{vMP}
    v_mov_b32 v43, v{vMS}
    s_nop 1
    v_permlane32_swap_b32 v42, v{vMP}
    v_permlane32_swap_b32 v43, v{vMS}
    v_lshlrev_b32 v44, 2, v0
    s_lshl_b32 {sT0}, {sW}, 8
    v_max_f32 v{vMP}, v42, v{vMP}
    v_max_f32 v{vMS}, v43, v{vMS}
    v_add_u32 v45, {sT0}, v44
    ds_write_b32 v45, v{vMS}
    s_waitcnt lgkmcnt(0)
    s_barrier
    ds_read_b32 v42, v44
    ds_read_b32 v43, v44 offset:256
    ds_read_b32 v45, v44 offset:512
    ds_read_b32 v46, v44 offset:768
    s_waitcnt lgkmcnt(0)
    v_max3_f32 v{vMS}, v42, v43, v45
    v_max_f32 v{vMS}, v{vMS}, v46
    s_barrier
    s_branch L_start""")
    txt, added = k.text()
    est = s.est
    per = [sum(est[i:i + 40]) for i in range(0, len(est), 40)]
    print(f"main: {len(k.L)} lines, nops {added}, forced {s.forced}, mfma {len(est)}, est {sum(est)}; per40: {per}", file=sys.stderr)
    if OPT['verbose']:
        print("use:", s.use, file=sys.stderr)
        print("bars:", {n: o.gap for n, o in s.bars.items()}, file=sys.stderr)
    return txt

if __name__ == "__main__":
    out = sys.argv[1]
    sys.argv = sys.argv[:2] + ([f"ts={OPT['ts']}"] if OPT['ts'] else [])
    import gen
    m = main_kernel()
    L = [("mha_main_kernel", 256, 256, 163840), ("mha_reduce_kernel", 560, 256, 0)]
    KS = [("mha_main_kernel", m, 512, 256), ("mha_reduce_kernel", gen.reduce_kernel(), 80, 80)]
    write_file(out, HEADER, L, KS)
```

```python
import sys, math
sys.path.insert(0, "work")
from asmlib import K, write_file
from eng import Eng, Step, Fill, uid

OPT = dict(arr='N', ts=0, dump='', nt='nt', delay=2, maxlg=13, diag='', pre='', red=0, st='', ld='sc1', pf='', pfs=128, pfm='', rot=1, dA=2, dS=2, dP=3, dO=3, dc=16)
for a in sys.argv[2:]:
    kk, vv = a.split('=')
    OPT[kk] = int(vv) if vv.lstrip('-').isdigit() else vv

HEADER = "".join(l for l in open("standalone__mha_block_cached__near_ridge.s.ref").read().splitlines(True)[:11])
MF = "v_mfma_f32_32x32x16_bf16"
def R(p, lo, n): return f"{p}[{lo}:{lo+n-1}]"
SX, SK, SV, SWQ, SWO, SWS = "s[8:11]", "s[12:15]", "s[16:19]", "s[20:23]", "s[24:27]", "s[28:31]"
sW, sB, sH, sKC = "s32", "s33", "s34", "s35"
sT0, sT1, sT2 = "s36", "s37", "s38"
sC = "s39"
sWQO, sXO, sM8, sM4, sKO, sWOO, sWLO = "s40", "s41", "s42", "s43", "s44", "s45", "s46"
sST = 47
sTS = 60
XB = 96 * 1024
S4 = 128 * 1024
SLOT = lambda n: ((n + 1) % 4) * 32768

def main_kernel():
    k = K(); e = k.e
    eng = Eng(k)
    nst = [0]
    def stamp():
        if OPT['ts']:
            k.wait(lg0=True)
            e(f"{'s_memtime' if OPT['ts'] == 2 else 's_memrealtime'} s[{sTS+2*nst[0]}:{sTS+1+2*nst[0]}]\ns_waitcnt lgkmcnt(0)")
            nst[0] += 1
    def dump(name, regs):
        if OPT['dump'] != name: return
        eng.flush_dma()
        e("s_nop 7\ns_nop 7\ns_waitcnt vmcnt(0) lgkmcnt(0)")
        e(f"s_mul_i32 {sT0}, {sB}, 64\ns_lshl_b32 {sT1}, {sH}, 2\ns_add_u32 {sT0}, {sT0}, {sT1}\ns_add_u32 {sT0}, {sT0}, {sW}\ns_lshl_b32 {sT0}, {sT0}, 17")
        e("s_add_u32 s56, s4, 0x4000000\ns_addc_u32 s57, s5, 0\ns_mov_b32 s58, 0x8000000\ns_mov_b32 s59, 0x00020000")
        e("v_lshlrev_b32 v0, 2, v7")
        for i, r in enumerate(regs):
            e(f"buffer_store_dword {r}, v0, s[56:59], {sT0} offen\ns_add_u32 {sT0}, {sT0}, 256")
            if i % 32 == 31: e("s_waitcnt vmcnt(0)")
        e("s_waitcnt vmcnt(0)\ns_branch L_exit")

    if OPT['ts']:
        e(f"{'s_memtime' if OPT['ts'] == 2 else 's_memrealtime'} s[{sTS}:{sTS+1}]"); nst[0] = 1
    e(f"""
    s_cmp_ge_u32 s2, 256
    s_cbranch_scc1 L_exit
    s_load_dwordx2 s[8:9], s[0:1], 0
    s_load_dwordx2 s[12:13], s[0:1], 8
    s_load_dwordx2 s[16:17], s[0:1], 16
    s_load_dwordx2 s[20:21], s[0:1], 24
    s_load_dwordx2 s[24:25], s[0:1], 32
    s_load_dwordx2 s[4:5], s[0:1], 56
    v_lshrrev_b32 v1, 6, v0
    v_and_b32 v7, 63, v0
    v_readfirstlane_b32 {sW}, v1
    s_and_b32 {sT0}, s2, 7
    s_lshr_b32 {sT1}, s2, 3
    """)
    arr = OPT['arr']
    if arr == 'N':
        e(f"""s_lshr_b32 {sB}, {sT0}, 1
        s_lshl_b32 {sB}, {sB}, 2
        s_lshr_b32 {sT2}, {sT1}, 3
        s_add_u32 {sB}, {sB}, {sT2}
        s_and_b32 {sH}, {sT0}, 1
        s_lshl_b32 {sH}, {sH}, 3
        s_and_b32 {sT2}, {sT1}, 7
        s_add_u32 {sH}, {sH}, {sT2}""")
    elif arr == 'L':
        e(f"""s_lshl_b32 {sB}, {sT0}, 1
        s_lshr_b32 {sT2}, {sT1}, 4
        s_add_u32 {sB}, {sB}, {sT2}
        s_and_b32 {sH}, {sT1}, 15""")
    elif arr == 'M':
        e(f"""s_lshr_b32 {sB}, {sT0}, 2
        s_lshl_b32 {sB}, {sB}, 3
        s_lshr_b32 {sT2}, {sT1}, 2
        s_add_u32 {sB}, {sB}, {sT2}
        s_and_b32 {sH}, {sT0}, 3
        s_lshl_b32 {sH}, {sH}, 2
        s_and_b32 {sT2}, {sT1}, 3
        s_add_u32 {sH}, {sH}, {sT2}""")
    e(f"""s_lshl_b32 {sT0}, {sH}, 1
    s_add_u32 {sT0}, {sT0}, {sB}
    s_mul_i32 {sT1}, {sT0}, 37
    s_lshr_b32 {sT1}, {sT1}, 8
    s_mul_i32 {sT1}, {sT1}, 7
    s_sub_u32 {sKC}, {sT0}, {sT1}
    {'' if OPT['rot'] else f's_mov_b32 {sKC}, 0'}
    s_mov_b32 s10, 143360
    s_mov_b32 s11, 0x00020000
    s_mov_b32 s14, 262144
    s_mov_b32 s15, 0x00020000
    s_mov_b32 s18, 262144
    s_mov_b32 s19, 0x00020000
    s_mov_b32 s23, 0x00020000
    s_mov_b32 s26, 229376
    s_mov_b32 s27, 0x00020000
    s_mov_b32 s30, {140*16384}
    s_mov_b32 s31, 0x00020000
    s_mov_b32 {sC}, 0x{f2u(math.log2(math.e)/16):08x}
    s_lshl_b32 {sM8}, {sW}, 13
    s_lshl_b32 {sM4}, {sW}, 12
    s_lshl_b32 {sWQO}, {sW}, 17
    s_mul_i32 {sXO}, {sW}, 7168
    """)
    e(f"""
    v_lshrrev_b32 v14, 5, v7                 ; p>>5
    v_and_b32 v15, 31, v7                    ; p&31
    v_lshlrev_b32 v1, 2, v14
    v_xor_b32 v1, v1, v15                    ; (p&31)^((p>>5)<<2)
    v_lshlrev_b32 v1, 4, v1
    v_lshl_add_u32 v2, v14, 13, v1
    v_xor_b32 v3, 0x80, v2
    v_add_u32 v3, 15360, v3                  ; ii=1
    v_add_u32 v4, 30720, v2                  ; ii=2
    v_add_u32 v5, 30720, v3                  ; ii=3
    v_lshl_add_u32 v12, v14, 9, v1
    v_xor_b32 v13, 0x80, v12
    s_and_b32 {sT2}, {sW}, 1
    s_lshl_b32 {sT0}, {sT2}, 2
    v_lshrrev_b32 v6, 4, v7
    v_xor_b32 v6, {sT0}, v6
    v_and_b32 v1, 7, v7
    v_xor_b32 v6, v6, v1
    v_lshlrev_b32 v6, 4, v6
    v_lshrrev_b32 v1, 3, v7
    v_mul_u32_u24 v1, 896, v1
    v_add_u32 v6, v6, v1                     ; x voff
    s_waitcnt lgkmcnt(0)
    s_mul_i32 {sT0}, {sB}, 143360
    s_add_u32 s8, s8, {sT0}
    s_addc_u32 s9, s9, 0
    s_lshl_b32 {sT0}, {sH}, 9
    s_add_u32 s20, s20, {sT0}
    s_addc_u32 s21, s21, 0
    s_sub_u32 s22, 3670016, {sT0}
    """)
    def dma_stage(i):
        G = []
        tag = f"A{i}"
        slot = (i % 3) * 32768
        xs = XB + (i % 3) * 20480
        for u in range(2):
            for ii in range(4):
                g = []
                if ii == 0:
                    if u == 0:
                        g.append(Fill('e', f"s_lshl_b32 {sT0}, {sKC}, 19\ns_add_u32 {sT0}, {sT0}, {sWQO}"))
                    else:
                        g.append(Fill('e', f"s_add_u32 {sT0}, {sT0}, 65536"))
                    g.append(Fill('e', f"s_add_u32 m0, {sM8}, {slot + u * 4096}"))
                g.append(Fill('vm', f"buffer_load_dwordx4 v{2+ii}, {SWQ}, {sT0} offen offset:{ii*1024} lds", tag=tag))
                G.append(g)
        for u in range(5):
            g = []
            if u == 0:
                g.append(Fill('e', f"s_lshl_b32 {sT1}, {sKC}, 7\ns_add_u32 {sT1}, {sT1}, {sXO}\ns_lshl_b32 {sT2}, {sW}, 10"))
            else:
                g.append(Fill('e', f"s_add_u32 {sT1}, {sT1}, {4*7168}"))
            g.append(Fill('e', f"s_add_u32 m0, {sT2}, {xs + u * 4096}"))
            g.append(Fill('vm', f"buffer_load_dwordx4 v6, {SX}, {sT1} offen lds", tag=tag))
            if u == 4:
                g.append(Fill('e', f"s_add_u32 {sKC}, {sKC}, 1\ns_cmp_eq_u32 {sKC}, 7\ns_cselect_b32 {sKC}, 0, {sKC}"))
            G.append(g)
        return G[8:10] + G[0:4] + G[10:13] + G[4:8] if False else G
    def dma_tile(n):
        G = []
        tag = f"T{n}"
        slot = SLOT(n)
        for u in range(2):
            for ii in range(4):
                g = []
                if n < 16:
                    blk = n % 8
                    if ii == 0:
                        g.append(Fill('e', f"s_add_u32 {sKO}, {sM4}, {blk*32768 + u*16384}\ns_add_u32 m0, {sM4}, {slot + u*16384}"))
                    vo = f"v{8+ii}" if n < 8 else f"v{12+(ii&1)}"
                    srd = SK if n < 8 else SV
                    g.append(Fill('vm', f"buffer_load_dwordx4 {vo}, {srd}, {sKO} offen offset:{ii*1024} {OPT['nt']} lds", tag=tag))
                elif n < 22:
                    gi, dh = (n - 16) // 2, (n - 16) % 2
                    if ii == 0:
                        g.append(Fill('e', f"s_add_u32 {sKO}, {sWOO}, {(dh*128 + 16*u)*896 + gi*256}\ns_add_u32 m0, {sM8}, {slot + u*4096}"))
                    g.append(Fill('vm', f"buffer_load_dwordx4 v{2+ii}, {SWO}, {sKO} offen offset:{ii*1024} lds", tag=tag))
                else:
                    if ii == 0:
                        g.append(Fill('e', f"s_add_u32 {sKO}, {sWLO}, {32*u*896 + 768}\ns_add_u32 m0, {sM8}, {slot + u*4096}"))
                    g.append(Fill('vm', f"buffer_load_dwordx4 v{8+ii}, {SWO}, {sKO} offen offset:{ii*1024} lds", tag=tag))
                G.append(g)
        return G
    PF = {}
    if OPT['pf']:
        for it in str(OPT['pf']).split(','):
            a_, b_ = it.split(':'); PF.setdefault(a_, []).append(int(b_))
    def touch(ev):
        G = []
        for t in PF.get(ev, []):
            srd = SK if t < 8 else SV
            for u in range(128 // OPT['pfs']):
                G.append([Fill('e', f"s_add_u32 s55, {sM8}, {(t % 8) * 32768 + u * 4096}"),
                          Fill('vm', f"buffer_load_dword v58, v59, {srd}, s55 offen {OPT['pfm']}", tag='pf')])
        return G
    eng.dma += dma_stage(0); eng.flush_dma()
    e(f"""
    s_lshl_b32 {sT0}, {sB}, 4
    s_add_u32 {sT0}, {sT0}, {sH}
    s_lshl_b32 {sT0}, {sT0}, 18
    s_add_u32 s12, s12, {sT0}
    s_addc_u32 s13, s13, 0
    s_add_u32 s16, s16, {sT0}
    s_addc_u32 s17, s17, 0
    s_mul_i32 {sT0}, {sH}, 229376
    s_add_u32 s24, s24, {sT0}
    s_addc_u32 s25, s25, 0
    s_mul_i32 {sT0}, {sB}, {140*16384}
    s_lshl_b32 {sT1}, {sH}, 10
    s_add_u32 {sT0}, {sT0}, {sT1}
    s_add_u32 s28, s4, {sT0}
    s_addc_u32 s29, s5, 0
    s_mul_i32 {sWOO}, {sW}, {32*896}
    s_mul_i32 {sWLO}, {sW}, {64*896}
    """)
    e(f"v_mul_u32_u24 v59, {OPT['pfs']}, v7")
    eng.dma += dma_stage(1) + dma_stage(2) + touch('p'); eng.flush_dma()
    e(f"""
    s_and_b32 {sT2}, {sW}, 1
    s_lshl_b32 {sT0}, {sT2}, 3
    v_xor_b32 v1, v14, v15
    v_xor_b32 v1, {sT0}, v1
    v_lshlrev_b32 v1, 4, v1
    v_lshl_add_u32 v8, v14, 9, v1
    v_xor_b32 v9, 32, v8
    v_xor_b32 v10, 64, v8
    v_xor_b32 v11, 0x60, v8
    """)
    e(f"""
    v_bfe_u32 v63, v7, 2, 2                  ; r
    v_lshl_add_u32 v60, v14, 3, v63          ; 8hh+r
    v_bfe_u32 v1, v7, 4, 1
    v_lshlrev_b32 v62, 5, v1
    v_and_b32 v1, 1, v7
    v_lshl_add_u32 v62, v1, 4, v62
    v_bfe_u32 v1, v7, 1, 1
    v_lshl_add_u32 v62, v1, 3, v62
    v_lshl_add_u32 v61, v63, 6, v62
    s_lshl_b32 {sT0}, {sW}, 6
    v_lshl_add_u32 v16, v60, 9, v61
    v_xor_b32 v16, {sT0}, v16
    v_xor_b32 v17, 64, v16
    v_xor_b32 v18, 0x80, v16
    v_xor_b32 v19, 0xc0, v16
    """)
    e(f"""
    v_bfe_u32 v1, v7, 1, 3
    v_xor_b32 v1, v1, v14
    v_lshlrev_b32 v1, 4, v1
    v_lshl_add_u32 v1, v15, 7, v1
    v_add_u32 v24, {XB + 128*128}, v1
    s_lshl_b32 {sT0}, {sW}, 12
    s_add_u32 {sT0}, {sT0}, {XB}
    v_add_u32 v20, {sT0}, v1
    v_xor_b32 v21, 32, v20
    v_xor_b32 v22, 64, v20
    v_xor_b32 v23, 0x60, v20
    v_xor_b32 v25, 32, v24
    v_xor_b32 v26, 64, v24
    v_xor_b32 v27, 0x60, v24
    v_lshlrev_b32 v1, 4, v7
    """)
    hi = dict(tr=0, k=0, wo=0)
    def toggle(which, regs, want):
        if hi[which] == want: return []
        hi[which] = want
        return [('e', f"v_xor_b32 v{r}, 0x10000, v{r}") for r in regs]
    def barrier(vmtags, after=None, barid=None, st=False):
        def f():
            if barid is not None: eng.flush_fill(bar=barid)
            eng.flush_dma()
            for t in vmtags: assert t in k.vm, t
            k.wait(vm=vmtags, lg0=True)
            e("s_barrier")
            if st: stamp()
            if after: after()
        return f

    JORD = [0, 4, 1, 2, 3, 5, 6, 7]
    steps = []
    ringc = [0]
    def ringA(base, n, p):
        r = base + 4 * (ringc[0] % n); ringc[0] += 1
        return r
    for i in range(7):
        slot = (i % 3) * 32768
        xs = (i % 3) * 20480
        def after(i=i):
            if 1 <= i <= 4: eng.dma += dma_stage(i + 2)
            if i == 5: eng.dma += dma_tile(0)
            if i == 6: eng.dma += dma_tile(1)
            eng.dma += touch(str(i))
        for T in range(4):
            xb = 40 + 8 * ((4 * i + T) % 2)
            for jn, j in enumerate(JORD):
                pre = []
                bar = None
                if T == 0 and jn == 0:
                    bar = barrier([f"A{i}"], after, st=(i in (0, 3)))
                    pre += toggle('tr', range(16, 20), slot >> 16)
                if jn == 0:
                    pre.append(('ds', f"ds_read_b128 {R('v', xb, 4)}, v{20+T} offset:{xs}"))
                r = ringA(224, 8, 'a')
                off = (slot & 0xffff) + (j >> 2) * 256 + T * 8192
                pre.append(('ds', f"ds_read_b64_tr_b16 {R('a', r, 2)}, v{16+(j&3)} offset:{off}"))
                pre.append(('ds', f"ds_read_b64_tr_b16 {R('a', r+2, 2)}, v{16+(j&3)} offset:{off+2048}"))
                acc = R('v', 64 + 16 * j, 16)
                first = (i == 0 and T == 0)
                steps.append(Step(f"{MF} {acc}, {R('a', r, 4)}, {R('v', xb, 4)}, {'0' if first else acc}", pre, bar))
                if j in (0, 4):
                    pre2 = [('ds', f"ds_read_b128 {R('v', xb+4, 4)}, v{24+T} offset:{xs}")] if j == 0 else []
                    acc = R('v', 192 + 16 * (j >> 2), 16)
                    steps.append(Step(f"{MF} {acc}, {R('a', r, 4)}, {R('v', xb+4, 4)}, {'0' if first else acc}", pre2))
    eng.run(steps, maxlg=OPT['maxlg'], delay=OPT['delay'], dma_cost=OPT['dc'], dma_every=OPT['dA'])
    eng.flush_dma()
    dump('Q', [f"v{r}" for r in range(64, 224)])
    e(f"s_lshl_b32 {sT0}, {sW}, 11\ns_add_u32 {sT0}, {sT0}, {S4}\nv_add_u32 v14, {sT0}, v1")
    for a in range(2):
        for half in range(2):
            src = 192 + 16 * a + 8 * half
            for q in range(4):
                e(f"v_cvt_pk_bf16_f32 v{src+q}, v{src+2*q}, v{src+2*q+1}")
            k.ds(f"ds_write_b128 v14, {R('v', src, 4)} offset:{a*8192 + half*1024}", 'qsh')
    e(f"""
    v_and_b32 v15, 0x13, v7
    v_bfe_u32 v20, v7, 2, 1
    v_lshl_or_b32 v15, v20, 3, v15
    v_bfe_u32 v20, v7, 3, 1
    v_lshl_or_b32 v15, v20, 2, v15           ; key
    v_lshrrev_b32 v20, 5, v7
    s_lshl_b32 {sT0}, {sW}, 2
    v_xor_b32 v20, {sT0}, v20
    v_and_b32 v21, 15, v15
    v_xor_b32 v20, v20, v21
    v_lshlrev_b32 v20, 4, v20
    v_lshl_add_u32 v20, v15, 9, v20
    s_and_b32 {sT0}, {sW}, 1
    s_lshl_b32 {sT0}, {sT0}, 14
    v_add_u32 v28, {sT0}, v20
    """)
    for v in range(1, 8):
        e(f"v_xor_b32 v{20+v}, {v*32}, v20\nv_xor_b32 v{28+v}, {v*32}, v28")
    for j in range(8):
        for q in range(8):
            src = 64 + 16 * j + 2 * q
            e(f"v_cvt_pk_bf16_f32 v{src}, v{src}, v{src+1}")
        for q in range(8):
            src = 64 + 16 * j + 2 * q
            e(f"v_accvgpr_write_b32 a{8*j+q}, v{src}")
    barrier(["T0"], None, st=True)()
    eng.dma += dma_tile(2) + dma_tile(3) + touch('k0')
    e("v_xor_b32 v15, 0x800, v14\nv_xor_b32 v56, 0x1000, v14\nv_xor_b32 v57, 0x1800, v14")
    qa = [14, 15, 56, 57]
    ext = {}
    for j in range(8):
        for half in range(2):
            t = uid('q')
            k.ds(f"ds_read_b128 {R('a', 64+8*j+4*half, 4)}, v{qa[j&3]} offset:{(j>>2)*8192 + half*1024}", t)
    k.wait(lg0=True)
    dump('Qf', [f"a{r}" for r in range(128)])

    def Sreg(t):
        if t < 2: return ('v', 224 + 16 * t)
        if t < 12: return ('v', 64 + 16 * (t - 2))
        return ('a', 128 + 16 * (t - 12))
    vMX, vMS = 60, 61
    def max_fill(p, base, dst, first, early, tmp):
        F = []
        if p == 'a':
            for q in range(0, 16, 2):
                F.append(Fill('e', f"v_accvgpr_read_b32 v{tmp}, a{base+q}", early=early))
                F.append(Fill('e', f"v_accvgpr_read_b32 v{tmp+1}, a{base+q+1}", early=early))
                if first and q == 0: F.append(Fill('e', f"v_max_f32 v{dst}, v{tmp}, v{tmp+1}", early=early))
                else: F.append(Fill('e', f"v_max3_f32 v{dst}, v{tmp}, v{tmp+1}, v{dst}", early=early))
        else:
            for q in range(0, 16, 2):
                if first and q == 0: F.append(Fill('e', f"v_max_f32 v{dst}, v{base}, v{base+1}", early=early))
                else: F.append(Fill('e', f"v_max3_f32 v{dst}, v{base+q}, v{base+q+1}, v{dst}", early=early))
        return F
    def phaseS(par):
        steps = []
        ringc[0] = 0
        for blk in range(8):
            slot = SLOT(blk)
            def after(blk=blk):
                eng.dma += dma_tile(blk + 3) + touch(f"k{blk}")
            tiles = [('p', 0), ('p', 1)]
            if (blk & 1) == par: tiles = [('s', 0)] + tiles
            firststep = True
            for kind, kt in tiles:
                if kind == 'p':
                    p, base = Sreg(2 * blk + kt); qb = 0; ab = 20; off0 = kt * 16384
                else:
                    p, base = 'a', 192 + 16 * (blk >> 1); qb = 64; ab = 28; off0 = 0
                acc = R(p, base, 16)
                for j in range(8):
                    for half in range(2):
                        pre = []; bar = None
                        if firststep:
                            if blk > 0: bar = barrier([f"T{blk}"], after, st=(blk == 4))
                            pre += toggle('k', range(20, 36), slot >> 16)
                            firststep = False
                        r = ringA(36, 5, 'v')
                        off = (slot & 0xffff) + (j >> 2) * 256 + off0
                        pre.append(('ds', f"ds_read_b128 {R('v', r, 4)}, v{ab + (j&3)*2 + half} offset:{off}"))
                        first = (j == 0 and half == 0)
                        steps.append(Step(f"{MF} {acc}, {R('v', r, 4)}, {R('a', qb+8*j+4*half, 4)}, {'0' if first else acc}", pre, bar))
                if kind == 'p':
                    eng.fq += max_fill(p, base, vMX, blk == 0 and kt == 0, len(steps) + 1, 56)
                else:
                    eng.fq += max_fill(p, base, vMS, blk < 2, len(steps) + 1, 56)
        eng.run(steps, maxlg=OPT['maxlg'], delay=OPT['delay'], dma_cost=OPT['dc'], dma_every=OPT['dS'])
        eng.flush_dma()
        eng.flush_fill()
        k.wait(lg0=True)
    e(f"s_cmp_ge_u32 {sW}, 2\ns_cbranch_scc1 L_S1")
    vm0 = list(k.vm); dq = list(eng.dma); hk = dict(hi); ns0 = nst[0]
    phaseS(0)
    e("s_nop 1\ns_branch L_Sdone\nL_S1:\ns_nop 1")
    vm1 = list(k.vm)
    k.vm = vm0; eng.dma = dq; hi.update(hk); nst[0] = ns0
    phaseS(1)
    assert k.vm == vm1
    e("s_nop 1\nL_Sdone:")
    allS = []
    for t in range(16):
        p, b = Sreg(t); allS += [f"{p}{b+q}" for q in range(16)]
    dump('S', allS + [f"a{r}" for r in range(192, 256)] + ['v60', 'v61'])

    MXO = S4 + 31 * 1024
    e(f"""
    v_mov_b32 v56, v60
    v_mov_b32 v57, v61
    v_permlane32_swap_b32 v56, v60
    v_permlane32_swap_b32 v57, v61
    v_max_f32 v60, v56, v60
    v_max_f32 v61, v57, v61
    v_and_b32 v14, 31, v7
    v_lshlrev_b32 v14, 2, v14
    v_add_u32 v14, {MXO}, v14
    s_lshl_b32 {sT0}, {sW}, 7
    v_add_u32 v15, {sT0}, v14
    """)
    k.ds("ds_write_b32 v15, v61", 'mx')
    e(f"""
    v_lshrrev_b32 v56, 4, v7
    v_lshlrev_b32 v57, 2, v56
    v_and_b32 v2, 15, v7
    v_xor_b32 v2, v2, v57
    v_lshlrev_b32 v2, 4, v2
    v_mul_u32_u24 v57, 896, v56
    v_add_u32 v2, v2, v57
    v_add_u32 v3, 2560, v2
    v_add_u32 v4, 5120, v2
    v_add_u32 v5, 7680, v2
    v_and_b32 v56, 1, v56
    v_lshlrev_b32 v56, 2, v56
    v_and_b32 v8, 7, v7
    v_xor_b32 v8, v8, v56
    v_lshlrev_b32 v8, 4, v8
    v_lshrrev_b32 v56, 3, v7
    v_mul_u32_u24 v56, 896, v56
    v_add_u32 v8, v8, v56
    v_add_u32 v9, 6144, v8
    v_add_u32 v10, 12288, v8
    v_add_u32 v11, 18432, v8
    v_mul_f32 v60, {sC}, v60                 ; m*c private
    """)
    barrier([], None, st=True)()
    for w_ in range(4):
        k.ds(f"ds_read_b32 v{28+w_}, v14 offset:{w_*128}", 'mxr')
    eng.dma += dma_tile(11) + touch('b1'); eng.flush_dma()
    vSP, vSS = 62, 63
    e("v_mov_b32 v6, v62\nv_mov_b32 v0, v63")
    def exp_fill(p, base, n, tmp, mreg, sreg, first, early, dead, dst=None):
        F = []
        kw = dict(early=early, dead=dead)
        for q0 in range(0, n, 8):
            w0 = (tmp + q0) if p == 'a' else (base + q0)
            for q in range(8):
                if p == 'a':
                    F.append(Fill('e', f"v_accvgpr_read_b32 v{w0+q}, a{base+q0+q}", **kw))
            for q in range(8):
                F.append(Fill('e', f"v_fma_f32 v{w0+q}, v{w0+q}, {sC}, -v{mreg}", **kw))
            for q in range(8):
                F.append(Fill('e', f"v_exp_f32 v{w0+q}, v{w0+q}", cost=8, **kw))
                if q >= 1:
                    if first and q0 == 0 and q == 1: F.append(Fill('e', f"v_mov_b32 v{sreg}, v{w0}", **kw))
                    else: F.append(Fill('e', f"v_add_f32 v{sreg}, v{sreg}, v{w0+q-1}", **kw))
            F.append(Fill('e', f"v_cvt_pk_bf16_f32 v{w0}, v{w0}, v{w0+1}", **kw))
            F.append(Fill('e', f"v_add_f32 v{sreg}, v{sreg}, v{w0+7}", **kw))
            for q in range(1, 4):
                F.append(Fill('e', f"v_cvt_pk_bf16_f32 v{w0+q}, v{w0+2*q}, v{w0+2*q+1}", **kw))
        return F
    def Preg(t):
        if t < 12: return Sreg(t)[1]
        return Sreg(t - 12)[1]
    eng.fq += exp_fill('v', Sreg(0)[1], 16, 0, 60, vSP, True, -1, 0); eng.flush_fill()
    k.wait(lg=['mxr'])
    e("v_max3_f32 v61, v28, v29, v30\nv_max_f32 v61, v61, v31")
    e(f"v_mul_f32 v61, {sC}, v61")
    e(f"s_lshl_b32 {sT0}, {sW}, 11\ns_add_u32 {sT0}, {sT0}, {S4}\nv_add_u32 v15, {sT0}, v1\nv_add_u32 v14, {S4}, v1")
    def sh_fill(u, half, early, bdead, first=False):
        F = exp_fill('a', 192 + 16 * u + 8 * half, 8, 28, 61, vSS, first, early, 10**9)
        F.append(Fill('ds', f"ds_write_b128 v15, v[28:31] offset:{u*8192 + half*1024}", cost=8, early=early, tag='psh'))
        for f in F: f.bdead = bdead
        return F
    for u in range(2):
        for half in range(2):
            eng.fq += sh_fill(u, half, -1, 0, first=(u == 0 and half == 0))
    eng.fq += exp_fill('v', Sreg(1)[1], 16, 0, 60, vSP, False, -1, 0)
    eng.flush_fill()

    steps = []
    ringc[0] = 0
    SUMO = 0
    for blk in range(8):
        n = 8 + blk
        slot = SLOT(n)
        s0 = len(steps)
        def after(n=n):
            if n > 8: eng.dma += dma_tile(n + 3)
            eng.dma += touch(f"v{n-8}")
        for T in range(4):
            pb = Preg(2 * blk + (T >> 1)) + 8 * (T & 1)
            sb = 20 + 4 * (T & 1)
            for jn, j in enumerate(JORD):
                pre = []; bar = None
                if T == 0 and jn == 0:
                    bar = barrier([f"T{n}"], after, barid=blk, st=(blk in (0, 4)))
                    pre += toggle('tr', range(16, 20), slot >> 16)
                r = ringA(36, 5, 'v')
                off = (slot & 0xffff) + (j >> 2) * 256 + T * 8192
                pre.append(('ds', f"ds_read_b64_tr_b16 {R('v', r, 2)}, v{16+(j&3)} offset:{off}"))
                pre.append(('ds', f"ds_read_b64_tr_b16 {R('v', r+2, 2)}, v{16+(j&3)} offset:{off+2048}"))
                acc = R('a', 16 * j, 16)
                first = (blk == 0 and T == 0)
                steps.append(Step(f"{MF} {acc}, {R('v', r, 4)}, {R('v', pb, 4)}, {'0' if first else acc}", pre, bar))
                if j in (0, 4):
                    pre2 = [('ds', f"ds_read_b128 {R('v', sb, 4)}, v14 offset:{(4*blk+T)*1024}")] if j == 0 else []
                    acc = R('a', 192 + 16 * (j >> 2), 16)
                    steps.append(Step(f"{MF} {acc}, {R('v', r, 4)}, {R('v', sb, 4)}, {'0' if first else acc}", pre2))
        if blk < 4:
            eng.fq += sh_fill(2 + (blk >> 1), blk & 1, s0, 4 + 2 * (blk >> 1))
        if blk == 4:
            eng.fq.append(Fill('e', f"v_mov_b32 v28, v{vSS}", early=s0))
            eng.fq.append(Fill('e', f"v_lshrrev_b32 v29, 2, v1", early=s0))
            eng.fq.append(Fill('e', f"v_permlane32_swap_b32 v28, v{vSS}", early=s0))
            eng.fq.append(Fill('e', f"v_add_u32 v29, {S4}, v29", early=s0))
            eng.fq.append(Fill('e', f"s_lshl_b32 {sT0}, {sW}, 8\nv_add_f32 v28, v28, v{vSS}", early=s0))
            eng.fq.append(Fill('e', f"v_add_u32 v30, {sT0}, v29", early=s0))
            eng.fq.append(Fill('ds', f"ds_write_b32 v30, v28", early=s0, bdead=5, tag='sum'))
        if blk == 5:
            for w_ in range(4):
                eng.fq.append(Fill('ds', f"ds_read_b32 v{30+w_}, v29 offset:{w_*256}", early=s0, tag='sumr'))
        if blk == 6:
            eng.fq.append(Fill('e', f"v_add_f32 v30, v30, v31", early=s0, lgneed=['sumr']))
            eng.fq.append(Fill('e', f"v_add_f32 v32, v32, v33", early=s0))
            eng.fq.append(Fill('e', f"v_add_f32 v30, v30, v32", early=s0))
            eng.fq.append(Fill('e', f"v_rcp_f32 v{vSS}, v30", early=s0, cost=8))
        if blk < 7:
            for kt in range(2):
                t = 2 * blk + 2 + kt
                p, base = Sreg(t)
                dead = s0 + 40 + 20 * kt
                eng.fq += exp_fill(p, base, 16, Preg(t), 60, vSP, False, s0, dead)
        if blk == 7:
            eng.fq.append(Fill('e', f"v_mov_b32 v28, v{vSP}", early=s0))
            eng.fq.append(Fill('e', f"s_nop 0\nv_permlane32_swap_b32 v28, v{vSP}", early=s0))
            eng.fq.append(Fill('e', f"v_add_f32 v28, v28, v{vSP}", early=s0))
            eng.fq.append(Fill('e', f"v_rcp_f32 v{vSP}, v28", early=s0, cost=8))
    eng.run(steps, maxlg=OPT['maxlg'], delay=OPT['delay'], dma_cost=OPT['dc'], dma_every=OPT['dP'])
    eng.flush_dma(); eng.flush_fill()
    dump('O', [f"a{r}" for r in range(128)] + [f"a{r}" for r in range(192, 224)] + [f"v{vSP}", f"v{vSS}"])

    def conv_fill(abase, tmp, dst, inv, early, dead):
        F = []
        kw = dict(early=early, dead=dead)
        for q in range(8): F.append(Fill('e', f"v_accvgpr_read_b32 v{tmp+q}, a{abase+q}", **kw))
        for q in range(8): F.append(Fill('e', f"v_mul_f32 v{tmp+q}, v{tmp+q}, v{inv}", **kw))
        for q in range(4): F.append(Fill('e', f"v_cvt_pk_bf16_f32 v{dst+q}, v{tmp+2*q}, v{tmp+2*q+1}", **kw))
        return F
    for a in range(2):
        for half in range(2):
            eng.fq += conv_fill(192 + 16 * a + 8 * half, 208 + 8 * (2*a+half), 208 + 8 * (2*a+half), vSS, -1, 0)
            eng.fq.append(Fill('ds', f"ds_write_b128 v15, {R('v', 208 + 8*(2*a+half), 4)} offset:{a*8192 + half*1024}", tag='osh'))
    eng.flush_fill()
    e(f"""
    v_lshrrev_b32 v56, 5, v7
    v_lshl_add_u32 v56, v56, 3, v0           ; 8hh+r
    v_lshl_add_u32 v57, v0, 6, v6
    v_lshl_add_u32 v57, v56, 8, v57
    s_mul_i32 {sT0}, {sW}, {8192+64}
    v_xor_b32 v16, {sT0}, v57
    """)
    for j in range(4):
        for t in range(4):
            if j or t: e(f"v_xor_b32 v{16+4*j+t}, {j*8192+t*64}, v16")
    LA = [32, 33, 34, 35, 56, 57, 58, 59]
    e(f"""
    v_lshrrev_b32 v57, 1, v0
    v_lshl_add_u32 v57, v57, 6, v6
    v_lshl_add_u32 v57, v56, 7, v57
    s_and_b32 {sT1}, {sW}, 1
    s_lshl_b32 {sT1}, {sT1}, 6
    s_lshl_b32 {sT0}, {sW}, 12
    s_add_u32 {sT0}, {sT0}, {sT1}
    s_add_u32 {sT0}, {sT0}, {SLOT(22) & 0x10000}
    v_xor_b32 v32, {sT0}, v57
    """)
    for j in range(4):
        for t in range(2):
            if j or t: e(f"v_xor_b32 v{LA[2*j+t]}, {j*4096+t*64}, v32")
    for t in range(4):
        e(f"s_xor_b32 {sT0}, {sW}, {t}\ns_mul_i32 {sT1}, {sW}, 14\ns_add_u32 {sT0}, {sT0}, {sT1}\ns_lshl_b32 s{sST+t}, {sT0}, 15")
    e(f"s_add_u32 {sT0}, {sW}, 56\ns_lshl_b32 s{sST+4}, {sT0}, 15")
    e(f"s_and_b32 {sT2}, {sW}, 1\ns_add_u32 {sT0}, {sT1}, {sT2}\ns_add_u32 {sT0}, {sT0}, 12\ns_lshl_b32 s{sST+5}, {sT0}, 15")
    e(f"s_sub_u32 {sT0}, {sT1}, {sT2}\ns_add_u32 {sT0}, {sT0}, 13\ns_lshl_b32 s{sST+6}, {sT0}, 15")
    e(f"s_add_u32 {sT0}, {sT2}, 68\ns_lshl_b32 s{sST+7}, {sT0}, 15")
    e(f"""v_add_u32 v12, 16384, v1
    s_lshr_b32 {sT0}, {sW}, 1
    s_lshl_b32 {sT0}, {sT0}, 30
    v_add_u32 v13, {sT0}, v1
    v_add_u32 v60, {sT0}, v12""")
    OF = 144
    eng.fq += conv_fill(0, 240, OF, vSP, -1, 0) + conv_fill(8, 248, OF + 4, vSP, -1, 0)
    eng.flush_fill()
    barrier(["T16"], None, st=True)()
    eng.dma += dma_tile(19)
    e("v_xor_b32 v61, 0x800, v15\nv_xor_b32 v14, 0x1000, v15\nv_xor_b32 v6, 0x1800, v15")
    qa = [15, 61, 14, 6]
    hi['wo'] = 0
    steps = []
    ringc[0] = 0
    ACC = [('v', 64), ('a', 0), ('v', 64), ('v', 208)]
    def store_fill(g, early):
        p, base = ACC[g]
        nt = 5 if g < 3 else 3
        F = []
        for t in range(nt):
            for half in range(2):
                src = base + 16 * t + 8 * half
                if p == 'a':
                    tmp = 208 + 8 * ((2 * t + half) % 6)
                    for q in range(8): F.append(Fill('e', f"v_accvgpr_read_b32 v{tmp+q}, a{src+q}", early=early))
                    src = tmp
                for q in range(4): F.append(Fill('e', f"v_cvt_pk_bf16_f32 v{src+q}, v{src+2*q}, v{src+2*q+1}", early=early))
                if g < 3:
                    so = f"s{sST+t}"; vo = 'v1' if half == 0 else 'v12'
                else:
                    so = f"s{sST+5+t}"; vo = ('v1' if half == 0 else 'v12') if t < 2 else ('v13' if half == 0 else 'v60')
                F.append(Fill('vm', f"buffer_store_dwordx4 {R('v', src, 4)}, {vo}, {SWS}, {so} offen {OPT['st']}", cost=16, early=early, tag='st'))
            if g < 2: F.append(Fill('e', f"s_add_u32 s{sST+t}, s{sST+t}, {4*32768}", early=early))
        return F
    for g in range(4):
        p, base = ACC[g]
        sg = len(steps)
        for j in range(8):
            n = 16 + 2 * g + (j >> 2) if g < 3 else 22
            slot = SLOT(n)
            def after(n=n):
                if n + 3 <= 22: eng.dma += dma_tile(n + 3)
            for half in range(2):
                nt = 4 if g < 3 else 2
                for t in range(nt):
                    pre = []; bar = None
                    if t == 0 and half == 0 and ((j & 3) == 0 if g < 3 else j == 0):
                        if n > 16: bar = barrier([f"T{n}"], after, st=(n in (18, 20, 22)))
                        if g < 3: pre += toggle('wo', range(16, 32), slot >> 16)
                    r = ringA(36, 5, 'v')
                    if g < 3:
                        ar = 16 + 4 * (j & 3) + t; off = (slot & 0xffff) + half * 4096; so = 1024
                    else:
                        ar = LA[2 * (j & 3) + t]; off = (slot & 0xffff) + (j >> 2) * 16384 + half * 2048; so = 512
                    pre.append(('ds', f"ds_read_b64_tr_b16 {R('v', r, 2)}, v{ar} offset:{off}"))
                    pre.append(('ds', f"ds_read_b64_tr_b16 {R('v', r+2, 2)}, v{ar} offset:{off+so}"))
                    acc = R(p, base + 16 * t, 16)
                    first = (j == 0 and half == 0)
                    steps.append(Step(f"{MF} {acc}, {R('v', r, 4)}, {R('v', OF+8*j+4*half, 4)}, {'0' if first else acc}", pre, bar))
                    if t == 0:
                        pre2 = []
                        if g == 0:
                            pre2 = [('ds', f"ds_read_b128 {R('a', 128+8*j+4*half, 4)}, v{qa[j&3]} offset:{(j>>2)*8192 + half*1024}")]
                        acc = R(p, base + 16 * nt, 16)
                        steps.append(Step(f"{MF} {acc}, {R('v', r, 4)}, {R('a', 128+8*j+4*half, 4)}, {'0' if first else acc}", pre2))
                if g == 0 and j < 7:
                    jj = j + 1
                    eng.fq += conv_fill(16 * jj + 8 * half, 240 + 8 * half, OF + 8 * jj + 4 * half, vSP, -1, 10 * jj + 5 * half)
        if g >= 1:
            F = store_fill(g - 1, sg + 1)
            nxt = sg + (80 if g < 3 else 48)
            for f in F: f.dead = nxt
            eng.fq += F
    eng.run(steps, maxlg=OPT['maxlg'], delay=OPT['delay'], dma_cost=OPT['dc'], dma_every=OPT['dO'])
    eng.flush_dma(); eng.flush_fill()
    eng.fq += store_fill(3, -1); eng.flush_fill()
    if OPT['red'] == 1:
        stamp()
        e(f"""s_load_dwordx2 s[56:57], s[0:1], 48
        s_load_dwordx2 s[8:9], s[0:1], 40
        s_mov_b32 s58, 256
        s_mov_b32 s59, 0x00020000
        s_lshl_b32 {sT0}, {sH}, 10
        s_sub_u32 s28, s28, {sT0}
        s_subb_u32 s29, s29, 0
        s_lshl_b32 {sT0}, {sH}, 2
        s_add_u32 {sT0}, {sT0}, {sW}
        s_mul_i32 {sT0}, {sT0}, 140
        v_add_u32 v2, {sT0}, v7                  ; u
        v_lshrrev_b32 v3, 6, v2                  ; f
        v_and_b32 v2, 63, v2                     ; l'
        v_lshlrev_b32 v4, 4, v2
        v_lshl_add_u32 v4, v3, 14, v4
        v_add_u32 v5, 16384, v4
        v_add_u32 v6, 32768, v4
        v_cmp_gt_u32 vcc, 12, v7
        v_mov_b32 v8, 0x40000000
        v_cndmask_b32 v6, v8, v6, vcc
        v_and_b32 v9, 31, v2
        v_mul_u32_u24 v9, 896, v9
        v_lshrrev_b32 v2, 5, v2
        v_lshl_add_u32 v9, v2, 4, v9             ; (l'&31)*896 + 16*(l'>>5)
        """)
        for p in range(3):
            e(f"""v_add_u32 v2, {p}, v3
            v_mul_u32_u24 v13, 2341, v2
            v_lshrrev_b32 v13, 16, v13               ; qt
            v_mul_u32_u24 v14, 28, v13
            v_sub_u32 v2, v2, v14
            v_mul_u32_u24 v13, {32*896}, v13
            v_lshl_add_u32 v13, v2, 5, v13
            v_add_u32 v{10+p}, v13, v9""")
        e(f"""v_cndmask_b32 v12, v8, v12, vcc
        v_and_b32 v2, 31, v7                     ; m
        v_lshrrev_b32 v3, 3, v2
        v_lshlrev_b32 v3, 1, v3
        v_bfe_u32 v13, v2, 1, 1
        v_or_b32 v3, v3, v13                     ; j>>1 (>=4 when m>=16)
        v_bfe_u32 v13, v2, 2, 1
        v_lshrrev_b32 v14, 5, v7
        v_xor_b32 v13, v13, v14
        v_lshl_or_b32 v3, v13, 3, v3
        v_and_b32 v2, 1, v2
        v_lshlrev_b32 v2, 4, v2
        v_mov_b32 v13, 0x3f80
        v_lshlrev_b32 v2, v2, v13""")
        for r in range(4):
            e(f"v_cmp_eq_u32 vcc, {r}, v3\nv_cndmask_b32 v{16+r}, 0, v2, vcc")
        e(f"""s_waitcnt lgkmcnt(0)
        s_mul_i32 {sT0}, {sB}, 143360
        s_add_u32 s8, s8, {sT0}
        s_addc_u32 s9, s9, 0""")
        k.wait(vm0=True)
        stamp()
        e(f"""s_barrier
        s_cmp_lg_u32 {sW}, 0
        s_cbranch_scc1 L_polled
        s_mov_b64 exec, 1
        s_lshl_b32 {sT0}, {sB}, 4
        v_mov_b32 v2, 1
        v_mov_b32 v3, {sT0}
        buffer_atomic_add v2, v3, s[56:59], 0 offen sc1
        s_mov_b32 {sT1}, 0
        L_poll:
        buffer_load_dword v2, v3, s[56:59], 0 offen sc1
        s_add_u32 {sT1}, {sT1}, 1
        s_cmp_gt_u32 {sT1}, 20000
        s_cbranch_scc1 L_pollx
        s_waitcnt vmcnt(0)
        v_readfirstlane_b32 {sT0}, v2
        s_cmp_lt_u32 {sT0}, 16
        s_cbranch_scc1 L_poll
        L_pollx:
        s_mov_b64 exec, -1
        L_polled:
        s_barrier""")
        stamp()
        for p in range(3):
            for h in range(16):
                if h % 4 == 0: e(f"s_mov_b32 {sT0}, {h*1024}")
                r = 64 * p + 4 * h
                k.vmem(f"buffer_load_dwordx4 {R('a', r, 4)}, v{4+p}, {SWS}, {sT0} offen offset:{(h%4)*1024} {OPT['ld']}", f"r{p}_{h}")
        for p in range(3):
            acc = R('v', 64 + 16 * p, 16)
            for h in range(16):
                k.wait(vm=[f"r{p}_{h}"])
                e(f"{MF} {acc}, v[16:19], {R('a', 64*p+4*h, 4)}, {'0' if h == 0 else acc}")
        for p in range(3):
            for q in range(4):
                e(f"v_cvt_pk_bf16_f32 v{64+16*p+q}, v{64+16*p+2*q}, v{64+16*p+2*q+1}")
            k.vmem(f"buffer_store_dwordx4 {R('v', 64+16*p, 4)}, v{10+p}, {SX}, 0 offen", 'o')
    if OPT['ts']:
        stamp()
        k.wait(vm0=True)
        stamp()
        e(f"""s_add_u32 s56, s4, 0x0ff00000
        s_addc_u32 s57, s5, 0
        s_mov_b32 s58, 0x100000
        s_mov_b32 s59, 0x00020000
        s_cmp_lg_u32 {sW}, 0
        s_cbranch_scc1 L_exit
        s_mov_b64 exec, 1
        s_lshl_b32 s3, s2, 8
        v_mov_b32 v1, s3
        v_mov_b32 v2, {nst[0]}
        v_mov_b32 v3, 0
        buffer_store_dwordx2 v[2:3], v1, s[56:59], 0 offen""")
        for j in range(nst[0]):
            e(f"v_mov_b32 v4, s{sTS+2*j}\nv_mov_b32 v5, s{sTS+1+2*j}\nbuffer_store_dwordx2 v[4:5], v1, s[56:59], 0 offen offset:{8+8*j}\ns_nop 1")
        e("s_waitcnt vmcnt(0)")
    e("L_exit:")
    txt, added = k.text()
    print(f"main: {len(k.L)} lines, nops added {added}, forced fills {eng.forced}, stamps {nst[0]}", file=sys.stderr)
    return txt

def f2u(x):
    import struct
    return struct.unpack('<I', struct.pack('<f', x))[0]

def reduce_kernel():
    k = K(); e = k.e
    if OPT['ts']: e("s_memrealtime s[20:21]")
    e(f"""
    s_cmp_ge_u32 s2, 560
    s_cbranch_scc1 L_rexit
    s_load_dwordx2 s[8:9], s[0:1], 56
    s_load_dwordx2 s[12:13], s[0:1], 40
    v_lshrrev_b32 v1, 6, v0
    v_and_b32 v2, 63, v0
    v_readfirstlane_b32 s3, v1
    s_lshl_b32 s4, s2, 2
    s_add_u32 s4, s4, s3                     ; gw
    s_mov_b32 s10, {2240*16384}
    s_mov_b32 s11, 0x00020000
    s_mov_b32 s14, 2293760
    s_mov_b32 s15, 0x00020000
    s_lshl_b32 s5, s4, 14
    v_lshlrev_b32 v3, 4, v2
    s_waitcnt lgkmcnt(0)
    """)
    for h in range(16):
        if h % 4 == 0 and h: e("s_add_u32 s5, s5, 4096")
        k.vmem(f"buffer_load_dwordx4 v[{16+4*h}:{19+4*h}], v3, s[8:11], s5 offen offset:{(h%4)*1024}", f"h{h}")
    e(f"""
    s_mul_i32 s6, s4, 2341
    s_lshr_b32 s6, s6, 16
    s_mul_i32 s7, s6, 28
    s_sub_u32 s7, s4, s7
    s_mul_i32 s6, s6, {32*896}
    s_lshl_b32 s7, s7, 5
    s_add_u32 s6, s6, s7
    v_and_b32 v4, 31, v2
    v_mul_u32_u24 v4, 896, v4
    v_lshrrev_b32 v5, 5, v2
    v_lshl_add_u32 v4, v5, 4, v4
    s_mov_b32 s16, 0xffff0000
    """)
    for h in range(16):
        k.wait(vm=[f"h{h}"])
        for q in range(4):
            r = 16 + 4 * h + q
            if h == 0:
                e(f"v_lshlrev_b32 v{8+2*q}, 16, v{r}\nv_and_b32 v{9+2*q}, s16, v{r}")
            else:
                e(f"v_lshlrev_b32 v6, 16, v{r}\nv_and_b32 v7, s16, v{r}\nv_add_f32 v{8+2*q}, v{8+2*q}, v6\nv_add_f32 v{9+2*q}, v{9+2*q}, v7")
    for q in range(4):
        e(f"v_cvt_pk_bf16_f32 v{8+q}, v{8+2*q}, v{9+2*q}")
    e("buffer_store_dwordx4 v[8:11], v4, s[12:15], s6 offen")
    if OPT['ts']:
        e("""s_waitcnt vmcnt(0)
        s_memrealtime s[22:23]
        s_add_u32 s8, s8, 0x0ff20000
        s_addc_u32 s9, s9, 0
        s_mov_b32 s10, 0x20000
        s_mov_b64 exec, 1
        s_lshl_b32 s5, s4, 4
        s_waitcnt lgkmcnt(0)
        v_mov_b32 v2, s20
        v_mov_b32 v3, s22
        v_mov_b32 v1, 0
        buffer_store_dwordx2 v[2:3], v1, s[8:11], s5 offen
        s_waitcnt vmcnt(0)""")
    e("L_rexit:")
    txt, added = k.text()
    return txt

def diag_kernel():
    A, B, KK = OPT['diag'].split(',')
    k = K(); e = k.e
    e("""s_memrealtime s[20:21]
    s_cmp_ge_u32 s2, 1
    s_cbranch_scc1 L_dexit
    s_load_dwordx2 s[8:9], s[0:1], 56
    s_mov_b32 s10, 0x100000
    s_mov_b32 s11, 0x00020000
    s_waitcnt lgkmcnt(0)
    s_add_u32 s8, s8, 0x0ff00000
    s_addc_u32 s9, s9, 0""")
    def val(spec, dst):
        if spec == 'now':
            e(f"s_mov_b32 {dst}, s20"); return
        kind = spec[0]; idx = int(spec[1:-3]); op = spec[-3:]
        if kind == 'm': n, stride, off = 4, 256, 8 + 8 * idx
        elif kind == 'p': n, stride, off = 4, 16, 0x40000 + 4 * idx
        else: n, stride, off = 35, 16, 0x20000 + 4 * idx
        e(f"v_mul_u32_u24 v1, {stride}, v0\nv_add_u32 v1, {off}, v1")
        for j in range(n):
            e(f"buffer_load_dword v{2+j}, v1, s[8:11], 0 offen\nv_add_u32 v1, {64*stride}, v1")
        e("s_waitcnt vmcnt(0)")
        for j in range(n): e(f"v_subrev_u32 v{2+j}, s20, v{2+j}")
        vop = 'v_add_u32' if op == 'avg' else f"v_{op}_i32"
        sop = 's_add_i32' if op == 'avg' else f"s_{op}_i32"
        for j in range(1, n): e(f"{vop} v2, v2, v{2+j}")
        e(f"s_nop 1\nv_readlane_b32 {dst}, v2, 0")
        for l in range(1, 64):
            e(f"v_readlane_b32 s30, v2, {l}\n{sop} {dst}, {dst}, s30")
        if op == 'avg': e(f"s_ashr_i32 {dst}, {dst}, 8")
        e(f"s_add_u32 {dst}, {dst}, s20")
    val(A, 's24'); val(B, 's25')
    e(f"""s_sub_u32 s24, s25, s24
    s_mul_i32 s24, s24, {KK}
    s_min_u32 s24, s24, 40000
    s_add_u32 s24, s24, 300
    L_spin:
    s_memrealtime s[22:23]
    s_waitcnt lgkmcnt(0)
    s_sub_u32 s22, s22, s20
    s_cmp_lt_u32 s22, s24
    s_cbranch_scc1 L_spin
    L_dexit:""")
    return k.text()[0]

def pre_kernel():
    mods, infl, order = OPT['pre'].split(':'); infl = int(infl)
    k = K(); e = k.e
    e("""s_memrealtime s[20:21]
    s_cmp_ge_u32 s2, 256
    s_cbranch_scc1 L_pexit
    s_load_dwordx2 s[12:13], s[0:1], 8
    s_load_dwordx2 s[16:17], s[0:1], 16
    s_load_dwordx2 s[8:9], s[0:1], 56
    s_mov_b32 s14, 0x4000000
    s_mov_b32 s15, 0x00020000
    s_mov_b32 s18, 0x4000000
    s_mov_b32 s19, 0x00020000
    s_mov_b32 s10, 0x100000
    s_mov_b32 s11, 0x00020000
    v_lshrrev_b32 v1, 6, v0
    v_and_b32 v2, 63, v0
    v_readfirstlane_b32 s28, v1
    v_lshlrev_b32 v2, 4, v2
    s_lshl_b32 s3, s2, 18
    s_lshl_b32 s29, s28, 12
    s_add_u32 s3, s3, s29
    s_mul_i32 s32, s28, 40960
    s_waitcnt lgkmcnt(0)
    s_add_u32 s8, s8, 0x0ff40000
    s_addc_u32 s9, s9, 0""")
    i = 0
    for t in order:
        srd = "s[12:15]" if t == 'K' else "s[16:19]"
        for blk in range(16):
            e(f"s_add_u32 s33, s3, {blk*16384}\ns_add_u32 m0, s32, {(i % 10)*4096}")
            for ii in range(4):
                e(f"s_waitcnt vmcnt({infl-1})\nbuffer_load_dwordx4 v2, {srd}, s33 offen offset:{ii*1024} {mods} lds")
            i += 1
            if i == 16 + infl // 4 or (i == 16 and len(order) == 1): e("s_memrealtime s[22:23]")
    e("""s_waitcnt vmcnt(0)
    s_barrier
    s_memrealtime s[24:25]
    s_cmp_lg_u32 s28, 0
    s_cbranch_scc1 L_pexit
    s_mov_b64 exec, 1
    s_lshl_b32 s5, s2, 4
    s_waitcnt lgkmcnt(0)
    v_mov_b32 v4, s20
    v_mov_b32 v5, s22
    v_mov_b32 v6, s24
    v_mov_b32 v7, 0
    v_mov_b32 v1, 0
    buffer_store_dwordx4 v[4:7], v1, s[8:11], s5 offen
    s_waitcnt vmcnt(0)
    L_pexit:""")
    return k.text()[0]

if __name__ == "__main__":
    out = sys.argv[1]
    m = main_kernel()
    r = reduce_kernel()
    L = [("mha_main_kernel", 256, 256, 163840), ("mha_reduce_kernel", 560, 256, 0)]
    KS = [("mha_main_kernel", m, 512, 256), ("mha_reduce_kernel", r, 80, 80)]
    if OPT['red']:
        L = L[:1]; KS = KS[:1]
    if OPT['pre']:
        L.insert(0, ("mha_pre_kernel", 256, 256, 163840)); KS.append(("mha_pre_kernel", pre_kernel(), 64, 64))
    if OPT['diag']:
        L.append(("mha_diag_kernel", 1, 64, 0)); KS.append(("mha_diag_kernel", diag_kernel(), 64, 64))
    write_file(out, HEADER, L, KS)
```

```python
import sys, math, struct
sys.path.insert(0, "work")
from asmlib import K, write_file
from sch import Sched, Op

OPT = dict(arr='N', ts=0, dump='', nt='nt', st='', bud=24, maxlg=14, delay=3, dsage=4, maxds=3,
           rb=9, wb=0, wage=6, dc=16, wc=16, lc=12,
           kpre=0, k0=0, kp=80, kp2=50, ksw=32, pair=1, tp=0, tpm='', stamps='RA0,RA3,RS0,RS2,RS4,RS6,RS8,RS10,RS12,RS14,RS16,RS18,RS20,RS22',
           w0=14, wp=2,
           dp=2, vp=3, verbose=0, red=0, lo=-20, hi=30, diag='')
for a in sys.argv[2:]:
    kk, vv = a.split('=')
    assert kk in OPT, kk
    OPT[kk] = int(vv) if vv.lstrip('-').isdigit() else vv

HEADER = "".join(l for l in open("standalone__mha_block_cached__near_ridge.s.ref").read().splitlines(True)[:11])
MF = "v_mfma_f32_32x32x16_bf16"
def R(p, lo, n): return f"{p}[{lo}:{lo+n-1}]"
def f2u(x): return struct.unpack('<I', struct.pack('<f', x))[0]
SX, SK, SV, SWQ, SWO, SWS = "s[8:11]", "s[12:15]", "s[16:19]", "s[20:23]", "s[24:27]", "s[28:31]"
sW, sB, sH = "s32", "s33", "s34"
sT0, sT1, sT2 = "s36", "s37", "s38"
sC = "s39"
sWQO, sXO, sM8, sM1, sW16, sWOO, sWLO = "s40", "s41", "s42", "s43", "s44", "s45", "s46"
sST = 47
sD, sL, sS = "s55", "s56", "s35"
sPASS, sLO, sRNG = "s57", "s58", "s59"
sTS = 60
XB = 96 * 1024
S4 = 128 * 1024
SL = dict(a=32768, b=65536, c=0, d=98304)
def B(i): return 48 + 16 * i
vSP, vSS, vMP, vMS = 38, 39, 40, 41

def main_kernel():
    k = K(); e = k.e
    s = Sched(k)
    nst = [0]
    TSI = 's_memtime' if OPT['ts'] == 2 else 's_memrealtime'
    def stamp():
        if OPT['ts']:
            k.wait(lg0=True)
            e(f"{TSI} s[{sTS+2*nst[0]}:{sTS+1+2*nst[0]}]\ns_waitcnt lgkmcnt(0)")
            nst[0] += 1
    def dump(name, regs):
        if OPT['dump'] != name: return
        def fn(op):
            e("s_nop 7\ns_nop 7\ns_waitcnt vmcnt(0) lgkmcnt(0)")
            e(f"s_mul_i32 {sT0}, {sB}, 64\ns_lshl_b32 {sT1}, {sH}, 2\ns_add_u32 {sT0}, {sT0}, {sT1}\ns_add_u32 {sT0}, {sT0}, {sW}\ns_lshl_b32 {sT0}, {sT0}, 17")
            e("s_add_u32 s8, s4, 0x4000000\ns_addc_u32 s9, s5, 0\ns_mov_b32 s10, 0x8000000\ns_mov_b32 s11, 0x00020000")
            e("v_lshlrev_b32 v0, 2, v0")
            for i, r in enumerate(regs):
                e(f"buffer_store_dword {r}, v0, s[8:11], {sT0} offen\ns_add_u32 {sT0}, {sT0}, 256")
                if i % 32 == 31: e("s_waitcnt vmcnt(0)")
            e("s_waitcnt vmcnt(0)\ns_branch L_exit")
        s.add(Op('e', 's_nop 0', R=regs, W=regs, fn=fn, dl=s.nmf))

    if OPT['ts']:
        e(f"{TSI} s[{sTS}:{sTS+1}]"); nst[0] = 1
    e(f"""
    s_cmp_ge_u32 s2, 256
    s_cbranch_scc1 L_exit
    v_lshrrev_b32 v1, 6, v0
    v_and_b32 v0, 63, v0
    s_mov_b32 {sPASS}, 0
    v_readfirstlane_b32 {sW}, v1
    s_mov_b64 vcc, 0
    s_mov_b32 {sLO}, 0x{(127 + OPT['lo']) << 23:08x}
    s_mov_b32 {sRNG}, 0x{(OPT['hi'] - OPT['lo']) << 23:08x}
    L_start:
    s_load_dwordx2 s[8:9], s[0:1], 0
    s_load_dwordx2 s[20:21], s[0:1], 24
    s_load_dwordx2 s[12:13], s[0:1], 8
    s_load_dwordx2 s[16:17], s[0:1], 16
    s_load_dwordx2 s[24:25], s[0:1], 32
    s_load_dwordx2 s[4:5], s[0:1], 56
    s_and_b32 {sT0}, s2, 7
    s_lshr_b32 {sT1}, s2, 3
    """)
    arr = OPT['arr']
    if arr == 'N':
        e(f"""s_lshr_b32 {sB}, {sT0}, 1
        s_lshl_b32 {sB}, {sB}, 2
        s_lshr_b32 {sT2}, {sT1}, 3
        s_add_u32 {sB}, {sB}, {sT2}
        s_and_b32 {sH}, {sT0}, 1
        s_lshl_b32 {sH}, {sH}, 3
        s_and_b32 {sT2}, {sT1}, 7
        s_add_u32 {sH}, {sH}, {sT2}""")
    elif arr == 'L':
        e(f"""s_lshl_b32 {sB}, {sT0}, 1
        s_lshr_b32 {sT2}, {sT1}, 4
        s_add_u32 {sB}, {sB}, {sT2}
        s_and_b32 {sH}, {sT1}, 15""")
    elif arr == 'M':
        e(f"""s_lshr_b32 {sB}, {sT0}, 2
        s_lshl_b32 {sB}, {sB}, 3
        s_lshr_b32 {sT2}, {sT1}, 2
        s_add_u32 {sB}, {sB}, {sT2}
        s_and_b32 {sH}, {sT0}, 3
        s_lshl_b32 {sH}, {sH}, 2
        s_and_b32 {sT2}, {sT1}, 3
        s_add_u32 {sH}, {sH}, {sT2}""")
    e(f"""
    s_mov_b32 s10, 143360
    s_mov_b32 s11, 0x00020000
    s_mov_b32 s23, 0x00020000
    s_lshl_b32 {sM8}, {sW}, 13
    s_lshl_b32 {sM1}, {sW}, 10
    s_lshl_b32 {sWQO}, {sW}, 17
    s_mul_i32 {sXO}, {sW}, 7168
    v_lshrrev_b32 v44, 5, v0                 ; hh
    v_and_b32 v45, 31, v0                    ; c
    v_lshlrev_b32 v1, 2, v44
    v_xor_b32 v1, v1, v45
    v_lshlrev_b32 v1, 4, v1
    v_lshl_add_u32 v2, v44, 13, v1
    v_xor_b32 v3, 0x80, v2
    v_add_u32 v3, 15360, v3
    v_add_u32 v4, 30720, v2
    v_add_u32 v5, 30720, v3
    s_and_b32 {sT2}, {sW}, 1
    s_lshl_b32 {sT0}, {sT2}, 2
    v_lshrrev_b32 v6, 4, v0
    v_xor_b32 v6, {sT0}, v6
    v_and_b32 v1, 7, v0
    v_xor_b32 v6, v6, v1
    v_lshlrev_b32 v6, 4, v6
    v_lshrrev_b32 v1, 3, v0
    v_mul_u32_u24 v1, 896, v1
    v_add_u32 v6, v6, v1                     ; x voff
    s_mul_i32 {sT0}, {sB}, 143360
    s_lshl_b32 {sT1}, {sH}, 9
    s_waitcnt lgkmcnt(0)
    s_add_u32 s8, s8, {sT0}
    s_addc_u32 s9, s9, 0
    s_add_u32 s20, s20, {sT1}
    s_addc_u32 s21, s21, 0
    s_sub_u32 s22, 3670016, {sT1}
    """)
    dc, lc = OPT['dc'], OPT['lc']
    def vmop(text, **kw):
        n = text.count('\n')
        return s.vm(text, cost=kw.pop('cost', dc) + 4 * n, chain='vm', **kw)
    def pace(e0, p):
        i = 0
        while True:
            x = e0 + int(i * p)
            yield dict(early=x, dl=x + 2)
            i += 1
    def dma_stage(i, pc=None, **kw):
        L = []
        slot = (i % 3) * 32768; xs = XB + (i % 3) * 20480
        for u in range(2):
            for ii in range(4):
                t = f"s_add_u32 m0, {sM8}, {slot + u*4096}\ns_add_u32 {sD}, {sWQO}, {(i << 19) + u*65536}\n" if ii == 0 else ""
                L.append(t + f"buffer_load_dwordx4 v{2+ii}, {SWQ}, {sD} offen offset:{ii*1024} lds")
        X = []
        for u in range(5):
            X.append(f"s_add_u32 m0, {sM1}, {xs + u*4096}\ns_add_u32 {sD}, {sXO}, {i*128 + u*4*7168}\nbuffer_load_dwordx4 v6, {SX}, {sD} offen lds")
        return [(t, dict(bb=f"RA{i}", **kw)) for t in L + X]
    def dma_tile(n, slot, **kw):
        L = []
        for u in range(2):
            for ii in range(4):
                if n < 16:
                    i, dh = (n >> 1, n & 1) if n < 8 else ((n - 8) & 3, (n - 8) >> 2)
                    so = f"{sW16}, {i*65536 + dh*256 + u*8192}"; vo = (8 if n < 8 else 2) + ii; srd = SK if n < 8 else SV; m = OPT['nt']
                elif n < 22:
                    g, dh = (n - 16) >> 1, (n - 16) & 1
                    so = f"{sWOO}, {(dh*128 + 16*u)*896 + g*256}"; vo = 2 + ii; srd = SWO; m = ''
                else:
                    so = f"{sWLO}, {32*u*896 + 768}"; vo = 8 + ii; srd = SWO; m = ''
                t = f"s_add_u32 m0, {sM8}, {SL[slot] + u*4096}\ns_add_u32 {sD}, {so}\n" if ii == 0 else ""
                L.append(t + f"buffer_load_dwordx4 v{vo}, {srd}, {sD} offen offset:{ii*1024} {m} lds")
        return [(t, dict(bb=f"RS{n}", **kw)) for t in L]
    def stage_load(tiles, **kw):
        L = []
        for u in range(2):
            for ii in range(4):
                for x, (n, r) in enumerate(tiles):
                    i, dh = (n >> 1, n & 1) if n < 8 else ((n - 8) & 3, (n - 8) >> 2)
                    t = f"s_add_u32 {sL}, {sW16}, {i*65536 + u*8192}\n" if ii == 0 and x == 0 else ""
                    vo = (8 if n < 8 else 2) + ii; srd = SK if n < 8 else SV
                    L.append(t + f"buffer_load_dwordx4 {R('a', 32*r + 16*u + 4*ii, 4)}, v{vo}, {srd}, {sL} offen offset:{ii*1024 + dh*256} {OPT['nt']}")
        return [(t, dict(cost=lc, **kw)) for t in L]
    def issue(L, pc=None, **kw):
        for t, a in L:
            a = dict(a); a.update(kw)
            if pc is not None: a.update(next(pc))
            vmop(t, **a)
    wbase = [32768]
    def stage_write(n, r, slot, ab, p0):
        for u in range(2):
            for ii in range(4):
                off = SL[slot] - wbase[0] + u * 4096 + ii * 1024
                assert 0 <= off < 65536
                x = p0 + OPT['w0'] + OPT['wp'] * (4 * u + ii)
                s.ds(f"ds_write_b128 v7, {R('a', 32*r + 16*u + 4*ii, 4)} offset:{off}", cost=OPT['wc'], ab=ab, bb=f"RS{n}", early=x, dl=x + 1)
    P = dict(pre=True)
    issue(dma_stage(0), **P)
    s.es(f"""
    s_lshl_b32 {sT0}, {sB}, 4
    s_add_u32 {sT0}, {sT0}, {sH}
    s_lshl_b32 {sT0}, {sT0}, 18""", **P)
    s.e(f"s_add_u32 s16, s16, {sT0}\ns_addc_u32 s17, s17, 0\ns_add_u32 s12, s12, {sT0}\ns_addc_u32 s13, s13, 0", **P)
    s.es(f"""
    s_mov_b32 s14, 262144
    s_mov_b32 s15, 0x00020000
    s_mov_b32 s18, 262144
    s_mov_b32 s19, 0x00020000
    s_lshl_b32 {sW16}, {sW}, 14""", **P)
    issue(dma_stage(1), **P)
    s.es(f"""
    v_bfe_u32 v1, v0, 4, 1
    v_and_b32 v8, 7, v0
    v_xor_b32 v8, v8, v1
    v_lshlrev_b32 v8, 4, v8
    v_lshl_add_u32 v8, v44, 7, v8
    v_bfe_u32 v1, v0, 3, 2
    v_lshl_add_u32 v8, v1, 9, v8
    v_xor_b32 v9, {1024+32}, v8
    v_xor_b32 v10, {2048+64}, v8
    v_xor_b32 v11, {3072+96}, v8""".replace(f"v_xor_b32 v9, {1024+32}, v8", "v_xor_b32 v9, 32, v8\nv_add_u32 v9, 1024, v9")
       .replace(f"v_xor_b32 v10, {2048+64}, v8", "v_xor_b32 v10, 64, v8\nv_add_u32 v10, 2048, v10")
       .replace(f"v_xor_b32 v11, {3072+96}, v8", "v_xor_b32 v11, 0x60, v8\nv_add_u32 v11, 3072, v11"), **P)
    KL = stage_load([(0, 0), (1, 1)]) + stage_load([(2, 2), (3, 3)]) + stage_load([(4, 4), (5, 5)]) + stage_load([(6, 6)])
    if not OPT['pair']: KL = sum([stage_load([(n, n)]) for n in range(7)], [])
    if OPT['tp']:
        s.es(f"v_and_b32 v241, 15, v0\nv_lshlrev_b32 v241, 12, v241\ns_lshl_b32 {sL}, {sW}, 16", **P)
        vmop(f"buffer_load_dword v240, v241, {SK}, {sL} offen {OPT['tpm']}", **P)
        if OPT['tp'] > 1: vmop(f"buffer_load_dword v242, v241, {SV}, {sL} offen {OPT['tpm']}", **P)
    issue(KL[:OPT['kpre']], **P)
    KL = KL[OPT['kpre']:]
    s.e(f"s_mul_i32 {sT0}, {sH}, 229376\ns_add_u32 s24, s24, {sT0}\ns_addc_u32 s25, s25, 0", **P)
    s.e(f"s_mul_i32 {sT0}, {sB}, {140*16384}\ns_lshl_b32 {sT1}, {sH}, 10\ns_add_u32 {sT0}, {sT0}, {sT1}\ns_add_u32 s28, s4, {sT0}\ns_addc_u32 s29, s5, 0", **P)
    s.es(f"""
    s_mov_b32 s26, 229376
    s_mov_b32 s27, 0x00020000
    s_mov_b32 s30, {140*16384}
    s_mov_b32 s31, 0x00020000
    s_mov_b32 {sC}, 0x{f2u(math.log2(math.e)/16):08x}
    s_mul_i32 {sWOO}, {sW}, {32*896}
    s_mul_i32 {sWLO}, {sW}, {64*896}
    """, **P)
    s.es(f"""
    v_bfe_u32 v47, v0, 2, 2
    v_lshl_add_u32 v43, v44, 3, v47
    v_bfe_u32 v1, v0, 4, 1
    v_lshlrev_b32 v46, 5, v1
    v_and_b32 v1, 1, v0
    v_lshl_add_u32 v46, v1, 4, v46
    v_bfe_u32 v1, v0, 1, 1
    v_lshl_add_u32 v46, v1, 3, v46
    v_lshl_add_u32 v1, v47, 6, v46
    s_lshl_b32 {sT0}, {sW}, 6
    v_lshl_add_u32 v12, v43, 9, v1
    v_xor_b32 v12, {sT0}, v12
    v_xor_b32 v13, 64, v12
    v_xor_b32 v14, 0x80, v12
    v_xor_b32 v15, 0xc0, v12
    v_bfe_u32 v1, v0, 1, 3
    v_xor_b32 v1, v1, v44
    v_lshlrev_b32 v1, 4, v1
    v_lshl_add_u32 v1, v45, 7, v1
    v_add_u32 v20, {XB + 128*128}, v1
    s_lshl_b32 {sT0}, {sW}, 12
    s_add_u32 {sT0}, {sT0}, {XB}
    v_add_u32 v16, {sT0}, v1
    v_xor_b32 v17, 32, v16
    v_xor_b32 v18, 64, v16
    v_xor_b32 v19, 0x60, v16
    v_xor_b32 v21, 32, v20
    v_xor_b32 v22, 64, v20
    v_xor_b32 v23, 0x60, v20
    """, **P)
    s.es(f"""
    v_and_b32 v42, 0x13, v0
    v_bfe_u32 v1, v0, 2, 1
    v_lshl_or_b32 v42, v1, 3, v42
    v_bfe_u32 v1, v0, 3, 1
    v_lshl_or_b32 v42, v1, 2, v42
    v_bfe_u32 v1, v42, 1, 3
    v_xor_b32 v1, v1, v44
    v_lshlrev_b32 v1, 4, v1
    v_and_b32 v24, 3, v42
    v_lshl_add_u32 v1, v24, 7, v1
    v_lshrrev_b32 v24, 2, v42
    v_lshl_add_u32 v1, v24, 10, v1
    s_add_u32 {sT0}, {sM8}, 32768
    v_add_u32 v32, {sT0}, v1
    v_xor_b32 v33, 32, v32
    v_xor_b32 v34, 64, v32
    v_xor_b32 v35, 0x60, v32
    s_lshr_b32 {sT1}, {sW}, 1
    s_lshl_b32 {sT1}, {sT1}, 9
    s_and_b32 {sT2}, {sW}, 1
    s_lshl_b32 {sT2}, {sT2}, 6
    s_add_u32 {sT1}, {sT1}, {sT2}
    s_add_u32 {sT1}, {sT1}, 32768
    v_xor_b32 v24, {sT1}, v1
    """, **P)
    for jj in range(4):
        for half in range(2):
            if jj or half: s.e(f"v_xor_b32 v{24+2*jj+half}, {(jj>>1)*512 + (jj&1)*64 + half*32}, v24", **P)
    s.es(f"""
    v_lshlrev_b32 v1, 4, v0
    v_add_u32 v7, {sT0}, v1
    v_add_u32 v36, {S4}, v1
    s_lshl_b32 {sT0}, {sW}, 11
    v_add_u32 v37, {sT0}, v36
    """, **P)
    s.e(f"s_mul_i32 {sT1}, {sW}, 14", **P)
    for t in range(4):
        s.es(f"s_xor_b32 {sT0}, {sW}, {t}\ns_add_u32 {sT0}, {sT0}, {sT1}\ns_lshl_b32 s{sST+t}, {sT0}, 15", **P)
    s.es(f"""s_add_u32 {sT0}, {sW}, 56
    s_lshl_b32 s{sST+4}, {sT0}, 15
    s_and_b32 {sT2}, {sW}, 1
    s_add_u32 {sT0}, {sT1}, {sT2}
    s_add_u32 {sT0}, {sT0}, 12
    s_lshl_b32 s{sST+5}, {sT0}, 15
    s_sub_u32 {sT0}, {sT1}, {sT2}
    s_add_u32 {sT0}, {sT0}, 13
    s_lshl_b32 s{sST+6}, {sT0}, 15
    s_add_u32 {sT0}, {sT2}, 68
    s_lshl_b32 s{sST+7}, {sT0}, 15""", **P)

    ringc = [0]
    def ring():
        r = 224 + 4 * (ringc[0] % 8); ringc[0] += 1
        return r
    STAMPS = set(OPT['stamps'].split(','))
    def RB(name):
        s.bar(name, fn=(stamp if name in STAMPS else None), early=s.nmf - OPT['rb'])
    def WB(name, p0):
        s.bar(name, early=p0 + OPT['wb'], lgage=OPT['wage'], dl=p0 + OPT['wb'] + 2)
    def rebase(regs, delta):
        for r in regs:
            s.e(f"v_add_u32 v{r}, {delta}, v{r}" if delta > 0 else f"v_subrev_u32 v{r}, {-delta}, v{r}")
    def tr(ar, off, d2, **kw):
        r = ring()
        s.rd(f"ds_read_b64_tr_b16 {R('a', r, 2)}, v{ar} offset:{off}", **kw)
        s.rd(f"ds_read_b64_tr_b16 {R('a', r+2, 2)}, v{ar} offset:{off+d2}", **kw)
        return R('a', r, 4)
    def rd128(ar, off, dst=None, **kw):
        if dst is None: dst = R('a', ring(), 4)
        s.rd(f"ds_read_b128 {dst}, v{ar} offset:{off}", **kw)
        return dst
    def mf(acc, a, b, first): s.mf(f"{MF} {acc}, {a}, {b}, {'0' if first else acc}")

    def qconv(src, j):
        for q in range(16): s.e(f"v_mul_f32 v{src+q}, {sC}, v{src+q}")
        for q in range(8): s.e(f"v_cvt_pk_bf16_f32 v{src+2*q}, v{src+2*q}, v{src+2*q+1}")
        for q in range(8): s.e(f"v_accvgpr_write_b32 a{8*j+q}, v{src+2*q}")
    def pack_write(src, off, ab, bb):
        for q in range(8): s.e(f"v_cvt_pk_bf16_f32 v{src+q}, v{src+2*q}, v{src+2*q+1}")
        for half in range(2):
            s.ds(f"ds_write_b128 v37, {R('v', src+4*half, 4)} offset:{off + half*1024}", cost=OPT['wc'], ab=ab, bb=bb)
    JORD = [0, 4, 1, 2, 3, 5, 6, 7]
    trb = 0
    gx = [float(OPT['k0']), 0]
    def gpace(e0):
        while True:
            gx[0] = max(gx[0], e0)
            x = int(gx[0]); gx[1] += 1
            gx[0] += (OPT['kp'] if gx[1] + OPT['kpre'] < OPT['ksw'] else OPT['kp2']) / 10
            yield dict(early=x, dl=x + 2)
    kpc = gpace(0)
    kq = [(t, dict(a, **next(kpc))) for t, a in KL]
    def merged(L, upto):
        M = list(L)
        while kq and kq[0][1]['early'] < upto: M.append(kq.pop(0))
        M.sort(key=lambda x: x[1]['early'])
        issue(M)
    for i in range(7):
        p0 = s.nmf
        slot = (i % 3) * 32768; xs = (i % 3) * 20480
        RB(f"RA{i}")
        if i >= 1: WB(f"WA{i}", p0)
        L = []
        if i <= 4:
            pc = pace(p0 + (1 if i else -1), OPT['dp'])
            L = [(t, dict(a, **next(pc))) for t, a in dma_stage(i + 2, ab=(f"WA{i}" if i else None))]
        merged(L, p0 + 40 if i < 6 else 10**9)
        if i == 5: stage_write(0, 0, 'a', 'WA5', p0)
        if i == 6: stage_write(1, 1, 'b', 'WA6', p0 - OPT['w0'] + 2)
        want = slot & 0x10000
        if want != trb: rebase(range(12, 16), want - trb); trb = want
        kw = dict(ab=f"RA{i}", bb=(f"WA{i+1}" if i < 6 else "WS0"))
        def step(j, T, newx):
            xb = B(10) + 8 * T
            if newx: rd128(16 + T, xs, R('v', xb, 4), **kw)
            a = tr(12 + (j & 3), slot - trb + (j >> 2) * 256 + T * 8192, 2048, **kw)
            mf(R('v', B(j), 16), a, R('v', xb, 4), i == 0 and T == 0)
            if j in (0, 4):
                if newx: rd128(20 + T, xs, R('v', xb + 4, 4), **kw)
                mf(R('v', B(8 + (j >> 2)), 16), a, R('v', xb + 4, 4), i == 0 and T == 0)
        if i < 6:
            for T in range(4):
                for j in JORD: step(j, T, j == 0)
        else:
            for j in range(8):
                for T in range(4): step(j, T, j == 0)
                if OPT['dump'] == 'Q': continue
                if j in (0, 4):
                    sh = B(8 + (j >> 2))
                    for q in range(16): s.e(f"v_mul_f32 v{sh+q}, {sC}, v{sh+q}")
                    pack_write(sh, 16384 + (j >> 2) * 8192, 'WA6', f"RS{j>>2}")
                qconv(B(j), j)
    dump('Q', [f"v{r}" for r in range(B(0), B(10))])
    s.es(f"""
    v_lshrrev_b32 v42, 4, v0
    v_lshlrev_b32 v3, 2, v42
    v_and_b32 v2, 15, v0
    v_xor_b32 v2, v2, v3
    v_lshlrev_b32 v2, 4, v2
    v_lshl_add_u32 v2, v42, 9, v2
    v_add_u32 v3, 1024, v2
    v_add_u32 v4, 2048, v2
    v_add_u32 v5, 3072, v2
    v_lshl_add_u32 v45, v47, 6, v46
    v_lshl_add_u32 v45, v43, 8, v45
    s_lshl_b32 {sT0}, {sW}, 6
    s_add_u32 {sT0}, {sT0}, 65536
    v_xor_b32 v12, {sT0}, v45
    v_xor_b32 v13, 64, v12
    v_xor_b32 v14, 0x80, v12
    v_xor_b32 v15, 0xc0, v12
    """)

    SLOT = {0: 'a', 1: 'b', 2: 'a', 3: 'b', 4: 'a', 5: 'b', 6: 'a', 7: 'c', 8: 'd', 9: 'b', 10: 'd', 11: 'b', 12: 'a', 13: 'c', 14: 'd', 15: 'b',
            16: 'a', 17: 'c', 18: 'd', 19: 'b', 20: 'a', 21: 'c', 22: 'd'}
    TB = [[12, 11, 8, 10, 0], [1, 2, 3, 4, 5], [6, 7, 9, 11, 0], [5, 2, 4, 7, 10]]
    hooks = []
    firsts = {vSP: True, vSS: True}
    def softmax(g, t):
        src = B(TB[g][t]); regs = [f"v{src+q}" for q in range(16)]
        mx, sm = (vMP, vSP) if t < 4 else (vMS, vSS)
        h = len(hooks); hooks.append((src, mx))
        s.add(Op('e', f"s_cbranch_vccnz L_fix{h}\nL_ret{h}:", cost=8, R=regs + ['vcc', f"v{mx}"], W=regs + [f"v{mx}"]))
        for q in range(16):
            s.e(f"v_exp_f32 v{src+q}, v{src+q}")
        for q in range(16):
            if firsts[sm]:
                if q == 0: continue
                s.e(f"v_add_f32 v{sm}, v{src}, v{src+1}"); firsts[sm] = False
            else: s.e(f"v_add_f32 v{sm}, v{sm}, v{src+q}")
        if t < 4:
            dst = B(TB[g][t & 2]) + 8 * (t & 1)
            for q in range(8): s.e(f"v_cvt_pk_bf16_f32 v{dst+q}, v{src+2*q}, v{src+2*q+1}")
        else:
            pack_write(src, g * 8192, ['RS0', 'RS0', 'WS7', 'WS8'][g], f"RS{8+g}")
    def Pfrag(g, ks): return R('v', B(TB[g][(ks >> 1) & 2]) + 4 * (ks & 3), 4)
    kb = 32768
    vp = OPT['vp']
    for n in range(8):
        p0 = s.nmf
        g, dh = n >> 1, n & 1
        RB(f"RS{n}")
        if n != 6: WB(f"WS{n}", p0)
        if n == 0: issue(dma_tile(7, 'c', ab='WS0') + dma_tile(8, 'd', ab='WS0'), gpace(p0 + 1))
        if 1 <= n <= 5: stage_write(n + 1, n + 1, SLOT[n + 1], f"WS{n}", p0)
        if 1 <= n <= 3: issue(stage_load([(8 + n, n + 1)]), gpace(p0 + OPT['w0'] + 6))
        if n == 5: rebase([7], 32768); wbase[0] = 65536
        if n == 7: issue(dma_tile(12, 'a', ab='WS7'), gpace(p0 + 1))
        off0 = SL[SLOT[n]] - kb
        if not 0 <= off0 < 65536 - 32767:
            rebase(range(24, 36), off0); kb += off0; off0 = 0
        kw = dict(ab=f"RS{n}", bb=(f"WS{n+1}" if n != 5 else "RS7"))
        qkw = dict(ab=f"RS{n}", bb=(f"WS{n+1}" if n >= 6 else None))
        def step(t, ks):
            acc = R('v', B(TB[g][t]), 16); first = (dh == 0 and ks == 0)
            if t < 4:
                a = rd128(24 + ks, off0 + t * 8192, **kw)
                mf(acc, a, R('a', 32 * dh + 4 * ks, 4), first)
            else:
                a = rd128(32 + (ks & 3), off0 + (ks >> 2) * 512, **kw)
                b = rd128(36, 16384 + dh * 8192 + ks * 1024, **qkw)
                mf(acc, a, b, first)
        if n < 2:
            for ks in range(8):
                for t in range(5): step(t, ks)
            if dh and OPT['dump'] != 'S0':
                for t in (4, 0, 1, 2, 3): softmax(g, t)
        else:
            for t in (4, 0, 1, 2, 3):
                for ks in range(8): step(t, ks)
                if dh: softmax(g, t)
        if n == 1: dump('S0', [f"v{B(b)+q}" for b in TB[0] for q in range(16)])
    dump('P', [f"v{B(TB[g][t])+q}" for g in range(4) for t in (0, 2) for q in range(16)] + [f"v{vSP}", f"v{vSS}"])
    s.es(f"s_mul_i32 {sT0}, {sW}, {8192+64}\nv_xor_b32 v16, {sT0}, v45")
    for jj in range(4):
        for t in range(4):
            if jj or t: s.e(f"v_xor_b32 v{16+4*jj+t}, {jj*8192+t*64}, v16")
    s.es(f"""
    v_lshrrev_b32 v32, 1, v47
    v_lshl_add_u32 v32, v32, 6, v46
    v_lshl_add_u32 v32, v43, 7, v32
    s_and_b32 {sT1}, {sW}, 1
    s_lshl_b32 {sT1}, {sT1}, 6
    s_lshl_b32 {sT0}, {sW}, 12
    s_add_u32 {sT0}, {sT0}, {sT1}
    s_add_u32 {sT0}, {sT0}, {SL['d']}
    v_xor_b32 v32, {sT0}, v32
    v_xor_b32 v33, 64, v32
    v_xor_b32 v34, 4096, v32
    v_xor_b32 v35, {4096+64}, v32
    v_lshrrev_b32 v42, 4, v0
    v_and_b32 v42, 1, v42
    v_lshlrev_b32 v42, 2, v42
    v_and_b32 v8, 7, v0
    v_xor_b32 v8, v8, v42
    v_lshlrev_b32 v8, 4, v8
    v_lshrrev_b32 v42, 3, v0
    v_mul_u32_u24 v42, 896, v42
    v_add_u32 v8, v8, v42
    v_add_u32 v9, 6144, v8
    v_add_u32 v10, 12288, v8
    v_add_u32 v11, 18432, v8
    """)
    s.es(f"""
    v_mov_b32 v42, v{vSP}
    v_mov_b32 v43, v{vSS}
    v_permlane32_swap_b32 v42, v{vSP}
    v_permlane32_swap_b32 v43, v{vSS}
    v_add_f32 v{vSP}, v42, v{vSP}
    v_add_f32 v{vSS}, v43, v{vSS}
    v_subrev_u32 v42, {sLO}, v{vSP}
    v_mov_b32 v43, 0x7f800000
    v_cmp_le_u32 vcc, {sRNG}, v42
    v_cndmask_b32 v{vSS}, v{vSS}, v43, vcc
    v_rcp_f32 v{vSP}, v{vSP}
    v_lshlrev_b32 v6, 2, v0
    v_add_u32 v6, {S4}, v6
    s_lshl_b32 {sT0}, {sW}, 8
    v_add_u32 v42, {sT0}, v6
    """)
    s.ds(f"ds_write_b32 v42, v{vSS}", ab='WS13', bb='RS14')

    OA = [[R('a', 16 * j, 16) for j in range(4)] + [R('a', 192, 16)], [R('v', B(b), 16) for b in (0, 11, 2, 7, 10)]]
    tmpc = [0]
    def oconv_a(abase, dst, inv):
        for q in range(8):
            t = 42 + 2 * (tmpc[0] % 3); tmpc[0] += 1
            s.es(f"""v_accvgpr_read_b32 v{t}, a{abase+2*q}
            v_accvgpr_read_b32 v{t+1}, a{abase+2*q+1}
            v_mul_f32 v{t}, v{t}, v{inv}
            v_mul_f32 v{t+1}, v{t+1}, v{inv}
            v_cvt_pk_bf16_f32 v{dst+q}, v{t}, v{t+1}""")
    def oconv_v(src, dst, inv):
        for q in range(16): s.e(f"v_mul_f32 v{src+q}, v{src+q}, v{inv}")
        if dst is not None:
            for q in range(8): s.e(f"v_cvt_pk_bf16_f32 v{dst+q}, v{src+2*q}, v{src+2*q+1}")
    vb = 65536
    for n in range(8, 16):
        p0 = s.nmf
        dh, g = (n - 8) >> 2, (n - 8) & 3
        RB(f"RS{n}")
        if n != 11: WB(f"WS{n}", p0)
        if n == 8:
            stage_write(9, 2, 'b', 'RS7', p0)
            issue(dma_tile(13, 'c', ab='WS8') + stage_load([(14, 5)]), gpace(p0 + 1))
        if n == 9: stage_write(10, 3, 'd', 'WS9', p0)
        if n == 10: stage_write(11, 4, 'b', 'WS10', p0)
        if n == 12:
            issue(dma_tile(15, 'b', ab='WS12'), gpace(p0 + 1))
            s.es(f"""
            v_lshrrev_b32 v6, 4, v0
            v_mul_u32_u24 v6, {896-512}, v6
            v_add_u32 v2, v2, v6
            v_add_u32 v3, 2560, v2
            v_add_u32 v4, 5120, v2
            v_add_u32 v5, 7680, v2
            v_lshlrev_b32 v6, 2, v0
            v_add_u32 v6, {S4}, v6""")
        if n == 13: stage_write(14, 5, 'd', 'RS12', p0)
        if n >= 13: issue(dma_tile(n + 3, SLOT[n + 3], ab=f"WS{n}"), pace(p0 + 1, vp))
        if n == 14:
            for w_ in range(4): s.ds(f"ds_read_b32 v{44+w_}, v6 offset:{w_*256}", ab='RS14')
            s.es(f"""v_add_f32 v44, v44, v45
            v_add_f32 v46, v46, v47
            v_add_f32 v{vSS}, v44, v46
            v_subrev_u32 v44, {sLO}, v{vSS}""")
            s.add(Op('e', f"v_cmp_le_u32 vcc, {sRNG}, v44\ns_nop 1\ns_cbranch_vccnz L_slow\nL_checked:", cost=16, R=[f"v{vMP}", f"v{vMS}"], W=['#chk'], ab='RS14', bb='RS15'))
            s.e(f"v_rcp_f32 v{vSS}, v{vSS}")
            s.es(f"v_xor_b32 v6, 0x800, v37\nv_xor_b32 v40, 0x1000, v37\nv_xor_b32 v41, 0x1800, v37")
            oconv_a(192, B(1), vSS)
            for half in range(2):
                s.ds(f"ds_write_b128 v37, {R('v', B(1)+4*half, 4)} offset:{8192 + half*1024}", cost=OPT['wc'], ab='WS14', bb='RS16')
        off0 = SL[SLOT[n]] - vb
        if not 0 <= off0 <= 32768:
            nb = SL[SLOT[n]] & 0x10000
            rebase(range(12, 16), nb - vb); vb = nb; off0 = SL[SLOT[n]] - vb
        kw = dict(ab=f"RS{n}", bb=(f"WS{n+1}" if n != 10 else "RS12"))
        pkw = dict(ab=f"RS{n}", bb=(f"WS{n+1}" if n >= 12 else None))
        for j in range(4):
            for ks in range(8):
                a = tr(12 + j, off0 + ks * 4096, 1024, **kw)
                mf(OA[dh][j], a, Pfrag(g, ks), g == 0 and ks == 0)
                if j == 0:
                    b = rd128(36, g * 8192 + ks * 1024, **pkw)
                    mf(OA[dh][4], a, b, g == 0 and ks == 0)
            if n == 15 and OPT['dump'] != 'O':
                if j == 0:
                    oconv_v(B(10), None, vSS)
                    pack_write(B(10), 16384, 'WS15', 'RS17')
                oconv_v(B((0, 11, 2, 7)[j]), B((0, 2)[j >> 1]) + 8 * (j & 1), vSP)
        if n == 12:
            for j in range(4): oconv_a(16 * j, B((12, 8)[j >> 1]) + 8 * (j & 1), vSP)
    dump('O', [f"a{r}" for r in range(64)] + [f"v{B(b)+q}" for b in (0, 11, 2, 7) for q in range(16)] + [f"a{r}" for r in range(192, 208)]
         + [f"v{B(10)+q}" for q in range(16)] + [f"v{vSP}", f"v{vSS}"])

    s.es(f"v_xor_b32 v12, 8192, v32\nv_xor_b32 v13, 8192, v33\nv_xor_b32 v14, 8192, v34\nv_xor_b32 v15, 8192, v35")
    s.es(f"s_lshr_b32 {sT0}, {sW}, 1\ns_lshl_b32 {sT0}, {sT0}, 30\nv_add_u32 v7, {sT0}, v1")
    LA = [32, 33, 34, 35, 12, 13, 14, 15]
    OB = [[1, 3, 6, 9, 5], [4, 11, 7, 1, 10], [5, 6, 9, 4, 3], [10, 7, None, None, 11]]
    def Ofrag(dh, jj, half): return R('v', B(((12, 8), (0, 2))[dh][jj >> 1]) + 8 * (jj & 1) + 4 * half, 4)
    def Osh(dh, jj, half): return R('a', 96 + 32 * dh + 8 * jj + 4 * half, 4)
    QA = [37, 6, 40, 41]
    def store(g, t):
        src = B(OB[g][t])
        for q in range(8): s.e(f"v_cvt_pk_bf16_f32 v{src+q}, v{src+2*q}, v{src+2*q+1}")
        for half in range(2):
            if g < 3: sb = sST + t; off = g * 4 * 32768; vo = 1
            else: sb = sST + (5, 6, 0, 0, 7)[t]; off = 0; vo = 7 if t == 4 else 1
            s.vm(f"s_add_u32 {sS}, s{sb}, {off + half*16384}\nbuffer_store_dwordx4 {R('v', src+4*half, 4)}, v{vo}, {SWS}, {sS} offen {OPT['st']}",
                 cost=20, R=['#chk'], dl=s.nmf + 6)
    wb = 0
    for n in range(16, 23):
        p0 = s.nmf
        g, dh = (n - 16) >> 1, (n - 16) & 1
        RB(f"RS{n}")
        if n <= 19:
            WB(f"WS{n}", p0)
            issue(dma_tile(n + 3, SLOT[n + 3], ab=f"WS{n}"), pace(p0 + 1, vp))
        kw = dict(ab=f"RS{n}", bb=(f"WS{n+1}" if n <= 18 else None))
        if n < 22:
            nb = SL[SLOT[n]] & 0x10000
            if nb != wb: rebase(range(16, 32), nb - wb); wb = nb
            off0 = SL[SLOT[n]] - wb
            for t in range(4):
                for jj in range(4):
                    for half in range(2):
                        first = dh == 0 and jj == 0 and half == 0
                        a = tr(16 + 4 * jj + t, off0 + half * 4096, 1024, **kw)
                        mf(R('v', B(OB[g][t]), 16), a, Ofrag(dh, jj, half), first)
                        if t == 0:
                            if g == 0: rd128(QA[jj], 8192 + dh * 8192 + half * 1024, Osh(dh, jj, half), ab=f"RS{n}")
                            mf(R('v', B(OB[g][4]), 16), a, Osh(dh, jj, half), first)
                if dh:
                    store(g, t)
                    if t == 0: store(g, 4)
        else:
            for t in range(2):
                for d2 in range(2):
                    for jj in range(4):
                        for half in range(2):
                            first = d2 == 0 and jj == 0 and half == 0
                            a = tr(LA[2 * jj + t], d2 * 16384 + half * 2048, 512, **kw)
                            mf(R('v', B(OB[3][t]), 16), a, Ofrag(d2, jj, half), first)
                            if t == 0: mf(R('v', B(OB[3][4]), 16), a, Osh(d2, jj, half), first)
                store(3, t)
                if t == 0: store(3, 4)
    s.build()
    s.run(budget=OPT['bud'], maxlg=OPT['maxlg'], delay=OPT['delay'], dsage=OPT['dsage'], maxds=OPT['maxds'])
    if OPT['ts']:
        stamp()
        k.wait(vm0=True)
        stamp()
        e(f"""s_add_u32 s8, s4, 0x0ff00000
        s_addc_u32 s9, s5, 0
        s_mov_b32 s10, 0x100000
        s_cmp_lg_u32 {sW}, 0
        s_cbranch_scc1 L_exit
        s_mov_b64 exec, 1
        s_lshl_b32 s3, s2, 8
        v_mov_b32 v1, s3
        v_mov_b32 v2, {nst[0]}
        v_mov_b32 v3, 0
        buffer_store_dwordx2 v[2:3], v1, s[8:11], 0 offen""")
        for j in range(nst[0]):
            e(f"v_mov_b32 v4, s{sTS+2*j}\nv_mov_b32 v5, s{sTS+1+2*j}\nbuffer_store_dwordx2 v[4:5], v1, s[8:11], 0 offen offset:{8+8*j}\ns_nop 1")
        e("s_waitcnt vmcnt(0)")
    e("L_exit:\ns_endpgm")
    for h, (src, mx) in enumerate(hooks):
        e(f"L_fix{h}:\ns_nop 7\ns_nop 7\ns_cmp_eq_u32 {sPASS}, 2\ns_cbranch_scc1 L_sub{h}")
        for q in range(0, 16, 2): e(f"v_max3_f32 v{mx}, v{src+q}, v{src+q+1}, v{mx}")
        e(f"s_branch L_ret{h}\nL_sub{h}:")
        for q in range(16): e(f"v_sub_f32 v{src+q}, v{src+q}, v{mx}")
        e(f"s_branch L_ret{h}")
    e(f"""L_slow:
    s_cmp_eq_u32 {sPASS}, 2
    s_cbranch_scc1 L_checked
    s_nop 7
    s_nop 7
    s_waitcnt vmcnt(0) lgkmcnt(0)
    s_barrier
    s_mov_b64 vcc, -1
    s_cmp_eq_u32 {sPASS}, 1
    s_cbranch_scc1 L_slow2
    s_mov_b32 {sPASS}, 1
    s_mov_b32 {sRNG}, 0
    v_mov_b32 v{vMP}, 0xff800000
    v_mov_b32 v{vMS}, 0xff800000
    s_branch L_start
    L_slow2:
    s_mov_b32 {sPASS}, 2
    s_mov_b32 {sLO}, 0
    s_mov_b32 {sRNG}, -1
    v_mov_b32 v42, v{vMP}
    v_mov_b32 v43, v{vMS}
    s_nop 1
    v_permlane32_swap_b32 v42, v{vMP}
    v_permlane32_swap_b32 v43, v{vMS}
    v_lshlrev_b32 v44, 2, v0
    s_lshl_b32 {sT0}, {sW}, 8
    v_max_f32 v{vMP}, v42, v{vMP}
    v_max_f32 v{vMS}, v43, v{vMS}
    v_add_u32 v45, {sT0}, v44
    ds_write_b32 v45, v{vMS}
    s_waitcnt lgkmcnt(0)
    s_barrier
    ds_read_b32 v42, v44
    ds_read_b32 v43, v44 offset:256
    ds_read_b32 v45, v44 offset:512
    ds_read_b32 v46, v44 offset:768
    s_waitcnt lgkmcnt(0)
    v_max3_f32 v{vMS}, v42, v43, v45
    v_max_f32 v{vMS}, v{vMS}, v46
    s_barrier
    s_branch L_start""")
    txt, added = k.text()
    est = s.est
    per = [sum(est[i:i + 40]) for i in range(0, len(est), 40)]
    print(f"main: {len(k.L)} lines, nops {added}, forced {s.forced}, mfma {len(est)}, est {sum(est)}; per40: {per}", file=sys.stderr)
    if OPT['verbose']:
        print("use:", s.use, file=sys.stderr)
        print("bars:", {n: o.gap for n, o in s.bars.items()}, file=sys.stderr)
    return txt

if __name__ == "__main__":
    out = sys.argv[1]
    sys.argv = sys.argv[:2] + ([f"ts={OPT['ts']}"] if OPT['ts'] else []) + ([f"diag={OPT['diag']}"] if OPT['diag'] else [])
    import gen
    m = main_kernel()
    L = [("mha_main_kernel", 256, 256, 163840), ("mha_reduce_kernel", 560, 256, 0)]
    KS = [("mha_main_kernel", m, 512, 256), ("mha_reduce_kernel", gen.reduce_kernel(), 80, 80)]
    if OPT['diag']:
        L.append(("mha_diag_kernel", 1, 64, 0)); KS.append(("mha_diag_kernel", gen.diag_kernel(), 64, 64))
    write_file(out, HEADER, L, KS)
```

```python
import sys, math
sys.path.insert(0, "work")
from asmlib import K, write_file
from eng import Eng, Step, Fill, uid

OPT = dict(arr='N', ts=0, dump='', nt='nt', delay=2, maxlg=13, diag='', pre='', red=0, st='', ld='sc1', pf='', pfs=128, pfm='', rot=1, dA=2, dS=2, dP=3, dO=3, dc=16)
for a in sys.argv[2:]:
    kk, vv = a.split('=')
    OPT[kk] = int(vv) if vv.lstrip('-').isdigit() else vv

HEADER = "".join(l for l in open("standalone__mha_block_cached__near_ridge.s.ref").read().splitlines(True)[:11])
MF = "v_mfma_f32_32x32x16_bf16"
def R(p, lo, n): return f"{p}[{lo}:{lo+n-1}]"
SX, SK, SV, SWQ, SWO, SWS = "s[8:11]", "s[12:15]", "s[16:19]", "s[20:23]", "s[24:27]", "s[28:31]"
sW, sB, sH, sKC = "s32", "s33", "s34", "s35"
sT0, sT1, sT2 = "s36", "s37", "s38"
sC = "s39"
sWQO, sXO, sM8, sM4, sKO, sWOO, sWLO = "s40", "s41", "s42", "s43", "s44", "s45", "s46"
sST = 47
sTS = 60
XB = 96 * 1024
S4 = 128 * 1024
SLOT = lambda n: ((n + 1) % 4) * 32768

def main_kernel():
    k = K(); e = k.e
    eng = Eng(k)
    nst = [0]
    def stamp():
        if OPT['ts']:
            k.wait(lg0=True)
            e(f"{'s_memtime' if OPT['ts'] == 2 else 's_memrealtime'} s[{sTS+2*nst[0]}:{sTS+1+2*nst[0]}]\ns_waitcnt lgkmcnt(0)")
            nst[0] += 1
    def dump(name, regs):
        if OPT['dump'] != name: return
        eng.flush_dma()
        e("s_nop 7\ns_nop 7\ns_waitcnt vmcnt(0) lgkmcnt(0)")
        e(f"s_mul_i32 {sT0}, {sB}, 64\ns_lshl_b32 {sT1}, {sH}, 2\ns_add_u32 {sT0}, {sT0}, {sT1}\ns_add_u32 {sT0}, {sT0}, {sW}\ns_lshl_b32 {sT0}, {sT0}, 17")
        e("s_add_u32 s56, s4, 0x4000000\ns_addc_u32 s57, s5, 0\ns_mov_b32 s58, 0x8000000\ns_mov_b32 s59, 0x00020000")
        e("v_lshlrev_b32 v0, 2, v7")
        for i, r in enumerate(regs):
            e(f"buffer_store_dword {r}, v0, s[56:59], {sT0} offen\ns_add_u32 {sT0}, {sT0}, 256")
            if i % 32 == 31: e("s_waitcnt vmcnt(0)")
        e("s_waitcnt vmcnt(0)\ns_branch L_exit")

    if OPT['ts']:
        e(f"{'s_memtime' if OPT['ts'] == 2 else 's_memrealtime'} s[{sTS}:{sTS+1}]"); nst[0] = 1
    e(f"""
    s_cmp_ge_u32 s2, 256
    s_cbranch_scc1 L_exit
    s_load_dwordx2 s[8:9], s[0:1], 0
    s_load_dwordx2 s[12:13], s[0:1], 8
    s_load_dwordx2 s[16:17], s[0:1], 16
    s_load_dwordx2 s[20:21], s[0:1], 24
    s_load_dwordx2 s[24:25], s[0:1], 32
    s_load_dwordx2 s[4:5], s[0:1], 56
    v_lshrrev_b32 v1, 6, v0
    v_and_b32 v7, 63, v0
    v_readfirstlane_b32 {sW}, v1
    s_and_b32 {sT0}, s2, 7
    s_lshr_b32 {sT1}, s2, 3
    """)
    arr = OPT['arr']
    if arr == 'N':
        e(f"""s_lshr_b32 {sB}, {sT0}, 1
        s_lshl_b32 {sB}, {sB}, 2
        s_lshr_b32 {sT2}, {sT1}, 3
        s_add_u32 {sB}, {sB}, {sT2}
        s_and_b32 {sH}, {sT0}, 1
        s_lshl_b32 {sH}, {sH}, 3
        s_and_b32 {sT2}, {sT1}, 7
        s_add_u32 {sH}, {sH}, {sT2}""")
    elif arr == 'L':
        e(f"""s_lshl_b32 {sB}, {sT0}, 1
        s_lshr_b32 {sT2}, {sT1}, 4
        s_add_u32 {sB}, {sB}, {sT2}
        s_and_b32 {sH}, {sT1}, 15""")
    elif arr == 'M':
        e(f"""s_lshr_b32 {sB}, {sT0}, 2
        s_lshl_b32 {sB}, {sB}, 3
        s_lshr_b32 {sT2}, {sT1}, 2
        s_add_u32 {sB}, {sB}, {sT2}
        s_and_b32 {sH}, {sT0}, 3
        s_lshl_b32 {sH}, {sH}, 2
        s_and_b32 {sT2}, {sT1}, 3
        s_add_u32 {sH}, {sH}, {sT2}""")
    e(f"""s_lshl_b32 {sT0}, {sH}, 1
    s_add_u32 {sT0}, {sT0}, {sB}
    s_mul_i32 {sT1}, {sT0}, 37
    s_lshr_b32 {sT1}, {sT1}, 8
    s_mul_i32 {sT1}, {sT1}, 7
    s_sub_u32 {sKC}, {sT0}, {sT1}
    {'' if OPT['rot'] else f's_mov_b32 {sKC}, 0'}
    s_mov_b32 s10, 143360
    s_mov_b32 s11, 0x00020000
    s_mov_b32 s14, 262144
    s_mov_b32 s15, 0x00020000
    s_mov_b32 s18, 262144
    s_mov_b32 s19, 0x00020000
    s_mov_b32 s23, 0x00020000
    s_mov_b32 s26, 229376
    s_mov_b32 s27, 0x00020000
    s_mov_b32 s30, {140*16384}
    s_mov_b32 s31, 0x00020000
    s_mov_b32 {sC}, 0x{f2u(math.log2(math.e)/16):08x}
    s_lshl_b32 {sM8}, {sW}, 13
    s_lshl_b32 {sM4}, {sW}, 12
    s_lshl_b32 {sWQO}, {sW}, 17
    s_mul_i32 {sXO}, {sW}, 7168
    """)
    e(f"""
    v_lshrrev_b32 v14, 5, v7                 ; p>>5
    v_and_b32 v15, 31, v7                    ; p&31
    v_lshlrev_b32 v1, 2, v14
    v_xor_b32 v1, v1, v15                    ; (p&31)^((p>>5)<<2)
    v_lshlrev_b32 v1, 4, v1
    v_lshl_add_u32 v2, v14, 13, v1
    v_xor_b32 v3, 0x80, v2
    v_add_u32 v3, 15360, v3                  ; ii=1
    v_add_u32 v4, 30720, v2                  ; ii=2
    v_add_u32 v5, 30720, v3                  ; ii=3
    v_lshl_add_u32 v12, v14, 9, v1
    v_xor_b32 v13, 0x80, v12
    s_and_b32 {sT2}, {sW}, 1
    s_lshl_b32 {sT0}, {sT2}, 2
    v_lshrrev_b32 v6, 4, v7
    v_xor_b32 v6, {sT0}, v6
    v_and_b32 v1, 7, v7
    v_xor_b32 v6, v6, v1
    v_lshlrev_b32 v6, 4, v6
    v_lshrrev_b32 v1, 3, v7
    v_mul_u32_u24 v1, 896, v1
    v_add_u32 v6, v6, v1                     ; x voff
    s_waitcnt lgkmcnt(0)
    s_mul_i32 {sT0}, {sB}, 143360
    s_add_u32 s8, s8, {sT0}
    s_addc_u32 s9, s9, 0
    s_lshl_b32 {sT0}, {sH}, 9
    s_add_u32 s20, s20, {sT0}
    s_addc_u32 s21, s21, 0
    s_sub_u32 s22, 3670016, {sT0}
    """)
    def dma_stage(i):
        G = []
        tag = f"A{i}"
        slot = (i % 3) * 32768
        xs = XB + (i % 3) * 20480
        for u in range(2):
            for ii in range(4):
                g = []
                if ii == 0:
                    if u == 0:
                        g.append(Fill('e', f"s_lshl_b32 {sT0}, {sKC}, 19\ns_add_u32 {sT0}, {sT0}, {sWQO}"))
                    else:
                        g.append(Fill('e', f"s_add_u32 {sT0}, {sT0}, 65536"))
                    g.append(Fill('e', f"s_add_u32 m0, {sM8}, {slot + u * 4096}"))
                g.append(Fill('vm', f"buffer_load_dwordx4 v{2+ii}, {SWQ}, {sT0} offen offset:{ii*1024} lds", tag=tag))
                G.append(g)
        for u in range(5):
            g = []
            if u == 0:
                g.append(Fill('e', f"s_lshl_b32 {sT1}, {sKC}, 7\ns_add_u32 {sT1}, {sT1}, {sXO}\ns_lshl_b32 {sT2}, {sW}, 10"))
            else:
                g.append(Fill('e', f"s_add_u32 {sT1}, {sT1}, {4*7168}"))
            g.append(Fill('e', f"s_add_u32 m0, {sT2}, {xs + u * 4096}"))
            g.append(Fill('vm', f"buffer_load_dwordx4 v6, {SX}, {sT1} offen lds", tag=tag))
            if u == 4:
                g.append(Fill('e', f"s_add_u32 {sKC}, {sKC}, 1\ns_cmp_eq_u32 {sKC}, 7\ns_cselect_b32 {sKC}, 0, {sKC}"))
            G.append(g)
        return G[8:10] + G[0:4] + G[10:13] + G[4:8] if False else G
    def dma_tile(n):
        G = []
        tag = f"T{n}"
        slot = SLOT(n)
        for u in range(2):
            for ii in range(4):
                g = []
                if n < 16:
                    blk = n % 8
                    if ii == 0:
                        g.append(Fill('e', f"s_add_u32 {sKO}, {sM4}, {blk*32768 + u*16384}\ns_add_u32 m0, {sM4}, {slot + u*16384}"))
                    vo = f"v{8+ii}" if n < 8 else f"v{12+(ii&1)}"
                    srd = SK if n < 8 else SV
                    g.append(Fill('vm', f"buffer_load_dwordx4 {vo}, {srd}, {sKO} offen offset:{ii*1024} {OPT['nt']} lds", tag=tag))
                elif n < 22:
                    gi, dh = (n - 16) // 2, (n - 16) % 2
                    if ii == 0:
                        g.append(Fill('e', f"s_add_u32 {sKO}, {sWOO}, {(dh*128 + 16*u)*896 + gi*256}\ns_add_u32 m0, {sM8}, {slot + u*4096}"))
                    g.append(Fill('vm', f"buffer_load_dwordx4 v{2+ii}, {SWO}, {sKO} offen offset:{ii*1024} lds", tag=tag))
                else:
                    if ii == 0:
                        g.append(Fill('e', f"s_add_u32 {sKO}, {sWLO}, {32*u*896 + 768}\ns_add_u32 m0, {sM8}, {slot + u*4096}"))
                    g.append(Fill('vm', f"buffer_load_dwordx4 v{8+ii}, {SWO}, {sKO} offen offset:{ii*1024} lds", tag=tag))
                G.append(g)
        return G
    PF = {}
    if OPT['pf']:
        for it in str(OPT['pf']).split(','):
            a_, b_ = it.split(':'); PF.setdefault(a_, []).append(int(b_))
    def touch(ev):
        G = []
        for t in PF.get(ev, []):
            srd = SK if t < 8 else SV
            for u in range(128 // OPT['pfs']):
                G.append([Fill('e', f"s_add_u32 s55, {sM8}, {(t % 8) * 32768 + u * 4096}"),
                          Fill('vm', f"buffer_load_dword v58, v59, {srd}, s55 offen {OPT['pfm']}", tag='pf')])
        return G
    eng.dma += dma_stage(0); eng.flush_dma()
    e(f"""
    s_lshl_b32 {sT0}, {sB}, 4
    s_add_u32 {sT0}, {sT0}, {sH}
    s_lshl_b32 {sT0}, {sT0}, 18
    s_add_u32 s12, s12, {sT0}
    s_addc_u32 s13, s13, 0
    s_add_u32 s16, s16, {sT0}
    s_addc_u32 s17, s17, 0
    s_mul_i32 {sT0}, {sH}, 229376
    s_add_u32 s24, s24, {sT0}
    s_addc_u32 s25, s25, 0
    s_mul_i32 {sT0}, {sB}, {140*16384}
    s_lshl_b32 {sT1}, {sH}, 10
    s_add_u32 {sT0}, {sT0}, {sT1}
    s_add_u32 s28, s4, {sT0}
    s_addc_u32 s29, s5, 0
    s_mul_i32 {sWOO}, {sW}, {32*896}
    s_mul_i32 {sWLO}, {sW}, {64*896}
    """)
    e(f"v_mul_u32_u24 v59, {OPT['pfs']}, v7")
    eng.dma += dma_stage(1) + dma_stage(2) + touch('p'); eng.flush_dma()
    e(f"""
    s_and_b32 {sT2}, {sW}, 1
    s_lshl_b32 {sT0}, {sT2}, 3
    v_xor_b32 v1, v14, v15
    v_xor_b32 v1, {sT0}, v1
    v_lshlrev_b32 v1, 4, v1
    v_lshl_add_u32 v8, v14, 9, v1
    v_xor_b32 v9, 32, v8
    v_xor_b32 v10, 64, v8
    v_xor_b32 v11, 0x60, v8
    """)
    e(f"""
    v_bfe_u32 v63, v7, 2, 2                  ; r
    v_lshl_add_u32 v60, v14, 3, v63          ; 8hh+r
    v_bfe_u32 v1, v7, 4, 1
    v_lshlrev_b32 v62, 5, v1
    v_and_b32 v1, 1, v7
    v_lshl_add_u32 v62, v1, 4, v62
    v_bfe_u32 v1, v7, 1, 1
    v_lshl_add_u32 v62, v1, 3, v62
    v_lshl_add_u32 v61, v63, 6, v62
    s_lshl_b32 {sT0}, {sW}, 6
    v_lshl_add_u32 v16, v60, 9, v61
    v_xor_b32 v16, {sT0}, v16
    v_xor_b32 v17, 64, v16
    v_xor_b32 v18, 0x80, v16
    v_xor_b32 v19, 0xc0, v16
    """)
    e(f"""
    v_bfe_u32 v1, v7, 1, 3
    v_xor_b32 v1, v1, v14
    v_lshlrev_b32 v1, 4, v1
    v_lshl_add_u32 v1, v15, 7, v1
    v_add_u32 v24, {XB + 128*128}, v1
    s_lshl_b32 {sT0}, {sW}, 12
    s_add_u32 {sT0}, {sT0}, {XB}
    v_add_u32 v20, {sT0}, v1
    v_xor_b32 v21, 32, v20
    v_xor_b32 v22, 64, v20
    v_xor_b32 v23, 0x60, v20
    v_xor_b32 v25, 32, v24
    v_xor_b32 v26, 64, v24
    v_xor_b32 v27, 0x60, v24
    v_lshlrev_b32 v1, 4, v7
    """)
    hi = dict(tr=0, k=0, wo=0)
    def toggle(which, regs, want):
        if hi[which] == want: return []
        hi[which] = want
        return [('e', f"v_xor_b32 v{r}, 0x10000, v{r}") for r in regs]
    def barrier(vmtags, after=None, barid=None, st=False):
        def f():
            if barid is not None: eng.flush_fill(bar=barid)
            eng.flush_dma()
            for t in vmtags: assert t in k.vm, t
            k.wait(vm=vmtags, lg0=True)
            e("s_barrier")
            if st: stamp()
            if after: after()
        return f

    JORD = [0, 4, 1, 2, 3, 5, 6, 7]
    steps = []
    ringc = [0]
    def ringA(base, n, p):
        r = base + 4 * (ringc[0] % n); ringc[0] += 1
        return r
    for i in range(7):
        slot = (i % 3) * 32768
        xs = (i % 3) * 20480
        def after(i=i):
            if 1 <= i <= 4: eng.dma += dma_stage(i + 2)
            if i == 5: eng.dma += dma_tile(0)
            if i == 6: eng.dma += dma_tile(1)
            eng.dma += touch(str(i))
        for T in range(4):
            xb = 40 + 8 * ((4 * i + T) % 2)
            for jn, j in enumerate(JORD):
                pre = []
                bar = None
                if T == 0 and jn == 0:
                    bar = barrier([f"A{i}"], after, st=(i in (0, 3)))
                    pre += toggle('tr', range(16, 20), slot >> 16)
                if jn == 0:
                    pre.append(('ds', f"ds_read_b128 {R('v', xb, 4)}, v{20+T} offset:{xs}"))
                r = ringA(224, 8, 'a')
                off = (slot & 0xffff) + (j >> 2) * 256 + T * 8192
                pre.append(('ds', f"ds_read_b64_tr_b16 {R('a', r, 2)}, v{16+(j&3)} offset:{off}"))
                pre.append(('ds', f"ds_read_b64_tr_b16 {R('a', r+2, 2)}, v{16+(j&3)} offset:{off+2048}"))
                acc = R('v', 64 + 16 * j, 16)
                first = (i == 0 and T == 0)
                steps.append(Step(f"{MF} {acc}, {R('a', r, 4)}, {R('v', xb, 4)}, {'0' if first else acc}", pre, bar))
                if j in (0, 4):
                    pre2 = [('ds', f"ds_read_b128 {R('v', xb+4, 4)}, v{24+T} offset:{xs}")] if j == 0 else []
                    acc = R('v', 192 + 16 * (j >> 2), 16)
                    steps.append(Step(f"{MF} {acc}, {R('a', r, 4)}, {R('v', xb+4, 4)}, {'0' if first else acc}", pre2))
    eng.run(steps, maxlg=OPT['maxlg'], delay=OPT['delay'], dma_cost=OPT['dc'], dma_every=OPT['dA'])
    eng.flush_dma()
    dump('Q', [f"v{r}" for r in range(64, 224)])
    e(f"s_lshl_b32 {sT0}, {sW}, 11\ns_add_u32 {sT0}, {sT0}, {S4}\nv_add_u32 v14, {sT0}, v1")
    for a in range(2):
        for half in range(2):
            src = 192 + 16 * a + 8 * half
            for q in range(4):
                e(f"v_cvt_pk_bf16_f32 v{src+q}, v{src+2*q}, v{src+2*q+1}")
            k.ds(f"ds_write_b128 v14, {R('v', src, 4)} offset:{a*8192 + half*1024}", 'qsh')
    e(f"""
    v_and_b32 v15, 0x13, v7
    v_bfe_u32 v20, v7, 2, 1
    v_lshl_or_b32 v15, v20, 3, v15
    v_bfe_u32 v20, v7, 3, 1
    v_lshl_or_b32 v15, v20, 2, v15           ; key
    v_lshrrev_b32 v20, 5, v7
    s_lshl_b32 {sT0}, {sW}, 2
    v_xor_b32 v20, {sT0}, v20
    v_and_b32 v21, 15, v15
    v_xor_b32 v20, v20, v21
    v_lshlrev_b32 v20, 4, v20
    v_lshl_add_u32 v20, v15, 9, v20
    s_and_b32 {sT0}, {sW}, 1
    s_lshl_b32 {sT0}, {sT0}, 14
    v_add_u32 v28, {sT0}, v20
    """)
    for v in range(1, 8):
        e(f"v_xor_b32 v{20+v}, {v*32}, v20\nv_xor_b32 v{28+v}, {v*32}, v28")
    for j in range(8):
        for q in range(8):
            src = 64 + 16 * j + 2 * q
            e(f"v_cvt_pk_bf16_f32 v{src}, v{src}, v{src+1}")
        for q in range(8):
            src = 64 + 16 * j + 2 * q
            e(f"v_accvgpr_write_b32 a{8*j+q}, v{src}")
    barrier(["T0"], None, st=True)()
    eng.dma += dma_tile(2) + dma_tile(3) + touch('k0')
    e("v_xor_b32 v15, 0x800, v14\nv_xor_b32 v56, 0x1000, v14\nv_xor_b32 v57, 0x1800, v14")
    qa = [14, 15, 56, 57]
    ext = {}
    for j in range(8):
        for half in range(2):
            t = uid('q')
            k.ds(f"ds_read_b128 {R('a', 64+8*j+4*half, 4)}, v{qa[j&3]} offset:{(j>>2)*8192 + half*1024}", t)
    k.wait(lg0=True)
    dump('Qf', [f"a{r}" for r in range(128)])

    def Sreg(t):
        if t < 2: return ('v', 224 + 16 * t)
        if t < 12: return ('v', 64 + 16 * (t - 2))
        return ('a', 128 + 16 * (t - 12))
    vMX, vMS = 60, 61
    def max_fill(p, base, dst, first, early, tmp):
        F = []
        if p == 'a':
            for q in range(0, 16, 2):
                F.append(Fill('e', f"v_accvgpr_read_b32 v{tmp}, a{base+q}", early=early))
                F.append(Fill('e', f"v_accvgpr_read_b32 v{tmp+1}, a{base+q+1}", early=early))
                if first and q == 0: F.append(Fill('e', f"v_max_f32 v{dst}, v{tmp}, v{tmp+1}", early=early))
                else: F.append(Fill('e', f"v_max3_f32 v{dst}, v{tmp}, v{tmp+1}, v{dst}", early=early))
        else:
            for q in range(0, 16, 2):
                if first and q == 0: F.append(Fill('e', f"v_max_f32 v{dst}, v{base}, v{base+1}", early=early))
                else: F.append(Fill('e', f"v_max3_f32 v{dst}, v{base+q}, v{base+q+1}, v{dst}", early=early))
        return F
    def phaseS(par):
        steps = []
        ringc[0] = 0
        for blk in range(8):
            slot = SLOT(blk)
            def after(blk=blk):
                eng.dma += dma_tile(blk + 3) + touch(f"k{blk}")
            tiles = [('p', 0), ('p', 1)]
            if (blk & 1) == par: tiles = [('s', 0)] + tiles
            firststep = True
            for kind, kt in tiles:
                if kind == 'p':
                    p, base = Sreg(2 * blk + kt); qb = 0; ab = 20; off0 = kt * 16384
                else:
                    p, base = 'a', 192 + 16 * (blk >> 1); qb = 64; ab = 28; off0 = 0
                acc = R(p, base, 16)
                for j in range(8):
                    for half in range(2):
                        pre = []; bar = None
                        if firststep:
                            if blk > 0: bar = barrier([f"T{blk}"], after, st=(blk == 4))
                            pre += toggle('k', range(20, 36), slot >> 16)
                            firststep = False
                        r = ringA(36, 5, 'v')
                        off = (slot & 0xffff) + (j >> 2) * 256 + off0
                        pre.append(('ds', f"ds_read_b128 {R('v', r, 4)}, v{ab + (j&3)*2 + half} offset:{off}"))
                        first = (j == 0 and half == 0)
                        steps.append(Step(f"{MF} {acc}, {R('v', r, 4)}, {R('a', qb+8*j+4*half, 4)}, {'0' if first else acc}", pre, bar))
                if kind == 'p':
                    eng.fq += max_fill(p, base, vMX, blk == 0 and kt == 0, len(steps) + 1, 56)
                else:
                    eng.fq += max_fill(p, base, vMS, blk < 2, len(steps) + 1, 56)
        eng.run(steps, maxlg=OPT['maxlg'], delay=OPT['delay'], dma_cost=OPT['dc'], dma_every=OPT['dS'])
        eng.flush_dma()
        eng.flush_fill()
        k.wait(lg0=True)
    e(f"s_cmp_ge_u32 {sW}, 2\ns_cbranch_scc1 L_S1")
    vm0 = list(k.vm); dq = list(eng.dma); hk = dict(hi); ns0 = nst[0]
    phaseS(0)
    e("s_nop 1\ns_branch L_Sdone\nL_S1:\ns_nop 1")
    vm1 = list(k.vm)
    k.vm = vm0; eng.dma = dq; hi.update(hk); nst[0] = ns0
    phaseS(1)
    assert k.vm == vm1
    e("s_nop 1\nL_Sdone:")
    allS = []
    for t in range(16):
        p, b = Sreg(t); allS += [f"{p}{b+q}" for q in range(16)]
    dump('S', allS + [f"a{r}" for r in range(192, 256)] + ['v60', 'v61'])

    MXO = S4 + 31 * 1024
    e(f"""
    v_mov_b32 v56, v60
    v_mov_b32 v57, v61
    v_permlane32_swap_b32 v56, v60
    v_permlane32_swap_b32 v57, v61
    v_max_f32 v60, v56, v60
    v_max_f32 v61, v57, v61
    v_and_b32 v14, 31, v7
    v_lshlrev_b32 v14, 2, v14
    v_add_u32 v14, {MXO}, v14
    s_lshl_b32 {sT0}, {sW}, 7
    v_add_u32 v15, {sT0}, v14
    """)
    k.ds("ds_write_b32 v15, v61", 'mx')
    e(f"""
    v_lshrrev_b32 v56, 4, v7
    v_lshlrev_b32 v57, 2, v56
    v_and_b32 v2, 15, v7
    v_xor_b32 v2, v2, v57
    v_lshlrev_b32 v2, 4, v2
    v_mul_u32_u24 v57, 896, v56
    v_add_u32 v2, v2, v57
    v_add_u32 v3, 2560, v2
    v_add_u32 v4, 5120, v2
    v_add_u32 v5, 7680, v2
    v_and_b32 v56, 1, v56
    v_lshlrev_b32 v56, 2, v56
    v_and_b32 v8, 7, v7
    v_xor_b32 v8, v8, v56
    v_lshlrev_b32 v8, 4, v8
    v_lshrrev_b32 v56, 3, v7
    v_mul_u32_u24 v56, 896, v56
    v_add_u32 v8, v8, v56
    v_add_u32 v9, 6144, v8
    v_add_u32 v10, 12288, v8
    v_add_u32 v11, 18432, v8
    v_mul_f32 v60, {sC}, v60                 ; m*c private
    """)
    barrier([], None, st=True)()
    for w_ in range(4):
        k.ds(f"ds_read_b32 v{28+w_}, v14 offset:{w_*128}", 'mxr')
    eng.dma += dma_tile(11) + touch('b1'); eng.flush_dma()
    vSP, vSS = 62, 63
    e("v_mov_b32 v6, v62\nv_mov_b32 v0, v63")
    def exp_fill(p, base, n, tmp, mreg, sreg, first, early, dead, dst=None):
        F = []
        kw = dict(early=early, dead=dead)
        for q0 in range(0, n, 8):
            w0 = (tmp + q0) if p == 'a' else (base + q0)
            for q in range(8):
                if p == 'a':
                    F.append(Fill('e', f"v_accvgpr_read_b32 v{w0+q}, a{base+q0+q}", **kw))
            for q in range(8):
                F.append(Fill('e', f"v_fma_f32 v{w0+q}, v{w0+q}, {sC}, -v{mreg}", **kw))
            for q in range(8):
                F.append(Fill('e', f"v_exp_f32 v{w0+q}, v{w0+q}", cost=8, **kw))
                if q >= 1:
                    if first and q0 == 0 and q == 1: F.append(Fill('e', f"v_mov_b32 v{sreg}, v{w0}", **kw))
                    else: F.append(Fill('e', f"v_add_f32 v{sreg}, v{sreg}, v{w0+q-1}", **kw))
            F.append(Fill('e', f"v_cvt_pk_bf16_f32 v{w0}, v{w0}, v{w0+1}", **kw))
            F.append(Fill('e', f"v_add_f32 v{sreg}, v{sreg}, v{w0+7}", **kw))
            for q in range(1, 4):
                F.append(Fill('e', f"v_cvt_pk_bf16_f32 v{w0+q}, v{w0+2*q}, v{w0+2*q+1}", **kw))
        return F
    def Preg(t):
        if t < 12: return Sreg(t)[1]
        return Sreg(t - 12)[1]
    eng.fq += exp_fill('v', Sreg(0)[1], 16, 0, 60, vSP, True, -1, 0); eng.flush_fill()
    k.wait(lg=['mxr'])
    e("v_max3_f32 v61, v28, v29, v30\nv_max_f32 v61, v61, v31")
    e(f"v_mul_f32 v61, {sC}, v61")
    e(f"s_lshl_b32 {sT0}, {sW}, 11\ns_add_u32 {sT0}, {sT0}, {S4}\nv_add_u32 v15, {sT0}, v1\nv_add_u32 v14, {S4}, v1")
    def sh_fill(u, half, early, bdead, first=False):
        F = exp_fill('a', 192 + 16 * u + 8 * half, 8, 28, 61, vSS, first, early, 10**9)
        F.append(Fill('ds', f"ds_write_b128 v15, v[28:31] offset:{u*8192 + half*1024}", cost=8, early=early, tag='psh'))
        for f in F: f.bdead = bdead
        return F
    for u in range(2):
        for half in range(2):
            eng.fq += sh_fill(u, half, -1, 0, first=(u == 0 and half == 0))
    eng.fq += exp_fill('v', Sreg(1)[1], 16, 0, 60, vSP, False, -1, 0)
    eng.flush_fill()

    steps = []
    ringc[0] = 0
    SUMO = 0
    for blk in range(8):
        n = 8 + blk
        slot = SLOT(n)
        s0 = len(steps)
        def after(n=n):
            if n > 8: eng.dma += dma_tile(n + 3)
            eng.dma += touch(f"v{n-8}")
        for T in range(4):
            pb = Preg(2 * blk + (T >> 1)) + 8 * (T & 1)
            sb = 20 + 4 * (T & 1)
            for jn, j in enumerate(JORD):
                pre = []; bar = None
                if T == 0 and jn == 0:
                    bar = barrier([f"T{n}"], after, barid=blk, st=(blk in (0, 4)))
                    pre += toggle('tr', range(16, 20), slot >> 16)
                r = ringA(36, 5, 'v')
                off = (slot & 0xffff) + (j >> 2) * 256 + T * 8192
                pre.append(('ds', f"ds_read_b64_tr_b16 {R('v', r, 2)}, v{16+(j&3)} offset:{off}"))
                pre.append(('ds', f"ds_read_b64_tr_b16 {R('v', r+2, 2)}, v{16+(j&3)} offset:{off+2048}"))
                acc = R('a', 16 * j, 16)
                first = (blk == 0 and T == 0)
                steps.append(Step(f"{MF} {acc}, {R('v', r, 4)}, {R('v', pb, 4)}, {'0' if first else acc}", pre, bar))
                if j in (0, 4):
                    pre2 = [('ds', f"ds_read_b128 {R('v', sb, 4)}, v14 offset:{(4*blk+T)*1024}")] if j == 0 else []
                    acc = R('a', 192 + 16 * (j >> 2), 16)
                    steps.append(Step(f"{MF} {acc}, {R('v', r, 4)}, {R('v', sb, 4)}, {'0' if first else acc}", pre2))
        if blk < 4:
            eng.fq += sh_fill(2 + (blk >> 1), blk & 1, s0, 4 + 2 * (blk >> 1))
        if blk == 4:
            eng.fq.append(Fill('e', f"v_mov_b32 v28, v{vSS}", early=s0))
            eng.fq.append(Fill('e', f"v_lshrrev_b32 v29, 2, v1", early=s0))
            eng.fq.append(Fill('e', f"v_permlane32_swap_b32 v28, v{vSS}", early=s0))
            eng.fq.append(Fill('e', f"v_add_u32 v29, {S4}, v29", early=s0))
            eng.fq.append(Fill('e', f"s_lshl_b32 {sT0}, {sW}, 8\nv_add_f32 v28, v28, v{vSS}", early=s0))
            eng.fq.append(Fill('e', f"v_add_u32 v30, {sT0}, v29", early=s0))
            eng.fq.append(Fill('ds', f"ds_write_b32 v30, v28", early=s0, bdead=5, tag='sum'))
        if blk == 5:
            for w_ in range(4):
                eng.fq.append(Fill('ds', f"ds_read_b32 v{30+w_}, v29 offset:{w_*256}", early=s0, tag='sumr'))
        if blk == 6:
            eng.fq.append(Fill('e', f"v_add_f32 v30, v30, v31", early=s0, lgneed=['sumr']))
            eng.fq.append(Fill('e', f"v_add_f32 v32, v32, v33", early=s0))
            eng.fq.append(Fill('e', f"v_add_f32 v30, v30, v32", early=s0))
            eng.fq.append(Fill('e', f"v_rcp_f32 v{vSS}, v30", early=s0, cost=8))
        if blk < 7:
            for kt in range(2):
                t = 2 * blk + 2 + kt
                p, base = Sreg(t)
                dead = s0 + 40 + 20 * kt
                eng.fq += exp_fill(p, base, 16, Preg(t), 60, vSP, False, s0, dead)
        if blk == 7:
            eng.fq.append(Fill('e', f"v_mov_b32 v28, v{vSP}", early=s0))
            eng.fq.append(Fill('e', f"s_nop 0\nv_permlane32_swap_b32 v28, v{vSP}", early=s0))
            eng.fq.append(Fill('e', f"v_add_f32 v28, v28, v{vSP}", early=s0))
            eng.fq.append(Fill('e', f"v_rcp_f32 v{vSP}, v28", early=s0, cost=8))
    eng.run(steps, maxlg=OPT['maxlg'], delay=OPT['delay'], dma_cost=OPT['dc'], dma_every=OPT['dP'])
    eng.flush_dma(); eng.flush_fill()
    dump('O', [f"a{r}" for r in range(128)] + [f"a{r}" for r in range(192, 224)] + [f"v{vSP}", f"v{vSS}"])

    def conv_fill(abase, tmp, dst, inv, early, dead):
        F = []
        kw = dict(early=early, dead=dead)
        for q in range(8): F.append(Fill('e', f"v_accvgpr_read_b32 v{tmp+q}, a{abase+q}", **kw))
        for q in range(8): F.append(Fill('e', f"v_mul_f32 v{tmp+q}, v{tmp+q}, v{inv}", **kw))
        for q in range(4): F.append(Fill('e', f"v_cvt_pk_bf16_f32 v{dst+q}, v{tmp+2*q}, v{tmp+2*q+1}", **kw))
        return F
    for a in range(2):
        for half in range(2):
            eng.fq += conv_fill(192 + 16 * a + 8 * half, 208 + 8 * (2*a+half), 208 + 8 * (2*a+half), vSS, -1, 0)
            eng.fq.append(Fill('ds', f"ds_write_b128 v15, {R('v', 208 + 8*(2*a+half), 4)} offset:{a*8192 + half*1024}", tag='osh'))
    eng.flush_fill()
    e(f"""
    v_lshrrev_b32 v56, 5, v7
    v_lshl_add_u32 v56, v56, 3, v0           ; 8hh+r
    v_lshl_add_u32 v57, v0, 6, v6
    v_lshl_add_u32 v57, v56, 8, v57
    s_mul_i32 {sT0}, {sW}, {8192+64}
    v_xor_b32 v16, {sT0}, v57
    """)
    for j in range(4):
        for t in range(4):
            if j or t: e(f"v_xor_b32 v{16+4*j+t}, {j*8192+t*64}, v16")
    LA = [32, 33, 34, 35, 56, 57, 58, 59]
    e(f"""
    v_lshrrev_b32 v57, 1, v0
    v_lshl_add_u32 v57, v57, 6, v6
    v_lshl_add_u32 v57, v56, 7, v57
    s_and_b32 {sT1}, {sW}, 1
    s_lshl_b32 {sT1}, {sT1}, 6
    s_lshl_b32 {sT0}, {sW}, 12
    s_add_u32 {sT0}, {sT0}, {sT1}
    s_add_u32 {sT0}, {sT0}, {SLOT(22) & 0x10000}
    v_xor_b32 v32, {sT0}, v57
    """)
    for j in range(4):
        for t in range(2):
            if j or t: e(f"v_xor_b32 v{LA[2*j+t]}, {j*4096+t*64}, v32")
    for t in range(4):
        e(f"s_xor_b32 {sT0}, {sW}, {t}\ns_mul_i32 {sT1}, {sW}, 14\ns_add_u32 {sT0}, {sT0}, {sT1}\ns_lshl_b32 s{sST+t}, {sT0}, 15")
    e(f"s_add_u32 {sT0}, {sW}, 56\ns_lshl_b32 s{sST+4}, {sT0}, 15")
    e(f"s_and_b32 {sT2}, {sW}, 1\ns_add_u32 {sT0}, {sT1}, {sT2}\ns_add_u32 {sT0}, {sT0}, 12\ns_lshl_b32 s{sST+5}, {sT0}, 15")
    e(f"s_sub_u32 {sT0}, {sT1}, {sT2}\ns_add_u32 {sT0}, {sT0}, 13\ns_lshl_b32 s{sST+6}, {sT0}, 15")
    e(f"s_add_u32 {sT0}, {sT2}, 68\ns_lshl_b32 s{sST+7}, {sT0}, 15")
    e(f"""v_add_u32 v12, 16384, v1
    s_lshr_b32 {sT0}, {sW}, 1
    s_lshl_b32 {sT0}, {sT0}, 30
    v_add_u32 v13, {sT0}, v1
    v_add_u32 v60, {sT0}, v12""")
    OF = 144
    eng.fq += conv_fill(0, 240, OF, vSP, -1, 0) + conv_fill(8, 248, OF + 4, vSP, -1, 0)
    eng.flush_fill()
    barrier(["T16"], None, st=True)()
    eng.dma += dma_tile(19)
    e("v_xor_b32 v61, 0x800, v15\nv_xor_b32 v14, 0x1000, v15\nv_xor_b32 v6, 0x1800, v15")
    qa = [15, 61, 14, 6]
    hi['wo'] = 0
    steps = []
    ringc[0] = 0
    ACC = [('v', 64), ('a', 0), ('v', 64), ('v', 208)]
    def store_fill(g, early):
        p, base = ACC[g]
        nt = 5 if g < 3 else 3
        F = []
        for t in range(nt):
            for half in range(2):
                src = base + 16 * t + 8 * half
                if p == 'a':
                    tmp = 208 + 8 * ((2 * t + half) % 6)
                    for q in range(8): F.append(Fill('e', f"v_accvgpr_read_b32 v{tmp+q}, a{src+q}", early=early))
                    src = tmp
                for q in range(4): F.append(Fill('e', f"v_cvt_pk_bf16_f32 v{src+q}, v{src+2*q}, v{src+2*q+1}", early=early))
                if g < 3:
                    so = f"s{sST+t}"; vo = 'v1' if half == 0 else 'v12'
                else:
                    so = f"s{sST+5+t}"; vo = ('v1' if half == 0 else 'v12') if t < 2 else ('v13' if half == 0 else 'v60')
                F.append(Fill('vm', f"buffer_store_dwordx4 {R('v', src, 4)}, {vo}, {SWS}, {so} offen {OPT['st']}", cost=16, early=early, tag='st'))
            if g < 2: F.append(Fill('e', f"s_add_u32 s{sST+t}, s{sST+t}, {4*32768}", early=early))
        return F
    for g in range(4):
        p, base = ACC[g]
        sg = len(steps)
        for j in range(8):
            n = 16 + 2 * g + (j >> 2) if g < 3 else 22
            slot = SLOT(n)
            def after(n=n):
                if n + 3 <= 22: eng.dma += dma_tile(n + 3)
            for half in range(2):
                nt = 4 if g < 3 else 2
                for t in range(nt):
                    pre = []; bar = None
                    if t == 0 and half == 0 and ((j & 3) == 0 if g < 3 else j == 0):
                        if n > 16: bar = barrier([f"T{n}"], after, st=(n in (18, 20, 22)))
                        if g < 3: pre += toggle('wo', range(16, 32), slot >> 16)
                    r = ringA(36, 5, 'v')
                    if g < 3:
                        ar = 16 + 4 * (j & 3) + t; off = (slot & 0xffff) + half * 4096; so = 1024
                    else:
                        ar = LA[2 * (j & 3) + t]; off = (slot & 0xffff) + (j >> 2) * 16384 + half * 2048; so = 512
                    pre.append(('ds', f"ds_read_b64_tr_b16 {R('v', r, 2)}, v{ar} offset:{off}"))
                    pre.append(('ds', f"ds_read_b64_tr_b16 {R('v', r+2, 2)}, v{ar} offset:{off+so}"))
                    acc = R(p, base + 16 * t, 16)
                    first = (j == 0 and half == 0)
                    steps.append(Step(f"{MF} {acc}, {R('v', r, 4)}, {R('v', OF+8*j+4*half, 4)}, {'0' if first else acc}", pre, bar))
                    if t == 0:
                        pre2 = []
                        if g == 0:
                            pre2 = [('ds', f"ds_read_b128 {R('a', 128+8*j+4*half, 4)}, v{qa[j&3]} offset:{(j>>2)*8192 + half*1024}")]
                        acc = R(p, base + 16 * nt, 16)
                        steps.append(Step(f"{MF} {acc}, {R('v', r, 4)}, {R('a', 128+8*j+4*half, 4)}, {'0' if first else acc}", pre2))
                if g == 0 and j < 7:
                    jj = j + 1
                    eng.fq += conv_fill(16 * jj + 8 * half, 240 + 8 * half, OF + 8 * jj + 4 * half, vSP, -1, 10 * jj + 5 * half)
        if g >= 1:
            F = store_fill(g - 1, sg + 1)
            nxt = sg + (80 if g < 3 else 48)
            for f in F: f.dead = nxt
            eng.fq += F
    eng.run(steps, maxlg=OPT['maxlg'], delay=OPT['delay'], dma_cost=OPT['dc'], dma_every=OPT['dO'])
    eng.flush_dma(); eng.flush_fill()
    eng.fq += store_fill(3, -1); eng.flush_fill()
    if OPT['red'] == 1:
        stamp()
        e(f"""s_load_dwordx2 s[56:57], s[0:1], 48
        s_load_dwordx2 s[8:9], s[0:1], 40
        s_mov_b32 s58, 256
        s_mov_b32 s59, 0x00020000
        s_lshl_b32 {sT0}, {sH}, 10
        s_sub_u32 s28, s28, {sT0}
        s_subb_u32 s29, s29, 0
        s_lshl_b32 {sT0}, {sH}, 2
        s_add_u32 {sT0}, {sT0}, {sW}
        s_mul_i32 {sT0}, {sT0}, 140
        v_add_u32 v2, {sT0}, v7                  ; u
        v_lshrrev_b32 v3, 6, v2                  ; f
        v_and_b32 v2, 63, v2                     ; l'
        v_lshlrev_b32 v4, 4, v2
        v_lshl_add_u32 v4, v3, 14, v4
        v_add_u32 v5, 16384, v4
        v_add_u32 v6, 32768, v4
        v_cmp_gt_u32 vcc, 12, v7
        v_mov_b32 v8, 0x40000000
        v_cndmask_b32 v6, v8, v6, vcc
        v_and_b32 v9, 31, v2
        v_mul_u32_u24 v9, 896, v9
        v_lshrrev_b32 v2, 5, v2
        v_lshl_add_u32 v9, v2, 4, v9             ; (l'&31)*896 + 16*(l'>>5)
        """)
        for p in range(3):
            e(f"""v_add_u32 v2, {p}, v3
            v_mul_u32_u24 v13, 2341, v2
            v_lshrrev_b32 v13, 16, v13               ; qt
            v_mul_u32_u24 v14, 28, v13
            v_sub_u32 v2, v2, v14
            v_mul_u32_u24 v13, {32*896}, v13
            v_lshl_add_u32 v13, v2, 5, v13
            v_add_u32 v{10+p}, v13, v9""")
        e(f"""v_cndmask_b32 v12, v8, v12, vcc
        v_and_b32 v2, 31, v7                     ; m
        v_lshrrev_b32 v3, 3, v2
        v_lshlrev_b32 v3, 1, v3
        v_bfe_u32 v13, v2, 1, 1
        v_or_b32 v3, v3, v13                     ; j>>1 (>=4 when m>=16)
        v_bfe_u32 v13, v2, 2, 1
        v_lshrrev_b32 v14, 5, v7
        v_xor_b32 v13, v13, v14
        v_lshl_or_b32 v3, v13, 3, v3
        v_and_b32 v2, 1, v2
        v_lshlrev_b32 v2, 4, v2
        v_mov_b32 v13, 0x3f80
        v_lshlrev_b32 v2, v2, v13""")
        for r in range(4):
            e(f"v_cmp_eq_u32 vcc, {r}, v3\nv_cndmask_b32 v{16+r}, 0, v2, vcc")
        e(f"""s_waitcnt lgkmcnt(0)
        s_mul_i32 {sT0}, {sB}, 143360
        s_add_u32 s8, s8, {sT0}
        s_addc_u32 s9, s9, 0""")
        k.wait(vm0=True)
        stamp()
        e(f"""s_barrier
        s_cmp_lg_u32 {sW}, 0
        s_cbranch_scc1 L_polled
        s_mov_b64 exec, 1
        s_lshl_b32 {sT0}, {sB}, 4
        v_mov_b32 v2, 1
        v_mov_b32 v3, {sT0}
        buffer_atomic_add v2, v3, s[56:59], 0 offen sc1
        s_mov_b32 {sT1}, 0
        L_poll:
        buffer_load_dword v2, v3, s[56:59], 0 offen sc1
        s_add_u32 {sT1}, {sT1}, 1
        s_cmp_gt_u32 {sT1}, 20000
        s_cbranch_scc1 L_pollx
        s_waitcnt vmcnt(0)
        v_readfirstlane_b32 {sT0}, v2
        s_cmp_lt_u32 {sT0}, 16
        s_cbranch_scc1 L_poll
        L_pollx:
        s_mov_b64 exec, -1
        L_polled:
        s_barrier""")
        stamp()
        for p in range(3):
            for h in range(16):
                if h % 4 == 0: e(f"s_mov_b32 {sT0}, {h*1024}")
                r = 64 * p + 4 * h
                k.vmem(f"buffer_load_dwordx4 {R('a', r, 4)}, v{4+p}, {SWS}, {sT0} offen offset:{(h%4)*1024} {OPT['ld']}", f"r{p}_{h}")
        for p in range(3):
            acc = R('v', 64 + 16 * p, 16)
            for h in range(16):
                k.wait(vm=[f"r{p}_{h}"])
                e(f"{MF} {acc}, v[16:19], {R('a', 64*p+4*h, 4)}, {'0' if h == 0 else acc}")
        for p in range(3):
            for q in range(4):
                e(f"v_cvt_pk_bf16_f32 v{64+16*p+q}, v{64+16*p+2*q}, v{64+16*p+2*q+1}")
            k.vmem(f"buffer_store_dwordx4 {R('v', 64+16*p, 4)}, v{10+p}, {SX}, 0 offen", 'o')
    if OPT['ts']:
        stamp()
        k.wait(vm0=True)
        stamp()
        e(f"""s_add_u32 s56, s4, 0x0ff00000
        s_addc_u32 s57, s5, 0
        s_mov_b32 s58, 0x100000
        s_mov_b32 s59, 0x00020000
        s_cmp_lg_u32 {sW}, 0
        s_cbranch_scc1 L_exit
        s_mov_b64 exec, 1
        s_lshl_b32 s3, s2, 8
        v_mov_b32 v1, s3
        v_mov_b32 v2, {nst[0]}
        v_mov_b32 v3, 0
        buffer_store_dwordx2 v[2:3], v1, s[56:59], 0 offen""")
        for j in range(nst[0]):
            e(f"v_mov_b32 v4, s{sTS+2*j}\nv_mov_b32 v5, s{sTS+1+2*j}\nbuffer_store_dwordx2 v[4:5], v1, s[56:59], 0 offen offset:{8+8*j}\ns_nop 1")
        e("s_waitcnt vmcnt(0)")
    e("L_exit:")
    txt, added = k.text()
    print(f"main: {len(k.L)} lines, nops added {added}, forced fills {eng.forced}, stamps {nst[0]}", file=sys.stderr)
    return txt

def f2u(x):
    import struct
    return struct.unpack('<I', struct.pack('<f', x))[0]

def reduce_kernel():
    k = K(); e = k.e
    if OPT['ts']: e("s_memrealtime s[20:21]")
    e(f"""
    s_cmp_ge_u32 s2, 560
    s_cbranch_scc1 L_rexit
    s_load_dwordx2 s[8:9], s[0:1], 56
    s_load_dwordx2 s[12:13], s[0:1], 40
    v_lshrrev_b32 v1, 6, v0
    v_and_b32 v2, 63, v0
    v_readfirstlane_b32 s3, v1
    s_lshl_b32 s4, s2, 2
    s_add_u32 s4, s4, s3                     ; gw
    s_mov_b32 s10, {2240*16384}
    s_mov_b32 s11, 0x00020000
    s_mov_b32 s14, 2293760
    s_mov_b32 s15, 0x00020000
    s_lshl_b32 s5, s4, 14
    v_lshlrev_b32 v3, 4, v2
    s_waitcnt lgkmcnt(0)
    """)
    for h in range(16):
        if h % 4 == 0 and h: e("s_add_u32 s5, s5, 4096")
        k.vmem(f"buffer_load_dwordx4 v[{16+4*h}:{19+4*h}], v3, s[8:11], s5 offen offset:{(h%4)*1024}", f"h{h}")
    e(f"""
    s_mul_i32 s6, s4, 2341
    s_lshr_b32 s6, s6, 16
    s_mul_i32 s7, s6, 28
    s_sub_u32 s7, s4, s7
    s_mul_i32 s6, s6, {32*896}
    s_lshl_b32 s7, s7, 5
    s_add_u32 s6, s6, s7
    v_and_b32 v4, 31, v2
    v_mul_u32_u24 v4, 896, v4
    v_lshrrev_b32 v5, 5, v2
    v_lshl_add_u32 v4, v5, 4, v4
    s_mov_b32 s16, 0xffff0000
    """)
    for h in range(16):
        k.wait(vm=[f"h{h}"])
        for q in range(4):
            r = 16 + 4 * h + q
            if h == 0:
                e(f"v_lshlrev_b32 v{8+2*q}, 16, v{r}\nv_and_b32 v{9+2*q}, s16, v{r}")
            else:
                e(f"v_lshlrev_b32 v6, 16, v{r}\nv_and_b32 v7, s16, v{r}\nv_add_f32 v{8+2*q}, v{8+2*q}, v6\nv_add_f32 v{9+2*q}, v{9+2*q}, v7")
    for q in range(4):
        e(f"v_cvt_pk_bf16_f32 v{8+q}, v{8+2*q}, v{9+2*q}")
    e("buffer_store_dwordx4 v[8:11], v4, s[12:15], s6 offen")
    if OPT['ts']:
        e("""s_waitcnt vmcnt(0)
        s_memrealtime s[22:23]
        s_add_u32 s8, s8, 0x0ff20000
        s_addc_u32 s9, s9, 0
        s_mov_b32 s10, 0x20000
        s_mov_b64 exec, 1
        s_lshl_b32 s5, s4, 4
        s_waitcnt lgkmcnt(0)
        v_mov_b32 v2, s20
        v_mov_b32 v3, s22
        v_mov_b32 v1, 0
        buffer_store_dwordx2 v[2:3], v1, s[8:11], s5 offen
        s_waitcnt vmcnt(0)""")
    e("L_rexit:")
    txt, added = k.text()
    return txt

def diag_kernel():
    A, B, KK = OPT['diag'].split(',')
    k = K(); e = k.e
    e("""s_memrealtime s[20:21]
    s_cmp_ge_u32 s2, 1
    s_cbranch_scc1 L_dexit
    s_load_dwordx2 s[8:9], s[0:1], 56
    s_mov_b32 s10, 0x100000
    s_mov_b32 s11, 0x00020000
    s_waitcnt lgkmcnt(0)
    s_add_u32 s8, s8, 0x0ff00000
    s_addc_u32 s9, s9, 0""")
    def val(spec, dst):
        if spec == 'now':
            e(f"s_mov_b32 {dst}, s20"); return
        kind = spec[0]; idx = int(spec[1:-3]); op = spec[-3:]
        if kind == 'm': n, stride, off = 4, 256, 8 + 8 * idx
        elif kind == 'p': n, stride, off = 4, 16, 0x40000 + 4 * idx
        else: n, stride, off = 35, 16, 0x20000 + 4 * idx
        e(f"v_mul_u32_u24 v1, {stride}, v0\nv_add_u32 v1, {off}, v1")
        for j in range(n):
            e(f"buffer_load_dword v{2+j}, v1, s[8:11], 0 offen\nv_add_u32 v1, {64*stride}, v1")
        e("s_waitcnt vmcnt(0)")
        for j in range(n): e(f"v_subrev_u32 v{2+j}, s20, v{2+j}")
        vop = 'v_add_u32' if op == 'avg' else f"v_{op}_i32"
        sop = 's_add_i32' if op == 'avg' else f"s_{op}_i32"
        for j in range(1, n): e(f"{vop} v2, v2, v{2+j}")
        e(f"s_nop 1\nv_readlane_b32 {dst}, v2, 0")
        for l in range(1, 64):
            e(f"v_readlane_b32 s30, v2, {l}\n{sop} {dst}, {dst}, s30")
        if op == 'avg' and not both: e(f"s_ashr_i32 {dst}, {dst}, 8")
        e(f"s_add_u32 {dst}, {dst}, s20")
    both = A.endswith('avg') and B.endswith('avg')
    val(A, 's24'); val(B, 's25')
    e(f"""s_sub_u32 s24, s25, s24
    s_lshr_b32 s24, s24, {8 if both else 0}
    {'s_lshr_b32 s24, s24, 2' if KK == 'q' else f's_mul_i32 s24, s24, {KK}'}
    s_min_u32 s24, s24, 40000
    s_add_u32 s24, s24, 300
    L_spin:
    s_memrealtime s[22:23]
    s_waitcnt lgkmcnt(0)
    s_sub_u32 s22, s22, s20
    s_cmp_lt_u32 s22, s24
    s_cbranch_scc1 L_spin
    L_dexit:""")
    return k.text()[0]

def pre_kernel():
    mods, infl, order = OPT['pre'].split(':'); infl = int(infl)
    k = K(); e = k.e
    e("""s_memrealtime s[20:21]
    s_cmp_ge_u32 s2, 256
    s_cbranch_scc1 L_pexit
    s_load_dwordx2 s[12:13], s[0:1], 8
    s_load_dwordx2 s[16:17], s[0:1], 16
    s_load_dwordx2 s[8:9], s[0:1], 56
    s_mov_b32 s14, 0x4000000
    s_mov_b32 s15, 0x00020000
    s_mov_b32 s18, 0x4000000
    s_mov_b32 s19, 0x00020000
    s_mov_b32 s10, 0x100000
    s_mov_b32 s11, 0x00020000
    v_lshrrev_b32 v1, 6, v0
    v_and_b32 v2, 63, v0
    v_readfirstlane_b32 s28, v1
    v_lshlrev_b32 v2, 4, v2
    s_lshl_b32 s3, s2, 18
    s_lshl_b32 s29, s28, 12
    s_add_u32 s3, s3, s29
    s_mul_i32 s32, s28, 40960
    s_waitcnt lgkmcnt(0)
    s_add_u32 s8, s8, 0x0ff40000
    s_addc_u32 s9, s9, 0""")
    i = 0
    for t in order:
        srd = "s[12:15]" if t == 'K' else "s[16:19]"
        for blk in range(16):
            e(f"s_add_u32 s33, s3, {blk*16384}\ns_add_u32 m0, s32, {(i % 10)*4096}")
            for ii in range(4):
                e(f"s_waitcnt vmcnt({infl-1})\nbuffer_load_dwordx4 v2, {srd}, s33 offen offset:{ii*1024} {mods} lds")
            i += 1
            if i == 16 + infl // 4 or (i == 16 and len(order) == 1): e("s_memrealtime s[22:23]")
    e("""s_waitcnt vmcnt(0)
    s_barrier
    s_memrealtime s[24:25]
    s_cmp_lg_u32 s28, 0
    s_cbranch_scc1 L_pexit
    s_mov_b64 exec, 1
    s_lshl_b32 s5, s2, 4
    s_waitcnt lgkmcnt(0)
    v_mov_b32 v4, s20
    v_mov_b32 v5, s22
    v_mov_b32 v6, s24
    v_mov_b32 v7, 0
    v_mov_b32 v1, 0
    buffer_store_dwordx4 v[4:7], v1, s[8:11], s5 offen
    s_waitcnt vmcnt(0)
    L_pexit:""")
    return k.text()[0]

if __name__ == "__main__":
    out = sys.argv[1]
    m = main_kernel()
    r = reduce_kernel()
    L = [("mha_main_kernel", 256, 256, 163840), ("mha_reduce_kernel", 560, 256, 0)]
    KS = [("mha_main_kernel", m, 512, 256), ("mha_reduce_kernel", r, 80, 80)]
    if OPT['red']:
        L = L[:1]; KS = KS[:1]
    if OPT['pre']:
        L.insert(0, ("mha_pre_kernel", 256, 256, 163840)); KS.append(("mha_pre_kernel", pre_kernel(), 64, 64))
    if OPT['diag']:
        L.append(("mha_diag_kernel", 1, 64, 0)); KS.append(("mha_diag_kernel", diag_kernel(), 64, 64))
    write_file(out, HEADER, L, KS)
```

```python
import sys, math, struct
sys.path.insert(0, "work")
from asmlib import K, write_file
from sch import Sched, Op

OPT = dict(arr='N', ts=0, dump='', nt='nt', st='', bud=24, maxlg=14, delay=3, dsage=4, maxds=3,
           rb=9, wb=0, wage=6, dc=16, wc=16, lc=12,
           kpre=0, k0=0, kp=80, kp2=50, ksw=32, pair=1, tp=0, tpm='', stamps='RA0,RA3,RS0,RS2,RS4,RS6,RS8,RS10,RS12,RS14,RS16,RS18,RS20,RS22',
           w0=14, wp=2,
           dp=2, vp=3, verbose=0, red=0, lo=-20, hi=30, diag='', dup=0)
for a in sys.argv[2:]:
    kk, vv = a.split('=')
    assert kk in OPT, kk
    OPT[kk] = int(vv) if vv.lstrip('-').isdigit() else vv

HEADER = "".join(l for l in open("standalone__mha_block_cached__near_ridge.s.ref").read().splitlines(True)[:11])
MF = "v_mfma_f32_32x32x16_bf16"
def R(p, lo, n): return f"{p}[{lo}:{lo+n-1}]"
def f2u(x): return struct.unpack('<I', struct.pack('<f', x))[0]
SX, SK, SV, SWQ, SWO, SWS = "s[8:11]", "s[12:15]", "s[16:19]", "s[20:23]", "s[24:27]", "s[28:31]"
sW, sB, sH = "s32", "s33", "s34"
sT0, sT1, sT2 = "s36", "s37", "s38"
sC = "s39"
sWQO, sXO, sM8, sM1, sW16, sWOO, sWLO = "s40", "s41", "s42", "s43", "s44", "s45", "s46"
sST = 47
sD, sL, sS = "s55", "s56", "s35"
sPASS, sLO, sRNG = "s57", "s58", "s59"
sTS = 60
XB = 96 * 1024
S4 = 128 * 1024
SL = dict(a=32768, b=65536, c=0, d=98304)
def B(i): return 48 + 16 * i
vSP, vSS, vMP, vMS = 38, 39, 40, 41

def main_kernel():
    k = K(); e = k.e
    s = Sched(k)
    nst = [0]
    TSI = 's_memtime' if OPT['ts'] == 2 else 's_memrealtime'
    def stamp():
        if OPT['ts']:
            k.wait(lg0=True)
            e(f"{TSI} s[{sTS+2*nst[0]}:{sTS+1+2*nst[0]}]\ns_waitcnt lgkmcnt(0)")
            nst[0] += 1
    def dump(name, regs):
        if OPT['dump'] != name: return
        def fn(op):
            e("s_nop 7\ns_nop 7\ns_waitcnt vmcnt(0) lgkmcnt(0)")
            e(f"s_mul_i32 {sT0}, {sB}, 64\ns_lshl_b32 {sT1}, {sH}, 2\ns_add_u32 {sT0}, {sT0}, {sT1}\ns_add_u32 {sT0}, {sT0}, {sW}\ns_lshl_b32 {sT0}, {sT0}, 17")
            e("s_add_u32 s8, s4, 0x4000000\ns_addc_u32 s9, s5, 0\ns_mov_b32 s10, 0x8000000\ns_mov_b32 s11, 0x00020000")
            e("v_lshlrev_b32 v0, 2, v0")
            for i, r in enumerate(regs):
                e(f"buffer_store_dword {r}, v0, s[8:11], {sT0} offen\ns_add_u32 {sT0}, {sT0}, 256")
                if i % 32 == 31: e("s_waitcnt vmcnt(0)")
            e("s_waitcnt vmcnt(0)\ns_branch L_exit")
        s.add(Op('e', 's_nop 0', R=regs, W=regs, fn=fn, dl=s.nmf))

    if OPT['ts']:
        e(f"{TSI} s[{sTS}:{sTS+1}]"); nst[0] = 1
    e(f"""
    s_cmp_ge_u32 s2, 256
    s_cbranch_scc1 L_exit
    v_lshrrev_b32 v1, 6, v0
    v_and_b32 v0, 63, v0
    s_mov_b32 {sPASS}, 0
    v_readfirstlane_b32 {sW}, v1
    s_mov_b64 vcc, 0
    s_mov_b32 {sLO}, 0x{(127 + OPT['lo']) << 23:08x}
    s_mov_b32 {sRNG}, 0x{(OPT['hi'] - OPT['lo']) << 23:08x}
    L_start:
    s_load_dwordx2 s[8:9], s[0:1], 0
    s_load_dwordx2 s[20:21], s[0:1], 24
    s_load_dwordx2 s[12:13], s[0:1], 8
    s_load_dwordx2 s[16:17], s[0:1], 16
    s_load_dwordx2 s[24:25], s[0:1], 32
    s_load_dwordx2 s[4:5], s[0:1], 56
    s_and_b32 {sT0}, s2, 7
    s_lshr_b32 {sT1}, s2, 3
    """)
    arr = OPT['arr']
    if arr == 'N':
        e(f"""s_lshr_b32 {sB}, {sT0}, 1
        s_lshl_b32 {sB}, {sB}, 2
        s_lshr_b32 {sT2}, {sT1}, 3
        s_add_u32 {sB}, {sB}, {sT2}
        s_and_b32 {sH}, {sT0}, 1
        s_lshl_b32 {sH}, {sH}, 3
        s_and_b32 {sT2}, {sT1}, 7
        s_add_u32 {sH}, {sH}, {sT2}""")
    elif arr == 'L':
        e(f"""s_lshl_b32 {sB}, {sT0}, 1
        s_lshr_b32 {sT2}, {sT1}, 4
        s_add_u32 {sB}, {sB}, {sT2}
        s_and_b32 {sH}, {sT1}, 15""")
    elif arr == 'M':
        e(f"""s_lshr_b32 {sB}, {sT0}, 2
        s_lshl_b32 {sB}, {sB}, 3
        s_lshr_b32 {sT2}, {sT1}, 2
        s_add_u32 {sB}, {sB}, {sT2}
        s_and_b32 {sH}, {sT0}, 3
        s_lshl_b32 {sH}, {sH}, 2
        s_and_b32 {sT2}, {sT1}, 3
        s_add_u32 {sH}, {sH}, {sT2}""")
    e(f"""
    s_mov_b32 s10, 143360
    s_mov_b32 s11, 0x00020000
    s_mov_b32 s23, 0x00020000
    s_lshl_b32 {sM8}, {sW}, 13
    s_lshl_b32 {sM1}, {sW}, 10
    s_lshl_b32 {sWQO}, {sW}, 17
    s_mul_i32 {sXO}, {sW}, 7168
    v_lshrrev_b32 v44, 5, v0                 ; hh
    v_and_b32 v45, 31, v0                    ; c
    v_lshlrev_b32 v1, 2, v44
    v_xor_b32 v1, v1, v45
    v_lshlrev_b32 v1, 4, v1
    v_lshl_add_u32 v2, v44, 13, v1
    v_xor_b32 v3, 0x80, v2
    v_add_u32 v3, 15360, v3
    v_add_u32 v4, 30720, v2
    v_add_u32 v5, 30720, v3
    s_and_b32 {sT2}, {sW}, 1
    s_lshl_b32 {sT0}, {sT2}, 2
    v_lshrrev_b32 v6, 4, v0
    v_xor_b32 v6, {sT0}, v6
    v_and_b32 v1, 7, v0
    v_xor_b32 v6, v6, v1
    v_lshlrev_b32 v6, 4, v6
    v_lshrrev_b32 v1, 3, v0
    v_mul_u32_u24 v1, 896, v1
    v_add_u32 v6, v6, v1                     ; x voff
    s_mul_i32 {sT0}, {sB}, 143360
    s_lshl_b32 {sT1}, {sH}, 9
    s_waitcnt lgkmcnt(0)
    s_add_u32 s8, s8, {sT0}
    s_addc_u32 s9, s9, 0
    s_add_u32 s20, s20, {sT1}
    s_addc_u32 s21, s21, 0
    s_sub_u32 s22, 3670016, {sT1}
    """)
    dc, lc = OPT['dc'], OPT['lc']
    def vmop(text, **kw):
        n = text.count('\n')
        return s.vm(text, cost=kw.pop('cost', dc) + 4 * n, chain='vm', **kw)
    def pace(e0, p):
        i = 0
        while True:
            x = e0 + int(i * p)
            yield dict(early=x, dl=x + 2)
            i += 1
    def dma_stage(i, pc=None, **kw):
        L = []
        slot = (i % 3) * 32768; xs = XB + (i % 3) * 20480
        for u in range(2):
            for ii in range(4):
                t = f"s_add_u32 m0, {sM8}, {slot + u*4096}\ns_add_u32 {sD}, {sWQO}, {(i << 19) + u*65536}\n" if ii == 0 else ""
                L.append(t + f"buffer_load_dwordx4 v{2+ii}, {SWQ}, {sD} offen offset:{ii*1024} lds")
        X = []
        for u in range(5):
            X.append(f"s_add_u32 m0, {sM1}, {xs + u*4096}\ns_add_u32 {sD}, {sXO}, {i*128 + u*4*7168}\nbuffer_load_dwordx4 v6, {SX}, {sD} offen lds")
        return [(t, dict(bb=f"RA{i}", **kw)) for t in L + X]
    def dma_tile(n, slot, **kw):
        L = []
        for u in range(2):
            for ii in range(4):
                if n < 16:
                    i, dh = (n >> 1, n & 1) if n < 8 else ((n - 8) & 3, (n - 8) >> 2)
                    so = f"{sW16}, {i*65536 + dh*256 + u*8192}"; vo = (8 if n < 8 else 2) + ii; srd = SK if n < 8 else SV; m = OPT['nt']
                elif n < 22:
                    g, dh = (n - 16) >> 1, (n - 16) & 1
                    so = f"{sWOO}, {(dh*128 + 16*u)*896 + g*256}"; vo = 2 + ii; srd = SWO; m = ''
                else:
                    so = f"{sWLO}, {32*u*896 + 768}"; vo = 8 + ii; srd = SWO; m = ''
                t = f"s_add_u32 m0, {sM8}, {SL[slot] + u*4096}\ns_add_u32 {sD}, {so}\n" if ii == 0 else ""
                L.append(t + f"buffer_load_dwordx4 v{vo}, {srd}, {sD} offen offset:{ii*1024} {m} lds")
        return [(t, dict(bb=f"RS{n}", **kw)) for t in L]
    def stage_load(tiles, **kw):
        L = []
        for u in range(2):
            for ii in range(4):
                for x, (n, r) in enumerate(tiles):
                    i, dh = (n >> 1, n & 1) if n < 8 else ((n - 8) & 3, (n - 8) >> 2)
                    t = f"s_add_u32 {sL}, {sW16}, {i*65536 + u*8192}\n" if ii == 0 and x == 0 else ""
                    vo = (8 if n < 8 else 2) + ii; srd = SK if n < 8 else SV
                    L.append(t + f"buffer_load_dwordx4 {R('a', 32*r + 16*u + 4*ii, 4)}, v{vo}, {srd}, {sL} offen offset:{ii*1024 + dh*256} {OPT['nt']}")
        return [(t, dict(cost=lc, **kw)) for t in L]
    def issue(L, pc=None, **kw):
        for t, a in L:
            a = dict(a); a.update(kw)
            if pc is not None: a.update(next(pc))
            vmop(t, **a)
    wbase = [32768]
    def stage_write(n, r, slot, ab, p0):
        for u in range(2):
            for ii in range(4):
                off = SL[slot] - wbase[0] + u * 4096 + ii * 1024
                assert 0 <= off < 65536
                x = p0 + OPT['w0'] + OPT['wp'] * (4 * u + ii)
                s.ds(f"ds_write_b128 v7, {R('a', 32*r + 16*u + 4*ii, 4)} offset:{off}", cost=OPT['wc'], ab=ab, bb=f"RS{n}", early=x, dl=x + 1)
    P = dict(pre=True)
    issue(dma_stage(0), **P)
    s.es(f"""
    s_lshl_b32 {sT0}, {sB}, 4
    s_add_u32 {sT0}, {sT0}, {sH}
    s_lshl_b32 {sT0}, {sT0}, 18""", **P)
    s.e(f"s_add_u32 s16, s16, {sT0}\ns_addc_u32 s17, s17, 0\ns_add_u32 s12, s12, {sT0}\ns_addc_u32 s13, s13, 0", **P)
    s.es(f"""
    s_mov_b32 s14, 262144
    s_mov_b32 s15, 0x00020000
    s_mov_b32 s18, 262144
    s_mov_b32 s19, 0x00020000
    s_lshl_b32 {sW16}, {sW}, 14""", **P)
    issue(dma_stage(1), **P)
    s.es(f"""
    v_bfe_u32 v1, v0, 4, 1
    v_and_b32 v8, 7, v0
    v_xor_b32 v8, v8, v1
    v_lshlrev_b32 v8, 4, v8
    v_lshl_add_u32 v8, v44, 7, v8
    v_bfe_u32 v1, v0, 3, 2
    v_lshl_add_u32 v8, v1, 9, v8
    v_xor_b32 v9, {1024+32}, v8
    v_xor_b32 v10, {2048+64}, v8
    v_xor_b32 v11, {3072+96}, v8""".replace(f"v_xor_b32 v9, {1024+32}, v8", "v_xor_b32 v9, 32, v8\nv_add_u32 v9, 1024, v9")
       .replace(f"v_xor_b32 v10, {2048+64}, v8", "v_xor_b32 v10, 64, v8\nv_add_u32 v10, 2048, v10")
       .replace(f"v_xor_b32 v11, {3072+96}, v8", "v_xor_b32 v11, 0x60, v8\nv_add_u32 v11, 3072, v11"), **P)
    KL = stage_load([(0, 0), (1, 1)]) + stage_load([(2, 2), (3, 3)]) + stage_load([(4, 4), (5, 5)]) + stage_load([(6, 6)])
    if not OPT['pair']: KL = sum([stage_load([(n, n)]) for n in range(7)], [])
    if OPT['tp']:
        s.es(f"v_and_b32 v241, 15, v0\nv_lshlrev_b32 v241, 12, v241\ns_lshl_b32 {sL}, {sW}, 16", **P)
        vmop(f"buffer_load_dword v240, v241, {SK}, {sL} offen {OPT['tpm']}", **P)
        if OPT['tp'] > 1: vmop(f"buffer_load_dword v242, v241, {SV}, {sL} offen {OPT['tpm']}", **P)
    issue(KL[:OPT['kpre']], **P)
    KL = KL[OPT['kpre']:]
    s.e(f"s_mul_i32 {sT0}, {sH}, 229376\ns_add_u32 s24, s24, {sT0}\ns_addc_u32 s25, s25, 0", **P)
    s.e(f"s_mul_i32 {sT0}, {sB}, {140*16384}\ns_lshl_b32 {sT1}, {sH}, 10\ns_add_u32 {sT0}, {sT0}, {sT1}\ns_add_u32 s28, s4, {sT0}\ns_addc_u32 s29, s5, 0", **P)
    s.es(f"""
    s_mov_b32 s26, 229376
    s_mov_b32 s27, 0x00020000
    s_mov_b32 s30, {140*16384}
    s_mov_b32 s31, 0x00020000
    s_mov_b32 {sC}, 0x{f2u(math.log2(math.e)/16):08x}
    s_mul_i32 {sWOO}, {sW}, {32*896}
    s_mul_i32 {sWLO}, {sW}, {64*896}
    """, **P)
    s.es(f"""
    v_bfe_u32 v47, v0, 2, 2
    v_lshl_add_u32 v43, v44, 3, v47
    v_bfe_u32 v1, v0, 4, 1
    v_lshlrev_b32 v46, 5, v1
    v_and_b32 v1, 1, v0
    v_lshl_add_u32 v46, v1, 4, v46
    v_bfe_u32 v1, v0, 1, 1
    v_lshl_add_u32 v46, v1, 3, v46
    v_lshl_add_u32 v1, v47, 6, v46
    s_lshl_b32 {sT0}, {sW}, 6
    v_lshl_add_u32 v12, v43, 9, v1
    v_xor_b32 v12, {sT0}, v12
    v_xor_b32 v13, 64, v12
    v_xor_b32 v14, 0x80, v12
    v_xor_b32 v15, 0xc0, v12
    v_bfe_u32 v1, v0, 1, 3
    v_xor_b32 v1, v1, v44
    v_lshlrev_b32 v1, 4, v1
    v_lshl_add_u32 v1, v45, 7, v1
    v_add_u32 v20, {XB + 128*128}, v1
    s_lshl_b32 {sT0}, {sW}, 12
    s_add_u32 {sT0}, {sT0}, {XB}
    v_add_u32 v16, {sT0}, v1
    v_xor_b32 v17, 32, v16
    v_xor_b32 v18, 64, v16
    v_xor_b32 v19, 0x60, v16
    v_xor_b32 v21, 32, v20
    v_xor_b32 v22, 64, v20
    v_xor_b32 v23, 0x60, v20
    """, **P)
    s.es(f"""
    v_and_b32 v42, 0x13, v0
    v_bfe_u32 v1, v0, 2, 1
    v_lshl_or_b32 v42, v1, 3, v42
    v_bfe_u32 v1, v0, 3, 1
    v_lshl_or_b32 v42, v1, 2, v42
    v_bfe_u32 v1, v42, 1, 3
    v_xor_b32 v1, v1, v44
    v_lshlrev_b32 v1, 4, v1
    v_and_b32 v24, 3, v42
    v_lshl_add_u32 v1, v24, 7, v1
    v_lshrrev_b32 v24, 2, v42
    v_lshl_add_u32 v1, v24, 10, v1
    s_add_u32 {sT0}, {sM8}, 32768
    v_add_u32 v32, {sT0}, v1
    v_xor_b32 v33, 32, v32
    v_xor_b32 v34, 64, v32
    v_xor_b32 v35, 0x60, v32
    s_lshr_b32 {sT1}, {sW}, 1
    s_lshl_b32 {sT1}, {sT1}, 9
    s_and_b32 {sT2}, {sW}, 1
    s_lshl_b32 {sT2}, {sT2}, 6
    s_add_u32 {sT1}, {sT1}, {sT2}
    s_add_u32 {sT1}, {sT1}, 32768
    v_xor_b32 v24, {sT1}, v1
    """, **P)
    for jj in range(4):
        for half in range(2):
            if jj or half: s.e(f"v_xor_b32 v{24+2*jj+half}, {(jj>>1)*512 + (jj&1)*64 + half*32}, v24", **P)
    s.es(f"""
    v_lshlrev_b32 v1, 4, v0
    v_add_u32 v7, {sT0}, v1
    v_add_u32 v36, {S4}, v1
    s_lshl_b32 {sT0}, {sW}, 11
    v_add_u32 v37, {sT0}, v36
    """, **P)
    s.e(f"s_mul_i32 {sT1}, {sW}, 14", **P)
    for t in range(4):
        s.es(f"s_xor_b32 {sT0}, {sW}, {t}\ns_add_u32 {sT0}, {sT0}, {sT1}\ns_lshl_b32 s{sST+t}, {sT0}, 15", **P)
    s.es(f"""s_add_u32 {sT0}, {sW}, 56
    s_lshl_b32 s{sST+4}, {sT0}, 15
    s_and_b32 {sT2}, {sW}, 1
    s_add_u32 {sT0}, {sT1}, {sT2}
    s_add_u32 {sT0}, {sT0}, 12
    s_lshl_b32 s{sST+5}, {sT0}, 15
    s_sub_u32 {sT0}, {sT1}, {sT2}
    s_add_u32 {sT0}, {sT0}, 13
    s_lshl_b32 s{sST+6}, {sT0}, 15
    s_add_u32 {sT0}, {sT2}, 68
    s_lshl_b32 s{sST+7}, {sT0}, 15""", **P)

    ringc = [0]
    def ring():
        r = 224 + 4 * (ringc[0] % 8); ringc[0] += 1
        return r
    STAMPS = set(OPT['stamps'].split(','))
    def RB(name):
        s.bar(name, fn=(stamp if name in STAMPS else None), early=s.nmf - OPT['rb'])
    def WB(name, p0):
        s.bar(name, early=p0 + OPT['wb'], lgage=OPT['wage'], dl=p0 + OPT['wb'] + 2)
    def rebase(regs, delta):
        for r in regs:
            s.e(f"v_add_u32 v{r}, {delta}, v{r}" if delta > 0 else f"v_subrev_u32 v{r}, {-delta}, v{r}")
    def tr(ar, off, d2, **kw):
        r = ring()
        s.rd(f"ds_read_b64_tr_b16 {R('a', r, 2)}, v{ar} offset:{off}", **kw)
        s.rd(f"ds_read_b64_tr_b16 {R('a', r+2, 2)}, v{ar} offset:{off+d2}", **kw)
        return R('a', r, 4)
    def rd128(ar, off, dst=None, **kw):
        if dst is None: dst = R('a', ring(), 4)
        s.rd(f"ds_read_b128 {dst}, v{ar} offset:{off}", **kw)
        return dst
    def mf(acc, a, b, first): s.mf(f"{MF} {acc}, {a}, {b}, {'0' if first else acc}")

    def qconv(src, j):
        for q in range(16): s.e(f"v_mul_f32 v{src+q}, {sC}, v{src+q}")
        for q in range(8): s.e(f"v_cvt_pk_bf16_f32 v{src+2*q}, v{src+2*q}, v{src+2*q+1}")
        for q in range(8): s.e(f"v_accvgpr_write_b32 a{8*j+q}, v{src+2*q}")
    def pack_write(src, off, ab, bb):
        for q in range(8): s.e(f"v_cvt_pk_bf16_f32 v{src+q}, v{src+2*q}, v{src+2*q+1}")
        for half in range(2):
            s.ds(f"ds_write_b128 v37, {R('v', src+4*half, 4)} offset:{off + half*1024}", cost=OPT['wc'], ab=ab, bb=bb)
    JORD = [0, 4, 1, 2, 3, 5, 6, 7]
    trb = 0
    gx = [float(OPT['k0']), 0]
    def gpace(e0):
        while True:
            gx[0] = max(gx[0], e0)
            x = int(gx[0]); gx[1] += 1
            gx[0] += (OPT['kp'] if gx[1] + OPT['kpre'] < OPT['ksw'] else OPT['kp2']) / 10
            yield dict(early=x, dl=x + 2)
    kpc = gpace(0)
    kq = [(t, dict(a, **next(kpc))) for t, a in KL]
    def merged(L, upto):
        M = list(L)
        while kq and kq[0][1]['early'] < upto: M.append(kq.pop(0))
        M.sort(key=lambda x: x[1]['early'])
        issue(M)
    for i in range(7):
        p0 = s.nmf
        slot = (i % 3) * 32768; xs = (i % 3) * 20480
        RB(f"RA{i}")
        if i >= 1: WB(f"WA{i}", p0)
        L = []
        if i <= 4:
            pc = pace(p0 + (1 if i else -1), OPT['dp'])
            L = [(t, dict(a, **next(pc))) for t, a in dma_stage(i + 2, ab=(f"WA{i}" if i else None))]
        merged(L, p0 + 40 if i < 6 else 10**9)
        if i == 5: stage_write(0, 0, 'a', 'WA5', p0)
        if i == 6: stage_write(1, 1, 'b', 'WA6', p0 - OPT['w0'] + 2)
        want = slot & 0x10000
        if want != trb: rebase(range(12, 16), want - trb); trb = want
        kw = dict(ab=f"RA{i}", bb=(f"WA{i+1}" if i < 6 else "WS0"))
        def step(j, T, newx):
            xb = B(10) + 8 * T
            if newx: rd128(16 + T, xs, R('v', xb, 4), **kw)
            a = tr(12 + (j & 3), slot - trb + (j >> 2) * 256 + T * 8192, 2048, **kw)
            mf(R('v', B(j), 16), a, R('v', xb, 4), i == 0 and T == 0)
            if j in (0, 4):
                if newx: rd128(20 + T, xs, R('v', xb + 4, 4), **kw)
                mf(R('v', B(8 + (j >> 2)), 16), a, R('v', xb + 4, 4), i == 0 and T == 0)
        if i < 6:
            for T in range(4):
                for j in JORD: step(j, T, j == 0)
        else:
            for j in range(8):
                for T in range(4): step(j, T, j == 0)
                if OPT['dump'] == 'Q': continue
                if j in (0, 4):
                    sh = B(8 + (j >> 2))
                    for q in range(16): s.e(f"v_mul_f32 v{sh+q}, {sC}, v{sh+q}")
                    pack_write(sh, 16384 + (j >> 2) * 8192, 'WA6', f"RS{j>>2}")
                qconv(B(j), j)
    dump('Q', [f"v{r}" for r in range(B(0), B(10))])
    s.es(f"""
    v_lshrrev_b32 v42, 4, v0
    v_lshlrev_b32 v3, 2, v42
    v_and_b32 v2, 15, v0
    v_xor_b32 v2, v2, v3
    v_lshlrev_b32 v2, 4, v2
    v_lshl_add_u32 v2, v42, 9, v2
    v_add_u32 v3, 1024, v2
    v_add_u32 v4, 2048, v2
    v_add_u32 v5, 3072, v2
    v_lshl_add_u32 v45, v47, 6, v46
    v_lshl_add_u32 v45, v43, 8, v45
    s_lshl_b32 {sT0}, {sW}, 6
    s_add_u32 {sT0}, {sT0}, 65536
    v_xor_b32 v12, {sT0}, v45
    v_xor_b32 v13, 64, v12
    v_xor_b32 v14, 0x80, v12
    v_xor_b32 v15, 0xc0, v12
    """)

    SLOT = {0: 'a', 1: 'b', 2: 'a', 3: 'b', 4: 'a', 5: 'b', 6: 'a', 7: 'c', 8: 'd', 9: 'b', 10: 'd', 11: 'b', 12: 'a', 13: 'c', 14: 'd', 15: 'b',
            16: 'a', 17: 'c', 18: 'd', 19: 'b', 20: 'a', 21: 'c', 22: 'd'}
    TB = [[12, 11, 8, 10, 0], [1, 2, 3, 4, 5], [6, 7, 9, 11, 0], [5, 2, 4, 7, 10]]
    hooks = []
    firsts = {vSP: True, vSS: True}
    def softmax(g, t):
        src = B(TB[g][t]); regs = [f"v{src+q}" for q in range(16)]
        mx, sm = (vMP, vSP) if t < 4 else (vMS, vSS)
        h = len(hooks); hooks.append((src, mx))
        s.add(Op('e', f"s_cbranch_vccnz L_fix{h}\nL_ret{h}:", cost=8, R=regs + ['vcc', f"v{mx}"], W=regs + [f"v{mx}"]))
        for q in range(16):
            s.e(f"v_exp_f32 v{src+q}, v{src+q}")
        for q in range(16):
            if firsts[sm]:
                if q == 0: continue
                s.e(f"v_add_f32 v{sm}, v{src}, v{src+1}"); firsts[sm] = False
            else: s.e(f"v_add_f32 v{sm}, v{sm}, v{src+q}")
        if t < 4:
            dst = B(TB[g][t & 2]) + 8 * (t & 1)
            for q in range(8): s.e(f"v_cvt_pk_bf16_f32 v{dst+q}, v{src+2*q}, v{src+2*q+1}")
        else:
            pack_write(src, g * 8192, ['RS0', 'RS0', 'WS7', 'WS8'][g], f"RS{8+g}")
    def Pfrag(g, ks): return R('v', B(TB[g][(ks >> 1) & 2]) + 4 * (ks & 3), 4)
    kb = 32768
    vp = OPT['vp']
    for n in range(8):
        p0 = s.nmf
        g, dh = n >> 1, n & 1
        RB(f"RS{n}")
        if n != 6: WB(f"WS{n}", p0)
        if n == 0: issue(dma_tile(7, 'c', ab='WS0') + dma_tile(8, 'd', ab='WS0'), gpace(p0 + 1))
        if 1 <= n <= 5: stage_write(n + 1, n + 1, SLOT[n + 1], f"WS{n}", p0)
        if 1 <= n <= 3: issue(stage_load([(8 + n, n + 1)]), gpace(p0 + OPT['w0'] + 6))
        if n == 5: rebase([7], 32768); wbase[0] = 65536
        if n == 7: issue(dma_tile(12, 'a', ab='WS7'), gpace(p0 + 1))
        off0 = SL[SLOT[n]] - kb
        if not 0 <= off0 < 65536 - 32767:
            rebase(range(24, 36), off0); kb += off0; off0 = 0
        kw = dict(ab=f"RS{n}", bb=(f"WS{n+1}" if n != 5 else "RS7"))
        qkw = dict(ab=f"RS{n}", bb=(f"WS{n+1}" if n >= 6 else None))
        def step(t, ks):
            acc = R('v', B(TB[g][t]), 16); first = (dh == 0 and ks == 0)
            if t < 4:
                a = rd128(24 + ks, off0 + t * 8192, **kw)
                mf(acc, a, R('a', 32 * dh + 4 * ks, 4), first)
            else:
                a = rd128(32 + (ks & 3), off0 + (ks >> 2) * 512, **kw)
                b = rd128(36, 16384 + dh * 8192 + ks * 1024, **qkw)
                mf(acc, a, b, first)
        if n < 2:
            for ks in range(8):
                for t in range(5): step(t, ks)
            if dh and OPT['dump'] != 'S0':
                for t in (4, 0, 1, 2, 3): softmax(g, t)
        else:
            for t in (4, 0, 1, 2, 3):
                for ks in range(8): step(t, ks)
                if dh: softmax(g, t)
        if n == 1: dump('S0', [f"v{B(b)+q}" for b in TB[0] for q in range(16)])
    dump('P', [f"v{B(TB[g][t])+q}" for g in range(4) for t in (0, 2) for q in range(16)] + [f"v{vSP}", f"v{vSS}"])
    s.es(f"s_mul_i32 {sT0}, {sW}, {8192+64}\nv_xor_b32 v16, {sT0}, v45")
    for jj in range(4):
        for t in range(4):
            if jj or t: s.e(f"v_xor_b32 v{16+4*jj+t}, {jj*8192+t*64}, v16")
    s.es(f"""
    v_lshrrev_b32 v32, 1, v47
    v_lshl_add_u32 v32, v32, 6, v46
    v_lshl_add_u32 v32, v43, 7, v32
    s_and_b32 {sT1}, {sW}, 1
    s_lshl_b32 {sT1}, {sT1}, 6
    s_lshl_b32 {sT0}, {sW}, 12
    s_add_u32 {sT0}, {sT0}, {sT1}
    s_add_u32 {sT0}, {sT0}, {SL['d']}
    v_xor_b32 v32, {sT0}, v32
    v_xor_b32 v33, 64, v32
    v_xor_b32 v34, 4096, v32
    v_xor_b32 v35, {4096+64}, v32
    v_lshrrev_b32 v42, 4, v0
    v_and_b32 v42, 1, v42
    v_lshlrev_b32 v42, 2, v42
    v_and_b32 v8, 7, v0
    v_xor_b32 v8, v8, v42
    v_lshlrev_b32 v8, 4, v8
    v_lshrrev_b32 v42, 3, v0
    v_mul_u32_u24 v42, 896, v42
    v_add_u32 v8, v8, v42
    v_add_u32 v9, 6144, v8
    v_add_u32 v10, 12288, v8
    v_add_u32 v11, 18432, v8
    """)
    s.es(f"""
    v_mov_b32 v42, v{vSP}
    v_mov_b32 v43, v{vSS}
    v_permlane32_swap_b32 v42, v{vSP}
    v_permlane32_swap_b32 v43, v{vSS}
    v_add_f32 v{vSP}, v42, v{vSP}
    v_add_f32 v{vSS}, v43, v{vSS}
    v_subrev_u32 v42, {sLO}, v{vSP}
    v_mov_b32 v43, 0x7f800000
    v_cmp_le_u32 vcc, {sRNG}, v42
    v_cndmask_b32 v{vSS}, v{vSS}, v43, vcc
    v_rcp_f32 v{vSP}, v{vSP}
    v_lshlrev_b32 v6, 2, v0
    v_add_u32 v6, {S4}, v6
    s_lshl_b32 {sT0}, {sW}, 8
    v_add_u32 v42, {sT0}, v6
    """)
    s.ds(f"ds_write_b32 v42, v{vSS}", ab='WS13', bb='RS14')

    OA = [[R('a', 16 * j, 16) for j in range(4)] + [R('a', 192, 16)], [R('v', B(b), 16) for b in (0, 11, 2, 7, 10)]]
    tmpc = [0]
    def oconv_a(abase, dst, inv):
        for q in range(8):
            t = 42 + 2 * (tmpc[0] % 3); tmpc[0] += 1
            s.es(f"""v_accvgpr_read_b32 v{t}, a{abase+2*q}
            v_accvgpr_read_b32 v{t+1}, a{abase+2*q+1}
            v_mul_f32 v{t}, v{t}, v{inv}
            v_mul_f32 v{t+1}, v{t+1}, v{inv}
            v_cvt_pk_bf16_f32 v{dst+q}, v{t}, v{t+1}""")
    def oconv_v(src, dst, inv):
        for q in range(16): s.e(f"v_mul_f32 v{src+q}, v{src+q}, v{inv}")
        if dst is not None:
            for q in range(8): s.e(f"v_cvt_pk_bf16_f32 v{dst+q}, v{src+2*q}, v{src+2*q+1}")
    vb = 65536
    for n in range(8, 16):
        p0 = s.nmf
        dh, g = (n - 8) >> 2, (n - 8) & 3
        RB(f"RS{n}")
        if n != 11: WB(f"WS{n}", p0)
        if n == 8:
            stage_write(9, 2, 'b', 'RS7', p0)
            issue(dma_tile(13, 'c', ab='WS8') + stage_load([(14, 5)]), gpace(p0 + 1))
        if n == 9: stage_write(10, 3, 'd', 'WS9', p0)
        if n == 10: stage_write(11, 4, 'b', 'WS10', p0)
        if n == 12:
            issue(dma_tile(15, 'b', ab='WS12'), gpace(p0 + 1))
            s.es(f"""
            v_lshrrev_b32 v6, 4, v0
            v_mul_u32_u24 v6, {896-512}, v6
            v_add_u32 v2, v2, v6
            v_add_u32 v3, 2560, v2
            v_add_u32 v4, 5120, v2
            v_add_u32 v5, 7680, v2
            v_lshlrev_b32 v6, 2, v0
            v_add_u32 v6, {S4}, v6""")
        if n == 13: stage_write(14, 5, 'd', 'RS12', p0)
        if n >= 13: issue(dma_tile(n + 3, SLOT[n + 3], ab=f"WS{n}"), pace(p0 + 1, vp))
        if n == 14:
            for w_ in range(4): s.ds(f"ds_read_b32 v{44+w_}, v6 offset:{w_*256}", ab='RS14')
            s.es(f"""v_add_f32 v44, v44, v45
            v_add_f32 v46, v46, v47
            v_add_f32 v{vSS}, v44, v46
            v_subrev_u32 v44, {sLO}, v{vSS}""")
            s.add(Op('e', f"v_cmp_le_u32 vcc, {sRNG}, v44\ns_nop 1\ns_cbranch_vccnz L_slow\nL_checked:", cost=16, R=[f"v{vMP}", f"v{vMS}"], W=['#chk'], ab='RS14', bb='RS15'))
            s.e(f"v_rcp_f32 v{vSS}, v{vSS}")
            s.es(f"v_xor_b32 v6, 0x800, v37\nv_xor_b32 v40, 0x1000, v37\nv_xor_b32 v41, 0x1800, v37")
            oconv_a(192, B(1), vSS)
            for half in range(2):
                s.ds(f"ds_write_b128 v37, {R('v', B(1)+4*half, 4)} offset:{8192 + half*1024}", cost=OPT['wc'], ab='WS14', bb='RS16')
        off0 = SL[SLOT[n]] - vb
        if not 0 <= off0 <= 32768:
            nb = SL[SLOT[n]] & 0x10000
            rebase(range(12, 16), nb - vb); vb = nb; off0 = SL[SLOT[n]] - vb
        kw = dict(ab=f"RS{n}", bb=(f"WS{n+1}" if n != 10 else "RS12"))
        pkw = dict(ab=f"RS{n}", bb=(f"WS{n+1}" if n >= 12 else None))
        for j in range(4):
            for ks in range(8):
                a = tr(12 + j, off0 + ks * 4096, 1024, **kw)
                mf(OA[dh][j], a, Pfrag(g, ks), g == 0 and ks == 0)
                if j == 0:
                    b = rd128(36, g * 8192 + ks * 1024, **pkw)
                    mf(OA[dh][4], a, b, g == 0 and ks == 0)
            if n == 15 and OPT['dump'] != 'O':
                if j == 0:
                    oconv_v(B(10), None, vSS)
                    pack_write(B(10), 16384, 'WS15', 'RS17')
                oconv_v(B((0, 11, 2, 7)[j]), B((0, 2)[j >> 1]) + 8 * (j & 1), vSP)
        if n == 12:
            for j in range(4): oconv_a(16 * j, B((12, 8)[j >> 1]) + 8 * (j & 1), vSP)
    dump('O', [f"a{r}" for r in range(64)] + [f"v{B(b)+q}" for b in (0, 11, 2, 7) for q in range(16)] + [f"a{r}" for r in range(192, 208)]
         + [f"v{B(10)+q}" for q in range(16)] + [f"v{vSP}", f"v{vSS}"])

    s.es(f"v_xor_b32 v12, 8192, v32\nv_xor_b32 v13, 8192, v33\nv_xor_b32 v14, 8192, v34\nv_xor_b32 v15, 8192, v35")
    s.es(f"s_lshr_b32 {sT0}, {sW}, 1\ns_lshl_b32 {sT0}, {sT0}, 30\nv_add_u32 v7, {sT0}, v1")
    LA = [32, 33, 34, 35, 12, 13, 14, 15]
    OB = [[1, 3, 6, 9, 5], [4, 11, 7, 1, 10], [5, 6, 9, 4, 3], [10, 7, None, None, 11]]
    def Ofrag(dh, jj, half): return R('v', B(((12, 8), (0, 2))[dh][jj >> 1]) + 8 * (jj & 1) + 4 * half, 4)
    def Osh(dh, jj, half): return R('a', 96 + 32 * dh + 8 * jj + 4 * half, 4)
    QA = [37, 6, 40, 41]
    def store(g, t):
        src = B(OB[g][t])
        for q in range(8): s.e(f"v_cvt_pk_bf16_f32 v{src+q}, v{src+2*q}, v{src+2*q+1}")
        for half in range(2):
            if g < 3: sb = sST + t; off = g * 4 * 32768; vo = 1
            else: sb = sST + (5, 6, 0, 0, 7)[t]; off = 0; vo = 7 if t == 4 else 1
            s.vm(f"s_add_u32 {sS}, s{sb}, {off + half*16384}\nbuffer_store_dwordx4 {R('v', src+4*half, 4)}, v{vo}, {SWS}, {sS} offen {OPT['st']}",
                 cost=20, R=['#chk'], dl=s.nmf + 6)
    wb = 0
    for n in range(16, 23):
        p0 = s.nmf
        g, dh = (n - 16) >> 1, (n - 16) & 1
        RB(f"RS{n}")
        if n <= 19:
            WB(f"WS{n}", p0)
            issue(dma_tile(n + 3, SLOT[n + 3], ab=f"WS{n}"), pace(p0 + 1, vp))
        kw = dict(ab=f"RS{n}", bb=(f"WS{n+1}" if n <= 18 else None))
        if n < 22:
            nb = SL[SLOT[n]] & 0x10000
            if nb != wb: rebase(range(16, 32), nb - wb); wb = nb
            off0 = SL[SLOT[n]] - wb
            for t in range(4):
                for jj in range(4):
                    for half in range(2):
                        first = dh == 0 and jj == 0 and half == 0
                        a = tr(16 + 4 * jj + t, off0 + half * 4096, 1024, **kw)
                        mf(R('v', B(OB[g][t]), 16), a, Ofrag(dh, jj, half), first)
                        if t == 0:
                            if g == 0: rd128(QA[jj], 8192 + dh * 8192 + half * 1024, Osh(dh, jj, half), ab=f"RS{n}")
                            mf(R('v', B(OB[g][4]), 16), a, Osh(dh, jj, half), first)
                if dh:
                    store(g, t)
                    if t == 0: store(g, 4)
        else:
            for t in range(2):
                for d2 in range(2):
                    for jj in range(4):
                        for half in range(2):
                            first = d2 == 0 and jj == 0 and half == 0
                            a = tr(LA[2 * jj + t], d2 * 16384 + half * 2048, 512, **kw)
                            mf(R('v', B(OB[3][t]), 16), a, Ofrag(d2, jj, half), first)
                            if t == 0: mf(R('v', B(OB[3][4]), 16), a, Osh(d2, jj, half), first)
                store(3, t)
                if t == 0: store(3, 4)
    s.build()
    s.run(budget=OPT['bud'], maxlg=OPT['maxlg'], delay=OPT['delay'], dsage=OPT['dsage'], maxds=OPT['maxds'])
    if OPT['ts']:
        stamp()
        k.wait(vm0=True)
        stamp()
        e(f"""s_add_u32 s8, s4, 0x0ff00000
        s_addc_u32 s9, s5, 0
        s_mov_b32 s10, 0x100000
        s_cmp_lg_u32 {sW}, 0
        s_cbranch_scc1 L_exit
        s_mov_b64 exec, 1
        s_lshl_b32 s3, s2, 8
        v_mov_b32 v1, s3
        v_mov_b32 v2, {nst[0]}
        v_mov_b32 v3, 0
        buffer_store_dwordx2 v[2:3], v1, s[8:11], 0 offen""")
        for j in range(nst[0]):
            e(f"v_mov_b32 v4, s{sTS+2*j}\nv_mov_b32 v5, s{sTS+1+2*j}\nbuffer_store_dwordx2 v[4:5], v1, s[8:11], 0 offen offset:{8+8*j}\ns_nop 1")
        e("s_waitcnt vmcnt(0)")
    e("L_exit:\ns_endpgm")
    for h, (src, mx) in enumerate(hooks):
        e(f"L_fix{h}:\ns_nop 7\ns_nop 7\ns_cmp_eq_u32 {sPASS}, 2\ns_cbranch_scc1 L_sub{h}")
        for q in range(0, 16, 2): e(f"v_max3_f32 v{mx}, v{src+q}, v{src+q+1}, v{mx}")
        e(f"s_branch L_ret{h}\nL_sub{h}:")
        for q in range(16): e(f"v_sub_f32 v{src+q}, v{src+q}, v{mx}")
        e(f"s_branch L_ret{h}")
    e(f"""L_slow:
    s_cmp_eq_u32 {sPASS}, 2
    s_cbranch_scc1 L_checked
    s_nop 7
    s_nop 7
    s_waitcnt vmcnt(0) lgkmcnt(0)
    s_barrier
    s_mov_b64 vcc, -1
    s_cmp_eq_u32 {sPASS}, 1
    s_cbranch_scc1 L_slow2
    s_mov_b32 {sPASS}, 1
    s_mov_b32 {sRNG}, 0
    v_mov_b32 v{vMP}, 0xff800000
    v_mov_b32 v{vMS}, 0xff800000
    s_branch L_start
    L_slow2:
    s_mov_b32 {sPASS}, 2
    s_mov_b32 {sLO}, 0
    s_mov_b32 {sRNG}, -1
    v_mov_b32 v42, v{vMP}
    v_mov_b32 v43, v{vMS}
    s_nop 1
    v_permlane32_swap_b32 v42, v{vMP}
    v_permlane32_swap_b32 v43, v{vMS}
    v_lshlrev_b32 v44, 2, v0
    s_lshl_b32 {sT0}, {sW}, 8
    v_max_f32 v{vMP}, v42, v{vMP}
    v_max_f32 v{vMS}, v43, v{vMS}
    v_add_u32 v45, {sT0}, v44
    ds_write_b32 v45, v{vMS}
    s_waitcnt lgkmcnt(0)
    s_barrier
    ds_read_b32 v42, v44
    ds_read_b32 v43, v44 offset:256
    ds_read_b32 v45, v44 offset:512
    ds_read_b32 v46, v44 offset:768
    s_waitcnt lgkmcnt(0)
    v_max3_f32 v{vMS}, v42, v43, v45
    v_max_f32 v{vMS}, v{vMS}, v46
    s_barrier
    s_branch L_start""")
    txt, added = k.text()
    est = s.est
    per = [sum(est[i:i + 40]) for i in range(0, len(est), 40)]
    print(f"main: {len(k.L)} lines, nops {added}, forced {s.forced}, mfma {len(est)}, est {sum(est)}; per40: {per}", file=sys.stderr)
    if OPT['verbose']:
        print("use:", s.use, file=sys.stderr)
        print("bars:", {n: o.gap for n, o in s.bars.items()}, file=sys.stderr)
    return txt

if __name__ == "__main__":
    out = sys.argv[1]
    sys.argv = sys.argv[:2] + ([f"ts={OPT['ts']}"] if OPT['ts'] else []) + ([f"diag={OPT['diag']}"] if OPT['diag'] else [])
    import gen
    m = main_kernel()
    L = [("mha_main_kernel", 256, 256, 163840), ("mha_reduce_kernel", 560, 256, 0)]
    KS = [("mha_main_kernel", m, 512, 256), ("mha_reduce_kernel", gen.reduce_kernel(), 80, 80)]
    if OPT['dup'] == 1: L.insert(0, L[0])
    if OPT['dup'] == 2:
        L.insert(0, ("mha_copy_kernel", 256, 256, 163840)); KS.append(("mha_copy_kernel", m.replace("L_", "M_"), 512, 256))
    if OPT['diag']:
        L.append(("mha_diag_kernel", 1, 64, 0)); KS.append(("mha_diag_kernel", gen.diag_kernel(), 64, 64))
    write_file(out, HEADER, L, KS)
```

```python
import sys, math, struct
sys.path.insert(0, "work")
from asmlib import K, write_file
from sch import Sched, Op

OPT = dict(arr='N', ts=0, dump='', nt='nt', st='', bud=24, maxlg=14, delay=3, dsage=4, maxds=3,
           rb=9, wb=0, wage=6, dc=16, wc=16, lc=12,
           kpre=0, k0=0, kp=80, kp2=50, ksw=32, pair=1, tp=0, tpm='', stamps='RA0,RA3,RS0,RS2,RS4,RS6,RS8,RS10,RS12,RS14,RS16,RS18,RS20,RS22',
           w0=14, wp=2,
           dp=2, vp=3, verbose=0, red=0, lo=-20, hi=30, diag='', dup=0, cp=0, cpm='', cps=7)
for a in sys.argv[2:]:
    kk, vv = a.split('=')
    assert kk in OPT, kk
    OPT[kk] = int(vv) if vv.lstrip('-').isdigit() else vv

HEADER = "".join(l for l in open("standalone__mha_block_cached__near_ridge.s.ref").read().splitlines(True)[:11])
MF = "v_mfma_f32_32x32x16_bf16"
def R(p, lo, n): return f"{p}[{lo}:{lo+n-1}]"
def f2u(x): return struct.unpack('<I', struct.pack('<f', x))[0]
SX, SK, SV, SWQ, SWO, SWS = "s[8:11]", "s[12:15]", "s[16:19]", "s[20:23]", "s[24:27]", "s[28:31]"
sW, sB, sH = "s32", "s33", "s34"
sT0, sT1, sT2 = "s36", "s37", "s38"
sC = "s39"
sWQO, sXO, sM8, sM1, sW16, sWOO, sWLO = "s40", "s41", "s42", "s43", "s44", "s45", "s46"
sST = 47
sD, sL, sS = "s55", "s56", "s35"
sPASS, sLO, sRNG = "s57", "s58", "s59"
sTS = 60
XB = 96 * 1024
S4 = 128 * 1024
SL = dict(a=32768, b=65536, c=0, d=98304)
def B(i): return 48 + 16 * i
vSP, vSS, vMP, vMS = 38, 39, 40, 41

def main_kernel():
    k = K(); e = k.e
    s = Sched(k)
    nst = [0]
    TSI = 's_memtime' if OPT['ts'] == 2 else 's_memrealtime'
    def stamp():
        if OPT['ts']:
            k.wait(lg0=True)
            e(f"{TSI} s[{sTS+2*nst[0]}:{sTS+1+2*nst[0]}]\ns_waitcnt lgkmcnt(0)")
            nst[0] += 1
    def dump(name, regs):
        if OPT['dump'] != name: return
        def fn(op):
            e("s_nop 7\ns_nop 7\ns_waitcnt vmcnt(0) lgkmcnt(0)")
            e(f"s_mul_i32 {sT0}, {sB}, 64\ns_lshl_b32 {sT1}, {sH}, 2\ns_add_u32 {sT0}, {sT0}, {sT1}\ns_add_u32 {sT0}, {sT0}, {sW}\ns_lshl_b32 {sT0}, {sT0}, 17")
            e("s_add_u32 s8, s4, 0x4000000\ns_addc_u32 s9, s5, 0\ns_mov_b32 s10, 0x8000000\ns_mov_b32 s11, 0x00020000")
            e("v_lshlrev_b32 v0, 2, v0")
            for i, r in enumerate(regs):
                e(f"buffer_store_dword {r}, v0, s[8:11], {sT0} offen\ns_add_u32 {sT0}, {sT0}, 256")
                if i % 32 == 31: e("s_waitcnt vmcnt(0)")
            e("s_waitcnt vmcnt(0)\ns_branch L_exit")
        s.add(Op('e', 's_nop 0', R=regs, W=regs, fn=fn, dl=s.nmf))

    if OPT['ts']:
        e(f"{TSI} s[{sTS}:{sTS+1}]"); nst[0] = 1
    e(f"""
    s_cmp_ge_u32 s2, 256
    s_cbranch_scc1 L_exit
    v_lshrrev_b32 v1, 6, v0
    v_and_b32 v0, 63, v0
    s_mov_b32 {sPASS}, 0
    v_readfirstlane_b32 {sW}, v1
    s_mov_b64 vcc, 0
    s_mov_b32 {sLO}, 0x{(127 + OPT['lo']) << 23:08x}
    s_mov_b32 {sRNG}, 0x{(OPT['hi'] - OPT['lo']) << 23:08x}
    L_start:
    s_load_dwordx2 s[8:9], s[0:1], 0
    s_load_dwordx2 s[20:21], s[0:1], 24
    s_load_dwordx2 s[12:13], s[0:1], 8
    s_load_dwordx2 s[16:17], s[0:1], 16
    s_load_dwordx2 s[24:25], s[0:1], 32
    s_load_dwordx2 s[4:5], s[0:1], 56
    s_and_b32 {sT0}, s2, 7
    s_lshr_b32 {sT1}, s2, 3
    """)
    arr = OPT['arr']
    if arr == 'N':
        e(f"""s_lshr_b32 {sB}, {sT0}, 1
        s_lshl_b32 {sB}, {sB}, 2
        s_lshr_b32 {sT2}, {sT1}, 3
        s_add_u32 {sB}, {sB}, {sT2}
        s_and_b32 {sH}, {sT0}, 1
        s_lshl_b32 {sH}, {sH}, 3
        s_and_b32 {sT2}, {sT1}, 7
        s_add_u32 {sH}, {sH}, {sT2}""")
    elif arr == 'L':
        e(f"""s_lshl_b32 {sB}, {sT0}, 1
        s_lshr_b32 {sT2}, {sT1}, 4
        s_add_u32 {sB}, {sB}, {sT2}
        s_and_b32 {sH}, {sT1}, 15""")
    elif arr == 'M':
        e(f"""s_lshr_b32 {sB}, {sT0}, 2
        s_lshl_b32 {sB}, {sB}, 3
        s_lshr_b32 {sT2}, {sT1}, 2
        s_add_u32 {sB}, {sB}, {sT2}
        s_and_b32 {sH}, {sT0}, 3
        s_lshl_b32 {sH}, {sH}, 2
        s_and_b32 {sT2}, {sT1}, 3
        s_add_u32 {sH}, {sH}, {sT2}""")
    e(f"""
    s_mov_b32 s10, 143360
    s_mov_b32 s11, 0x00020000
    s_mov_b32 s23, 0x00020000
    s_lshl_b32 {sM8}, {sW}, 13
    s_lshl_b32 {sM1}, {sW}, 10
    s_lshl_b32 {sWQO}, {sW}, 17
    s_mul_i32 {sXO}, {sW}, 7168
    v_lshrrev_b32 v44, 5, v0                 ; hh
    v_and_b32 v45, 31, v0                    ; c
    v_lshlrev_b32 v1, 2, v44
    v_xor_b32 v1, v1, v45
    v_lshlrev_b32 v1, 4, v1
    v_lshl_add_u32 v2, v44, 13, v1
    v_xor_b32 v3, 0x80, v2
    v_add_u32 v3, 15360, v3
    v_add_u32 v4, 30720, v2
    v_add_u32 v5, 30720, v3
    s_and_b32 {sT2}, {sW}, 1
    s_lshl_b32 {sT0}, {sT2}, 2
    v_lshrrev_b32 v6, 4, v0
    v_xor_b32 v6, {sT0}, v6
    v_and_b32 v1, 7, v0
    v_xor_b32 v6, v6, v1
    v_lshlrev_b32 v6, 4, v6
    v_lshrrev_b32 v1, 3, v0
    v_mul_u32_u24 v1, 896, v1
    v_add_u32 v6, v6, v1                     ; x voff
    s_mul_i32 {sT0}, {sB}, 143360
    s_lshl_b32 {sT1}, {sH}, 9
    s_waitcnt lgkmcnt(0)
    s_add_u32 s8, s8, {sT0}
    s_addc_u32 s9, s9, 0
    s_add_u32 s20, s20, {sT1}
    s_addc_u32 s21, s21, 0
    s_sub_u32 s22, 3670016, {sT1}
    """)
    dc, lc = OPT['dc'], OPT['lc']
    def vmop(text, **kw):
        n = text.count('\n')
        return s.vm(text, cost=kw.pop('cost', dc) + 4 * n, chain='vm', **kw)
    def pace(e0, p):
        i = 0
        while True:
            x = e0 + int(i * p)
            yield dict(early=x, dl=x + 2)
            i += 1
    def dma_stage(i, pc=None, **kw):
        L = []
        slot = (i % 3) * 32768; xs = XB + (i % 3) * 20480
        for u in range(2):
            for ii in range(4):
                t = f"s_add_u32 m0, {sM8}, {slot + u*4096}\ns_add_u32 {sD}, {sWQO}, {(i << 19) + u*65536}\n" if ii == 0 else ""
                L.append(t + f"buffer_load_dwordx4 v{2+ii}, {SWQ}, {sD} offen offset:{ii*1024} lds")
        X = []
        for u in range(5):
            X.append(f"s_add_u32 m0, {sM1}, {xs + u*4096}\ns_add_u32 {sD}, {sXO}, {i*128 + u*4*7168}\nbuffer_load_dwordx4 v6, {SX}, {sD} offen lds")
        return [(t, dict(bb=f"RA{i}", **kw)) for t in L + X]
    def dma_tile(n, slot, **kw):
        L = []
        for u in range(2):
            for ii in range(4):
                if n < 16:
                    i, dh = (n >> 1, n & 1) if n < 8 else ((n - 8) & 3, (n - 8) >> 2)
                    so = f"{sW16}, {i*65536 + dh*256 + u*8192}"; vo = (8 if n < 8 else 2) + ii; srd = SK if n < 8 else SV; m = OPT['nt']
                elif n < 22:
                    g, dh = (n - 16) >> 1, (n - 16) & 1
                    so = f"{sWOO}, {(dh*128 + 16*u)*896 + g*256}"; vo = 2 + ii; srd = SWO; m = ''
                else:
                    so = f"{sWLO}, {32*u*896 + 768}"; vo = 8 + ii; srd = SWO; m = ''
                t = f"s_add_u32 m0, {sM8}, {SL[slot] + u*4096}\ns_add_u32 {sD}, {so}\n" if ii == 0 else ""
                L.append(t + f"buffer_load_dwordx4 v{vo}, {srd}, {sD} offen offset:{ii*1024} {m} lds")
        return [(t, dict(bb=f"RS{n}", **kw)) for t in L]
    def stage_load(tiles, **kw):
        L = []
        for u in range(2):
            for ii in range(4):
                for x, (n, r) in enumerate(tiles):
                    i, dh = (n >> 1, n & 1) if n < 8 else ((n - 8) & 3, (n - 8) >> 2)
                    t = f"s_add_u32 {sL}, {sW16}, {i*65536 + u*8192}\n" if ii == 0 and x == 0 else ""
                    vo = (8 if n < 8 else 2) + ii; srd = SK if n < 8 else SV
                    L.append(t + f"buffer_load_dwordx4 {R('a', 32*r + 16*u + 4*ii, 4)}, v{vo}, {srd}, {sL} offen offset:{ii*1024 + dh*256} {OPT['nt']}")
        return [(t, dict(cost=lc, **kw)) for t in L]
    def issue(L, pc=None, **kw):
        for t, a in L:
            a = dict(a); a.update(kw)
            if pc is not None: a.update(next(pc))
            vmop(t, **a)
    wbase = [32768]
    def stage_write(n, r, slot, ab, p0):
        for u in range(2):
            for ii in range(4):
                off = SL[slot] - wbase[0] + u * 4096 + ii * 1024
                assert 0 <= off < 65536
                x = p0 + OPT['w0'] + OPT['wp'] * (4 * u + ii)
                s.ds(f"ds_write_b128 v7, {R('a', 32*r + 16*u + 4*ii, 4)} offset:{off}", cost=OPT['wc'], ab=ab, bb=f"RS{n}", early=x, dl=x + 1)
    P = dict(pre=True)
    issue(dma_stage(0), **P)
    s.es(f"""
    s_lshl_b32 {sT0}, {sB}, 4
    s_add_u32 {sT0}, {sT0}, {sH}
    s_lshl_b32 {sT0}, {sT0}, 18""", **P)
    s.e(f"s_add_u32 s16, s16, {sT0}\ns_addc_u32 s17, s17, 0\ns_add_u32 s12, s12, {sT0}\ns_addc_u32 s13, s13, 0", **P)
    s.es(f"""
    s_mov_b32 s14, 262144
    s_mov_b32 s15, 0x00020000
    s_mov_b32 s18, 262144
    s_mov_b32 s19, 0x00020000
    s_lshl_b32 {sW16}, {sW}, 14""", **P)
    issue(dma_stage(1), **P)
    s.es(f"""
    v_bfe_u32 v1, v0, 4, 1
    v_and_b32 v8, 7, v0
    v_xor_b32 v8, v8, v1
    v_lshlrev_b32 v8, 4, v8
    v_lshl_add_u32 v8, v44, 7, v8
    v_bfe_u32 v1, v0, 3, 2
    v_lshl_add_u32 v8, v1, 9, v8
    v_xor_b32 v9, {1024+32}, v8
    v_xor_b32 v10, {2048+64}, v8
    v_xor_b32 v11, {3072+96}, v8""".replace(f"v_xor_b32 v9, {1024+32}, v8", "v_xor_b32 v9, 32, v8\nv_add_u32 v9, 1024, v9")
       .replace(f"v_xor_b32 v10, {2048+64}, v8", "v_xor_b32 v10, 64, v8\nv_add_u32 v10, 2048, v10")
       .replace(f"v_xor_b32 v11, {3072+96}, v8", "v_xor_b32 v11, 0x60, v8\nv_add_u32 v11, 3072, v11"), **P)
    KL = stage_load([(0, 0), (1, 1)]) + stage_load([(2, 2), (3, 3)]) + stage_load([(4, 4), (5, 5)]) + stage_load([(6, 6)])
    if not OPT['pair']: KL = sum([stage_load([(n, n)]) for n in range(7)], [])
    if OPT['tp']:
        s.es(f"v_and_b32 v241, 15, v0\nv_lshlrev_b32 v241, 12, v241\ns_lshl_b32 {sL}, {sW}, 16", **P)
        vmop(f"buffer_load_dword v240, v241, {SK}, {sL} offen {OPT['tpm']}", **P)
        if OPT['tp'] > 1: vmop(f"buffer_load_dword v242, v241, {SV}, {sL} offen {OPT['tpm']}", **P)
    if OPT['cp']:
        st = OPT['cps']; span = 256 << st
        s.e(f"s_getpc_b64 s[96:97]\nL_pc:", **P)
        s.es(f"""s_lshl_b32 {sT0}, {sW}, {6+st}
        v_lshlrev_b32 v244, {st}, v0
        v_add_u32 v244, {sT0}, v244
        s_mov_b32 {sT1}, L_codeend-L_pc-4""", **P)
        for j in range(65536 // span):
            s.es(f"""v_add_u32 v242, {j*span}, v244
            v_min_u32 v242, {sT1}, v242
            v_mov_b32 v243, s97""", **P)
            s.add(Op('e', f"v_add_co_u32 v242, s[98:99], s96, v242\ns_nop 1\nv_addc_co_u32 v243, s[98:99], 0, v243, s[98:99]", R=['v242','v243','s96'], W=['v242','v243','s98','s99'], pre=True))
            s.add(Op('vm', f"global_load_dword v{240+(j&1)}, v[242:243], off {OPT['cpm']}", R=['v242','v243'], W=[f"v{240+(j&1)}"], chain='vm', pre=True))
    issue(KL[:OPT['kpre']], **P)
    KL = KL[OPT['kpre']:]
    s.e(f"s_mul_i32 {sT0}, {sH}, 229376\ns_add_u32 s24, s24, {sT0}\ns_addc_u32 s25, s25, 0", **P)
    s.e(f"s_mul_i32 {sT0}, {sB}, {140*16384}\ns_lshl_b32 {sT1}, {sH}, 10\ns_add_u32 {sT0}, {sT0}, {sT1}\ns_add_u32 s28, s4, {sT0}\ns_addc_u32 s29, s5, 0", **P)
    s.es(f"""
    s_mov_b32 s26, 229376
    s_mov_b32 s27, 0x00020000
    s_mov_b32 s30, {140*16384}
    s_mov_b32 s31, 0x00020000
    s_mov_b32 {sC}, 0x{f2u(math.log2(math.e)/16):08x}
    s_mul_i32 {sWOO}, {sW}, {32*896}
    s_mul_i32 {sWLO}, {sW}, {64*896}
    """, **P)
    s.es(f"""
    v_bfe_u32 v47, v0, 2, 2
    v_lshl_add_u32 v43, v44, 3, v47
    v_bfe_u32 v1, v0, 4, 1
    v_lshlrev_b32 v46, 5, v1
    v_and_b32 v1, 1, v0
    v_lshl_add_u32 v46, v1, 4, v46
    v_bfe_u32 v1, v0, 1, 1
    v_lshl_add_u32 v46, v1, 3, v46
    v_lshl_add_u32 v1, v47, 6, v46
    s_lshl_b32 {sT0}, {sW}, 6
    v_lshl_add_u32 v12, v43, 9, v1
    v_xor_b32 v12, {sT0}, v12
    v_xor_b32 v13, 64, v12
    v_xor_b32 v14, 0x80, v12
    v_xor_b32 v15, 0xc0, v12
    v_bfe_u32 v1, v0, 1, 3
    v_xor_b32 v1, v1, v44
    v_lshlrev_b32 v1, 4, v1
    v_lshl_add_u32 v1, v45, 7, v1
    v_add_u32 v20, {XB + 128*128}, v1
    s_lshl_b32 {sT0}, {sW}, 12
    s_add_u32 {sT0}, {sT0}, {XB}
    v_add_u32 v16, {sT0}, v1
    v_xor_b32 v17, 32, v16
    v_xor_b32 v18, 64, v16
    v_xor_b32 v19, 0x60, v16
    v_xor_b32 v21, 32, v20
    v_xor_b32 v22, 64, v20
    v_xor_b32 v23, 0x60, v20
    """, **P)
    s.es(f"""
    v_and_b32 v42, 0x13, v0
    v_bfe_u32 v1, v0, 2, 1
    v_lshl_or_b32 v42, v1, 3, v42
    v_bfe_u32 v1, v0, 3, 1
    v_lshl_or_b32 v42, v1, 2, v42
    v_bfe_u32 v1, v42, 1, 3
    v_xor_b32 v1, v1, v44
    v_lshlrev_b32 v1, 4, v1
    v_and_b32 v24, 3, v42
    v_lshl_add_u32 v1, v24, 7, v1
    v_lshrrev_b32 v24, 2, v42
    v_lshl_add_u32 v1, v24, 10, v1
    s_add_u32 {sT0}, {sM8}, 32768
    v_add_u32 v32, {sT0}, v1
    v_xor_b32 v33, 32, v32
    v_xor_b32 v34, 64, v32
    v_xor_b32 v35, 0x60, v32
    s_lshr_b32 {sT1}, {sW}, 1
    s_lshl_b32 {sT1}, {sT1}, 9
    s_and_b32 {sT2}, {sW}, 1
    s_lshl_b32 {sT2}, {sT2}, 6
    s_add_u32 {sT1}, {sT1}, {sT2}
    s_add_u32 {sT1}, {sT1}, 32768
    v_xor_b32 v24, {sT1}, v1
    """, **P)
    for jj in range(4):
        for half in range(2):
            if jj or half: s.e(f"v_xor_b32 v{24+2*jj+half}, {(jj>>1)*512 + (jj&1)*64 + half*32}, v24", **P)
    s.es(f"""
    v_lshlrev_b32 v1, 4, v0
    v_add_u32 v7, {sT0}, v1
    v_add_u32 v36, {S4}, v1
    s_lshl_b32 {sT0}, {sW}, 11
    v_add_u32 v37, {sT0}, v36
    """, **P)
    s.e(f"s_mul_i32 {sT1}, {sW}, 14", **P)
    for t in range(4):
        s.es(f"s_xor_b32 {sT0}, {sW}, {t}\ns_add_u32 {sT0}, {sT0}, {sT1}\ns_lshl_b32 s{sST+t}, {sT0}, 15", **P)
    s.es(f"""s_add_u32 {sT0}, {sW}, 56
    s_lshl_b32 s{sST+4}, {sT0}, 15
    s_and_b32 {sT2}, {sW}, 1
    s_add_u32 {sT0}, {sT1}, {sT2}
    s_add_u32 {sT0}, {sT0}, 12
    s_lshl_b32 s{sST+5}, {sT0}, 15
    s_sub_u32 {sT0}, {sT1}, {sT2}
    s_add_u32 {sT0}, {sT0}, 13
    s_lshl_b32 s{sST+6}, {sT0}, 15
    s_add_u32 {sT0}, {sT2}, 68
    s_lshl_b32 s{sST+7}, {sT0}, 15""", **P)

    ringc = [0]
    def ring():
        r = 224 + 4 * (ringc[0] % 8); ringc[0] += 1
        return r
    STAMPS = set(OPT['stamps'].split(','))
    def RB(name):
        s.bar(name, fn=(stamp if name in STAMPS else None), early=s.nmf - OPT['rb'])
    def WB(name, p0):
        s.bar(name, early=p0 + OPT['wb'], lgage=OPT['wage'], dl=p0 + OPT['wb'] + 2)
    def rebase(regs, delta):
        for r in regs:
            s.e(f"v_add_u32 v{r}, {delta}, v{r}" if delta > 0 else f"v_subrev_u32 v{r}, {-delta}, v{r}")
    def tr(ar, off, d2, **kw):
        r = ring()
        s.rd(f"ds_read_b64_tr_b16 {R('a', r, 2)}, v{ar} offset:{off}", **kw)
        s.rd(f"ds_read_b64_tr_b16 {R('a', r+2, 2)}, v{ar} offset:{off+d2}", **kw)
        return R('a', r, 4)
    def rd128(ar, off, dst=None, **kw):
        if dst is None: dst = R('a', ring(), 4)
        s.rd(f"ds_read_b128 {dst}, v{ar} offset:{off}", **kw)
        return dst
    def mf(acc, a, b, first): s.mf(f"{MF} {acc}, {a}, {b}, {'0' if first else acc}")

    def qconv(src, j):
        for q in range(16): s.e(f"v_mul_f32 v{src+q}, {sC}, v{src+q}")
        for q in range(8): s.e(f"v_cvt_pk_bf16_f32 v{src+2*q}, v{src+2*q}, v{src+2*q+1}")
        for q in range(8): s.e(f"v_accvgpr_write_b32 a{8*j+q}, v{src+2*q}")
    def pack_write(src, off, ab, bb):
        for q in range(8): s.e(f"v_cvt_pk_bf16_f32 v{src+q}, v{src+2*q}, v{src+2*q+1}")
        for half in range(2):
            s.ds(f"ds_write_b128 v37, {R('v', src+4*half, 4)} offset:{off + half*1024}", cost=OPT['wc'], ab=ab, bb=bb)
    JORD = [0, 4, 1, 2, 3, 5, 6, 7]
    trb = 0
    gx = [float(OPT['k0']), 0]
    def gpace(e0):
        while True:
            gx[0] = max(gx[0], e0)
            x = int(gx[0]); gx[1] += 1
            gx[0] += (OPT['kp'] if gx[1] + OPT['kpre'] < OPT['ksw'] else OPT['kp2']) / 10
            yield dict(early=x, dl=x + 2)
    kpc = gpace(0)
    kq = [(t, dict(a, **next(kpc))) for t, a in KL]
    def merged(L, upto):
        M = list(L)
        while kq and kq[0][1]['early'] < upto: M.append(kq.pop(0))
        M.sort(key=lambda x: x[1]['early'])
        issue(M)
    for i in range(7):
        p0 = s.nmf
        slot = (i % 3) * 32768; xs = (i % 3) * 20480
        RB(f"RA{i}")
        if i >= 1: WB(f"WA{i}", p0)
        L = []
        if i <= 4:
            pc = pace(p0 + (1 if i else -1), OPT['dp'])
            L = [(t, dict(a, **next(pc))) for t, a in dma_stage(i + 2, ab=(f"WA{i}" if i else None))]
        merged(L, p0 + 40 if i < 6 else 10**9)
        if i == 5: stage_write(0, 0, 'a', 'WA5', p0)
        if i == 6: stage_write(1, 1, 'b', 'WA6', p0 - OPT['w0'] + 2)
        want = slot & 0x10000
        if want != trb: rebase(range(12, 16), want - trb); trb = want
        kw = dict(ab=f"RA{i}", bb=(f"WA{i+1}" if i < 6 else "WS0"))
        def step(j, T, newx):
            xb = B(10) + 8 * T
            if newx: rd128(16 + T, xs, R('v', xb, 4), **kw)
            a = tr(12 + (j & 3), slot - trb + (j >> 2) * 256 + T * 8192, 2048, **kw)
            mf(R('v', B(j), 16), a, R('v', xb, 4), i == 0 and T == 0)
            if j in (0, 4):
                if newx: rd128(20 + T, xs, R('v', xb + 4, 4), **kw)
                mf(R('v', B(8 + (j >> 2)), 16), a, R('v', xb + 4, 4), i == 0 and T == 0)
        if i < 6:
            for T in range(4):
                for j in JORD: step(j, T, j == 0)
        else:
            for j in range(8):
                for T in range(4): step(j, T, j == 0)
                if OPT['dump'] == 'Q': continue
                if j in (0, 4):
                    sh = B(8 + (j >> 2))
                    for q in range(16): s.e(f"v_mul_f32 v{sh+q}, {sC}, v{sh+q}")
                    pack_write(sh, 16384 + (j >> 2) * 8192, 'WA6', f"RS{j>>2}")
                qconv(B(j), j)
    dump('Q', [f"v{r}" for r in range(B(0), B(10))])
    s.es(f"""
    v_lshrrev_b32 v42, 4, v0
    v_lshlrev_b32 v3, 2, v42
    v_and_b32 v2, 15, v0
    v_xor_b32 v2, v2, v3
    v_lshlrev_b32 v2, 4, v2
    v_lshl_add_u32 v2, v42, 9, v2
    v_add_u32 v3, 1024, v2
    v_add_u32 v4, 2048, v2
    v_add_u32 v5, 3072, v2
    v_lshl_add_u32 v45, v47, 6, v46
    v_lshl_add_u32 v45, v43, 8, v45
    s_lshl_b32 {sT0}, {sW}, 6
    s_add_u32 {sT0}, {sT0}, 65536
    v_xor_b32 v12, {sT0}, v45
    v_xor_b32 v13, 64, v12
    v_xor_b32 v14, 0x80, v12
    v_xor_b32 v15, 0xc0, v12
    """)

    SLOT = {0: 'a', 1: 'b', 2: 'a', 3: 'b', 4: 'a', 5: 'b', 6: 'a', 7: 'c', 8: 'd', 9: 'b', 10: 'd', 11: 'b', 12: 'a', 13: 'c', 14: 'd', 15: 'b',
            16: 'a', 17: 'c', 18: 'd', 19: 'b', 20: 'a', 21: 'c', 22: 'd'}
    TB = [[12, 11, 8, 10, 0], [1, 2, 3, 4, 5], [6, 7, 9, 11, 0], [5, 2, 4, 7, 10]]
    hooks = []
    firsts = {vSP: True, vSS: True}
    def softmax(g, t):
        src = B(TB[g][t]); regs = [f"v{src+q}" for q in range(16)]
        mx, sm = (vMP, vSP) if t < 4 else (vMS, vSS)
        h = len(hooks); hooks.append((src, mx))
        s.add(Op('e', f"s_cbranch_vccnz L_fix{h}\nL_ret{h}:", cost=8, R=regs + ['vcc', f"v{mx}"], W=regs + [f"v{mx}"]))
        for q in range(16):
            s.e(f"v_exp_f32 v{src+q}, v{src+q}")
        for q in range(16):
            if firsts[sm]:
                if q == 0: continue
                s.e(f"v_add_f32 v{sm}, v{src}, v{src+1}"); firsts[sm] = False
            else: s.e(f"v_add_f32 v{sm}, v{sm}, v{src+q}")
        if t < 4:
            dst = B(TB[g][t & 2]) + 8 * (t & 1)
            for q in range(8): s.e(f"v_cvt_pk_bf16_f32 v{dst+q}, v{src+2*q}, v{src+2*q+1}")
        else:
            pack_write(src, g * 8192, ['RS0', 'RS0', 'WS7', 'WS8'][g], f"RS{8+g}")
    def Pfrag(g, ks): return R('v', B(TB[g][(ks >> 1) & 2]) + 4 * (ks & 3), 4)
    kb = 32768
    vp = OPT['vp']
    for n in range(8):
        p0 = s.nmf
        g, dh = n >> 1, n & 1
        RB(f"RS{n}")
        if n != 6: WB(f"WS{n}", p0)
        if n == 0: issue(dma_tile(7, 'c', ab='WS0') + dma_tile(8, 'd', ab='WS0'), gpace(p0 + 1))
        if 1 <= n <= 5: stage_write(n + 1, n + 1, SLOT[n + 1], f"WS{n}", p0)
        if 1 <= n <= 3: issue(stage_load([(8 + n, n + 1)]), gpace(p0 + OPT['w0'] + 6))
        if n == 5: rebase([7], 32768); wbase[0] = 65536
        if n == 7: issue(dma_tile(12, 'a', ab='WS7'), gpace(p0 + 1))
        off0 = SL[SLOT[n]] - kb
        if not 0 <= off0 < 65536 - 32767:
            rebase(range(24, 36), off0); kb += off0; off0 = 0
        kw = dict(ab=f"RS{n}", bb=(f"WS{n+1}" if n != 5 else "RS7"))
        qkw = dict(ab=f"RS{n}", bb=(f"WS{n+1}" if n >= 6 else None))
        def step(t, ks):
            acc = R('v', B(TB[g][t]), 16); first = (dh == 0 and ks == 0)
            if t < 4:
                a = rd128(24 + ks, off0 + t * 8192, **kw)
                mf(acc, a, R('a', 32 * dh + 4 * ks, 4), first)
            else:
                a = rd128(32 + (ks & 3), off0 + (ks >> 2) * 512, **kw)
                b = rd128(36, 16384 + dh * 8192 + ks * 1024, **qkw)
                mf(acc, a, b, first)
        if n < 2:
            for ks in range(8):
                for t in range(5): step(t, ks)
            if dh and OPT['dump'] != 'S0':
                for t in (4, 0, 1, 2, 3): softmax(g, t)
        else:
            for t in (4, 0, 1, 2, 3):
                for ks in range(8): step(t, ks)
                if dh: softmax(g, t)
        if n == 1: dump('S0', [f"v{B(b)+q}" for b in TB[0] for q in range(16)])
    dump('P', [f"v{B(TB[g][t])+q}" for g in range(4) for t in (0, 2) for q in range(16)] + [f"v{vSP}", f"v{vSS}"])
    s.es(f"s_mul_i32 {sT0}, {sW}, {8192+64}\nv_xor_b32 v16, {sT0}, v45")
    for jj in range(4):
        for t in range(4):
            if jj or t: s.e(f"v_xor_b32 v{16+4*jj+t}, {jj*8192+t*64}, v16")
    s.es(f"""
    v_lshrrev_b32 v32, 1, v47
    v_lshl_add_u32 v32, v32, 6, v46
    v_lshl_add_u32 v32, v43, 7, v32
    s_and_b32 {sT1}, {sW}, 1
    s_lshl_b32 {sT1}, {sT1}, 6
    s_lshl_b32 {sT0}, {sW}, 12
    s_add_u32 {sT0}, {sT0}, {sT1}
    s_add_u32 {sT0}, {sT0}, {SL['d']}
    v_xor_b32 v32, {sT0}, v32
    v_xor_b32 v33, 64, v32
    v_xor_b32 v34, 4096, v32
    v_xor_b32 v35, {4096+64}, v32
    v_lshrrev_b32 v42, 4, v0
    v_and_b32 v42, 1, v42
    v_lshlrev_b32 v42, 2, v42
    v_and_b32 v8, 7, v0
    v_xor_b32 v8, v8, v42
    v_lshlrev_b32 v8, 4, v8
    v_lshrrev_b32 v42, 3, v0
    v_mul_u32_u24 v42, 896, v42
    v_add_u32 v8, v8, v42
    v_add_u32 v9, 6144, v8
    v_add_u32 v10, 12288, v8
    v_add_u32 v11, 18432, v8
    """)
    s.es(f"""
    v_mov_b32 v42, v{vSP}
    v_mov_b32 v43, v{vSS}
    v_permlane32_swap_b32 v42, v{vSP}
    v_permlane32_swap_b32 v43, v{vSS}
    v_add_f32 v{vSP}, v42, v{vSP}
    v_add_f32 v{vSS}, v43, v{vSS}
    v_subrev_u32 v42, {sLO}, v{vSP}
    v_mov_b32 v43, 0x7f800000
    v_cmp_le_u32 vcc, {sRNG}, v42
    v_cndmask_b32 v{vSS}, v{vSS}, v43, vcc
    v_rcp_f32 v{vSP}, v{vSP}
    v_lshlrev_b32 v6, 2, v0
    v_add_u32 v6, {S4}, v6
    s_lshl_b32 {sT0}, {sW}, 8
    v_add_u32 v42, {sT0}, v6
    """)
    s.ds(f"ds_write_b32 v42, v{vSS}", ab='WS13', bb='RS14')

    OA = [[R('a', 16 * j, 16) for j in range(4)] + [R('a', 192, 16)], [R('v', B(b), 16) for b in (0, 11, 2, 7, 10)]]
    tmpc = [0]
    def oconv_a(abase, dst, inv):
        for q in range(8):
            t = 42 + 2 * (tmpc[0] % 3); tmpc[0] += 1
            s.es(f"""v_accvgpr_read_b32 v{t}, a{abase+2*q}
            v_accvgpr_read_b32 v{t+1}, a{abase+2*q+1}
            v_mul_f32 v{t}, v{t}, v{inv}
            v_mul_f32 v{t+1}, v{t+1}, v{inv}
            v_cvt_pk_bf16_f32 v{dst+q}, v{t}, v{t+1}""")
    def oconv_v(src, dst, inv):
        for q in range(16): s.e(f"v_mul_f32 v{src+q}, v{src+q}, v{inv}")
        if dst is not None:
            for q in range(8): s.e(f"v_cvt_pk_bf16_f32 v{dst+q}, v{src+2*q}, v{src+2*q+1}")
    vb = 65536
    for n in range(8, 16):
        p0 = s.nmf
        dh, g = (n - 8) >> 2, (n - 8) & 3
        RB(f"RS{n}")
        if n != 11: WB(f"WS{n}", p0)
        if n == 8:
            stage_write(9, 2, 'b', 'RS7', p0)
            issue(dma_tile(13, 'c', ab='WS8') + stage_load([(14, 5)]), gpace(p0 + 1))
        if n == 9: stage_write(10, 3, 'd', 'WS9', p0)
        if n == 10: stage_write(11, 4, 'b', 'WS10', p0)
        if n == 12:
            issue(dma_tile(15, 'b', ab='WS12'), gpace(p0 + 1))
            s.es(f"""
            v_lshrrev_b32 v6, 4, v0
            v_mul_u32_u24 v6, {896-512}, v6
            v_add_u32 v2, v2, v6
            v_add_u32 v3, 2560, v2
            v_add_u32 v4, 5120, v2
            v_add_u32 v5, 7680, v2
            v_lshlrev_b32 v6, 2, v0
            v_add_u32 v6, {S4}, v6""")
        if n == 13: stage_write(14, 5, 'd', 'RS12', p0)
        if n >= 13: issue(dma_tile(n + 3, SLOT[n + 3], ab=f"WS{n}"), pace(p0 + 1, vp))
        if n == 14:
            for w_ in range(4): s.ds(f"ds_read_b32 v{44+w_}, v6 offset:{w_*256}", ab='RS14')
            s.es(f"""v_add_f32 v44, v44, v45
            v_add_f32 v46, v46, v47
            v_add_f32 v{vSS}, v44, v46
            v_subrev_u32 v44, {sLO}, v{vSS}""")
            s.add(Op('e', f"v_cmp_le_u32 vcc, {sRNG}, v44\ns_nop 1\ns_cbranch_vccnz L_slow\nL_checked:", cost=16, R=[f"v{vMP}", f"v{vMS}"], W=['#chk'], ab='RS14', bb='RS15'))
            s.e(f"v_rcp_f32 v{vSS}, v{vSS}")
            s.es(f"v_xor_b32 v6, 0x800, v37\nv_xor_b32 v40, 0x1000, v37\nv_xor_b32 v41, 0x1800, v37")
            oconv_a(192, B(1), vSS)
            for half in range(2):
                s.ds(f"ds_write_b128 v37, {R('v', B(1)+4*half, 4)} offset:{8192 + half*1024}", cost=OPT['wc'], ab='WS14', bb='RS16')
        off0 = SL[SLOT[n]] - vb
        if not 0 <= off0 <= 32768:
            nb = SL[SLOT[n]] & 0x10000
            rebase(range(12, 16), nb - vb); vb = nb; off0 = SL[SLOT[n]] - vb
        kw = dict(ab=f"RS{n}", bb=(f"WS{n+1}" if n != 10 else "RS12"))
        pkw = dict(ab=f"RS{n}", bb=(f"WS{n+1}" if n >= 12 else None))
        for j in range(4):
            for ks in range(8):
                a = tr(12 + j, off0 + ks * 4096, 1024, **kw)
                mf(OA[dh][j], a, Pfrag(g, ks), g == 0 and ks == 0)
                if j == 0:
                    b = rd128(36, g * 8192 + ks * 1024, **pkw)
                    mf(OA[dh][4], a, b, g == 0 and ks == 0)
            if n == 15 and OPT['dump'] != 'O':
                if j == 0:
                    oconv_v(B(10), None, vSS)
                    pack_write(B(10), 16384, 'WS15', 'RS17')
                oconv_v(B((0, 11, 2, 7)[j]), B((0, 2)[j >> 1]) + 8 * (j & 1), vSP)
        if n == 12:
            for j in range(4): oconv_a(16 * j, B((12, 8)[j >> 1]) + 8 * (j & 1), vSP)
    dump('O', [f"a{r}" for r in range(64)] + [f"v{B(b)+q}" for b in (0, 11, 2, 7) for q in range(16)] + [f"a{r}" for r in range(192, 208)]
         + [f"v{B(10)+q}" for q in range(16)] + [f"v{vSP}", f"v{vSS}"])

    s.es(f"v_xor_b32 v12, 8192, v32\nv_xor_b32 v13, 8192, v33\nv_xor_b32 v14, 8192, v34\nv_xor_b32 v15, 8192, v35")
    s.es(f"s_lshr_b32 {sT0}, {sW}, 1\ns_lshl_b32 {sT0}, {sT0}, 30\nv_add_u32 v7, {sT0}, v1")
    LA = [32, 33, 34, 35, 12, 13, 14, 15]
    OB = [[1, 3, 6, 9, 5], [4, 11, 7, 1, 10], [5, 6, 9, 4, 3], [10, 7, None, None, 11]]
    def Ofrag(dh, jj, half): return R('v', B(((12, 8), (0, 2))[dh][jj >> 1]) + 8 * (jj & 1) + 4 * half, 4)
    def Osh(dh, jj, half): return R('a', 96 + 32 * dh + 8 * jj + 4 * half, 4)
    QA = [37, 6, 40, 41]
    def store(g, t):
        src = B(OB[g][t])
        for q in range(8): s.e(f"v_cvt_pk_bf16_f32 v{src+q}, v{src+2*q}, v{src+2*q+1}")
        for half in range(2):
            if g < 3: sb = sST + t; off = g * 4 * 32768; vo = 1
            else: sb = sST + (5, 6, 0, 0, 7)[t]; off = 0; vo = 7 if t == 4 else 1
            s.vm(f"s_add_u32 {sS}, s{sb}, {off + half*16384}\nbuffer_store_dwordx4 {R('v', src+4*half, 4)}, v{vo}, {SWS}, {sS} offen {OPT['st']}",
                 cost=20, R=['#chk'], dl=s.nmf + 6)
    wb = 0
    for n in range(16, 23):
        p0 = s.nmf
        g, dh = (n - 16) >> 1, (n - 16) & 1
        RB(f"RS{n}")
        if n <= 19:
            WB(f"WS{n}", p0)
            issue(dma_tile(n + 3, SLOT[n + 3], ab=f"WS{n}"), pace(p0 + 1, vp))
        kw = dict(ab=f"RS{n}", bb=(f"WS{n+1}" if n <= 18 else None))
        if n < 22:
            nb = SL[SLOT[n]] & 0x10000
            if nb != wb: rebase(range(16, 32), nb - wb); wb = nb
            off0 = SL[SLOT[n]] - wb
            for t in range(4):
                for jj in range(4):
                    for half in range(2):
                        first = dh == 0 and jj == 0 and half == 0
                        a = tr(16 + 4 * jj + t, off0 + half * 4096, 1024, **kw)
                        mf(R('v', B(OB[g][t]), 16), a, Ofrag(dh, jj, half), first)
                        if t == 0:
                            if g == 0: rd128(QA[jj], 8192 + dh * 8192 + half * 1024, Osh(dh, jj, half), ab=f"RS{n}")
                            mf(R('v', B(OB[g][4]), 16), a, Osh(dh, jj, half), first)
                if dh:
                    store(g, t)
                    if t == 0: store(g, 4)
        else:
            for t in range(2):
                for d2 in range(2):
                    for jj in range(4):
                        for half in range(2):
                            first = d2 == 0 and jj == 0 and half == 0
                            a = tr(LA[2 * jj + t], d2 * 16384 + half * 2048, 512, **kw)
                            mf(R('v', B(OB[3][t]), 16), a, Ofrag(d2, jj, half), first)
                            if t == 0: mf(R('v', B(OB[3][4]), 16), a, Osh(d2, jj, half), first)
                store(3, t)
                if t == 0: store(3, 4)
    s.build()
    s.run(budget=OPT['bud'], maxlg=OPT['maxlg'], delay=OPT['delay'], dsage=OPT['dsage'], maxds=OPT['maxds'])
    if OPT['ts']:
        stamp()
        k.wait(vm0=True)
        stamp()
        e(f"""s_add_u32 s8, s4, 0x0ff00000
        s_addc_u32 s9, s5, 0
        s_mov_b32 s10, 0x100000
        s_cmp_lg_u32 {sW}, 0
        s_cbranch_scc1 L_exit
        s_mov_b64 exec, 1
        s_lshl_b32 s3, s2, 8
        v_mov_b32 v1, s3
        v_mov_b32 v2, {nst[0]}
        v_mov_b32 v3, 0
        buffer_store_dwordx2 v[2:3], v1, s[8:11], 0 offen""")
        for j in range(nst[0]):
            e(f"v_mov_b32 v4, s{sTS+2*j}\nv_mov_b32 v5, s{sTS+1+2*j}\nbuffer_store_dwordx2 v[4:5], v1, s[8:11], 0 offen offset:{8+8*j}\ns_nop 1")
        e("s_waitcnt vmcnt(0)")
    e("L_exit:\ns_endpgm\nL_codeend:")
    for h, (src, mx) in enumerate(hooks):
        e(f"L_fix{h}:\ns_nop 7\ns_nop 7\ns_cmp_eq_u32 {sPASS}, 2\ns_cbranch_scc1 L_sub{h}")
        for q in range(0, 16, 2): e(f"v_max3_f32 v{mx}, v{src+q}, v{src+q+1}, v{mx}")
        e(f"s_branch L_ret{h}\nL_sub{h}:")
        for q in range(16): e(f"v_sub_f32 v{src+q}, v{src+q}, v{mx}")
        e(f"s_branch L_ret{h}")
    e(f"""L_slow:
    s_cmp_eq_u32 {sPASS}, 2
    s_cbranch_scc1 L_checked
    s_nop 7
    s_nop 7
    s_waitcnt vmcnt(0) lgkmcnt(0)
    s_barrier
    s_mov_b64 vcc, -1
    s_cmp_eq_u32 {sPASS}, 1
    s_cbranch_scc1 L_slow2
    s_mov_b32 {sPASS}, 1
    s_mov_b32 {sRNG}, 0
    v_mov_b32 v{vMP}, 0xff800000
    v_mov_b32 v{vMS}, 0xff800000
    s_branch L_start
    L_slow2:
    s_mov_b32 {sPASS}, 2
    s_mov_b32 {sLO}, 0
    s_mov_b32 {sRNG}, -1
    v_mov_b32 v42, v{vMP}
    v_mov_b32 v43, v{vMS}
    s_nop 1
    v_permlane32_swap_b32 v42, v{vMP}
    v_permlane32_swap_b32 v43, v{vMS}
    v_lshlrev_b32 v44, 2, v0
    s_lshl_b32 {sT0}, {sW}, 8
    v_max_f32 v{vMP}, v42, v{vMP}
    v_max_f32 v{vMS}, v43, v{vMS}
    v_add_u32 v45, {sT0}, v44
    ds_write_b32 v45, v{vMS}
    s_waitcnt lgkmcnt(0)
    s_barrier
    ds_read_b32 v42, v44
    ds_read_b32 v43, v44 offset:256
    ds_read_b32 v45, v44 offset:512
    ds_read_b32 v46, v44 offset:768
    s_waitcnt lgkmcnt(0)
    v_max3_f32 v{vMS}, v42, v43, v45
    v_max_f32 v{vMS}, v{vMS}, v46
    s_barrier
    s_branch L_start""")
    txt, added = k.text()
    est = s.est
    per = [sum(est[i:i + 40]) for i in range(0, len(est), 40)]
    print(f"main: {len(k.L)} lines, nops {added}, forced {s.forced}, mfma {len(est)}, est {sum(est)}; per40: {per}", file=sys.stderr)
    if OPT['verbose']:
        print("use:", s.use, file=sys.stderr)
        print("bars:", {n: o.gap for n, o in s.bars.items()}, file=sys.stderr)
    return txt

if __name__ == "__main__":
    out = sys.argv[1]
    sys.argv = sys.argv[:2] + ([f"ts={OPT['ts']}"] if OPT['ts'] else []) + ([f"diag={OPT['diag']}"] if OPT['diag'] else [])
    import gen
    m = main_kernel()
    L = [("mha_main_kernel", 256, 256, 163840), ("mha_reduce_kernel", 560, 256, 0)]
    KS = [("mha_main_kernel", m, 512, 256), ("mha_reduce_kernel", gen.reduce_kernel(), 80, 80)]
    if OPT['dup'] == 1: L.insert(0, L[0])
    if OPT['dup'] == 2:
        L.insert(0, ("mha_copy_kernel", 256, 256, 163840)); KS.append(("mha_copy_kernel", m.replace("L_", "M_"), 512, 256))
    if OPT['diag']:
        L.append(("mha_diag_kernel", 1, 64, 0)); KS.append(("mha_diag_kernel", gen.diag_kernel(), 64, 64))
    write_file(out, HEADER, L, KS)
```

```python
import sys, math, struct
sys.path.insert(0, "work")
from asmlib import K, write_file
from sch import Sched, Op

OPT = dict(arr='N', ts=0, dump='', nt='nt', st='', bud=24, maxlg=14, delay=3, dsage=4, maxds=3,
           rb=9, wb=0, wage=6, dc=16, wc=16, lc=12,
           kpre=0, k0=0, kp=70, kp2=65, ksw=32, pair=1, tp=0, tpm='', stamps='RA0,RA3,RS0,RS2,RS4,RS6,RS8,RS10,RS12,RS14,RS16,RS18,RS20,RS22',
           w0=14, wp=2,
           dp=2, vp=3, verbose=0, red=0, lo=-20, hi=30, diag='', dup=0, cp=2, cpm='', cpf='RA3:RS1:242,RS3:RS8:16,RS10:RS16:46')
for a in sys.argv[2:]:
    kk, vv = a.split('=')
    assert kk in OPT, kk
    OPT[kk] = int(vv) if vv.lstrip('-').isdigit() else vv

HEADER = "".join(l for l in open("standalone__mha_block_cached__near_ridge.s.ref").read().splitlines(True)[:11])
MF = "v_mfma_f32_32x32x16_bf16"
def R(p, lo, n): return f"{p}[{lo}:{lo+n-1}]"
def f2u(x): return struct.unpack('<I', struct.pack('<f', x))[0]
SX, SK, SV, SWQ, SWO, SWS = "s[8:11]", "s[12:15]", "s[16:19]", "s[20:23]", "s[24:27]", "s[28:31]"
sW, sB, sH = "s32", "s33", "s34"
sT0, sT1, sT2 = "s36", "s37", "s38"
sC = "s39"
sWQO, sXO, sM8, sM1, sW16, sWOO, sWLO = "s40", "s41", "s42", "s43", "s44", "s45", "s46"
sST = 47
sD, sL, sS = "s55", "s56", "s35"
sPASS, sLO, sRNG = "s57", "s58", "s59"
sTS = 60
XB = 96 * 1024
S4 = 128 * 1024
SL = dict(a=32768, b=65536, c=0, d=98304)
def B(i): return 48 + 16 * i
vSP, vSS, vMP, vMS = 38, 39, 40, 41

def main_kernel():
    k = K(); e = k.e
    s = Sched(k)
    nst = [0]
    TSI = 's_memtime' if OPT['ts'] == 2 else 's_memrealtime'
    def stamp():
        if OPT['ts']:
            k.wait(lg0=True)
            e(f"{TSI} s[{sTS+2*nst[0]}:{sTS+1+2*nst[0]}]\ns_waitcnt lgkmcnt(0)")
            nst[0] += 1
    def dump(name, regs):
        if OPT['dump'] != name: return
        def fn(op):
            e("s_nop 7\ns_nop 7\ns_waitcnt vmcnt(0) lgkmcnt(0)")
            e(f"s_mul_i32 {sT0}, {sB}, 64\ns_lshl_b32 {sT1}, {sH}, 2\ns_add_u32 {sT0}, {sT0}, {sT1}\ns_add_u32 {sT0}, {sT0}, {sW}\ns_lshl_b32 {sT0}, {sT0}, 17")
            e("s_add_u32 s8, s4, 0x4000000\ns_addc_u32 s9, s5, 0\ns_mov_b32 s10, 0x8000000\ns_mov_b32 s11, 0x00020000")
            e("v_lshlrev_b32 v0, 2, v0")
            for i, r in enumerate(regs):
                e(f"buffer_store_dword {r}, v0, s[8:11], {sT0} offen\ns_add_u32 {sT0}, {sT0}, 256")
                if i % 32 == 31: e("s_waitcnt vmcnt(0)")
            e("s_waitcnt vmcnt(0)\ns_branch L_exit")
        s.add(Op('e', 's_nop 0', R=regs, W=regs, fn=fn, dl=s.nmf))

    if OPT['ts']:
        e(f"{TSI} s[{sTS}:{sTS+1}]"); nst[0] = 1
    e(f"""
    s_cmp_ge_u32 s2, 256
    s_cbranch_scc1 L_exit
    v_lshrrev_b32 v1, 6, v0
    v_and_b32 v0, 63, v0
    s_mov_b32 {sPASS}, 0
    v_readfirstlane_b32 {sW}, v1
    s_mov_b64 vcc, 0
    s_mov_b32 {sLO}, 0x{(127 + OPT['lo']) << 23:08x}
    s_mov_b32 {sRNG}, 0x{(OPT['hi'] - OPT['lo']) << 23:08x}
    L_start:
    s_load_dwordx2 s[8:9], s[0:1], 0
    s_load_dwordx2 s[20:21], s[0:1], 24
    s_load_dwordx2 s[12:13], s[0:1], 8
    s_load_dwordx2 s[16:17], s[0:1], 16
    s_load_dwordx2 s[24:25], s[0:1], 32
    s_load_dwordx2 s[4:5], s[0:1], 56
    s_and_b32 {sT0}, s2, 7
    s_lshr_b32 {sT1}, s2, 3
    """)
    arr = OPT['arr']
    if arr == 'N':
        e(f"""s_lshr_b32 {sB}, {sT0}, 1
        s_lshl_b32 {sB}, {sB}, 2
        s_lshr_b32 {sT2}, {sT1}, 3
        s_add_u32 {sB}, {sB}, {sT2}
        s_and_b32 {sH}, {sT0}, 1
        s_lshl_b32 {sH}, {sH}, 3
        s_and_b32 {sT2}, {sT1}, 7
        s_add_u32 {sH}, {sH}, {sT2}""")
    elif arr == 'L':
        e(f"""s_lshl_b32 {sB}, {sT0}, 1
        s_lshr_b32 {sT2}, {sT1}, 4
        s_add_u32 {sB}, {sB}, {sT2}
        s_and_b32 {sH}, {sT1}, 15""")
    elif arr == 'M':
        e(f"""s_lshr_b32 {sB}, {sT0}, 2
        s_lshl_b32 {sB}, {sB}, 3
        s_lshr_b32 {sT2}, {sT1}, 2
        s_add_u32 {sB}, {sB}, {sT2}
        s_and_b32 {sH}, {sT0}, 3
        s_lshl_b32 {sH}, {sH}, 2
        s_and_b32 {sT2}, {sT1}, 3
        s_add_u32 {sH}, {sH}, {sT2}""")
    e(f"""
    s_mov_b32 s10, 143360
    s_mov_b32 s11, 0x00020000
    s_mov_b32 s23, 0x00020000
    s_lshl_b32 {sM8}, {sW}, 13
    s_lshl_b32 {sM1}, {sW}, 10
    s_lshl_b32 {sWQO}, {sW}, 17
    s_mul_i32 {sXO}, {sW}, 7168
    v_lshrrev_b32 v44, 5, v0                 ; hh
    v_and_b32 v45, 31, v0                    ; c
    v_lshlrev_b32 v1, 2, v44
    v_xor_b32 v1, v1, v45
    v_lshlrev_b32 v1, 4, v1
    v_lshl_add_u32 v2, v44, 13, v1
    v_xor_b32 v3, 0x80, v2
    v_add_u32 v3, 15360, v3
    v_add_u32 v4, 30720, v2
    v_add_u32 v5, 30720, v3
    s_and_b32 {sT2}, {sW}, 1
    s_lshl_b32 {sT0}, {sT2}, 2
    v_lshrrev_b32 v6, 4, v0
    v_xor_b32 v6, {sT0}, v6
    v_and_b32 v1, 7, v0
    v_xor_b32 v6, v6, v1
    v_lshlrev_b32 v6, 4, v6
    v_lshrrev_b32 v1, 3, v0
    v_mul_u32_u24 v1, 896, v1
    v_add_u32 v6, v6, v1                     ; x voff
    s_mul_i32 {sT0}, {sB}, 143360
    s_lshl_b32 {sT1}, {sH}, 9
    s_waitcnt lgkmcnt(0)
    s_add_u32 s8, s8, {sT0}
    s_addc_u32 s9, s9, 0
    s_add_u32 s20, s20, {sT1}
    s_addc_u32 s21, s21, 0
    s_sub_u32 s22, 3670016, {sT1}
    """)
    dc, lc = OPT['dc'], OPT['lc']
    def vmop(text, **kw):
        n = text.count('\n')
        return s.vm(text, cost=kw.pop('cost', dc) + 4 * n, chain='vm', **kw)
    def pace(e0, p):
        i = 0
        while True:
            x = e0 + int(i * p)
            yield dict(early=x, dl=x + 2)
            i += 1
    def dma_stage(i, pc=None, **kw):
        L = []
        slot = (i % 3) * 32768; xs = XB + (i % 3) * 20480
        for u in range(2):
            for ii in range(4):
                t = f"s_add_u32 m0, {sM8}, {slot + u*4096}\ns_add_u32 {sD}, {sWQO}, {(i << 19) + u*65536}\n" if ii == 0 else ""
                L.append(t + f"buffer_load_dwordx4 v{2+ii}, {SWQ}, {sD} offen offset:{ii*1024} lds")
        X = []
        for u in range(5):
            X.append(f"s_add_u32 m0, {sM1}, {xs + u*4096}\ns_add_u32 {sD}, {sXO}, {i*128 + u*4*7168}\nbuffer_load_dwordx4 v6, {SX}, {sD} offen lds")
        return [(t, dict(bb=f"RA{i}", **kw)) for t in L + X]
    def dma_tile(n, slot, **kw):
        L = []
        for u in range(2):
            for ii in range(4):
                if n < 16:
                    i, dh = (n >> 1, n & 1) if n < 8 else ((n - 8) & 3, (n - 8) >> 2)
                    so = f"{sW16}, {i*65536 + dh*256 + u*8192}"; vo = (8 if n < 8 else 2) + ii; srd = SK if n < 8 else SV; m = OPT['nt']
                elif n < 22:
                    g, dh = (n - 16) >> 1, (n - 16) & 1
                    so = f"{sWOO}, {(dh*128 + 16*u)*896 + g*256}"; vo = 2 + ii; srd = SWO; m = ''
                else:
                    so = f"{sWLO}, {32*u*896 + 768}"; vo = 8 + ii; srd = SWO; m = ''
                t = f"s_add_u32 m0, {sM8}, {SL[slot] + u*4096}\ns_add_u32 {sD}, {so}\n" if ii == 0 else ""
                L.append(t + f"buffer_load_dwordx4 v{vo}, {srd}, {sD} offen offset:{ii*1024} {m} lds")
        return [(t, dict(bb=f"RS{n}", **kw)) for t in L]
    def stage_load(tiles, **kw):
        L = []
        for u in range(2):
            for ii in range(4):
                for x, (n, r) in enumerate(tiles):
                    i, dh = (n >> 1, n & 1) if n < 8 else ((n - 8) & 3, (n - 8) >> 2)
                    t = f"s_add_u32 {sL}, {sW16}, {i*65536 + u*8192}\n" if ii == 0 and x == 0 else ""
                    vo = (8 if n < 8 else 2) + ii; srd = SK if n < 8 else SV
                    L.append(t + f"buffer_load_dwordx4 {R('a', 32*r + 16*u + 4*ii, 4)}, v{vo}, {srd}, {sL} offen offset:{ii*1024 + dh*256} {OPT['nt']}")
        return [(t, dict(cost=lc, **kw)) for t in L]
    def issue(L, pc=None, **kw):
        for t, a in L:
            a = dict(a); a.update(kw)
            if pc is not None: a.update(next(pc))
            vmop(t, **a)
    wbase = [32768]
    def stage_write(n, r, slot, ab, p0):
        for u in range(2):
            for ii in range(4):
                off = SL[slot] - wbase[0] + u * 4096 + ii * 1024
                assert 0 <= off < 65536
                x = p0 + OPT['w0'] + OPT['wp'] * (4 * u + ii)
                s.ds(f"ds_write_b128 v7, {R('a', 32*r + 16*u + 4*ii, 4)} offset:{off}", cost=OPT['wc'], ab=ab, bb=f"RS{n}", early=x, dl=x + 1)
    P = dict(pre=True)
    issue(dma_stage(0), **P)
    s.es(f"""
    s_lshl_b32 {sT0}, {sB}, 4
    s_add_u32 {sT0}, {sT0}, {sH}
    s_lshl_b32 {sT0}, {sT0}, 18""", **P)
    s.e(f"s_add_u32 s16, s16, {sT0}\ns_addc_u32 s17, s17, 0\ns_add_u32 s12, s12, {sT0}\ns_addc_u32 s13, s13, 0", **P)
    s.es(f"""
    s_mov_b32 s14, 262144
    s_mov_b32 s15, 0x00020000
    s_mov_b32 s18, 262144
    s_mov_b32 s19, 0x00020000
    s_lshl_b32 {sW16}, {sW}, 14""", **P)
    issue(dma_stage(1), **P)
    s.es(f"""
    v_bfe_u32 v1, v0, 4, 1
    v_and_b32 v8, 7, v0
    v_xor_b32 v8, v8, v1
    v_lshlrev_b32 v8, 4, v8
    v_lshl_add_u32 v8, v44, 7, v8
    v_bfe_u32 v1, v0, 3, 2
    v_lshl_add_u32 v8, v1, 9, v8
    v_xor_b32 v9, {1024+32}, v8
    v_xor_b32 v10, {2048+64}, v8
    v_xor_b32 v11, {3072+96}, v8""".replace(f"v_xor_b32 v9, {1024+32}, v8", "v_xor_b32 v9, 32, v8\nv_add_u32 v9, 1024, v9")
       .replace(f"v_xor_b32 v10, {2048+64}, v8", "v_xor_b32 v10, 64, v8\nv_add_u32 v10, 2048, v10")
       .replace(f"v_xor_b32 v11, {3072+96}, v8", "v_xor_b32 v11, 0x60, v8\nv_add_u32 v11, 3072, v11"), **P)
    KL = stage_load([(0, 0), (1, 1)]) + stage_load([(2, 2), (3, 3)]) + stage_load([(4, 4), (5, 5)]) + stage_load([(6, 6)])
    if not OPT['pair']: KL = sum([stage_load([(n, n)]) for n in range(7)], [])
    if OPT['tp']:
        s.es(f"v_and_b32 v241, 15, v0\nv_lshlrev_b32 v241, 12, v241\ns_lshl_b32 {sL}, {sW}, 16", **P)
        vmop(f"buffer_load_dword v240, v241, {SK}, {sL} offen {OPT['tpm']}", **P)
        if OPT['tp'] > 1: vmop(f"buffer_load_dword v242, v241, {SV}, {sL} offen {OPT['tpm']}", **P)
    def cpref(lab, tmp, st, n=1, **kw):
        a, b = f"v{tmp}", f"v{tmp+1}"
        for j in range(n):
            s.add(Op('e', f"s_lshl_b32 s98, {sW}, {6+st}\ns_add_u32 s98, s98, {lab}-L_pc+{j*(256<<st)}\nv_lshlrev_b32 {a}, {st}, v0\nv_add_u32 {a}, s98, {a}\nv_min_u32 {a}, s95, {a}", cost=20, **kw))
            s.add(Op('e', f"v_mov_b32 {b}, s97\nv_add_co_u32 {a}, s[98:99], s96, {a}\ns_nop 1\nv_addc_co_u32 {b}, s[98:99], 0, {b}, s[98:99]", W=['s98', 's99'], cost=20, **kw))
            s.add(Op('vm', f"global_load_dword {a}, v[{tmp}:{tmp+1}], off {OPT['cpm']}", cost=16, **kw))
    if OPT['cp']:
        s.e(f"s_getpc_b64 s[96:97]\nL_pc:\ns_mov_b32 s95, L_codeend-L_pc-4", **P)
        if OPT['cp'] == 1:
            cpref('L_pc', 242, 7, 1, **P); cpref('L_pc+32768', 244, 7, 1, **P)
        else: cpref('L_pc', 242, 6, 1, **P)
    issue(KL[:OPT['kpre']], **P)
    KL = KL[OPT['kpre']:]
    s.e(f"s_mul_i32 {sT0}, {sH}, 229376\ns_add_u32 s24, s24, {sT0}\ns_addc_u32 s25, s25, 0", **P)
    s.e(f"s_mul_i32 {sT0}, {sB}, {140*16384}\ns_lshl_b32 {sT1}, {sH}, 10\ns_add_u32 {sT0}, {sT0}, {sT1}\ns_add_u32 s28, s4, {sT0}\ns_addc_u32 s29, s5, 0", **P)
    s.es(f"""
    s_mov_b32 s26, 229376
    s_mov_b32 s27, 0x00020000
    s_mov_b32 s30, {140*16384}
    s_mov_b32 s31, 0x00020000
    s_mov_b32 {sC}, 0x{f2u(math.log2(math.e)/16):08x}
    s_mul_i32 {sWOO}, {sW}, {32*896}
    s_mul_i32 {sWLO}, {sW}, {64*896}
    """, **P)
    s.es(f"""
    v_bfe_u32 v47, v0, 2, 2
    v_lshl_add_u32 v43, v44, 3, v47
    v_bfe_u32 v1, v0, 4, 1
    v_lshlrev_b32 v46, 5, v1
    v_and_b32 v1, 1, v0
    v_lshl_add_u32 v46, v1, 4, v46
    v_bfe_u32 v1, v0, 1, 1
    v_lshl_add_u32 v46, v1, 3, v46
    v_lshl_add_u32 v1, v47, 6, v46
    s_lshl_b32 {sT0}, {sW}, 6
    v_lshl_add_u32 v12, v43, 9, v1
    v_xor_b32 v12, {sT0}, v12
    v_xor_b32 v13, 64, v12
    v_xor_b32 v14, 0x80, v12
    v_xor_b32 v15, 0xc0, v12
    v_bfe_u32 v1, v0, 1, 3
    v_xor_b32 v1, v1, v44
    v_lshlrev_b32 v1, 4, v1
    v_lshl_add_u32 v1, v45, 7, v1
    v_add_u32 v20, {XB + 128*128}, v1
    s_lshl_b32 {sT0}, {sW}, 12
    s_add_u32 {sT0}, {sT0}, {XB}
    v_add_u32 v16, {sT0}, v1
    v_xor_b32 v17, 32, v16
    v_xor_b32 v18, 64, v16
    v_xor_b32 v19, 0x60, v16
    v_xor_b32 v21, 32, v20
    v_xor_b32 v22, 64, v20
    v_xor_b32 v23, 0x60, v20
    """, **P)
    s.es(f"""
    v_and_b32 v42, 0x13, v0
    v_bfe_u32 v1, v0, 2, 1
    v_lshl_or_b32 v42, v1, 3, v42
    v_bfe_u32 v1, v0, 3, 1
    v_lshl_or_b32 v42, v1, 2, v42
    v_bfe_u32 v1, v42, 1, 3
    v_xor_b32 v1, v1, v44
    v_lshlrev_b32 v1, 4, v1
    v_and_b32 v24, 3, v42
    v_lshl_add_u32 v1, v24, 7, v1
    v_lshrrev_b32 v24, 2, v42
    v_lshl_add_u32 v1, v24, 10, v1
    s_add_u32 {sT0}, {sM8}, 32768
    v_add_u32 v32, {sT0}, v1
    v_xor_b32 v33, 32, v32
    v_xor_b32 v34, 64, v32
    v_xor_b32 v35, 0x60, v32
    s_lshr_b32 {sT1}, {sW}, 1
    s_lshl_b32 {sT1}, {sT1}, 9
    s_and_b32 {sT2}, {sW}, 1
    s_lshl_b32 {sT2}, {sT2}, 6
    s_add_u32 {sT1}, {sT1}, {sT2}
    s_add_u32 {sT1}, {sT1}, 32768
    v_xor_b32 v24, {sT1}, v1
    """, **P)
    for jj in range(4):
        for half in range(2):
            if jj or half: s.e(f"v_xor_b32 v{24+2*jj+half}, {(jj>>1)*512 + (jj&1)*64 + half*32}, v24", **P)
    s.es(f"""
    v_lshlrev_b32 v1, 4, v0
    v_add_u32 v7, {sT0}, v1
    v_add_u32 v36, {S4}, v1
    s_lshl_b32 {sT0}, {sW}, 11
    v_add_u32 v37, {sT0}, v36
    """, **P)
    s.e(f"s_mul_i32 {sT1}, {sW}, 14", **P)
    for t in range(4):
        s.es(f"s_xor_b32 {sT0}, {sW}, {t}\ns_add_u32 {sT0}, {sT0}, {sT1}\ns_lshl_b32 s{sST+t}, {sT0}, 15", **P)
    s.es(f"""s_add_u32 {sT0}, {sW}, 56
    s_lshl_b32 s{sST+4}, {sT0}, 15
    s_and_b32 {sT2}, {sW}, 1
    s_add_u32 {sT0}, {sT1}, {sT2}
    s_add_u32 {sT0}, {sT0}, 12
    s_lshl_b32 s{sST+5}, {sT0}, 15
    s_sub_u32 {sT0}, {sT1}, {sT2}
    s_add_u32 {sT0}, {sT0}, 13
    s_lshl_b32 s{sST+6}, {sT0}, 15
    s_add_u32 {sT0}, {sT2}, 68
    s_lshl_b32 s{sST+7}, {sT0}, 15""", **P)

    ringc = [0]
    def ring():
        r = 224 + 4 * (ringc[0] % 8); ringc[0] += 1
        return r
    STAMPS = set(OPT['stamps'].split(','))
    CPF = dict(x.split(':', 1) for x in OPT['cpf'].split(',') if x)
    def RB(name):
        def fn():
            e(f"L_{name}:")
            if name in STAMPS: stamp()
        s.bar(name, fn=fn, early=s.nmf - OPT['rb'])
        if OPT['cp'] > 1 and name in CPF:
            lab, tmp = CPF[name].split(':')
            cpref('L_' + lab, int(tmp), 6, 1, early=s.nmf, dl=s.nmf + 4)
    def WB(name, p0):
        s.bar(name, early=p0 + OPT['wb'], lgage=OPT['wage'], dl=p0 + OPT['wb'] + 2)
    def rebase(regs, delta):
        for r in regs:
            s.e(f"v_add_u32 v{r}, {delta}, v{r}" if delta > 0 else f"v_subrev_u32 v{r}, {-delta}, v{r}")
    def tr(ar, off, d2, **kw):
        r = ring()
        s.rd(f"ds_read_b64_tr_b16 {R('a', r, 2)}, v{ar} offset:{off}", **kw)
        s.rd(f"ds_read_b64_tr_b16 {R('a', r+2, 2)}, v{ar} offset:{off+d2}", **kw)
        return R('a', r, 4)
    def rd128(ar, off, dst=None, **kw):
        if dst is None: dst = R('a', ring(), 4)
        s.rd(f"ds_read_b128 {dst}, v{ar} offset:{off}", **kw)
        return dst
    def mf(acc, a, b, first): s.mf(f"{MF} {acc}, {a}, {b}, {'0' if first else acc}")

    def qconv(src, j):
        for q in range(16): s.e(f"v_mul_f32 v{src+q}, {sC}, v{src+q}")
        for q in range(8): s.e(f"v_cvt_pk_bf16_f32 v{src+2*q}, v{src+2*q}, v{src+2*q+1}")
        for q in range(8): s.e(f"v_accvgpr_write_b32 a{8*j+q}, v{src+2*q}")
    def pack_write(src, off, ab, bb):
        for q in range(8): s.e(f"v_cvt_pk_bf16_f32 v{src+q}, v{src+2*q}, v{src+2*q+1}")
        for half in range(2):
            s.ds(f"ds_write_b128 v37, {R('v', src+4*half, 4)} offset:{off + half*1024}", cost=OPT['wc'], ab=ab, bb=bb)
    JORD = [0, 4, 1, 2, 3, 5, 6, 7]
    trb = 0
    gx = [float(OPT['k0']), 0]
    def gpace(e0):
        while True:
            gx[0] = max(gx[0], e0)
            x = int(gx[0]); gx[1] += 1
            gx[0] += (OPT['kp'] if gx[1] + OPT['kpre'] < OPT['ksw'] else OPT['kp2']) / 10
            yield dict(early=x, dl=x + 2)
    kpc = gpace(0)
    kq = [(t, dict(a, **next(kpc))) for t, a in KL]
    def merged(L, upto):
        M = list(L)
        while kq and kq[0][1]['early'] < upto: M.append(kq.pop(0))
        M.sort(key=lambda x: x[1]['early'])
        issue(M)
    for i in range(7):
        p0 = s.nmf
        slot = (i % 3) * 32768; xs = (i % 3) * 20480
        RB(f"RA{i}")
        if i >= 1: WB(f"WA{i}", p0)
        L = []
        if i <= 4:
            pc = pace(p0 + (1 if i else -1), OPT['dp'])
            L = [(t, dict(a, **next(pc))) for t, a in dma_stage(i + 2, ab=(f"WA{i}" if i else None))]
        merged(L, p0 + 40 if i < 6 else 10**9)
        if i == 5: stage_write(0, 0, 'a', 'WA5', p0)
        if i == 6: stage_write(1, 1, 'b', 'WA6', p0 - OPT['w0'] + 2)
        want = slot & 0x10000
        if want != trb: rebase(range(12, 16), want - trb); trb = want
        kw = dict(ab=f"RA{i}", bb=(f"WA{i+1}" if i < 6 else "WS0"))
        def step(j, T, newx):
            xb = B(10) + 8 * T
            if newx: rd128(16 + T, xs, R('v', xb, 4), **kw)
            a = tr(12 + (j & 3), slot - trb + (j >> 2) * 256 + T * 8192, 2048, **kw)
            mf(R('v', B(j), 16), a, R('v', xb, 4), i == 0 and T == 0)
            if j in (0, 4):
                if newx: rd128(20 + T, xs, R('v', xb + 4, 4), **kw)
                mf(R('v', B(8 + (j >> 2)), 16), a, R('v', xb + 4, 4), i == 0 and T == 0)
        if i < 6:
            for T in range(4):
                for j in JORD: step(j, T, j == 0)
        else:
            for j in range(8):
                for T in range(4): step(j, T, j == 0)
                if OPT['dump'] == 'Q': continue
                if j in (0, 4):
                    sh = B(8 + (j >> 2))
                    for q in range(16): s.e(f"v_mul_f32 v{sh+q}, {sC}, v{sh+q}")
                    pack_write(sh, 16384 + (j >> 2) * 8192, 'WA6', f"RS{j>>2}")
                qconv(B(j), j)
    dump('Q', [f"v{r}" for r in range(B(0), B(10))])
    s.es(f"""
    v_lshrrev_b32 v42, 4, v0
    v_lshlrev_b32 v3, 2, v42
    v_and_b32 v2, 15, v0
    v_xor_b32 v2, v2, v3
    v_lshlrev_b32 v2, 4, v2
    v_lshl_add_u32 v2, v42, 9, v2
    v_add_u32 v3, 1024, v2
    v_add_u32 v4, 2048, v2
    v_add_u32 v5, 3072, v2
    v_lshl_add_u32 v45, v47, 6, v46
    v_lshl_add_u32 v45, v43, 8, v45
    s_lshl_b32 {sT0}, {sW}, 6
    s_add_u32 {sT0}, {sT0}, 65536
    v_xor_b32 v12, {sT0}, v45
    v_xor_b32 v13, 64, v12
    v_xor_b32 v14, 0x80, v12
    v_xor_b32 v15, 0xc0, v12
    """)

    SLOT = {0: 'a', 1: 'b', 2: 'a', 3: 'b', 4: 'a', 5: 'b', 6: 'a', 7: 'c', 8: 'd', 9: 'b', 10: 'd', 11: 'b', 12: 'a', 13: 'c', 14: 'd', 15: 'b',
            16: 'a', 17: 'c', 18: 'd', 19: 'b', 20: 'a', 21: 'c', 22: 'd'}
    TB = [[12, 11, 8, 10, 0], [1, 2, 3, 4, 5], [6, 7, 9, 11, 0], [5, 2, 4, 7, 10]]
    hooks = []
    firsts = {vSP: True, vSS: True}
    def softmax(g, t):
        src = B(TB[g][t]); regs = [f"v{src+q}" for q in range(16)]
        mx, sm = (vMP, vSP) if t < 4 else (vMS, vSS)
        h = len(hooks); hooks.append((src, mx))
        s.add(Op('e', f"s_cbranch_vccnz L_fix{h}\nL_ret{h}:", cost=8, R=regs + ['vcc', f"v{mx}"], W=regs + [f"v{mx}"]))
        for q in range(16):
            s.e(f"v_exp_f32 v{src+q}, v{src+q}")
        for q in range(16):
            if firsts[sm]:
                if q == 0: continue
                s.e(f"v_add_f32 v{sm}, v{src}, v{src+1}"); firsts[sm] = False
            else: s.e(f"v_add_f32 v{sm}, v{sm}, v{src+q}")
        if t < 4:
            dst = B(TB[g][t & 2]) + 8 * (t & 1)
            for q in range(8): s.e(f"v_cvt_pk_bf16_f32 v{dst+q}, v{src+2*q}, v{src+2*q+1}")
        else:
            pack_write(src, g * 8192, ['RS0', 'RS0', 'WS7', 'WS8'][g], f"RS{8+g}")
    def Pfrag(g, ks): return R('v', B(TB[g][(ks >> 1) & 2]) + 4 * (ks & 3), 4)
    kb = 32768
    vp = OPT['vp']
    for n in range(8):
        p0 = s.nmf
        g, dh = n >> 1, n & 1
        RB(f"RS{n}")
        if n != 6: WB(f"WS{n}", p0)
        if n == 0: issue(dma_tile(7, 'c', ab='WS0') + dma_tile(8, 'd', ab='WS0'), gpace(p0 + 1))
        if 1 <= n <= 5: stage_write(n + 1, n + 1, SLOT[n + 1], f"WS{n}", p0)
        if 1 <= n <= 3: issue(stage_load([(8 + n, n + 1)]), gpace(p0 + OPT['w0'] + 6))
        if n == 5: rebase([7], 32768); wbase[0] = 65536
        if n == 7: issue(dma_tile(12, 'a', ab='WS7'), gpace(p0 + 1))
        off0 = SL[SLOT[n]] - kb
        if not 0 <= off0 < 65536 - 32767:
            rebase(range(24, 36), off0); kb += off0; off0 = 0
        kw = dict(ab=f"RS{n}", bb=(f"WS{n+1}" if n != 5 else "RS7"))
        qkw = dict(ab=f"RS{n}", bb=(f"WS{n+1}" if n >= 6 else None))
        def step(t, ks):
            acc = R('v', B(TB[g][t]), 16); first = (dh == 0 and ks == 0)
            if t < 4:
                a = rd128(24 + ks, off0 + t * 8192, **kw)
                mf(acc, a, R('a', 32 * dh + 4 * ks, 4), first)
            else:
                a = rd128(32 + (ks & 3), off0 + (ks >> 2) * 512, **kw)
                b = rd128(36, 16384 + dh * 8192 + ks * 1024, **qkw)
                mf(acc, a, b, first)
        if n < 2:
            for ks in range(8):
                for t in range(5): step(t, ks)
            if dh and OPT['dump'] != 'S0':
                for t in (4, 0, 1, 2, 3): softmax(g, t)
        else:
            for t in (4, 0, 1, 2, 3):
                for ks in range(8): step(t, ks)
                if dh: softmax(g, t)
        if n == 1: dump('S0', [f"v{B(b)+q}" for b in TB[0] for q in range(16)])
    dump('P', [f"v{B(TB[g][t])+q}" for g in range(4) for t in (0, 2) for q in range(16)] + [f"v{vSP}", f"v{vSS}"])
    s.es(f"s_mul_i32 {sT0}, {sW}, {8192+64}\nv_xor_b32 v16, {sT0}, v45")
    for jj in range(4):
        for t in range(4):
            if jj or t: s.e(f"v_xor_b32 v{16+4*jj+t}, {jj*8192+t*64}, v16")
    s.es(f"""
    v_lshrrev_b32 v32, 1, v47
    v_lshl_add_u32 v32, v32, 6, v46
    v_lshl_add_u32 v32, v43, 7, v32
    s_and_b32 {sT1}, {sW}, 1
    s_lshl_b32 {sT1}, {sT1}, 6
    s_lshl_b32 {sT0}, {sW}, 12
    s_add_u32 {sT0}, {sT0}, {sT1}
    s_add_u32 {sT0}, {sT0}, {SL['d']}
    v_xor_b32 v32, {sT0}, v32
    v_xor_b32 v33, 64, v32
    v_xor_b32 v34, 4096, v32
    v_xor_b32 v35, {4096+64}, v32
    v_lshrrev_b32 v42, 4, v0
    v_and_b32 v42, 1, v42
    v_lshlrev_b32 v42, 2, v42
    v_and_b32 v8, 7, v0
    v_xor_b32 v8, v8, v42
    v_lshlrev_b32 v8, 4, v8
    v_lshrrev_b32 v42, 3, v0
    v_mul_u32_u24 v42, 896, v42
    v_add_u32 v8, v8, v42
    v_add_u32 v9, 6144, v8
    v_add_u32 v10, 12288, v8
    v_add_u32 v11, 18432, v8
    """)
    s.es(f"""
    v_mov_b32 v42, v{vSP}
    v_mov_b32 v43, v{vSS}
    v_permlane32_swap_b32 v42, v{vSP}
    v_permlane32_swap_b32 v43, v{vSS}
    v_add_f32 v{vSP}, v42, v{vSP}
    v_add_f32 v{vSS}, v43, v{vSS}
    v_subrev_u32 v42, {sLO}, v{vSP}
    v_mov_b32 v43, 0x7f800000
    v_cmp_le_u32 vcc, {sRNG}, v42
    v_cndmask_b32 v{vSS}, v{vSS}, v43, vcc
    v_rcp_f32 v{vSP}, v{vSP}
    v_lshlrev_b32 v6, 2, v0
    v_add_u32 v6, {S4}, v6
    s_lshl_b32 {sT0}, {sW}, 8
    v_add_u32 v42, {sT0}, v6
    """)
    s.ds(f"ds_write_b32 v42, v{vSS}", ab='WS13', bb='RS14')

    OA = [[R('a', 16 * j, 16) for j in range(4)] + [R('a', 192, 16)], [R('v', B(b), 16) for b in (0, 11, 2, 7, 10)]]
    tmpc = [0]
    def oconv_a(abase, dst, inv):
        for q in range(8):
            t = 42 + 2 * (tmpc[0] % 3); tmpc[0] += 1
            s.es(f"""v_accvgpr_read_b32 v{t}, a{abase+2*q}
            v_accvgpr_read_b32 v{t+1}, a{abase+2*q+1}
            v_mul_f32 v{t}, v{t}, v{inv}
            v_mul_f32 v{t+1}, v{t+1}, v{inv}
            v_cvt_pk_bf16_f32 v{dst+q}, v{t}, v{t+1}""")
    def oconv_v(src, dst, inv):
        for q in range(16): s.e(f"v_mul_f32 v{src+q}, v{src+q}, v{inv}")
        if dst is not None:
            for q in range(8): s.e(f"v_cvt_pk_bf16_f32 v{dst+q}, v{src+2*q}, v{src+2*q+1}")
    vb = 65536
    for n in range(8, 16):
        p0 = s.nmf
        dh, g = (n - 8) >> 2, (n - 8) & 3
        RB(f"RS{n}")
        if n != 11: WB(f"WS{n}", p0)
        if n == 8:
            stage_write(9, 2, 'b', 'RS7', p0)
            issue(dma_tile(13, 'c', ab='WS8') + stage_load([(14, 5)]), gpace(p0 + 1))
        if n == 9: stage_write(10, 3, 'd', 'WS9', p0)
        if n == 10: stage_write(11, 4, 'b', 'WS10', p0)
        if n == 12:
            issue(dma_tile(15, 'b', ab='WS12'), gpace(p0 + 1))
            s.es(f"""
            v_lshrrev_b32 v6, 4, v0
            v_mul_u32_u24 v6, {896-512}, v6
            v_add_u32 v2, v2, v6
            v_add_u32 v3, 2560, v2
            v_add_u32 v4, 5120, v2
            v_add_u32 v5, 7680, v2
            v_lshlrev_b32 v6, 2, v0
            v_add_u32 v6, {S4}, v6""")
        if n == 13: stage_write(14, 5, 'd', 'RS12', p0)
        if n >= 13: issue(dma_tile(n + 3, SLOT[n + 3], ab=f"WS{n}"), pace(p0 + 1, vp))
        if n == 14:
            for w_ in range(4): s.ds(f"ds_read_b32 v{44+w_}, v6 offset:{w_*256}", ab='RS14')
            s.es(f"""v_add_f32 v44, v44, v45
            v_add_f32 v46, v46, v47
            v_add_f32 v{vSS}, v44, v46
            v_subrev_u32 v44, {sLO}, v{vSS}""")
            s.add(Op('e', f"v_cmp_le_u32 vcc, {sRNG}, v44\ns_nop 1\ns_cbranch_vccnz L_slow\nL_checked:", cost=16, R=[f"v{vMP}", f"v{vMS}"], W=['#chk'], ab='RS14', bb='RS15'))
            s.e(f"v_rcp_f32 v{vSS}, v{vSS}")
            s.es(f"v_xor_b32 v6, 0x800, v37\nv_xor_b32 v40, 0x1000, v37\nv_xor_b32 v41, 0x1800, v37")
            oconv_a(192, B(1), vSS)
            for half in range(2):
                s.ds(f"ds_write_b128 v37, {R('v', B(1)+4*half, 4)} offset:{8192 + half*1024}", cost=OPT['wc'], ab='WS14', bb='RS16')
        off0 = SL[SLOT[n]] - vb
        if not 0 <= off0 <= 32768:
            nb = SL[SLOT[n]] & 0x10000
            rebase(range(12, 16), nb - vb); vb = nb; off0 = SL[SLOT[n]] - vb
        kw = dict(ab=f"RS{n}", bb=(f"WS{n+1}" if n != 10 else "RS12"))
        pkw = dict(ab=f"RS{n}", bb=(f"WS{n+1}" if n >= 12 else None))
        for j in range(4):
            for ks in range(8):
                a = tr(12 + j, off0 + ks * 4096, 1024, **kw)
                mf(OA[dh][j], a, Pfrag(g, ks), g == 0 and ks == 0)
                if j == 0:
                    b = rd128(36, g * 8192 + ks * 1024, **pkw)
                    mf(OA[dh][4], a, b, g == 0 and ks == 0)
            if n == 15 and OPT['dump'] != 'O':
                if j == 0:
                    oconv_v(B(10), None, vSS)
                    pack_write(B(10), 16384, 'WS15', 'RS17')
                oconv_v(B((0, 11, 2, 7)[j]), B((0, 2)[j >> 1]) + 8 * (j & 1), vSP)
        if n == 12:
            for j in range(4): oconv_a(16 * j, B((12, 8)[j >> 1]) + 8 * (j & 1), vSP)
    dump('O', [f"a{r}" for r in range(64)] + [f"v{B(b)+q}" for b in (0, 11, 2, 7) for q in range(16)] + [f"a{r}" for r in range(192, 208)]
         + [f"v{B(10)+q}" for q in range(16)] + [f"v{vSP}", f"v{vSS}"])

    s.es(f"v_xor_b32 v12, 8192, v32\nv_xor_b32 v13, 8192, v33\nv_xor_b32 v14, 8192, v34\nv_xor_b32 v15, 8192, v35")
    s.es(f"s_lshr_b32 {sT0}, {sW}, 1\ns_lshl_b32 {sT0}, {sT0}, 30\nv_add_u32 v7, {sT0}, v1")
    LA = [32, 33, 34, 35, 12, 13, 14, 15]
    OB = [[1, 3, 6, 9, 5], [4, 11, 7, 1, 10], [5, 6, 9, 4, 3], [10, 7, None, None, 11]]
    def Ofrag(dh, jj, half): return R('v', B(((12, 8), (0, 2))[dh][jj >> 1]) + 8 * (jj & 1) + 4 * half, 4)
    def Osh(dh, jj, half): return R('a', 96 + 32 * dh + 8 * jj + 4 * half, 4)
    QA = [37, 6, 40, 41]
    def store(g, t):
        src = B(OB[g][t])
        for q in range(8): s.e(f"v_cvt_pk_bf16_f32 v{src+q}, v{src+2*q}, v{src+2*q+1}")
        for half in range(2):
            if g < 3: sb = sST + t; off = g * 4 * 32768; vo = 1
            else: sb = sST + (5, 6, 0, 0, 7)[t]; off = 0; vo = 7 if t == 4 else 1
            s.vm(f"s_add_u32 {sS}, s{sb}, {off + half*16384}\nbuffer_store_dwordx4 {R('v', src+4*half, 4)}, v{vo}, {SWS}, {sS} offen {OPT['st']}",
                 cost=20, R=['#chk'], dl=s.nmf + 6)
    wb = 0
    for n in range(16, 23):
        p0 = s.nmf
        g, dh = (n - 16) >> 1, (n - 16) & 1
        RB(f"RS{n}")
        if n <= 19:
            WB(f"WS{n}", p0)
            issue(dma_tile(n + 3, SLOT[n + 3], ab=f"WS{n}"), pace(p0 + 1, vp))
        kw = dict(ab=f"RS{n}", bb=(f"WS{n+1}" if n <= 18 else None))
        if n < 22:
            nb = SL[SLOT[n]] & 0x10000
            if nb != wb: rebase(range(16, 32), nb - wb); wb = nb
            off0 = SL[SLOT[n]] - wb
            for t in range(4):
                for jj in range(4):
                    for half in range(2):
                        first = dh == 0 and jj == 0 and half == 0
                        a = tr(16 + 4 * jj + t, off0 + half * 4096, 1024, **kw)
                        mf(R('v', B(OB[g][t]), 16), a, Ofrag(dh, jj, half), first)
                        if t == 0:
                            if g == 0: rd128(QA[jj], 8192 + dh * 8192 + half * 1024, Osh(dh, jj, half), ab=f"RS{n}")
                            mf(R('v', B(OB[g][4]), 16), a, Osh(dh, jj, half), first)
                if dh:
                    store(g, t)
                    if t == 0: store(g, 4)
        else:
            for t in range(2):
                for d2 in range(2):
                    for jj in range(4):
                        for half in range(2):
                            first = d2 == 0 and jj == 0 and half == 0
                            a = tr(LA[2 * jj + t], d2 * 16384 + half * 2048, 512, **kw)
                            mf(R('v', B(OB[3][t]), 16), a, Ofrag(d2, jj, half), first)
                            if t == 0: mf(R('v', B(OB[3][4]), 16), a, Osh(d2, jj, half), first)
                store(3, t)
                if t == 0: store(3, 4)
    s.build()
    s.run(budget=OPT['bud'], maxlg=OPT['maxlg'], delay=OPT['delay'], dsage=OPT['dsage'], maxds=OPT['maxds'])
    if OPT['ts']:
        stamp()
        k.wait(vm0=True)
        stamp()
        e(f"""s_add_u32 s8, s4, 0x0ff00000
        s_addc_u32 s9, s5, 0
        s_mov_b32 s10, 0x100000
        s_cmp_lg_u32 {sW}, 0
        s_cbranch_scc1 L_exit
        s_mov_b64 exec, 1
        s_lshl_b32 s3, s2, 8
        v_mov_b32 v1, s3
        v_mov_b32 v2, {nst[0]}
        v_mov_b32 v3, 0
        buffer_store_dwordx2 v[2:3], v1, s[8:11], 0 offen""")
        for j in range(nst[0]):
            e(f"v_mov_b32 v4, s{sTS+2*j}\nv_mov_b32 v5, s{sTS+1+2*j}\nbuffer_store_dwordx2 v[4:5], v1, s[8:11], 0 offen offset:{8+8*j}\ns_nop 1")
        e("s_waitcnt vmcnt(0)")
    e("L_exit:\ns_endpgm\nL_codeend:")
    for h, (src, mx) in enumerate(hooks):
        e(f"L_fix{h}:\ns_nop 7\ns_nop 7\ns_cmp_eq_u32 {sPASS}, 2\ns_cbranch_scc1 L_sub{h}")
        for q in range(0, 16, 2): e(f"v_max3_f32 v{mx}, v{src+q}, v{src+q+1}, v{mx}")
        e(f"s_branch L_ret{h}\nL_sub{h}:")
        for q in range(16): e(f"v_sub_f32 v{src+q}, v{src+q}, v{mx}")
        e(f"s_branch L_ret{h}")
    e(f"""L_slow:
    s_cmp_eq_u32 {sPASS}, 2
    s_cbranch_scc1 L_checked
    s_nop 7
    s_nop 7
    s_waitcnt vmcnt(0) lgkmcnt(0)
    s_barrier
    s_mov_b64 vcc, -1
    s_cmp_eq_u32 {sPASS}, 1
    s_cbranch_scc1 L_slow2
    s_mov_b32 {sPASS}, 1
    s_mov_b32 {sRNG}, 0
    v_mov_b32 v{vMP}, 0xff800000
    v_mov_b32 v{vMS}, 0xff800000
    s_branch L_start
    L_slow2:
    s_mov_b32 {sPASS}, 2
    s_mov_b32 {sLO}, 0
    s_mov_b32 {sRNG}, -1
    v_mov_b32 v42, v{vMP}
    v_mov_b32 v43, v{vMS}
    s_nop 1
    v_permlane32_swap_b32 v42, v{vMP}
    v_permlane32_swap_b32 v43, v{vMS}
    v_lshlrev_b32 v44, 2, v0
    s_lshl_b32 {sT0}, {sW}, 8
    v_max_f32 v{vMP}, v42, v{vMP}
    v_max_f32 v{vMS}, v43, v{vMS}
    v_add_u32 v45, {sT0}, v44
    ds_write_b32 v45, v{vMS}
    s_waitcnt lgkmcnt(0)
    s_barrier
    ds_read_b32 v42, v44
    ds_read_b32 v43, v44 offset:256
    ds_read_b32 v45, v44 offset:512
    ds_read_b32 v46, v44 offset:768
    s_waitcnt lgkmcnt(0)
    v_max3_f32 v{vMS}, v42, v43, v45
    v_max_f32 v{vMS}, v{vMS}, v46
    s_barrier
    s_branch L_start""")
    txt, added = k.text()
    est = s.est
    per = [sum(est[i:i + 40]) for i in range(0, len(est), 40)]
    print(f"main: {len(k.L)} lines, nops {added}, forced {s.forced}, mfma {len(est)}, est {sum(est)}; per40: {per}", file=sys.stderr)
    if OPT['verbose']:
        print("use:", s.use, file=sys.stderr)
        print("bars:", {n: o.gap for n, o in s.bars.items()}, file=sys.stderr)
    return txt

if __name__ == "__main__":
    out = sys.argv[1]
    sys.argv = sys.argv[:2] + ([f"ts={OPT['ts']}"] if OPT['ts'] else []) + ([f"diag={OPT['diag']}"] if OPT['diag'] else [])
    import gen
    m = main_kernel()
    L = [("mha_main_kernel", 256, 256, 163840), ("mha_reduce_kernel", 560, 256, 0)]
    KS = [("mha_main_kernel", m, 512, 256), ("mha_reduce_kernel", gen.reduce_kernel(), 80, 80)]
    if OPT['dup'] == 1: L.insert(0, L[0])
    if OPT['dup'] == 2:
        L.insert(0, ("mha_copy_kernel", 256, 256, 163840)); KS.append(("mha_copy_kernel", m.replace("L_", "M_"), 512, 256))
    if OPT['diag']:
        L.append(("mha_diag_kernel", 1, 64, 0)); KS.append(("mha_diag_kernel", gen.diag_kernel(), 64, 64))
    write_file(out, HEADER, L, KS)
```

```python
import sys, math, struct
sys.path.insert(0, "work")
from asmlib import K, write_file
from sch import Sched, Op

OPT = dict(arr='N', ts=0, dump='', nt='nt', st='', bud=24, maxlg=14, delay=3, dsage=4, maxds=3,
           rb=9, wb=0, wage=6, dc=16, wc=16, lc=12,
           kpre=0, k0=0, kp=70, kp2=65, ksw=32, pair=1, tp=0, tpm='', stamps='RA3,RS0,RS8,RS16,RS22',
           w0=14, wp=2,
           dp=2, vp=3, verbose=0, red=1, fs=0, spin=20, lo=-20, hi=30, diag='', dup=0, cp=2, cpm='', cpf='RA3:RS1:242,RS3:RS8:16,RS10:RS16:46')
for a in sys.argv[2:]:
    kk, vv = a.split('=')
    assert kk in OPT, kk
    OPT[kk] = int(vv) if vv.lstrip('-').isdigit() else vv

if OPT['red'] and not OPT['st']: OPT['st'] = 'sc1'
HEADER = "".join(l for l in open("standalone__mha_block_cached__near_ridge.s.ref").read().splitlines(True)[:11])
MF = "v_mfma_f32_32x32x16_bf16"
def R(p, lo, n): return f"{p}[{lo}:{lo+n-1}]"
def f2u(x): return struct.unpack('<I', struct.pack('<f', x))[0]
SX, SK, SV, SWQ, SWO, SWS = "s[8:11]", "s[12:15]", "s[16:19]", "s[20:23]", "s[24:27]", "s[28:31]"
sW, sB, sH = "s32", "s33", "s34"
sT0, sT1, sT2 = "s36", "s37", "s38"
sC = "s39"
sWQO, sXO, sM8, sM1, sW16, sWOO, sWLO = "s40", "s41", "s42", "s43", "s44", "s45", "s46"
sST = 47
sD, sL, sS = "s55", "s56", "s35"
sPASS, sLO, sRNG = "s57", "s58", "s59"
sTS = 68
SFL, SDB = 's[60:63]', 's[64:67]'
FLOFF = 16 * 140 * 16384
XB = 96 * 1024
S4 = 128 * 1024
SL = dict(a=32768, b=65536, c=0, d=98304)
def B(i): return 48 + 16 * i
vSP, vSS, vMP, vMS = 38, 39, 40, 41

def main_kernel():
    k = K(); e = k.e
    s = Sched(k)
    nst = [0]
    TSI = 's_memtime' if OPT['ts'] == 2 else 's_memrealtime'
    def stamp():
        if OPT['ts']:
            k.wait(lg0=True)
            e(f"{TSI} s[{sTS+2*nst[0]}:{sTS+1+2*nst[0]}]\ns_waitcnt lgkmcnt(0)")
            nst[0] += 1
    def dump(name, regs):
        if OPT['dump'] != name: return
        def fn(op):
            e("s_nop 7\ns_nop 7\ns_waitcnt vmcnt(0) lgkmcnt(0)")
            e(f"s_mul_i32 {sT0}, {sB}, 64\ns_lshl_b32 {sT1}, {sH}, 2\ns_add_u32 {sT0}, {sT0}, {sT1}\ns_add_u32 {sT0}, {sT0}, {sW}\ns_lshl_b32 {sT0}, {sT0}, 17")
            e("s_add_u32 s8, s4, 0x4000000\ns_addc_u32 s9, s5, 0\ns_mov_b32 s10, 0x8000000\ns_mov_b32 s11, 0x00020000")
            e("v_lshlrev_b32 v0, 2, v0")
            for i, r in enumerate(regs):
                e(f"buffer_store_dword {r}, v0, s[8:11], {sT0} offen\ns_add_u32 {sT0}, {sT0}, 256")
                if i % 32 == 31: e("s_waitcnt vmcnt(0)")
            e("s_waitcnt vmcnt(0)\ns_branch L_exit")
        s.add(Op('e', 's_nop 0', R=regs, W=regs, fn=fn, dl=s.nmf))

    if OPT['ts']:
        e(f"{TSI} s[{sTS}:{sTS+1}]"); nst[0] = 1
    e(f"""
    s_cmp_ge_u32 s2, 256
    s_cbranch_scc1 L_exit
    v_lshrrev_b32 v1, 6, v0
    v_and_b32 v0, 63, v0
    s_mov_b32 {sPASS}, 0
    v_readfirstlane_b32 {sW}, v1
    s_mov_b64 vcc, 0
    s_mov_b32 {sLO}, 0x{(127 + OPT['lo']) << 23:08x}
    s_mov_b32 {sRNG}, 0x{(OPT['hi'] - OPT['lo']) << 23:08x}
    L_start:
    s_load_dwordx2 s[8:9], s[0:1], 0
    s_load_dwordx2 s[20:21], s[0:1], 24
    s_load_dwordx2 s[12:13], s[0:1], 8
    s_load_dwordx2 s[16:17], s[0:1], 16
    s_load_dwordx2 s[24:25], s[0:1], 32
    s_load_dwordx2 s[4:5], s[0:1], 56
    s_load_dwordx2 s[6:7], s[0:1], 40
    s_load_dwordx2 s[64:65], s[0:1], 48
    s_and_b32 {sT0}, s2, 7
    s_lshr_b32 {sT1}, s2, 3
    """)
    arr = OPT['arr']
    if arr == 'N':
        e(f"""s_lshr_b32 {sB}, {sT0}, 1
        s_lshl_b32 {sB}, {sB}, 2
        s_lshr_b32 {sT2}, {sT1}, 3
        s_add_u32 {sB}, {sB}, {sT2}
        s_and_b32 {sH}, {sT0}, 1
        s_lshl_b32 {sH}, {sH}, 3
        s_and_b32 {sT2}, {sT1}, 7
        s_add_u32 {sH}, {sH}, {sT2}""")
    elif arr == 'L':
        e(f"""s_lshl_b32 {sB}, {sT0}, 1
        s_lshr_b32 {sT2}, {sT1}, 4
        s_add_u32 {sB}, {sB}, {sT2}
        s_and_b32 {sH}, {sT1}, 15""")
    elif arr == 'M':
        e(f"""s_lshr_b32 {sB}, {sT0}, 2
        s_lshl_b32 {sB}, {sB}, 3
        s_lshr_b32 {sT2}, {sT1}, 2
        s_add_u32 {sB}, {sB}, {sT2}
        s_and_b32 {sH}, {sT0}, 3
        s_lshl_b32 {sH}, {sH}, 2
        s_and_b32 {sT2}, {sT1}, 3
        s_add_u32 {sH}, {sH}, {sT2}""")
    e(f"""
    s_mov_b32 s10, 143360
    s_mov_b32 s11, 0x00020000
    s_mov_b32 s23, 0x00020000
    s_lshl_b32 {sM8}, {sW}, 13
    s_lshl_b32 {sM1}, {sW}, 10
    s_lshl_b32 {sWQO}, {sW}, 17
    s_mul_i32 {sXO}, {sW}, 7168
    v_lshrrev_b32 v44, 5, v0                 ; hh
    v_and_b32 v45, 31, v0                    ; c
    v_lshlrev_b32 v1, 2, v44
    v_xor_b32 v1, v1, v45
    v_lshlrev_b32 v1, 4, v1
    v_lshl_add_u32 v2, v44, 13, v1
    v_xor_b32 v3, 0x80, v2
    v_add_u32 v3, 15360, v3
    v_add_u32 v4, 30720, v2
    v_add_u32 v5, 30720, v3
    s_and_b32 {sT2}, {sW}, 1
    s_lshl_b32 {sT0}, {sT2}, 2
    v_lshrrev_b32 v6, 4, v0
    v_xor_b32 v6, {sT0}, v6
    v_and_b32 v1, 7, v0
    v_xor_b32 v6, v6, v1
    v_lshlrev_b32 v6, 4, v6
    v_lshrrev_b32 v1, 3, v0
    v_mul_u32_u24 v1, 896, v1
    v_add_u32 v6, v6, v1                     ; x voff
    s_mul_i32 {sT0}, {sB}, 143360
    s_lshl_b32 {sT1}, {sH}, 9
    s_waitcnt lgkmcnt(0)
    s_add_u32 s8, s8, {sT0}
    s_addc_u32 s9, s9, 0
    s_add_u32 s20, s20, {sT1}
    s_addc_u32 s21, s21, 0
    s_sub_u32 s22, 3670016, {sT1}
    """)
    dc, lc = OPT['dc'], OPT['lc']
    def vmop(text, **kw):
        n = text.count('\n')
        return s.vm(text, cost=kw.pop('cost', dc) + 4 * n, chain='vm', **kw)
    def pace(e0, p):
        i = 0
        while True:
            x = e0 + int(i * p)
            yield dict(early=x, dl=x + 2)
            i += 1
    def dma_stage(i, pc=None, **kw):
        L = []
        slot = (i % 3) * 32768; xs = XB + (i % 3) * 20480
        for u in range(2):
            for ii in range(4):
                t = f"s_add_u32 m0, {sM8}, {slot + u*4096}\ns_add_u32 {sD}, {sWQO}, {(i << 19) + u*65536}\n" if ii == 0 else ""
                L.append(t + f"buffer_load_dwordx4 v{2+ii}, {SWQ}, {sD} offen offset:{ii*1024} lds")
        X = []
        for u in range(5):
            X.append(f"s_add_u32 m0, {sM1}, {xs + u*4096}\ns_add_u32 {sD}, {sXO}, {i*128 + u*4*7168}\nbuffer_load_dwordx4 v6, {SX}, {sD} offen lds")
        return [(t, dict(bb=f"RA{i}", **kw)) for t in L + X]
    def dma_tile(n, slot, **kw):
        L = []
        for u in range(2):
            for ii in range(4):
                if n < 16:
                    i, dh = (n >> 1, n & 1) if n < 8 else ((n - 8) & 3, (n - 8) >> 2)
                    so = f"{sW16}, {i*65536 + dh*256 + u*8192}"; vo = (8 if n < 8 else 2) + ii; srd = SK if n < 8 else SV; m = OPT['nt']
                elif n < 22:
                    g, dh = (n - 16) >> 1, (n - 16) & 1
                    so = f"{sWOO}, {(dh*128 + 16*u)*896 + g*256}"; vo = 2 + ii; srd = SWO; m = ''
                else:
                    so = f"{sWLO}, {32*u*896 + 768}"; vo = 8 + ii; srd = SWO; m = ''
                t = f"s_add_u32 m0, {sM8}, {SL[slot] + u*4096}\ns_add_u32 {sD}, {so}\n" if ii == 0 else ""
                L.append(t + f"buffer_load_dwordx4 v{vo}, {srd}, {sD} offen offset:{ii*1024} {m} lds")
        return [(t, dict(bb=f"RS{n}", **kw)) for t in L]
    def stage_load(tiles, **kw):
        L = []
        for u in range(2):
            for ii in range(4):
                for x, (n, r) in enumerate(tiles):
                    i, dh = (n >> 1, n & 1) if n < 8 else ((n - 8) & 3, (n - 8) >> 2)
                    t = f"s_add_u32 {sL}, {sW16}, {i*65536 + u*8192}\n" if ii == 0 and x == 0 else ""
                    vo = (8 if n < 8 else 2) + ii; srd = SK if n < 8 else SV
                    L.append(t + f"buffer_load_dwordx4 {R('a', 32*r + 16*u + 4*ii, 4)}, v{vo}, {srd}, {sL} offen offset:{ii*1024 + dh*256} {OPT['nt']}")
        return [(t, dict(cost=lc, **kw)) for t in L]
    def issue(L, pc=None, **kw):
        for t, a in L:
            a = dict(a); a.update(kw)
            if pc is not None: a.update(next(pc))
            vmop(t, **a)
    wbase = [32768]
    def stage_write(n, r, slot, ab, p0):
        for u in range(2):
            for ii in range(4):
                off = SL[slot] - wbase[0] + u * 4096 + ii * 1024
                assert 0 <= off < 65536
                x = p0 + OPT['w0'] + OPT['wp'] * (4 * u + ii)
                s.ds(f"ds_write_b128 v7, {R('a', 32*r + 16*u + 4*ii, 4)} offset:{off}", cost=OPT['wc'], ab=ab, bb=f"RS{n}", early=x, dl=x + 1)
    P = dict(pre=True)
    issue(dma_stage(0), **P)
    s.es(f"""
    s_lshl_b32 {sT0}, {sB}, 4
    s_add_u32 {sT0}, {sT0}, {sH}
    s_lshl_b32 {sT0}, {sT0}, 18""", **P)
    s.e(f"s_add_u32 s16, s16, {sT0}\ns_addc_u32 s17, s17, 0\ns_add_u32 s12, s12, {sT0}\ns_addc_u32 s13, s13, 0", **P)
    s.es(f"""
    s_mov_b32 s14, 262144
    s_mov_b32 s15, 0x00020000
    s_mov_b32 s18, 262144
    s_mov_b32 s19, 0x00020000
    s_lshl_b32 {sW16}, {sW}, 14""", **P)
    issue(dma_stage(1), **P)
    s.es(f"""
    v_bfe_u32 v1, v0, 4, 1
    v_and_b32 v8, 7, v0
    v_xor_b32 v8, v8, v1
    v_lshlrev_b32 v8, 4, v8
    v_lshl_add_u32 v8, v44, 7, v8
    v_bfe_u32 v1, v0, 3, 2
    v_lshl_add_u32 v8, v1, 9, v8
    v_xor_b32 v9, {1024+32}, v8
    v_xor_b32 v10, {2048+64}, v8
    v_xor_b32 v11, {3072+96}, v8""".replace(f"v_xor_b32 v9, {1024+32}, v8", "v_xor_b32 v9, 32, v8\nv_add_u32 v9, 1024, v9")
       .replace(f"v_xor_b32 v10, {2048+64}, v8", "v_xor_b32 v10, 64, v8\nv_add_u32 v10, 2048, v10")
       .replace(f"v_xor_b32 v11, {3072+96}, v8", "v_xor_b32 v11, 0x60, v8\nv_add_u32 v11, 3072, v11"), **P)
    KL = stage_load([(0, 0), (1, 1)]) + stage_load([(2, 2), (3, 3)]) + stage_load([(4, 4), (5, 5)]) + stage_load([(6, 6)])
    if not OPT['pair']: KL = sum([stage_load([(n, n)]) for n in range(7)], [])
    if OPT['tp']:
        s.es(f"v_and_b32 v241, 15, v0\nv_lshlrev_b32 v241, 12, v241\ns_lshl_b32 {sL}, {sW}, 16", **P)
        vmop(f"buffer_load_dword v240, v241, {SK}, {sL} offen {OPT['tpm']}", **P)
        if OPT['tp'] > 1: vmop(f"buffer_load_dword v242, v241, {SV}, {sL} offen {OPT['tpm']}", **P)
    def cpref(lab, tmp, st, n=1, **kw):
        a, b = f"v{tmp}", f"v{tmp+1}"
        for j in range(n):
            s.add(Op('e', f"s_lshl_b32 s98, {sW}, {6+st}\ns_add_u32 s98, s98, {lab}-L_pc+{j*(256<<st)}\nv_lshlrev_b32 {a}, {st}, v0\nv_add_u32 {a}, s98, {a}\nv_min_u32 {a}, s95, {a}", cost=20, **kw))
            s.add(Op('e', f"v_mov_b32 {b}, s97\nv_add_co_u32 {a}, s[98:99], s96, {a}\ns_nop 1\nv_addc_co_u32 {b}, s[98:99], 0, {b}, s[98:99]", W=['s98', 's99'], cost=20, **kw))
            s.add(Op('vm', f"global_load_dword {a}, v[{tmp}:{tmp+1}], off {OPT['cpm']}", cost=16, **kw))
    if OPT['cp']:
        s.e(f"s_getpc_b64 s[96:97]\nL_pc:\ns_mov_b32 s95, L_codeend-L_pc-4", **P)
        if OPT['cp'] == 1:
            cpref('L_pc', 242, 7, 1, **P); cpref('L_pc+32768', 244, 7, 1, **P)
        else: cpref('L_pc', 242, 6, 1, **P)
    if OPT['red']:
        s.e(f"s_lshl_b32 {sT0}, {sB}, 11\ns_add_u32 {sT0}, {sT0}, {FLOFF}\ns_add_u32 s60, s4, {sT0}\ns_addc_u32 s61, s5, 0", **P)
        s.e(f"s_lshl_b32 {sT0}, {sB}, 4\ns_add_u32 s64, s64, {sT0}\ns_addc_u32 s65, s65, 0", **P)
        s.es(f"""s_mov_b32 s62, 2048
        s_mov_b32 s63, 0x00020000
        s_mov_b32 s66, 16
        s_mov_b32 s67, 0x00020000
        s_lshl_b32 s3, {sH}, 7
        s_lshl_b32 {sT0}, {sW}, 29
        v_lshlrev_b32 v244, 23, v0
        v_add_u32 v244, {sT0}, v244
        v_mov_b32 v245, 0""", **P)
        s.e(f"s_cmp_eq_u32 {sPASS}, 0\ns_cselect_b32 {sT0}, 1, 0", **P)
        s.e(f"v_mov_b32 v246, {sT0}", **P)
        vmop(f"buffer_store_dword v245, v244, {SFL}, s3 offen sc1", bb='RA2', **P)
    issue(KL[:OPT['kpre']], **P)
    KL = KL[OPT['kpre']:]
    s.e(f"s_mul_i32 {sT0}, {sH}, 229376\ns_add_u32 s24, s24, {sT0}\ns_addc_u32 s25, s25, 0", **P)
    s.e(f"s_mul_i32 {sT0}, {sB}, {140*16384}\ns_lshl_b32 {sT1}, {sH}, 10\ns_add_u32 {sT0}, {sT0}, {sT1}\ns_add_u32 s28, s4, {sT0}\ns_addc_u32 s29, s5, 0", **P)
    s.es(f"""
    s_mov_b32 s26, 229376
    s_mov_b32 s27, 0x00020000
    s_mov_b32 s30, {140*16384}
    s_mov_b32 s31, 0x00020000
    s_mov_b32 {sC}, 0x{f2u(math.log2(math.e)/16):08x}
    s_mul_i32 {sWOO}, {sW}, {32*896}
    s_mul_i32 {sWLO}, {sW}, {64*896}
    """, **P)
    s.es(f"""
    v_bfe_u32 v47, v0, 2, 2
    v_lshl_add_u32 v43, v44, 3, v47
    v_bfe_u32 v1, v0, 4, 1
    v_lshlrev_b32 v46, 5, v1
    v_and_b32 v1, 1, v0
    v_lshl_add_u32 v46, v1, 4, v46
    v_bfe_u32 v1, v0, 1, 1
    v_lshl_add_u32 v46, v1, 3, v46
    v_lshl_add_u32 v1, v47, 6, v46
    s_lshl_b32 {sT0}, {sW}, 6
    v_lshl_add_u32 v12, v43, 9, v1
    v_xor_b32 v12, {sT0}, v12
    v_xor_b32 v13, 64, v12
    v_xor_b32 v14, 0x80, v12
    v_xor_b32 v15, 0xc0, v12
    v_bfe_u32 v1, v0, 1, 3
    v_xor_b32 v1, v1, v44
    v_lshlrev_b32 v1, 4, v1
    v_lshl_add_u32 v1, v45, 7, v1
    v_add_u32 v20, {XB + 128*128}, v1
    s_lshl_b32 {sT0}, {sW}, 12
    s_add_u32 {sT0}, {sT0}, {XB}
    v_add_u32 v16, {sT0}, v1
    v_xor_b32 v17, 32, v16
    v_xor_b32 v18, 64, v16
    v_xor_b32 v19, 0x60, v16
    v_xor_b32 v21, 32, v20
    v_xor_b32 v22, 64, v20
    v_xor_b32 v23, 0x60, v20
    """, **P)
    s.es(f"""
    v_and_b32 v42, 0x13, v0
    v_bfe_u32 v1, v0, 2, 1
    v_lshl_or_b32 v42, v1, 3, v42
    v_bfe_u32 v1, v0, 3, 1
    v_lshl_or_b32 v42, v1, 2, v42
    v_bfe_u32 v1, v42, 1, 3
    v_xor_b32 v1, v1, v44
    v_lshlrev_b32 v1, 4, v1
    v_and_b32 v24, 3, v42
    v_lshl_add_u32 v1, v24, 7, v1
    v_lshrrev_b32 v24, 2, v42
    v_lshl_add_u32 v1, v24, 10, v1
    s_add_u32 {sT0}, {sM8}, 32768
    v_add_u32 v32, {sT0}, v1
    v_xor_b32 v33, 32, v32
    v_xor_b32 v34, 64, v32
    v_xor_b32 v35, 0x60, v32
    s_lshr_b32 {sT1}, {sW}, 1
    s_lshl_b32 {sT1}, {sT1}, 9
    s_and_b32 {sT2}, {sW}, 1
    s_lshl_b32 {sT2}, {sT2}, 6
    s_add_u32 {sT1}, {sT1}, {sT2}
    s_add_u32 {sT1}, {sT1}, 32768
    v_xor_b32 v24, {sT1}, v1
    """, **P)
    for jj in range(4):
        for half in range(2):
            if jj or half: s.e(f"v_xor_b32 v{24+2*jj+half}, {(jj>>1)*512 + (jj&1)*64 + half*32}, v24", **P)
    s.es(f"""
    v_lshlrev_b32 v1, 4, v0
    v_add_u32 v7, {sT0}, v1
    v_add_u32 v36, {S4}, v1
    s_lshl_b32 {sT0}, {sW}, 11
    v_add_u32 v37, {sT0}, v36
    """, **P)
    s.e(f"s_mul_i32 {sT1}, {sW}, 14", **P)
    for t in range(4):
        s.es(f"s_xor_b32 {sT0}, {sW}, {t}\ns_add_u32 {sT0}, {sT0}, {sT1}\ns_lshl_b32 s{sST+t}, {sT0}, 15", **P)
    s.es(f"""s_add_u32 {sT0}, {sW}, 56
    s_lshl_b32 s{sST+4}, {sT0}, 15
    s_and_b32 {sT2}, {sW}, 1
    s_add_u32 {sT0}, {sT1}, {sT2}
    s_add_u32 {sT0}, {sT0}, 12
    s_lshl_b32 s{sST+5}, {sT0}, 15
    s_sub_u32 {sT0}, {sT1}, {sT2}
    s_add_u32 {sT0}, {sT0}, 13
    s_lshl_b32 s{sST+6}, {sT0}, 15
    s_add_u32 {sT0}, {sT2}, 68
    s_lshl_b32 s{sST+7}, {sT0}, 15""", **P)

    ringc = [0]
    def ring():
        r = 224 + 4 * (ringc[0] % 8); ringc[0] += 1
        return r
    STAMPS = set(OPT['stamps'].split(','))
    CPF = dict(x.split(':', 1) for x in OPT['cpf'].split(',') if x)
    def RB(name):
        def fn():
            e(f"L_{name}:")
            if name in STAMPS: stamp()
        s.bar(name, fn=fn, early=s.nmf - OPT['rb'])
        if OPT['cp'] > 1 and name in CPF:
            lab, tmp = CPF[name].split(':')
            cpref('L_' + lab, int(tmp), 6, 1, early=s.nmf, dl=s.nmf + 4)
    def WB(name, p0):
        s.bar(name, early=p0 + OPT['wb'], lgage=OPT['wage'], dl=p0 + OPT['wb'] + 2)
    def rebase(regs, delta):
        for r in regs:
            s.e(f"v_add_u32 v{r}, {delta}, v{r}" if delta > 0 else f"v_subrev_u32 v{r}, {-delta}, v{r}")
    def tr(ar, off, d2, **kw):
        r = ring()
        s.rd(f"ds_read_b64_tr_b16 {R('a', r, 2)}, v{ar} offset:{off}", **kw)
        s.rd(f"ds_read_b64_tr_b16 {R('a', r+2, 2)}, v{ar} offset:{off+d2}", **kw)
        return R('a', r, 4)
    def rd128(ar, off, dst=None, **kw):
        if dst is None: dst = R('a', ring(), 4)
        s.rd(f"ds_read_b128 {dst}, v{ar} offset:{off}", **kw)
        return dst
    def mf(acc, a, b, first): s.mf(f"{MF} {acc}, {a}, {b}, {'0' if first else acc}")

    def qconv(src, j):
        for q in range(16): s.e(f"v_mul_f32 v{src+q}, {sC}, v{src+q}")
        for q in range(8): s.e(f"v_cvt_pk_bf16_f32 v{src+2*q}, v{src+2*q}, v{src+2*q+1}")
        for q in range(8): s.e(f"v_accvgpr_write_b32 a{8*j+q}, v{src+2*q}")
    def pack_write(src, off, ab, bb):
        for q in range(8): s.e(f"v_cvt_pk_bf16_f32 v{src+q}, v{src+2*q}, v{src+2*q+1}")
        for half in range(2):
            s.ds(f"ds_write_b128 v37, {R('v', src+4*half, 4)} offset:{off + half*1024}", cost=OPT['wc'], ab=ab, bb=bb)
    JORD = [0, 4, 1, 2, 3, 5, 6, 7]
    trb = 0
    gx = [float(OPT['k0']), 0]
    def gpace(e0):
        while True:
            gx[0] = max(gx[0], e0)
            x = int(gx[0]); gx[1] += 1
            gx[0] += (OPT['kp'] if gx[1] + OPT['kpre'] < OPT['ksw'] else OPT['kp2']) / 10
            yield dict(early=x, dl=x + 2)
    kpc = gpace(0)
    kq = [(t, dict(a, **next(kpc))) for t, a in KL]
    def merged(L, upto):
        M = list(L)
        while kq and kq[0][1]['early'] < upto: M.append(kq.pop(0))
        M.sort(key=lambda x: x[1]['early'])
        issue(M)
    for i in range(7):
        p0 = s.nmf
        slot = (i % 3) * 32768; xs = (i % 3) * 20480
        RB(f"RA{i}")
        if i >= 1: WB(f"WA{i}", p0)
        L = []
        if i <= 4:
            pc = pace(p0 + (1 if i else -1), OPT['dp'])
            L = [(t, dict(a, **next(pc))) for t, a in dma_stage(i + 2, ab=(f"WA{i}" if i else None))]
        merged(L, p0 + 40 if i < 6 else 10**9)
        if i == 2 and OPT['red']: s.vm(f"buffer_atomic_add v246, v244, {SDB}, 0 offen sc1", cost=8, ab='RA2', dl=p0 + 20)
        if i == 5: stage_write(0, 0, 'a', 'WA5', p0)
        if i == 6: stage_write(1, 1, 'b', 'WA6', p0 - OPT['w0'] + 2)
        want = slot & 0x10000
        if want != trb: rebase(range(12, 16), want - trb); trb = want
        kw = dict(ab=f"RA{i}", bb=(f"WA{i+1}" if i < 6 else "WS0"))
        def step(j, T, newx):
            xb = B(10) + 8 * T
            if newx: rd128(16 + T, xs, R('v', xb, 4), **kw)
            a = tr(12 + (j & 3), slot - trb + (j >> 2) * 256 + T * 8192, 2048, **kw)
            mf(R('v', B(j), 16), a, R('v', xb, 4), i == 0 and T == 0)
            if j in (0, 4):
                if newx: rd128(20 + T, xs, R('v', xb + 4, 4), **kw)
                mf(R('v', B(8 + (j >> 2)), 16), a, R('v', xb + 4, 4), i == 0 and T == 0)
        if i < 6:
            for T in range(4):
                for j in JORD: step(j, T, j == 0)
        else:
            for j in range(8):
                for T in range(4): step(j, T, j == 0)
                if OPT['dump'] == 'Q': continue
                if j in (0, 4):
                    sh = B(8 + (j >> 2))
                    for q in range(16): s.e(f"v_mul_f32 v{sh+q}, {sC}, v{sh+q}")
                    pack_write(sh, 16384 + (j >> 2) * 8192, 'WA6', f"RS{j>>2}")
                qconv(B(j), j)
    dump('Q', [f"v{r}" for r in range(B(0), B(10))])
    s.es(f"""
    v_lshrrev_b32 v42, 4, v0
    v_lshlrev_b32 v3, 2, v42
    v_and_b32 v2, 15, v0
    v_xor_b32 v2, v2, v3
    v_lshlrev_b32 v2, 4, v2
    v_lshl_add_u32 v2, v42, 9, v2
    v_add_u32 v3, 1024, v2
    v_add_u32 v4, 2048, v2
    v_add_u32 v5, 3072, v2
    v_lshl_add_u32 v45, v47, 6, v46
    v_lshl_add_u32 v45, v43, 8, v45
    s_lshl_b32 {sT0}, {sW}, 6
    s_add_u32 {sT0}, {sT0}, 65536
    v_xor_b32 v12, {sT0}, v45
    v_xor_b32 v13, 64, v12
    v_xor_b32 v14, 0x80, v12
    v_xor_b32 v15, 0xc0, v12
    """)

    SLOT = {0: 'a', 1: 'b', 2: 'a', 3: 'b', 4: 'a', 5: 'b', 6: 'a', 7: 'c', 8: 'd', 9: 'b', 10: 'd', 11: 'b', 12: 'a', 13: 'c', 14: 'd', 15: 'b',
            16: 'a', 17: 'c', 18: 'd', 19: 'b', 20: 'a', 21: 'c', 22: 'd'}
    TB = [[12, 11, 8, 10, 0], [1, 2, 3, 4, 5], [6, 7, 9, 11, 0], [5, 2, 4, 7, 10]]
    hooks = []
    firsts = {vSP: True, vSS: True}
    def softmax(g, t):
        src = B(TB[g][t]); regs = [f"v{src+q}" for q in range(16)]
        mx, sm = (vMP, vSP) if t < 4 else (vMS, vSS)
        h = len(hooks); hooks.append((src, mx))
        s.add(Op('e', f"s_cbranch_vccnz L_fix{h}\nL_ret{h}:", cost=8, R=regs + ['vcc', f"v{mx}"], W=regs + [f"v{mx}"]))
        for q in range(16):
            s.e(f"v_exp_f32 v{src+q}, v{src+q}")
        for q in range(16):
            if firsts[sm]:
                if q == 0: continue
                s.e(f"v_add_f32 v{sm}, v{src}, v{src+1}"); firsts[sm] = False
            else: s.e(f"v_add_f32 v{sm}, v{sm}, v{src+q}")
        if t < 4:
            dst = B(TB[g][t & 2]) + 8 * (t & 1)
            for q in range(8): s.e(f"v_cvt_pk_bf16_f32 v{dst+q}, v{src+2*q}, v{src+2*q+1}")
        else:
            pack_write(src, g * 8192, ['RS0', 'RS0', 'WS7', 'WS8'][g], f"RS{8+g}")
    def Pfrag(g, ks): return R('v', B(TB[g][(ks >> 1) & 2]) + 4 * (ks & 3), 4)
    kb = 32768
    vp = OPT['vp']
    for n in range(8):
        p0 = s.nmf
        g, dh = n >> 1, n & 1
        RB(f"RS{n}")
        if n != 6: WB(f"WS{n}", p0)
        if n == 0: issue(dma_tile(7, 'c', ab='WS0') + dma_tile(8, 'd', ab='WS0'), gpace(p0 + 1))
        if 1 <= n <= 5: stage_write(n + 1, n + 1, SLOT[n + 1], f"WS{n}", p0)
        if 1 <= n <= 3: issue(stage_load([(8 + n, n + 1)]), gpace(p0 + OPT['w0'] + 6))
        if n == 5: rebase([7], 32768); wbase[0] = 65536
        if n == 7: issue(dma_tile(12, 'a', ab='WS7'), gpace(p0 + 1))
        off0 = SL[SLOT[n]] - kb
        if not 0 <= off0 < 65536 - 32767:
            rebase(range(24, 36), off0); kb += off0; off0 = 0
        kw = dict(ab=f"RS{n}", bb=(f"WS{n+1}" if n != 5 else "RS7"))
        qkw = dict(ab=f"RS{n}", bb=(f"WS{n+1}" if n >= 6 else None))
        def step(t, ks):
            acc = R('v', B(TB[g][t]), 16); first = (dh == 0 and ks == 0)
            if t < 4:
                a = rd128(24 + ks, off0 + t * 8192, **kw)
                mf(acc, a, R('a', 32 * dh + 4 * ks, 4), first)
            else:
                a = rd128(32 + (ks & 3), off0 + (ks >> 2) * 512, **kw)
                b = rd128(36, 16384 + dh * 8192 + ks * 1024, **qkw)
                mf(acc, a, b, first)
        if n < 2:
            for ks in range(8):
                for t in range(5): step(t, ks)
            if dh and OPT['dump'] != 'S0':
                for t in (4, 0, 1, 2, 3): softmax(g, t)
        else:
            for t in (4, 0, 1, 2, 3):
                for ks in range(8): step(t, ks)
                if dh: softmax(g, t)
        if n == 1: dump('S0', [f"v{B(b)+q}" for b in TB[0] for q in range(16)])
    dump('P', [f"v{B(TB[g][t])+q}" for g in range(4) for t in (0, 2) for q in range(16)] + [f"v{vSP}", f"v{vSS}"])
    s.es(f"s_mul_i32 {sT0}, {sW}, {8192+64}\nv_xor_b32 v16, {sT0}, v45")
    for jj in range(4):
        for t in range(4):
            if jj or t: s.e(f"v_xor_b32 v{16+4*jj+t}, {jj*8192+t*64}, v16")
    s.es(f"""
    v_lshrrev_b32 v32, 1, v47
    v_lshl_add_u32 v32, v32, 6, v46
    v_lshl_add_u32 v32, v43, 7, v32
    s_and_b32 {sT1}, {sW}, 1
    s_lshl_b32 {sT1}, {sT1}, 6
    s_lshl_b32 {sT0}, {sW}, 12
    s_add_u32 {sT0}, {sT0}, {sT1}
    s_add_u32 {sT0}, {sT0}, {SL['d']}
    v_xor_b32 v32, {sT0}, v32
    v_xor_b32 v33, 64, v32
    v_xor_b32 v34, 4096, v32
    v_xor_b32 v35, {4096+64}, v32
    v_lshrrev_b32 v42, 4, v0
    v_and_b32 v42, 1, v42
    v_lshlrev_b32 v42, 2, v42
    v_and_b32 v8, 7, v0
    v_xor_b32 v8, v8, v42
    v_lshlrev_b32 v8, 4, v8
    v_lshrrev_b32 v42, 3, v0
    v_mul_u32_u24 v42, 896, v42
    v_add_u32 v8, v8, v42
    v_add_u32 v9, 6144, v8
    v_add_u32 v10, 12288, v8
    v_add_u32 v11, 18432, v8
    """)
    s.es(f"""
    v_mov_b32 v42, v{vSP}
    v_mov_b32 v43, v{vSS}
    v_permlane32_swap_b32 v42, v{vSP}
    v_permlane32_swap_b32 v43, v{vSS}
    v_add_f32 v{vSP}, v42, v{vSP}
    v_add_f32 v{vSS}, v43, v{vSS}
    v_subrev_u32 v42, {sLO}, v{vSP}
    v_mov_b32 v43, 0x7f800000
    v_cmp_le_u32 vcc, {sRNG}, v42
    v_cndmask_b32 v{vSS}, v{vSS}, v43, vcc
    v_rcp_f32 v{vSP}, v{vSP}
    v_lshlrev_b32 v6, 2, v0
    v_add_u32 v6, {S4}, v6
    s_lshl_b32 {sT0}, {sW}, 8
    v_add_u32 v42, {sT0}, v6
    """)
    s.ds(f"ds_write_b32 v42, v{vSS}", ab='WS13', bb='RS14')

    OA = [[R('a', 16 * j, 16) for j in range(4)] + [R('a', 192, 16)], [R('v', B(b), 16) for b in (0, 11, 2, 7, 10)]]
    tmpc = [0]
    def oconv_a(abase, dst, inv):
        for q in range(8):
            t = 42 + 2 * (tmpc[0] % 3); tmpc[0] += 1
            s.es(f"""v_accvgpr_read_b32 v{t}, a{abase+2*q}
            v_accvgpr_read_b32 v{t+1}, a{abase+2*q+1}
            v_mul_f32 v{t}, v{t}, v{inv}
            v_mul_f32 v{t+1}, v{t+1}, v{inv}
            v_cvt_pk_bf16_f32 v{dst+q}, v{t}, v{t+1}""")
    def oconv_v(src, dst, inv):
        for q in range(16): s.e(f"v_mul_f32 v{src+q}, v{src+q}, v{inv}")
        if dst is not None:
            for q in range(8): s.e(f"v_cvt_pk_bf16_f32 v{dst+q}, v{src+2*q}, v{src+2*q+1}")
    vb = 65536
    for n in range(8, 16):
        p0 = s.nmf
        dh, g = (n - 8) >> 2, (n - 8) & 3
        RB(f"RS{n}")
        if n != 11: WB(f"WS{n}", p0)
        if n == 8:
            stage_write(9, 2, 'b', 'RS7', p0)
            issue(dma_tile(13, 'c', ab='WS8') + stage_load([(14, 5)]), gpace(p0 + 1))
        if n == 9: stage_write(10, 3, 'd', 'WS9', p0)
        if n == 10: stage_write(11, 4, 'b', 'WS10', p0)
        if n == 12:
            issue(dma_tile(15, 'b', ab='WS12'), gpace(p0 + 1))
            s.es(f"""
            v_lshrrev_b32 v6, 4, v0
            v_mul_u32_u24 v6, {896-512}, v6
            v_add_u32 v2, v2, v6
            v_add_u32 v3, 2560, v2
            v_add_u32 v4, 5120, v2
            v_add_u32 v5, 7680, v2
            v_lshlrev_b32 v6, 2, v0
            v_add_u32 v6, {S4}, v6""")
        if n == 13: stage_write(14, 5, 'd', 'RS12', p0)
        if n >= 13: issue(dma_tile(n + 3, SLOT[n + 3], ab=f"WS{n}"), pace(p0 + 1, vp))
        if n == 14:
            for w_ in range(4): s.ds(f"ds_read_b32 v{44+w_}, v6 offset:{w_*256}", ab='RS14')
            s.es(f"""v_add_f32 v44, v44, v45
            v_add_f32 v46, v46, v47
            v_add_f32 v{vSS}, v44, v46
            v_subrev_u32 v44, {sLO}, v{vSS}""")
            s.add(Op('e', f"v_cmp_le_u32 vcc, {sRNG}, v44\ns_nop 1\ns_cbranch_vccnz L_slow\nL_checked:", cost=16, R=[f"v{vMP}", f"v{vMS}"], W=['#chk'], ab='RS14', bb='RS15'))
            s.e(f"v_rcp_f32 v{vSS}, v{vSS}")
            s.es(f"v_xor_b32 v6, 0x800, v37\nv_xor_b32 v40, 0x1000, v37\nv_xor_b32 v41, 0x1800, v37")
            oconv_a(192, B(1), vSS)
            for half in range(2):
                s.ds(f"ds_write_b128 v37, {R('v', B(1)+4*half, 4)} offset:{8192 + half*1024}", cost=OPT['wc'], ab='WS14', bb='RS16')
        off0 = SL[SLOT[n]] - vb
        if not 0 <= off0 <= 32768:
            nb = SL[SLOT[n]] & 0x10000
            rebase(range(12, 16), nb - vb); vb = nb; off0 = SL[SLOT[n]] - vb
        kw = dict(ab=f"RS{n}", bb=(f"WS{n+1}" if n != 10 else "RS12"))
        pkw = dict(ab=f"RS{n}", bb=(f"WS{n+1}" if n >= 12 else None))
        for j in range(4):
            for ks in range(8):
                a = tr(12 + j, off0 + ks * 4096, 1024, **kw)
                mf(OA[dh][j], a, Pfrag(g, ks), g == 0 and ks == 0)
                if j == 0:
                    b = rd128(36, g * 8192 + ks * 1024, **pkw)
                    mf(OA[dh][4], a, b, g == 0 and ks == 0)
            if n == 15 and OPT['dump'] != 'O':
                if j == 0:
                    oconv_v(B(10), None, vSS)
                    pack_write(B(10), 16384, 'WS15', 'RS17')
                oconv_v(B((0, 11, 2, 7)[j]), B((0, 2)[j >> 1]) + 8 * (j & 1), vSP)
        if n == 12:
            for j in range(4): oconv_a(16 * j, B((12, 8)[j >> 1]) + 8 * (j & 1), vSP)
    dump('O', [f"a{r}" for r in range(64)] + [f"v{B(b)+q}" for b in (0, 11, 2, 7) for q in range(16)] + [f"a{r}" for r in range(192, 208)]
         + [f"v{B(10)+q}" for q in range(16)] + [f"v{vSP}", f"v{vSS}"])

    s.es(f"v_xor_b32 v12, 8192, v32\nv_xor_b32 v13, 8192, v33\nv_xor_b32 v14, 8192, v34\nv_xor_b32 v15, 8192, v35")
    s.es(f"s_lshr_b32 {sT0}, {sW}, 1\ns_lshl_b32 {sT0}, {sT0}, 30\nv_add_u32 v7, {sT0}, v1")
    LA = [32, 33, 34, 35, 12, 13, 14, 15]
    OB = [[1, 3, 6, 9, 5], [4, 11, 7, 1, 10], [5, 6, 9, 4, 3], [10, 7, None, None, 11]]
    def Ofrag(dh, jj, half): return R('v', B(((12, 8), (0, 2))[dh][jj >> 1]) + 8 * (jj & 1) + 4 * half, 4)
    def Osh(dh, jj, half): return R('a', 96 + 32 * dh + 8 * jj + 4 * half, 4)
    QA = [37, 6, 40, 41]
    def store(g, t):
        src = B(OB[g][t])
        for q in range(8): s.e(f"v_cvt_pk_bf16_f32 v{src+q}, v{src+2*q}, v{src+2*q+1}")
        for half in range(2):
            if g < 3: sb = sST + t; off = g * 4 * 32768; vo = 1
            else: sb = sST + (5, 6, 0, 0, 7)[t]; off = 0; vo = 7 if t == 4 else 1
            s.vm(f"s_add_u32 {sS}, s{sb}, {off + half*16384}\nbuffer_store_dwordx4 {R('v', src+4*half, 4)}, v{vo}, {SWS}, {sS} offen {OPT['st']}",
                 cost=20, R=['#chk'], dl=s.nmf + 6, bb=('RS22' if OPT['red'] and g < 2 else None))
    vZ, vFV, vPL, vLD, vLD2, vO1, vO2, vO3, vP0, vP1 = 2, 3, 4, 5, 8, 9, 10, 11, 36, 38
    SELA, SELB = 16, 20
    SRD_R, SRD_O = "s[8:11]", "s[12:15]"
    sHH, sHE, sN1, sN2, sCNT, sV = "s16", "s17", "s18", "s19", "s20", "s21"
    def red_setup(p0):
        s.es(f"""s_lshl_b32 {sT0}, {sW}, 29
        v_lshlrev_b32 v{vZ}, 23, v0
        v_add_u32 v{vZ}, {sT0}, v{vZ}
        v_mov_b32 v{vFV}, 1""", dl=p0 - 4)
        s.vm(f"buffer_store_dword v{vFV}, v{vZ}, {SFL}, s3 offen sc1", cost=8, ab='RS22', dl=p0 - 2)
        kw = dict(early=p0, dl=p0 + 40)
        s.e(f"s_mul_i32 {sT0}, {sB}, {140*16384}\ns_add_u32 s8, s4, {sT0}\ns_addc_u32 s9, s5, 0", **kw)
        s.e(f"s_mul_i32 {sT0}, {sB}, 143360\ns_add_u32 s12, s6, {sT0}\ns_addc_u32 s13, s7, 0", **kw)
        s.e(f"s_cmp_eq_u32 {sW}, 3\ns_cselect_b32 {sT1}, 0x40000000, 0\ns_cselect_b32 {sT2}, 0x2000000, 16", **kw)
        s.es(f"""s_mov_b32 s10, {140*16384}
        s_mov_b32 s14, 143360
        s_mov_b32 {sHH}, {sH}
        s_add_u32 {sHE}, {sH}, 1
        s_mov_b32 {sN1}, 1
        s_mov_b32 {sN2}, 2
        v_and_b32 v42, 15, v0
        v_lshrrev_b32 v43, 4, v0
        v_lshlrev_b32 v{vPL}, 7, v42
        v_lshlrev_b32 v{vLD}, 4, v42
        v_lshl_add_u32 v{vLD}, v43, 12, v{vLD}
        v_add_u32 v{vLD2}, {sT1}, v{vLD}
        v_mul_u32_u24 v{vO1}, 896, v42
        v_and_b32 v44, 1, v43
        v_lshl_add_u32 v{vO2}, v44, 3, v{vO1}
        v_lshl_add_u32 v{vO1}, v43, 3, v{vO1}
        v_and_b32 v44, 32, v0
        v_lshl_add_u32 v{vO3}, v44, 25, v{vO2}
        v_mul_lo_u32 v44, v44, {sT2}
        v_add_u32 v{vO2}, v44, v{vO2}
        v_and_b32 v44, 1, v0
        v_lshlrev_b32 v44, 4, v44
        v_mov_b32 v45, 0x3f80
        v_lshlrev_b32 v45, v44, v45
        v_lshrrev_b32 v42, 1, v42""", **kw)
        for r in range(8):
            s.e(f"v_cmp_eq_u32 vcc, {r}, v42\ns_nop 1\nv_cndmask_b32 v{SELA+r}, 0, v45, vcc", cost=12, R=['#chk'], **kw)
    def red_tail():
        M16 = "v_mfma_f32_16x16x32_bf16"
        k.vmem(f"buffer_load_dword v{vP0}, off, {SDB}, 0 sc1", 'p0')
        k.vmem(f"buffer_load_dword v{vP1}, v{vPL}, {SFL}, 0 offen sc1", 'p1')
        e(f"v_mov_b32 v{vFV}, 2\ns_waitcnt vmcnt(2)\ns_barrier")
        k.vm = k.vm[-2:]
        k.vmem(f"buffer_store_dword v{vFV}, v{vZ}, {SFL}, s3 offen sc1", 'f2')
        stamp()
        k.wait(vm=['p1'])
        e(f"v_readfirstlane_b32 {sV}, v{vP0}\ns_cmp_lg_u32 {sV}, {16 + OPT['fs']}\ns_cbranch_scc1 L_decide\nL_own:")
        lP, lG, lS, oP, oG, oS = "s22", "s23", "s24", "s25", "s26", "s27"
        e(f"""s_mul_i32 {lP}, {sW}, {28*16384}
        s_lshr_b32 {sT0}, {sHH}, 1
        s_and_b32 {sT1}, {sHH}, 1
        s_lshl_b32 {sT2}, {sT0}, 14
        s_add_u32 {sT2}, {sT2}, {lP}
        s_lshl_b32 {sD}, {sT1}, 8
        s_add_u32 {lP}, {sT2}, {sD}
        v_cmp_gt_u32 vcc, {sN1}, v{vP1}
        s_mov_b32 {sCNT}, 0
        s_cbranch_vccnz L_spin1
        L_go1:""")
        k.vm = []
        areg = [4 * i for i in range(24)] + [160 + 4 * i for i in range(16)]
        cnt = [0]
        def loads(vo, so, two):
            L = []
            for x in range(2 if two else 1):
                for j in range(4):
                    r = areg[cnt[0]]; cnt[0] += 1
                    k.vmem(f"buffer_load_dwordx4 {R('a', r, 4)}, v{vo}, {SRD_R}, {so} offen offset:{j*1024 + x*512} sc1", ('r', r))
                    L.append(r)
            return L
        def mm(acc, L, sels, first):
            for i, r in enumerate(L):
                k.wait(vm=[('r', r)])
                e(f"{M16} {R('v', acc, 4)}, {R('v', sels[i // 4], 4)}, {R('a', r, 4)}, {'0' if first and i == 0 else R('v', acc, 4)}")
        def outst(acc, vo, so, off):
            e(f"v_cvt_pk_bf16_f32 v{acc}, v{acc}, v{acc+1}\nv_cvt_pk_bf16_f32 v{acc+1}, v{acc+2}, v{acc+3}")
            k.vmem(f"buffer_store_dwordx2 {R('v', acc, 2)}, v{vo}, {SRD_O}, {so} offen offset:{off}", 'o')
        L0 = loads(vLD, lP, True)
        e(f"""s_add_u32 {lP}, {lP}, 131072
        s_mul_i32 {sD}, {sT1}, {16*896}
        s_mul_i32 {oG}, {sW}, {32*896}
        s_add_u32 {oG}, {oG}, {sD}
        s_lshl_b32 {sT2}, {sT0}, 5
        s_add_u32 {oP}, {oG}, {sT2}""")
        L1 = loads(vLD, lP, True)
        e(f"""s_add_u32 {lP}, {lP}, 131072
        s_and_b32 {sT0}, {sT0}, 1
        s_lshl_b32 {sT0}, {sT0}, 4
        s_lshr_b32 {sT1}, {sHH}, 2
        s_lshl_b32 {sT2}, {sT1}, 5
        s_add_u32 {sT0}, {sT0}, {sT2}
        s_add_u32 {oG}, {oG}, {sT0}
        s_add_u32 {oS}, {sD}, {sT0}
        s_lshl_b32 {sT2}, {sW}, 7
        s_add_u32 {oS}, {oS}, {sT2}
        s_add_u32 {oS}, {oS}, {128*896}
        s_lshl_b32 {sT1}, {sT1}, 14
        s_and_b32 {sT2}, {sHH}, 3
        s_lshl_b32 {sT2}, {sT2}, 8
        s_add_u32 {sT1}, {sT1}, {sT2}
        s_lshl_b32 {sT2}, {sW}, 16
        s_add_u32 {lS}, {sT1}, {sT2}
        s_add_u32 {lS}, {lS}, {112*16384}""")
        L4 = loads(vLD, lS, False)
        k.vmem(f"buffer_load_dword v{vP1}, v{vPL}, {SFL}, 0 offen sc1", 'p2')
        e(f"""s_add_u32 {lS}, {lS}, {16*16384}
        s_mul_i32 {lG}, {sW}, {28*16384}
        s_add_u32 {lG}, {lG}, {sT1}
        s_add_u32 {lG}, {lG}, {24*16384}""")
        D = [24, 28, 40, 44, 48]
        mm(D[0], L0, (SELA, SELB), True); mm(D[1], L1, (SELA, SELB), True); mm(D[4], L4, (SELA,), True)
        k.wait(vm=['p2'])
        e(f"v_cmp_gt_u32 vcc, {sN2}, v{vP1}\ns_nop 1\ns_cbranch_vccnz L_spin2\nL_go2:")
        stamp()
        L3 = loads(vLD, lG, False); L5 = loads(vLD2, lS, False); L2 = loads(vLD, lP, True)
        outst(D[0], vO1, oP, 0); outst(D[1], vO1, oP, 256)
        mm(D[3], L3, (SELA,), True); mm(D[4], L5, (SELB,), False); mm(D[2], L2[:4], (SELA,), True)
        outst(D[3], vO3, oG, 768); outst(D[4], vO2, oS, 0)
        mm(D[2], L2[4:], (SELB,), False)
        outst(D[2], vO1, oP, 512)
        e(f"s_add_u32 {sHH}, {sHH}, 1\ns_cmp_lt_u32 {sHH}, {sHE}\ns_cbranch_scc1 L_own")
    def red_cold():
        for i, n in ((1, sN1), (2, sN2)):
            e(f"""L_spin{i}:
            buffer_load_dword v{vP1}, v{vPL}, {SFL}, 0 offen sc1
            s_add_u32 {sCNT}, {sCNT}, 1
            s_cmp_ge_u32 {sCNT}, {1 << OPT['spin']}
            s_waitcnt vmcnt(0)
            s_cbranch_scc1 L_go{i}
            v_cmp_gt_u32 vcc, {n}, v{vP1}
            s_nop 1
            s_cbranch_vccnz L_spin{i}
            s_branch L_go{i}""")
        e(f"""L_decide:
        s_cmp_ge_u32 {sV}, 0x100
        s_cbranch_scc1 L_last
        s_cmp_eq_u32 {sV}, {16 + OPT['fs']}
        s_cbranch_scc1 L_own
        s_or_b32 {sT0}, {sV}, 0x100
        v_mov_b32 v42, {sT0}
        v_mov_b32 v43, {sV}
        v_lshlrev_b32 v44, 23, v0
        buffer_atomic_cmpswap v[42:43], v44, {SDB}, 0 offen sc0 sc1
        s_waitcnt vmcnt(0)
        v_readfirstlane_b32 {sT0}, v42
        s_cmp_eq_u32 {sT0}, {sV}
        s_mov_b32 {sV}, {sT0}
        s_cbranch_scc0 L_decide
        L_last:
        v_mov_b32 v42, 1
        s_lshl_b32 {sT0}, {sW}, 8
        v_lshlrev_b32 v43, 2, v0
        buffer_atomic_add v42, v{vZ}, {SDB}, 0 offen offset:4 sc0 sc1
        v_add_u32 v43, {sT0}, v43
        v_mov_b32 v44, 0
        s_waitcnt vmcnt(0)
        ds_write_b32 v43, v42
        s_waitcnt lgkmcnt(0)
        s_barrier
        ds_read_b32 v42, v44
        s_mov_b32 {sHH}, 0
        s_mov_b32 {sHE}, 16
        s_mov_b32 {sN1}, 0
        s_mov_b32 {sN2}, 0
        s_waitcnt lgkmcnt(0)
        v_readfirstlane_b32 {sT0}, v42
        s_cmp_eq_u32 {sT0}, 15
        s_cbranch_scc1 L_own
        s_endpgm""")
    wb = 0
    for n in range(16, 23):
        p0 = s.nmf
        g, dh = (n - 16) >> 1, (n - 16) & 1
        RB(f"RS{n}")
        if n <= 19:
            WB(f"WS{n}", p0)
            issue(dma_tile(n + 3, SLOT[n + 3], ab=f"WS{n}"), pace(p0 + 1, vp))
        if n == 22 and OPT['red']: red_setup(p0)
        kw = dict(ab=f"RS{n}", bb=(f"WS{n+1}" if n <= 18 else None))
        if n < 22:
            nb = SL[SLOT[n]] & 0x10000
            if nb != wb: rebase(range(16, 32), nb - wb); wb = nb
            off0 = SL[SLOT[n]] - wb
            for t in range(4):
                for jj in range(4):
                    for half in range(2):
                        first = dh == 0 and jj == 0 and half == 0
                        a = tr(16 + 4 * jj + t, off0 + half * 4096, 1024, **kw)
                        mf(R('v', B(OB[g][t]), 16), a, Ofrag(dh, jj, half), first)
                        if t == 0:
                            if g == 0: rd128(QA[jj], 8192 + dh * 8192 + half * 1024, Osh(dh, jj, half), ab=f"RS{n}")
                            mf(R('v', B(OB[g][4]), 16), a, Osh(dh, jj, half), first)
                if dh:
                    store(g, t)
                    if t == 0: store(g, 4)
        else:
            for t in range(2):
                for d2 in range(2):
                    for jj in range(4):
                        for half in range(2):
                            first = d2 == 0 and jj == 0 and half == 0
                            a = tr(LA[2 * jj + t], d2 * 16384 + half * 2048, 512, **kw)
                            mf(R('v', B(OB[3][t]), 16), a, Ofrag(d2, jj, half), first)
                            if t == 0: mf(R('v', B(OB[3][4]), 16), a, Osh(d2, jj, half), first)
                store(3, t)
                if t == 0: store(3, 4)
    s.build()
    s.run(budget=OPT['bud'], maxlg=OPT['maxlg'], delay=OPT['delay'], dsage=OPT['dsage'], maxds=OPT['maxds'])
    stamp()
    if OPT['red']: red_tail()
    if OPT['ts']:
        k.wait(vm0=True)
        stamp()
        e(f"""s_add_u32 s8, s4, 0x0ff00000
        s_addc_u32 s9, s5, 0
        s_mov_b32 s10, 0x100000
        s_cmp_lg_u32 {sW}, 0
        s_cbranch_scc1 L_exit
        s_mov_b64 exec, 1
        s_lshl_b32 s3, s2, 8
        v_mov_b32 v1, s3
        v_mov_b32 v2, {nst[0]}
        v_mov_b32 v3, 0
        buffer_store_dwordx2 v[2:3], v1, s[8:11], 0 offen""")
        for j in range(nst[0]):
            e(f"v_mov_b32 v4, s{sTS+2*j}\nv_mov_b32 v5, s{sTS+1+2*j}\nbuffer_store_dwordx2 v[4:5], v1, s[8:11], 0 offen offset:{8+8*j}\ns_nop 1")
        e("s_waitcnt vmcnt(0)")
    e("L_exit:\ns_endpgm")
    if OPT['red']: red_cold()
    e("L_codeend:")
    for h, (src, mx) in enumerate(hooks):
        e(f"L_fix{h}:\ns_nop 7\ns_nop 7\ns_cmp_eq_u32 {sPASS}, 2\ns_cbranch_scc1 L_sub{h}")
        for q in range(0, 16, 2): e(f"v_max3_f32 v{mx}, v{src+q}, v{src+q+1}, v{mx}")
        e(f"s_branch L_ret{h}\nL_sub{h}:")
        for q in range(16): e(f"v_sub_f32 v{src+q}, v{src+q}, v{mx}")
        e(f"s_branch L_ret{h}")
    e(f"""L_slow:
    s_cmp_eq_u32 {sPASS}, 2
    s_cbranch_scc1 L_checked
    s_nop 7
    s_nop 7
    s_waitcnt vmcnt(0) lgkmcnt(0)
    s_barrier
    s_mov_b64 vcc, -1
    s_cmp_eq_u32 {sPASS}, 1
    s_cbranch_scc1 L_slow2
    s_mov_b32 {sPASS}, 1
    s_mov_b32 {sRNG}, 0
    v_mov_b32 v{vMP}, 0xff800000
    v_mov_b32 v{vMS}, 0xff800000
    s_branch L_start
    L_slow2:
    s_mov_b32 {sPASS}, 2
    s_mov_b32 {sLO}, 0
    s_mov_b32 {sRNG}, -1
    v_mov_b32 v42, v{vMP}
    v_mov_b32 v43, v{vMS}
    s_nop 1
    v_permlane32_swap_b32 v42, v{vMP}
    v_permlane32_swap_b32 v43, v{vMS}
    v_lshlrev_b32 v44, 2, v0
    s_lshl_b32 {sT0}, {sW}, 8
    v_max_f32 v{vMP}, v42, v{vMP}
    v_max_f32 v{vMS}, v43, v{vMS}
    v_add_u32 v45, {sT0}, v44
    ds_write_b32 v45, v{vMS}
    s_waitcnt lgkmcnt(0)
    s_barrier
    ds_read_b32 v42, v44
    ds_read_b32 v43, v44 offset:256
    ds_read_b32 v45, v44 offset:512
    ds_read_b32 v46, v44 offset:768
    s_waitcnt lgkmcnt(0)
    v_max3_f32 v{vMS}, v42, v43, v45
    v_max_f32 v{vMS}, v{vMS}, v46
    s_barrier
    s_branch L_start""")
    txt, added = k.text()
    est = s.est
    per = [sum(est[i:i + 40]) for i in range(0, len(est), 40)]
    print(f"main: {len(k.L)} lines, nops {added}, forced {s.forced}, mfma {len(est)}, est {sum(est)}; per40: {per}", file=sys.stderr)
    if OPT['verbose']:
        print("use:", s.use, file=sys.stderr)
        print("bars:", {n: o.gap for n, o in s.bars.items()}, file=sys.stderr)
    return txt

if __name__ == "__main__":
    out = sys.argv[1]
    sys.argv = sys.argv[:2] + ([f"ts={OPT['ts']}"] if OPT['ts'] else []) + ([f"diag={OPT['diag']}"] if OPT['diag'] else [])
    import gen
    m = main_kernel()
    L = [("mha_main_kernel", 256, 256, 163840), ("mha_reduce_kernel", 560, 256, 0)]
    KS = [("mha_main_kernel", m, 512, 256), ("mha_reduce_kernel", gen.reduce_kernel(), 80, 80)]
    if OPT['red']:
        nm = "mha_main_kernel" if OPT['diag'] else "standalone__mha_block_cached__near_ridge_kernel"
        L = [(nm, 256, 256, 163840)]; KS = [(nm, m, 512, 256)]
    if OPT['dup'] == 1: L.insert(0, L[0])
    if OPT['dup'] == 2:
        L.insert(0, ("mha_copy_kernel", 256, 256, 163840)); KS.append(("mha_copy_kernel", m.replace("L_", "M_"), 512, 256))
    if OPT['diag']:
        L.append(("mha_diag_kernel", 1, 64, 0)); KS.append(("mha_diag_kernel", gen.diag_kernel(), 64, 64))
    write_file(out, HEADER, L, KS)
```

```python
import sys, math, struct
sys.path.insert(0, "work")
from asmlib import K, write_file
from sch import Sched, Op

OPT = dict(arr='L', ts=0, dump='', nt='nt', C=4, ap=8, pl=40, rs=2, pa=12, ca=12, cl=560, sp='13,14,15,15', so=26, sw=4, osb='RS16', nochk=0, bud=24, maxlg=14, delay=3, dsage=4, maxds=3,
           rb=9, wb=0, wage=6, dc=16, wc=16, lc=12,
           kpre=0, k0=0, kp=70, kp2=65, ksw=32, pair=1, tp=0, tpm='', stamps='RA3,RS0,RS8,RS16,RS22',
           w0=14, wp=2,
           dp=2, vp=3, verbose=0, fs=0, spin=20, lo=-20, hi=30, diag='', dup=0, cp=2, cpm='', cpf='RA3:RS1:242,RS3:RS8:16,RS10:RS16:46')
for a in sys.argv[2:]:
    kk, vv = a.split('=')
    assert kk in OPT, kk
    OPT[kk] = int(vv) if vv.lstrip('-').isdigit() else vv

C = OPT['C']; LC = C.bit_length() - 1
TSH = 15 - LC; TS = 1 << TSH
PB = 84 * TS
REG = 16 * PB
NF0 = 1 if C == 4 else 3
HEADER = "".join(l for l in open("standalone__mha_block_cached__near_ridge.s.ref").read().splitlines(True)[:11])
MF = "v_mfma_f32_32x32x16_bf16"
def R(p, lo, n): return f"{p}[{lo}:{lo+n-1}]"
def f2u(x): return struct.unpack('<I', struct.pack('<f', x))[0]
SX, SK, SV, SWQ, SWO, SWS = "s[8:11]", "s[12:15]", "s[16:19]", "s[20:23]", "s[24:27]", "s[28:31]"
sW, sB, sH = "s32", "s33", "s34"
sT0, sT1, sT2 = "s36", "s37", "s38"
sC = "s39"
sWQO, sXO, sM8, sM1, sW16 = "s40", "s41", "s42", "s43", "s44"
sPP = [f"s{47+i}" for i in range(7)]
sQ = ["s20", "s21", "s22", "s23", "s40", "s41", "s45"]
sNF, sPRED, sFAST, sV, sCNT = "s46", "s54", "s94", "s100", "s101"
SCH = "s[16:19]"
sD, sL, sS = "s55", "s56", "s35"
sPASS, sLO, sRNG = "s57", "s58", "s59"
sTS = 68
SFL, SDB = 's[60:63]', 's[64:67]'
FLOFF = C * REG
XB = 96 * 1024
S4 = 128 * 1024
SL = dict(a=32768, b=65536, c=0, d=98304)
def B(i): return 48 + 16 * i
vSP, vSS, vMP, vMS = 38, 39, 40, 41

def main_kernel():
    k = K(); e = k.e
    s = Sched(k)
    nst = [0]
    TSI = 's_memtime' if OPT['ts'] == 2 else 's_memrealtime'
    def stamp():
        if OPT['ts']:
            k.wait(lg0=True)
            e(f"{TSI} s[{sTS+2*nst[0]}:{sTS+1+2*nst[0]}]\ns_waitcnt lgkmcnt(0)")
            nst[0] += 1
    def dump(name, regs):
        if OPT['dump'] != name: return
        def fn(op):
            e("s_nop 7\ns_nop 7\ns_waitcnt vmcnt(0) lgkmcnt(0)")
            e(f"s_mul_i32 {sT0}, {sB}, 64\ns_lshl_b32 {sT1}, {sH}, 2\ns_add_u32 {sT0}, {sT0}, {sT1}\ns_add_u32 {sT0}, {sT0}, {sW}\ns_lshl_b32 {sT0}, {sT0}, 17")
            e("s_add_u32 s8, s4, 0x4000000\ns_addc_u32 s9, s5, 0\ns_mov_b32 s10, 0x8000000\ns_mov_b32 s11, 0x00020000")
            e("v_lshlrev_b32 v0, 2, v0")
            for i, r in enumerate(regs):
                e(f"buffer_store_dword {r}, v0, s[8:11], {sT0} offen\ns_add_u32 {sT0}, {sT0}, 256")
                if i % 32 == 31: e("s_waitcnt vmcnt(0)")
            e("s_waitcnt vmcnt(0)\ns_branch L_exit")
        s.add(Op('e', 's_nop 0', R=regs, W=regs, fn=fn, dl=s.nmf))

    if OPT['ts']:
        e(f"{TSI} s[{sTS}:{sTS+1}]"); nst[0] = 1
    e(f"""
    s_cmp_ge_u32 s2, 256
    s_cbranch_scc1 L_exit
    v_lshrrev_b32 v1, 6, v0
    v_and_b32 v0, 63, v0
    s_mov_b32 {sPASS}, 0
    v_readfirstlane_b32 {sW}, v1
    s_mov_b64 vcc, 0
    s_mov_b32 {sLO}, 0x{(127 + OPT['lo']) << 23:08x}
    s_mov_b32 {sRNG}, 0x{(OPT['hi'] - OPT['lo']) << 23:08x}
    L_start:
    s_load_dwordx2 s[8:9], s[0:1], 0
    s_load_dwordx2 s[20:21], s[0:1], 24
    s_load_dwordx2 s[12:13], s[0:1], 8
    s_load_dwordx2 s[16:17], s[0:1], 16
    s_load_dwordx2 s[24:25], s[0:1], 32
    s_load_dwordx2 s[4:5], s[0:1], 56
    s_load_dwordx2 s[6:7], s[0:1], 40
    s_load_dwordx2 s[64:65], s[0:1], 48
    s_and_b32 {sT0}, s2, 7
    s_lshr_b32 {sT1}, s2, 3
    """)
    arr = OPT['arr']
    if arr == 'N':
        e(f"""s_lshr_b32 {sB}, {sT0}, 1
        s_lshl_b32 {sB}, {sB}, 2
        s_lshr_b32 {sT2}, {sT1}, 3
        s_add_u32 {sB}, {sB}, {sT2}
        s_and_b32 {sH}, {sT0}, 1
        s_lshl_b32 {sH}, {sH}, 3
        s_and_b32 {sT2}, {sT1}, 7
        s_add_u32 {sH}, {sH}, {sT2}""")
    elif arr == 'L':
        e(f"""s_lshl_b32 {sB}, {sT0}, 1
        s_lshr_b32 {sT2}, {sT1}, 4
        s_add_u32 {sB}, {sB}, {sT2}
        s_and_b32 {sH}, {sT1}, 15""")
    elif arr == 'M':
        e(f"""s_lshr_b32 {sB}, {sT0}, 2
        s_lshl_b32 {sB}, {sB}, 3
        s_lshr_b32 {sT2}, {sT1}, 2
        s_add_u32 {sB}, {sB}, {sT2}
        s_and_b32 {sH}, {sT0}, 3
        s_lshl_b32 {sH}, {sH}, 2
        s_and_b32 {sT2}, {sT1}, 3
        s_add_u32 {sH}, {sH}, {sT2}""")
    e(f"""
    s_mov_b32 s10, 143360
    s_mov_b32 s11, 0x00020000
    s_mov_b32 s23, 0x00020000
    s_lshl_b32 {sM8}, {sW}, 13
    s_lshl_b32 {sM1}, {sW}, 10
    s_lshl_b32 {sWQO}, {sW}, 17
    s_mul_i32 {sXO}, {sW}, 7168
    v_lshrrev_b32 v44, 5, v0                 ; hh
    v_and_b32 v45, 31, v0                    ; c
    v_lshlrev_b32 v1, 2, v44
    v_xor_b32 v1, v1, v45
    v_lshlrev_b32 v1, 4, v1
    v_lshl_add_u32 v2, v44, 13, v1
    v_xor_b32 v3, 0x80, v2
    v_add_u32 v3, 15360, v3
    v_add_u32 v4, 30720, v2
    v_add_u32 v5, 30720, v3
    s_and_b32 {sT2}, {sW}, 1
    s_lshl_b32 {sT0}, {sT2}, 2
    v_lshrrev_b32 v6, 4, v0
    v_xor_b32 v6, {sT0}, v6
    v_and_b32 v1, 7, v0
    v_xor_b32 v6, v6, v1
    v_lshlrev_b32 v6, 4, v6
    v_lshrrev_b32 v1, 3, v0
    v_mul_u32_u24 v1, 896, v1
    v_add_u32 v6, v6, v1                     ; x voff
    s_mul_i32 {sT0}, {sB}, 143360
    s_lshl_b32 {sT1}, {sH}, 9
    s_waitcnt lgkmcnt(0)
    s_add_u32 s8, s8, {sT0}
    s_addc_u32 s9, s9, 0
    s_add_u32 s20, s20, {sT1}
    s_addc_u32 s21, s21, 0
    s_sub_u32 s22, 3670016, {sT1}
    """)
    dc, lc = OPT['dc'], OPT['lc']
    def vmop(text, **kw):
        n = text.count('\n')
        return s.vm(text, cost=kw.pop('cost', dc) + 4 * n, chain='vm', **kw)
    def pace(e0, p):
        i = 0
        while True:
            x = e0 + int(i * p)
            yield dict(early=x, dl=x + 2)
            i += 1
    def dma_stage(i, pc=None, **kw):
        L = []
        slot = (i % 3) * 32768; xs = XB + (i % 3) * 20480
        for u in range(2):
            for ii in range(4):
                t = f"s_add_u32 m0, {sM8}, {slot + u*4096}\ns_add_u32 {sD}, {sWQO}, {(i << 19) + u*65536}\n" if ii == 0 else ""
                L.append(t + f"buffer_load_dwordx4 v{2+ii}, {SWQ}, {sD} offen offset:{ii*1024} lds")
        X = []
        for u in range(5):
            X.append(f"s_add_u32 m0, {sM1}, {xs + u*4096}\ns_add_u32 {sD}, {sXO}, {i*128 + u*4*7168}\nbuffer_load_dwordx4 v6, {SX}, {sD} offen lds")
        return [(t, dict(bb=f"RA{i}", **kw)) for t in L + X]
    def dma_tile(n, slot, **kw):
        L = []
        for u in range(2):
            for ii in range(4):
                if n < 16:
                    i, dh = (n >> 1, n & 1) if n < 8 else ((n - 8) & 3, (n - 8) >> 2)
                    so = f"{sW16}, {i*65536 + dh*256 + u*8192}"; vo = (8 if n < 8 else 2) + ii; srd = SK if n < 8 else SV; m = OPT['nt']
                else:
                    so = f"{sPP[n-16]}, {32*u*896}"; vo = 8 + ii; srd = SWO; m = ''
                t = f"s_add_u32 m0, {sM8}, {SL[slot] + u*4096}\ns_add_u32 {sD}, {so}\n" if ii == 0 else ""
                L.append(t + f"buffer_load_dwordx4 v{vo}, {srd}, {sD} offen offset:{ii*1024} {m} lds")
        return [(t, dict(bb=f"RS{n}", **kw)) for t in L]
    def stage_load(tiles, **kw):
        L = []
        for u in range(2):
            for ii in range(4):
                for x, (n, r) in enumerate(tiles):
                    i, dh = (n >> 1, n & 1) if n < 8 else ((n - 8) & 3, (n - 8) >> 2)
                    t = f"s_add_u32 {sL}, {sW16}, {i*65536 + u*8192}\n" if ii == 0 and x == 0 else ""
                    vo = (8 if n < 8 else 2) + ii; srd = SK if n < 8 else SV
                    L.append(t + f"buffer_load_dwordx4 {R('a', 32*r + 16*u + 4*ii, 4)}, v{vo}, {srd}, {sL} offen offset:{ii*1024 + dh*256} {OPT['nt']}")
        return [(t, dict(cost=lc, **kw)) for t in L]
    def stage_wo(n, r, **kw):
        L = []
        for u in range(2):
            for ii in range(4):
                t = f"s_add_u32 {sL}, {sPP[n-16]}, {32*u*896}\n" if ii == 0 else ""
                L.append(t + f"buffer_load_dwordx4 {R('a', 32*r + 16*u + 4*ii, 4)}, v{8+ii}, {SWO}, {sL} offen offset:{ii*1024}")
        return [(t, dict(cost=lc, **kw)) for t in L]
    def issue(L, pc=None, **kw):
        for t, a in L:
            a = dict(a); a.update(kw)
            if pc is not None: a.update(next(pc))
            vmop(t, **a)
    wbase = [32768]
    def stage_write(n, r, slot, ab, p0, va=7, wp=None):
        for u in range(2):
            for ii in range(4):
                off = SL[slot] - (wbase[0] if va == 7 else 0) + u * 4096 + ii * 1024
                assert 0 <= off < 65536
                x = p0 + OPT['w0'] + (wp or OPT['wp']) * (4 * u + ii)
                s.ds(f"ds_write_b128 v{va}, {R('a', 32*r + 16*u + 4*ii, 4)} offset:{off}", cost=OPT['wc'], ab=ab, bb=f"RS{n}", early=x, dl=x + 1)
    P = dict(pre=True)
    issue(dma_stage(0), **P)
    s.es(f"""
    s_lshl_b32 {sT0}, {sB}, 4
    s_add_u32 {sT0}, {sT0}, {sH}
    s_lshl_b32 {sT0}, {sT0}, 18""", **P)
    s.e(f"s_add_u32 s16, s16, {sT0}\ns_addc_u32 s17, s17, 0\ns_add_u32 s12, s12, {sT0}\ns_addc_u32 s13, s13, 0", **P)
    s.es(f"""
    s_mov_b32 s14, 262144
    s_mov_b32 s15, 0x00020000
    s_mov_b32 s18, 262144
    s_mov_b32 s19, 0x00020000
    s_lshl_b32 {sW16}, {sW}, 14""", **P)
    issue(dma_stage(1), **P)
    s.es(f"""
    v_bfe_u32 v1, v0, 4, 1
    v_and_b32 v8, 7, v0
    v_xor_b32 v8, v8, v1
    v_lshlrev_b32 v8, 4, v8
    v_lshl_add_u32 v8, v44, 7, v8
    v_bfe_u32 v1, v0, 3, 2
    v_lshl_add_u32 v8, v1, 9, v8
    v_xor_b32 v9, {1024+32}, v8
    v_xor_b32 v10, {2048+64}, v8
    v_xor_b32 v11, {3072+96}, v8""".replace(f"v_xor_b32 v9, {1024+32}, v8", "v_xor_b32 v9, 32, v8\nv_add_u32 v9, 1024, v9")
       .replace(f"v_xor_b32 v10, {2048+64}, v8", "v_xor_b32 v10, 64, v8\nv_add_u32 v10, 2048, v10")
       .replace(f"v_xor_b32 v11, {3072+96}, v8", "v_xor_b32 v11, 0x60, v8\nv_add_u32 v11, 3072, v11"), **P)
    KL = stage_load([(0, 0), (1, 1)]) + stage_load([(2, 2), (3, 3)]) + stage_load([(4, 4), (5, 5)]) + stage_load([(6, 6)])
    if not OPT['pair']: KL = sum([stage_load([(n, n)]) for n in range(7)], [])
    if OPT['tp']:
        s.es(f"v_and_b32 v241, 15, v0\nv_lshlrev_b32 v241, 12, v241\ns_lshl_b32 {sL}, {sW}, 16", **P)
        vmop(f"buffer_load_dword v240, v241, {SK}, {sL} offen {OPT['tpm']}", **P)
        if OPT['tp'] > 1: vmop(f"buffer_load_dword v242, v241, {SV}, {sL} offen {OPT['tpm']}", **P)
    def cpref(lab, tmp, st, n=1, **kw):
        a, b = f"v{tmp}", f"v{tmp+1}"
        for j in range(n):
            s.add(Op('e', f"s_lshl_b32 s98, {sW}, {6+st}\ns_add_u32 s98, s98, {lab}-L_pc+{j*(256<<st)}\nv_lshlrev_b32 {a}, {st}, v0\nv_add_u32 {a}, s98, {a}\nv_min_u32 {a}, s95, {a}", cost=20, **kw))
            s.add(Op('e', f"v_mov_b32 {b}, s97\nv_add_co_u32 {a}, s[98:99], s96, {a}\ns_nop 1\nv_addc_co_u32 {b}, s[98:99], 0, {b}, s[98:99]", W=['s98', 's99'], cost=20, **kw))
            s.add(Op('vm', f"global_load_dword {a}, v[{tmp}:{tmp+1}], off {OPT['cpm']}", cost=16, **kw))
    if OPT['cp']:
        s.e(f"s_getpc_b64 s[96:97]\nL_pc:\ns_mov_b32 s95, L_codeend-L_pc-4", **P)
        if OPT['cp'] == 1:
            cpref('L_pc', 242, 7, 1, **P); cpref('L_pc+32768', 244, 7, 1, **P)
        else: cpref('L_pc', 242, 6, 1, **P)
    s.e(f"s_lshl_b32 {sT0}, {sB}, 11\ns_add_u32 {sT0}, {sT0}, {FLOFF}\ns_add_u32 s60, s4, {sT0}\ns_addc_u32 s61, s5, 0", **P)
    s.e(f"s_lshl_b32 {sT0}, {sB}, 4\ns_add_u32 s64, s64, {sT0}\ns_addc_u32 s65, s65, 0", **P)
    s.es(f"""s_mov_b32 s62, 2048
    s_mov_b32 s63, 0x00020000
    s_mov_b32 s66, 16
    s_mov_b32 s67, 0x00020000
    s_lshl_b32 s3, {sH}, 7
    s_lshl_b32 {sT0}, {sW}, 2
    s_add_u32 s3, s3, {sT0}
    v_lshlrev_b32 v247, 23, v0
    v_mov_b32 v245, 0""", **P)
    vmop(f"buffer_store_dword v245, v247, {SFL}, s3 offen", bb='RA2', **P)
    issue(KL[:OPT['kpre']], **P)
    KL = KL[OPT['kpre']:]
    s.e(f"s_mul_i32 {sT0}, {sH}, 229376\ns_add_u32 s24, s24, {sT0}\ns_addc_u32 s25, s25, 0", **P)
    s.e(f"s_mul_i32 {sT0}, {sB}, {PB}\ns_lshr_b32 {sT1}, {sH}, {LC}\ns_lshl_b32 {sT1}, {sT1}, 11\ns_add_u32 {sT0}, {sT0}, {sT1}\ns_add_u32 s28, s4, {sT0}\ns_addc_u32 s29, s5, 0", **P)
    s.es(f"""
    s_mov_b32 s26, 229376
    s_mov_b32 s27, 0x00020000
    s_mov_b32 s30, {PB}
    s_mov_b32 s31, 0x00020000
    s_mov_b32 {sC}, 0x{f2u(math.log2(math.e)/16):08x}
    """, **P)
    s.es(f"""
    v_bfe_u32 v47, v0, 2, 2
    v_lshl_add_u32 v43, v44, 3, v47
    v_bfe_u32 v1, v0, 4, 1
    v_lshlrev_b32 v46, 5, v1
    v_and_b32 v1, 1, v0
    v_lshl_add_u32 v46, v1, 4, v46
    v_bfe_u32 v1, v0, 1, 1
    v_lshl_add_u32 v46, v1, 3, v46
    v_lshl_add_u32 v1, v47, 6, v46
    s_lshl_b32 {sT0}, {sW}, 6
    v_lshl_add_u32 v12, v43, 9, v1
    v_xor_b32 v12, {sT0}, v12
    v_xor_b32 v13, 64, v12
    v_xor_b32 v14, 0x80, v12
    v_xor_b32 v15, 0xc0, v12
    v_bfe_u32 v1, v0, 1, 3
    v_xor_b32 v1, v1, v44
    v_lshlrev_b32 v1, 4, v1
    v_lshl_add_u32 v1, v45, 7, v1
    v_add_u32 v20, {XB + 128*128}, v1
    s_lshl_b32 {sT0}, {sW}, 12
    s_add_u32 {sT0}, {sT0}, {XB}
    v_add_u32 v16, {sT0}, v1
    v_xor_b32 v17, 32, v16
    v_xor_b32 v18, 64, v16
    v_xor_b32 v19, 0x60, v16
    v_xor_b32 v21, 32, v20
    v_xor_b32 v22, 64, v20
    v_xor_b32 v23, 0x60, v20
    """, **P)
    s.es(f"""
    v_and_b32 v42, 0x13, v0
    v_bfe_u32 v1, v0, 2, 1
    v_lshl_or_b32 v42, v1, 3, v42
    v_bfe_u32 v1, v0, 3, 1
    v_lshl_or_b32 v42, v1, 2, v42
    v_bfe_u32 v1, v42, 1, 3
    v_xor_b32 v1, v1, v44
    v_lshlrev_b32 v1, 4, v1
    v_and_b32 v24, 3, v42
    v_lshl_add_u32 v1, v24, 7, v1
    v_lshrrev_b32 v24, 2, v42
    v_lshl_add_u32 v1, v24, 10, v1
    s_add_u32 {sT0}, {sM8}, 32768
    v_add_u32 v32, {sT0}, v1
    v_xor_b32 v33, 32, v32
    v_xor_b32 v34, 64, v32
    v_xor_b32 v35, 0x60, v32
    s_lshr_b32 {sT1}, {sW}, 1
    s_lshl_b32 {sT1}, {sT1}, 9
    s_and_b32 {sT2}, {sW}, 1
    s_lshl_b32 {sT2}, {sT2}, 6
    s_add_u32 {sT1}, {sT1}, {sT2}
    s_add_u32 {sT1}, {sT1}, 32768
    v_xor_b32 v24, {sT1}, v1
    """, **P)
    for jj in range(4):
        for half in range(2):
            if jj or half: s.e(f"v_xor_b32 v{24+2*jj+half}, {(jj>>1)*512 + (jj&1)*64 + half*32}, v24", **P)
    s.es(f"""
    v_lshlrev_b32 v1, 4, v0
    v_add_u32 v7, {sT0}, v1
    v_add_u32 v36, {S4}, v1
    s_lshl_b32 {sT0}, {sW}, 11
    v_add_u32 v37, {sT0}, v36
    """, **P)
    s.es(f"""s_getreg_b32 {sT0}, hwreg(HW_REG_XCC_ID, 0, 3)
    s_mul_i32 {sT1}, {sT0}, {sT0}
    s_lshl_b32 {sT1}, {sT1}, 8
    s_add_u32 {sT0}, {sT0}, {sT1}
    s_lshl_b32 {sT0}, {sT0}, 8
    s_add_u32 {sT0}, {sT0}, 1
    s_lshl_b32 {sFAST}, {sT0}, 4
    s_lshl_b32 {sT1}, {sW}, 29
    v_add_u32 v244, {sT1}, v247""", dl=20)
    if OPT['fs']: s.e(f"s_add_u32 {sFAST}, {sFAST}, 1")
    s.e(f"s_cmp_eq_u32 {sPASS}, 0\ns_cselect_b32 {sT0}, {sT0}, 0", dl=20)
    s.e(f"v_mov_b32 v246, {sT0}", dl=20)

    ringc = [0]
    def ring():
        r = 224 + 4 * (ringc[0] % 8); ringc[0] += 1
        return r
    STAMPS = set(OPT['stamps'].split(','))
    CPF = dict(x.split(':', 1) for x in OPT['cpf'].split(',') if x)
    def RB(name):
        def fn():
            e(f"L_{name}:")
            if name in STAMPS: stamp()
        s.bar(name, fn=fn, early=s.nmf - OPT['rb'])
        if OPT['cp'] > 1 and name in CPF:
            lab, tmp = CPF[name].split(':')
            cpref('L_' + lab, int(tmp), 6, 1, early=s.nmf, dl=s.nmf + 4)
    def WB(name, p0):
        s.bar(name, early=p0 + OPT['wb'], lgage=OPT['wage'], dl=p0 + OPT['wb'] + 2)
    def rebase(regs, delta):
        for r in regs:
            s.e(f"v_add_u32 v{r}, {delta}, v{r}" if delta > 0 else f"v_subrev_u32 v{r}, {-delta}, v{r}")
    def tr(ar, off, d2, **kw):
        r = ring()
        s.rd(f"ds_read_b64_tr_b16 {R('a', r, 2)}, v{ar} offset:{off}", **kw)
        s.rd(f"ds_read_b64_tr_b16 {R('a', r+2, 2)}, v{ar} offset:{off+d2}", **kw)
        return R('a', r, 4)
    def rd128(ar, off, dst=None, **kw):
        if dst is None: dst = R('a', ring(), 4)
        s.rd(f"ds_read_b128 {dst}, v{ar} offset:{off}", **kw)
        return dst
    def mf(acc, a, b, first): s.mf(f"{MF} {acc}, {a}, {b}, {'0' if first else acc}")

    def qconv(src, j):
        for q in range(16): s.e(f"v_mul_f32 v{src+q}, {sC}, v{src+q}")
        for q in range(8): s.e(f"v_cvt_pk_bf16_f32 v{src+2*q}, v{src+2*q}, v{src+2*q+1}")
        for q in range(8): s.e(f"v_accvgpr_write_b32 a{8*j+q}, v{src+2*q}")
    def pack_write(src, off, ab, bb):
        for q in range(8): s.e(f"v_cvt_pk_bf16_f32 v{src+q}, v{src+2*q}, v{src+2*q+1}")
        for half in range(2):
            s.ds(f"ds_write_b128 v37, {R('v', src+4*half, 4)} offset:{off + half*1024}", cost=OPT['wc'], ab=ab, bb=bb)
    JORD = [0, 4, 1, 2, 3, 5, 6, 7]
    trb = 0
    gx = [float(OPT['k0']), 0]
    def gpace(e0):
        while True:
            gx[0] = max(gx[0], e0)
            x = int(gx[0]); gx[1] += 1
            gx[0] += (OPT['kp'] if gx[1] + OPT['kpre'] < OPT['ksw'] else OPT['kp2']) / 10
            yield dict(early=x, dl=x + 2)
    kpc = gpace(0)
    kq = [(t, dict(a, **next(kpc))) for t, a in KL]
    def merged(L, upto):
        M = list(L)
        while kq and kq[0][1]['early'] < upto: M.append(kq.pop(0))
        M.sort(key=lambda x: x[1]['early'])
        issue(M)
    for i in range(7):
        p0 = s.nmf
        slot = (i % 3) * 32768; xs = (i % 3) * 20480
        RB(f"RA{i}")
        if i >= 1: WB(f"WA{i}", p0)
        L = []
        if i <= 4:
            pc = pace(p0 + (1 if i else -1), OPT['dp'])
            L = [(t, dict(a, **next(pc))) for t, a in dma_stage(i + 2, ab=(f"WA{i}" if i else None))]
        merged(L, p0 + 40 if i < 6 else 10**9)
        if i == 2: s.vm(f"buffer_atomic_add v246, v244, {SDB}, 0 offen sc1", cost=8, ab='RA2', dl=p0 + 20)
        if i == 5: stage_write(0, 0, 'a', 'WA5', p0)
        if i == 6: stage_write(1, 1, 'b', 'WA6', p0 - OPT['w0'] + 2)
        want = slot & 0x10000
        if want != trb: rebase(range(12, 16), want - trb); trb = want
        kw = dict(ab=f"RA{i}", bb=(f"WA{i+1}" if i < 6 else "WS0"))
        def step(j, T, newx):
            xb = B(10) + 8 * T
            if newx: rd128(16 + T, xs, R('v', xb, 4), **kw)
            a = tr(12 + (j & 3), slot - trb + (j >> 2) * 256 + T * 8192, 2048, **kw)
            mf(R('v', B(j), 16), a, R('v', xb, 4), i == 0 and T == 0)
            if j in (0, 4):
                if newx: rd128(20 + T, xs, R('v', xb + 4, 4), **kw)
                mf(R('v', B(8 + (j >> 2)), 16), a, R('v', xb + 4, 4), i == 0 and T == 0)
        if i < 6:
            for T in range(4):
                for j in JORD: step(j, T, j == 0)
        else:
            for j in range(8):
                for T in range(4): step(j, T, j == 0)
                if OPT['dump'] == 'Q': continue
                if j in (0, 4):
                    sh = B(8 + (j >> 2))
                    for q in range(16): s.e(f"v_mul_f32 v{sh+q}, {sC}, v{sh+q}")
                    pack_write(sh, 16384 + (j >> 2) * 8192, 'WA6', f"RS{j>>2}")
                qconv(B(j), j)
    dump('Q', [f"v{r}" for r in range(B(0), B(10))])
    s.es(f"""
    v_lshrrev_b32 v42, 4, v0
    v_lshlrev_b32 v3, 2, v42
    v_and_b32 v2, 15, v0
    v_xor_b32 v2, v2, v3
    v_lshlrev_b32 v2, 4, v2
    v_lshl_add_u32 v2, v42, 9, v2
    v_add_u32 v3, 1024, v2
    v_add_u32 v4, 2048, v2
    v_add_u32 v5, 3072, v2
    v_lshl_add_u32 v45, v47, 6, v46
    v_lshl_add_u32 v45, v43, 8, v45
    s_lshl_b32 {sT0}, {sW}, 6
    s_add_u32 {sT0}, {sT0}, 65536
    v_xor_b32 v12, {sT0}, v45
    v_xor_b32 v13, 64, v12
    v_xor_b32 v14, 0x80, v12
    v_xor_b32 v15, 0xc0, v12
    """)

    SLOT = {0: 'a', 1: 'b', 2: 'a', 3: 'b', 4: 'a', 5: 'b', 6: 'a', 7: 'c', 8: 'd', 9: 'b', 10: 'd', 11: 'b', 12: 'a', 13: 'c', 14: 'd', 15: 'b',
            16: 'a', 17: 'c', 18: 'd', 19: 'b', 20: 'a', 21: 'c', 22: 'd'}
    TB = [[12, 11, 8, 10, 0], [1, 2, 3, 4, 5], [6, 7, 9, 11, 0], [5, 2, 4, 7, 10]]
    hooks = []
    firsts = {vSP: True, vSS: True}
    def softmax(g, t):
        src = B(TB[g][t]); regs = [f"v{src+q}" for q in range(16)]
        mx, sm = (vMP, vSP) if t < 4 else (vMS, vSS)
        h = len(hooks); hooks.append((src, mx))
        s.add(Op('e', f"s_cbranch_vccnz L_fix{h}\nL_ret{h}:", cost=8, R=regs + ['vcc', f"v{mx}"], W=regs + [f"v{mx}"]))
        for q in range(16):
            s.e(f"v_exp_f32 v{src+q}, v{src+q}")
        for q in range(16):
            if firsts[sm]:
                if q == 0: continue
                s.e(f"v_add_f32 v{sm}, v{src}, v{src+1}"); firsts[sm] = False
            else: s.e(f"v_add_f32 v{sm}, v{sm}, v{src+q}")
        if t < 4:
            dst = B(TB[g][t & 2]) + 8 * (t & 1)
            for q in range(8): s.e(f"v_cvt_pk_bf16_f32 v{dst+q}, v{src+2*q}, v{src+2*q+1}")
        else:
            pack_write(src, g * 8192, ['RS0', 'RS0', 'WS7', 'WS8'][g], f"RS{8+g}")
    def Pfrag(g, ks): return R('v', B(TB[g][(ks >> 1) & 2]) + 4 * (ks & 3), 4)
    kb = 32768
    vp = OPT['vp']
    for n in range(8):
        p0 = s.nmf
        g, dh = n >> 1, n & 1
        RB(f"RS{n}")
        if n != 6: WB(f"WS{n}", p0)
        if n == 0: issue(dma_tile(7, 'c', ab='WS0') + dma_tile(8, 'd', ab='WS0'), gpace(p0 + 1))
        if 1 <= n <= 5: stage_write(n + 1, n + 1, SLOT[n + 1], f"WS{n}", p0)
        if 1 <= n <= 3: issue(stage_load([(8 + n, n + 1)]), gpace(p0 + OPT['w0'] + 6))
        if n == 5: rebase([7], 32768); wbase[0] = 65536
        if n == 7: issue(dma_tile(12, 'a', ab='WS7'), gpace(p0 + 1))
        off0 = SL[SLOT[n]] - kb
        if not 0 <= off0 < 65536 - 32767:
            rebase(range(24, 36), off0); kb += off0; off0 = 0
        kw = dict(ab=f"RS{n}", bb=(f"WS{n+1}" if n != 5 else "RS7"))
        qkw = dict(ab=f"RS{n}", bb=(f"WS{n+1}" if n >= 6 else None))
        def step(t, ks):
            acc = R('v', B(TB[g][t]), 16); first = (dh == 0 and ks == 0)
            if t < 4:
                a = rd128(24 + ks, off0 + t * 8192, **kw)
                mf(acc, a, R('a', 32 * dh + 4 * ks, 4), first)
            else:
                a = rd128(32 + (ks & 3), off0 + (ks >> 2) * 512, **kw)
                b = rd128(36, 16384 + dh * 8192 + ks * 1024, **qkw)
                mf(acc, a, b, first)
        if n < 2:
            for ks in range(8):
                for t in range(5): step(t, ks)
            if dh and OPT['dump'] != 'S0':
                for t in (4, 0, 1, 2, 3): softmax(g, t)
        else:
            for t in (4, 0, 1, 2, 3):
                for ks in range(8): step(t, ks)
                if dh: softmax(g, t)
        if n == 1: dump('S0', [f"v{B(b)+q}" for b in TB[0] for q in range(16)])
    dump('P', [f"v{B(TB[g][t])+q}" for g in range(4) for t in (0, 2) for q in range(16)] + [f"v{vSP}", f"v{vSS}"])
    s.es(f"""
    v_lshrrev_b32 v16, 1, v47
    v_lshl_add_u32 v16, v16, 6, v46
    v_lshl_add_u32 v16, v43, 7, v16
    s_and_b32 {sT1}, {sW}, 1
    s_lshl_b32 {sT1}, {sT1}, 6
    s_lshl_b32 {sT0}, {sW}, 12
    s_add_u32 {sT0}, {sT0}, {sT1}
    v_xor_b32 v16, {sT0}, v16""")
    for x in range(1, 8): s.e(f"v_xor_b32 v{16+x}, {(x>>1)*4096 + (x&1)*64}, v16")
    s.es(f"""s_and_b32 {sT2}, {sH}, {C-1}
    s_mul_i32 {sPP[0]}, {sT2}, {128 * (2 if C == 4 else 3)}
    s_add_u32 {sT0}, {sH}, 1
    s_and_b32 {sT0}, {sT0}, {C-1}
    s_sub_u32 {sT0}, {sT0}, {sT2}
    s_lshl_b32 {sT0}, {sT0}, 7
    s_add_u32 {sPRED}, s3, {sT0}
    s_mov_b32 {sCNT}, 0""")
    s.e(f"s_cmp_eq_u32 {sT2}, {C-1}\ns_cselect_b32 {sNF}, {1 if C == 4 else 4}, {2 if C == 4 else 3}")
    for i in range(1, 7): s.e(f"s_add_u32 {sPP[i]}, {sPP[i-1]}, 128\ns_cmp_eq_u32 {sPP[i]}, 896\ns_cselect_b32 {sPP[i]}, 0, {sPP[i]}")
    for i in range(7): s.e(f"s_lshl_b32 {sQ[i]}, {sPP[i]}, {TSH+1-7}")
    s.es(f"""
    s_mul_i32 {sT0}, {sW}, {64*896}
    v_lshrrev_b32 v42, 4, v0
    v_and_b32 v42, 1, v42
    v_lshlrev_b32 v42, 2, v42
    v_and_b32 v8, 7, v0
    v_xor_b32 v8, v8, v42
    v_lshlrev_b32 v8, 4, v8
    v_lshrrev_b32 v42, 3, v0
    v_mul_u32_u24 v42, 896, v42
    v_add3_u32 v8, v8, v42, {sT0}
    v_add_u32 v9, 6144, v8
    v_add_u32 v10, 12288, v8
    v_add_u32 v11, 18432, v8
    """)
    s.es(f"""
    v_mov_b32 v42, v{vSP}
    v_mov_b32 v43, v{vSS}
    v_permlane32_swap_b32 v42, v{vSP}
    v_permlane32_swap_b32 v43, v{vSS}
    v_add_f32 v{vSP}, v42, v{vSP}
    v_add_f32 v{vSS}, v43, v{vSS}
    v_subrev_u32 v42, {sLO}, v{vSP}
    v_mov_b32 v43, 0x7f800000
    v_cmp_le_u32 vcc, {sRNG}, v42
    v_cndmask_b32 v{vSS}, v{vSS}, v43, vcc
    v_rcp_f32 v{vSP}, v{vSP}
    v_lshlrev_b32 v6, 2, v0
    v_add_u32 v6, {S4}, v6
    s_lshl_b32 {sT0}, {sW}, 8
    v_add_u32 v35, {sT0}, v6
    """)
    s.ds(f"ds_write_b32 v35, v{vSS}", ab='WS13', bb='RS14')
    vS = [32, 33, 34]
    SEL = [24, 28]
    vZ, vFV, vPO, vWL, vST = 1, 40, 41, 35, 41
    p12 = s.nmf + 160
    s.es(f"""s_and_b32 {sT1}, {sW}, 1
    s_mul_i32 {sT0}, {sW}, 14
    s_add_u32 {sT0}, {sT0}, {sT1}
    s_lshl_b32 {sT0}, {sT0}, {TSH}
    v_add_u32 v{vS[0]}, {sT0}, v1
    v_xor_b32 v{vS[1]}, {TS}, v{vS[0]}
    s_lshr_b32 {sT0}, {sW}, 1
    s_mul_i32 {sT0}, {sT0}, 14
    s_add_u32 {sT0}, {sT0}, {sT1}
    s_add_u32 {sT0}, {sT0}, 56
    s_lshl_b32 {sT0}, {sT0}, {TSH}
    v_add_u32 v{vS[2]}, {sT0}, v1
    v_lshlrev_b32 v{vZ}, 23, v0
    v_bfe_u32 v42, v0, 3, 2
    v_bfe_u32 v43, v0, 1, 1
    v_lshl_add_u32 v42, v42, 1, v43
    v_lshrrev_b32 v43, 3, v0
    v_xor_b32 v43, v43, v0
    v_and_b32 v43, 4, v43
    v_lshl_add_u32 v42, v43, 1, v42
    v_and_b32 v44, 1, v0
    v_lshlrev_b32 v44, 4, v44
    v_mov_b32 v45, 0x3f80
    v_lshlrev_b32 v45, v44, v45""", dl=p12 + 10)
    for r in range(8):
        s.e(f"v_cmp_eq_u32 s[8:9], {r}, v42\ns_nop 1\nv_cndmask_b32 v{SEL[r >> 2] + (r & 3)}, 0, v45, s[8:9]", cost=12, dl=p12 + 20)

    OA = [[R('a', 16 * j, 16) for j in range(4)] + [R('a', 192, 16)], [R('v', B(b), 16) for b in (0, 11, 2, 7, 10)]]
    tmpc = [0]
    def oconv_a(abase, dst, inv):
        for q in range(8):
            t = 42 + 2 * (tmpc[0] % 3); tmpc[0] += 1
            s.es(f"""v_accvgpr_read_b32 v{t}, a{abase+2*q}
            v_accvgpr_read_b32 v{t+1}, a{abase+2*q+1}
            v_mul_f32 v{t}, v{t}, v{inv}
            v_mul_f32 v{t+1}, v{t+1}, v{inv}
            v_cvt_pk_bf16_f32 v{dst+q}, v{t}, v{t+1}""")
    def oconv_v(src, dst, inv):
        for q in range(16): s.e(f"v_mul_f32 v{src+q}, v{src+q}, v{inv}")
        if dst is not None:
            for q in range(8): s.e(f"v_cvt_pk_bf16_f32 v{dst+q}, v{src+2*q}, v{src+2*q+1}")
    vb = 65536
    SP = [int(x) for x in OPT['sp'].split(',')]
    for n in range(8, 16):
        p0 = s.nmf
        dh, g = (n - 8) >> 2, (n - 8) & 3
        RB(f"RS{n}")
        if n != 11: WB(f"WS{n}", p0)
        if n == 8:
            stage_write(9, 2, 'b', 'RS7', p0)
            issue(dma_tile(13, 'c', ab='WS8') + stage_load([(14, 5)]), gpace(p0 + 1))
        if n == 9: stage_write(10, 3, 'd', 'WS9', p0)
        if n == 10: stage_write(11, 4, 'b', 'WS10', p0)
        if n == 12:
            issue(dma_tile(15, 'b', ab='WS12'), gpace(p0 + 1))
            s.es(f"s_mov_b32 s16, s28\ns_mov_b32 s17, s29")
        if n == 13: stage_write(14, 5, 'd', 'RS12', p0)
        if n >= 13: issue(dma_tile(n + 3, SLOT[n + 3], ab=f"WS{n}"), pace(p0 + 1, vp))
        SW = sum([stage_wo(19 + x, 2 + x) for x in range(4) if SP[x] == n], [])
        if SW: issue(SW, pace(p0 + OPT['so'], 2))
        if n == 14:
            for w_ in range(4): s.ds(f"ds_read_b32 v{44+w_}, v6 offset:{w_*256}", ab='RS14')
            s.es(f"""v_add_f32 v44, v44, v45
            v_add_f32 v46, v46, v47
            v_add_f32 v{vSS}, v44, v46
            v_subrev_u32 v44, {sLO}, v{vSS}""")
            s.add(Op('e', f"v_cmp_le_u32 vcc, {sRNG}, v44\ns_nop 1\ns_cbranch_vccnz L_slow\nL_checked:", cost=16, R=[f"v{vMP}", f"v{vMS}"], W=['#chk'], ab='RS14', bb='RS15'))
            s.e(f"v_rcp_f32 v{vSS}, v{vSS}")
            s.es(f"v_xor_b32 v6, 0x800, v37")
            oconv_a(192, B(1), vSS)
            for half in range(2):
                s.ds(f"ds_write_b128 v37, {R('v', B(1)+4*half, 4)} offset:{8192 + half*1024}", cost=OPT['wc'], ab='WS14', bb='RS16')
        off0 = SL[SLOT[n]] - vb
        if not 0 <= off0 <= 32768:
            nb = SL[SLOT[n]] & 0x10000
            rebase(range(12, 16), nb - vb); vb = nb; off0 = SL[SLOT[n]] - vb
        kw = dict(ab=f"RS{n}", bb=(f"WS{n+1}" if n not in (10, 15) else f"RS{n+2}"))
        pkw = dict(ab=f"RS{n}", bb=(f"WS{n+1}" if 12 <= n < 15 else None))
        for j in range(4):
            for ks in range(8):
                a = tr(12 + j, off0 + ks * 4096, 1024, **kw)
                mf(OA[dh][j], a, Pfrag(g, ks), g == 0 and ks == 0)
                if j == 0:
                    b = rd128(36, g * 8192 + ks * 1024, **pkw)
                    mf(OA[dh][4], a, b, g == 0 and ks == 0)
            if n == 15 and OPT['dump'] != 'O':
                if j == 0:
                    oconv_v(B(10), None, vSS)
                    pack_write(B(10), 16384, 'WS15', OPT['osb'])
                oconv_v(B((0, 11, 2, 7)[j]), B((0, 2)[j >> 1]) + 8 * (j & 1), vSP)
        if n == 12:
            for j in range(4): oconv_a(16 * j, B((12, 8)[j >> 1]) + 8 * (j & 1), vSP)
    dump('O', [f"a{r}" for r in range(64)] + [f"v{B(b)+q}" for b in (0, 11, 2, 7) for q in range(16)] + [f"a{r}" for r in range(192, 208)]
         + [f"v{B(10)+q}" for q in range(16)] + [f"v{vSP}", f"v{vSS}"])

    OB = [(1, 6, 3), (9, 4, 5), (10, 7, 11)]
    def Ofrag(dh, jj, half): return R('v', B(((12, 8), (0, 2))[dh][jj >> 1]) + 8 * (jj & 1) + 4 * half, 4)
    def Osh(dh, jj, half): return R('a', 192 + 16 * dh + 8 * jj + 4 * half, 4)
    QA = [37, 6]
    vPL, vLD, vLD2, vO1, vO2, vO3, vLE, vLE2 = 12, 13, 14, 15, 38, 39, 36, 37
    SELA, SELB = 2, 8
    SRD_R, SRD_O = "s[8:11]", "s[12:15]"
    lP, lG, lS, oP, oG, oS, sHH = "s24", "s25", "s26", "s27", "s44", "s56", "s39"
    p16 = s.nmf
    s.e(f"v_subrev_u32 v{vWL}, 65536, v7", early=p16 + 40)
    s.vm(f"buffer_load_dword v{vST}, off, {SDB}, 0 sc1", cost=8, lat=0, early=p16 - 20, dl=p16 - 16)
    s.add(Op('e', f"v_readfirstlane_b32 {sV}, v{vST}\ns_nop 0\ns_cmp_lg_u32 {sV}, {sFAST}\ns_cbranch_scc1 L_decide\nL_decided:", cost=16,
             R=['#chk', sNF, 's28', 's29'], W=['#dec', sNF, 's28', 's29', sT0, 'v42', 'v43', 'v44'], early=p16 + 16, minage=24))
    def col(x): return f"""s_lshr_b32 {sT0}, {sHH}, {x+1}
        s_lshl_b32 {sT0}, {sT0}, {TSH}
        s_bfe_u32 {sT1}, {sHH}, {0x10000 + x}
        s_lshl_b32 {sT1}, {sT1}, 10
        s_add_u32 {sT0}, {sT0}, {sT1}
        s_and_b32 {sT1}, {sHH}, {(1 << x) - 1}
        s_lshl_b32 {sT1}, {sT1}, 8
        s_add_u32 {sT0}, {sT0}, {sT1}"""
    OWN = f"""s_mul_i32 {lG}, {sW}, {14*TS}
        {col(1)}
        s_add_u32 {lP}, {lG}, {sT0}
        {col(2)}
        s_add_u32 {lG}, {lG}, {sT0}
        s_add_u32 {lG}, {lG}, {12*TS}
        s_lshl_b32 {lS}, {sW}, {TSH+1}
        s_add_u32 {lS}, {lS}, {sT0}
        s_add_u32 {lS}, {lS}, {56*TS}
        s_and_b32 {sT1}, {sHH}, 1
        s_mul_i32 {oS}, {sT1}, {16*896}
        s_mul_i32 {oG}, {sW}, {32*896}
        s_add_u32 {oG}, {oG}, {oS}
        s_lshr_b32 {sT0}, {sHH}, 1
        s_lshl_b32 {sT1}, {sT0}, 5
        s_add_u32 {oP}, {oG}, {sT1}
        s_lshl_b32 {sT0}, {sT0}, 4
        s_add_u32 {oG}, {oG}, {sT0}
        s_add_u32 {oS}, {oS}, {sT0}
        s_lshl_b32 {sT1}, {sW}, 7
        s_add_u32 {oS}, {oS}, {sT1}
        s_add_u32 {oS}, {oS}, {128*896}"""
    def red_setup(p0):
        kw = dict(early=p0, dl=p0 + 120)
        s.e(f"s_mul_i32 {sT0}, {sB}, {PB}\ns_add_u32 s8, s4, {sT0}\ns_addc_u32 s9, s5, 0", **kw)
        s.e(f"s_mul_i32 {sT0}, {sB}, 143360\ns_add_u32 s12, s6, {sT0}\ns_addc_u32 s13, s7, 0", **kw)
        s.e(f"s_cmp_eq_u32 {sW}, 3\ns_cselect_b32 {sT1}, 0x40000000, 0\ns_cselect_b32 {sT2}, 0x2000000, 16", **kw)
        s.es(f"""s_mov_b32 s10, {(C-1)*REG + PB}
        s_mov_b32 s14, 143360
        v_and_b32 v42, 15, v0
        v_lshrrev_b32 v43, 4, v0
        v_lshrrev_b32 v44, 2, v0
        v_and_b32 v{vPL}, 3, v0
        v_lshlrev_b32 v{vPL}, 2, v{vPL}
        v_lshl_add_u32 v{vPL}, v44, 7, v{vPL}
        v_lshlrev_b32 v{vLD}, 4, v42
        v_lshl_add_u32 v{vLD}, v43, 11, v{vLD}
        v_add_u32 v{vLD2}, {sT1}, v{vLD}
        v_mul_u32_u24 v{vO1}, 896, v42
        v_and_b32 v44, 1, v43
        v_lshl_add_u32 v{vO2}, v44, 3, v{vO1}
        v_lshl_add_u32 v{vO1}, v43, 3, v{vO1}
        v_and_b32 v44, 32, v0
        v_lshl_add_u32 v{vO3}, v44, 25, v{vO2}
        v_mul_lo_u32 v44, v44, {sT2}
        v_add_u32 v{vO2}, v44, v{vO2}
        v_lshrrev_b32 v42, 1, v42
        v_and_b32 v44, 1, v0
        v_lshlrev_b32 v44, 4, v44
        v_mov_b32 v45, 0x3f80
        v_lshlrev_b32 v45, v44, v45
        s_mov_b32 {sHH}, {sH}""", **kw)
        if C == 2: s.es(f"v_add_u32 v{vLE}, 8192, v{vLD}\nv_add_u32 v{vLE2}, 8192, v{vLD2}", **kw)
        s.es(OWN, **kw)
        for r in range(8):
            s.e(f"v_cmp_eq_u32 s[98:99], {r}, v42\ns_nop 1\nv_cndmask_b32 v{(SELA, SELB)[r >> 2] + (r & 3)}, 0, v45, s[98:99]", cost=12, **kw)
    def owner(VL, VL2):
        M16 = "v_mfma_f32_16x16x32_bf16"
        k.vm = []
        cnt = [0]
        def loads(vos, so, offs):
            L = []
            for o in offs:
                for vo in vos:
                    r = 4 * cnt[0]; cnt[0] += 1
                    k.vmem(f"buffer_load_dwordx4 {R('a', r, 4)}, v{vo}, {SRD_R}, {so} offen offset:{o} sc1", ('r', r))
                    L.append(r)
            return L
        def mm(acc, L, sels, first):
            for i, r in enumerate(L):
                k.wait(vm=[('r', r)])
                e(f"{M16} {R('v', acc, 4)}, {R('v', sels[i * len(sels) // len(L)], 4)}, {R('a', r, 4)}, {'0' if first and i == 0 else R('v', acc, 4)}")
        def outst(acc, vo, so, off):
            e(f"v_cvt_pk_bf16_f32 v{acc}, v{acc}, v{acc+1}\nv_cvt_pk_bf16_f32 v{acc+1}, v{acc+2}, v{acc+3}")
            k.vmem(f"buffer_store_dwordx2 {R('v', acc, 2)}, v{vo}, {SRD_O}, {so} offen offset:{off}", 'o')
        L4 = loads(VL, lS, [0])
        e(f"s_add_u32 {lS}, {lS}, {8*TS}")
        L5 = loads(VL2, lS, [0])
        e(f"s_add_u32 {lS}, {lS}, {6*TS}")
        L4 += loads(VL, lS, [0])
        e(f"s_add_u32 {lS}, {lS}, {8*TS}")
        L5 += loads(VL2, lS, [0])
        L0 = loads(VL, lP, [0, 512])
        e(f"s_add_u32 {lP}, {lP}, {4*TS}")
        L1 = loads(VL, lP, [0, 512])
        e(f"s_add_u32 {lP}, {lP}, {4*TS}")
        L2 = loads(VL, lP, [0, 512])
        L3 = loads(VL, lG, [0])
        D = [24, 28, 40, 44, 48]
        n = len(VL)
        mm(D[4], L4[:n], (SELA,), True); mm(D[4], L5[:n], (SELB,), False); mm(D[4], L4[n:], (SELA,), False); mm(D[4], L5[n:], (SELB,), False)
        mm(D[0], L0, (SELA, SELB), True); mm(D[1], L1, (SELA, SELB), True)
        outst(D[4], vO2, oS, 0)
        mm(D[2], L2, (SELA, SELB), True)
        outst(D[0], vO1, oP, 0)
        mm(D[3], L3, (SELA,), True)
        outst(D[1], vO1, oP, 256); outst(D[2], vO1, oP, 512); outst(D[3], vO3, oG, 768)
    def red_tail():
        e(f"""v_mov_b32 v{vFV}, 7
        s_cmp_gt_u32 {sNF}, 7
        s_waitcnt vmcnt(0)
        s_cbranch_scc1 L_fall
        buffer_store_dword v{vFV}, v{vZ}, {SFL}, s3 offen""")
        stamp()
        e(f"""L_fp:
        buffer_load_dword v{vPO}, v{vPL}, {SFL}, 0 offen sc1
        s_add_u32 {sCNT}, {sCNT}, 1
        s_cmp_ge_u32 {sCNT}, {1 << OPT['spin']}
        s_waitcnt vmcnt(0)
        v_cmp_gt_u32 vcc, 7, v{vPO}
        s_cbranch_scc1 L_fgo
        s_nop 0
        s_cbranch_vccnz L_fp
        L_fgo:""")
        stamp()
        owner([vLD, vLE][:4 // C], [vLD2, vLE2][:4 // C])
    def red_cold():
        for st in range(NF0, 7):
            e(f"""L_sp{st}:
            s_cmp_lt_u32 {st}, {sNF}
            s_cbranch_scc1 L_go{st}
            v_mov_b32 v{vPO}, {st}
            s_waitcnt vmcnt(0)
            buffer_store_dword v{vPO}, v{vZ}, {SFL}, s3 offen
            L_sq{st}:
            buffer_load_dword v{vPO}, off, {SFL}, {sPRED} sc1
            s_add_u32 {sCNT}, {sCNT}, 1
            s_cmp_ge_u32 {sCNT}, {1 << OPT['spin']}
            s_waitcnt vmcnt(0)
            v_cmp_gt_i32 vcc, {sS}, v{vPO}
            s_cbranch_scc1 L_go{st}
            s_nop 0
            s_cbranch_vccnz L_sq{st}
            s_branch L_go{st}""")
        e(f"""L_codeend:
        L_decide:
        s_cmp_lt_i32 {sV}, 0
        s_cbranch_scc1 L_apart
        s_cmp_eq_u32 {sV}, {sFAST}
        s_cbranch_scc1 L_decided
        s_or_b32 {sT0}, {sV}, 0x80000000
        v_mov_b32 v42, {sT0}
        v_mov_b32 v43, {sV}
        v_lshlrev_b32 v44, 23, v0
        buffer_atomic_cmpswap v[42:43], v44, {SDB}, 0 offen sc0 sc1
        s_waitcnt vmcnt(0)
        v_readfirstlane_b32 {sT0}, v42
        s_cmp_eq_u32 {sT0}, {sV}
        s_mov_b32 {sV}, {sT0}
        s_cbranch_scc0 L_decide
        L_apart:
        s_and_b32 {sT0}, {sH}, {C-1}
        s_mul_i32 {sT0}, {sT0}, {REG}
        s_add_u32 s28, s28, {sT0}
        s_addc_u32 s29, s29, 0
        s_mov_b32 {sNF}, 99
        s_branch L_decided
        L_fall:
        s_barrier
        buffer_wbl2 sc1
        s_lshl_b32 {sT0}, {sW}, 29
        v_add_u32 v44, {sT0}, v{vZ}
        v_mov_b32 v42, 1
        s_lshl_b32 {sT0}, {sW}, 8
        v_lshlrev_b32 v43, 2, v0
        s_waitcnt vmcnt(0)
        buffer_atomic_add v42, v44, {SDB}, 0 offen offset:4 sc0 sc1
        v_add_u32 v43, {sT0}, v43
        v_mov_b32 v44, 0
        s_waitcnt vmcnt(0)
        ds_write_b32 v43, v42
        s_waitcnt lgkmcnt(0)
        s_barrier
        ds_read_b32 v42, v44
        s_mov_b32 {sHH}, 0
        s_waitcnt lgkmcnt(0)
        v_readfirstlane_b32 {sT0}, v42
        s_cmp_lg_u32 {sT0}, 15
        s_cbranch_scc1 L_exit
        buffer_inv sc1""")
        offs = [r * REG + j * 8192 for r in range(C) for j in range(4 // C)]
        for i, o in enumerate(offs): e(f"v_add_u32 v{52+i}, {o}, v{vLD}\nv_add_u32 v{56+i}, {o}, v{vLD2}")
        e("s_waitcnt vmcnt(0)\ns_barrier\nL_all:")
        e(OWN)
        owner(range(52, 56), range(56, 60))
        e(f"s_add_u32 {sHH}, {sHH}, 1\ns_cmp_lt_u32 {sHH}, 16\ns_cbranch_scc1 L_all\ns_endpgm")
    for st in range(7):
        n = 16 + st
        p0 = s.nmf
        RB(f"RS{n}")
        if st == 0 and OPT['osb'] == 'WS16': WB('WS16', p0)
        if 1 <= st <= 4: stage_write(n + 2, st + 1, SLOT[n + 2], f"RS{n}", p0 - OPT['w0'] + OPT['sw'], va=(7 if SL[SLOT[n + 2]] >= 65536 else vWL), wp=3)
        if st == OPT['rs']: red_setup(p0)
        if st in (2, 4, 6): rebase(range(16, 24), 65536 if st != 4 else -65536)
        kw = dict(ab=f"RS{n}", bb=(f"RS{n+2}" if st <= 2 else None))
        la = 16; off0 = SL[SLOT[n]] & 0xffff
        ob = [B(x) for x in OB[st % 3]]
        cb = 24 * (st & 1)
        chain = st >= NF0
        need = p0 + 40 - OPT['ap']
        if chain:
            s.vm(f"buffer_load_dword v{vPO}, off, {SFL}, {sPRED} sc1", cost=8, R=['#dec'], lat=0, early=need - OPT['pl'], dl=need - OPT['pl'] + 1)
            s.e(f"s_cmp_ge_u32 {st}, {sNF}\ns_cselect_b32 s18, {PB}, 0\ns_sub_u32 {sS}, {st+1}, {sNF}")
            if OPT['nochk']: s.add(Op('e', f"v_cmp_gt_i32 vcc, {sS}, v{vPO}\ns_nop 1\nL_go{st}:", cost=12, W=['#go'], minage=OPT['ca'], dl=need - OPT['pl'] + OPT['ca']))
            else: s.add(Op('e', f"v_cmp_gt_i32 vcc, {sS}, v{vPO}\ns_nop 1\ns_cbranch_vccnz L_sp{st}\nL_go{st}:", cost=12,
                     R=[f"#is{st-1}{x}{h}" for x in range(3) for h in range(2)] + [f"#pub{st-2}"], W=['#go', f"v{vPO}", sCNT], minage=OPT['ca'], dl=need - OPT['pl'] + OPT['ca']))
            for x in (0, 2, 1):
                for half in range(2):
                    s.vm(f"buffer_load_dwordx4 {R('a', cb + 8*x + 4*half, 4)}, v{vS[x]}, {SCH}, {sQ[st]} offen offset:{half*1024} sc1", cost=lc, R=['#go'], lat=OPT['cl'])
        def add(x):
            for half in range(2): mf(R('v', ob[x], 16), R('v', SEL[half], 4), R('a', cb + 8*x + 4*half, 4), False)
        def store(x):
            for q in range(8): s.e(f"v_cvt_pk_bf16_f32 v{ob[x]+q}, v{ob[x]+2*q}, v{ob[x]+2*q+1}", dl=s.nmf + 3)
            for half in range(2):
                o = s.vm(f"buffer_store_dwordx4 {R('v', ob[x]+4*half, 4)}, v{vS[x]}, {SWS}, {sQ[st]} offen offset:{half*1024}",
                         cost=16, R=['#dec'], W=[f"#st{st}{x}{half}", f"#is{st}{x}{half}"], dl=s.nmf + 4, lat=0)
                o.asyncw.add(f"#st{st}{x}{half}")
        order = [(t, d2) for d2 in range(2) for t in range(2)] if st == 0 else [(t, d2) for t in range(2) for d2 in range(2)]
        for t, d2 in order:
            for jj in range(4):
                for half in range(2):
                    first = d2 == 0 and jj == 0 and half == 0
                    if chain:
                        if s.nmf == need: add(0); store(0)
                        if s.nmf == need + 4: add(2); store(2)
                        if s.nmf == need + 8: add(1)
                    a = tr(la + 2 * jj + t, off0 + d2 * 16384 + half * 2048, 512, **kw)
                    mf(R('v', ob[t], 16), a, Ofrag(d2, jj, half), first)
                    if t == 0 and jj < 2:
                        if st == 0: rd128(QA[jj], 8192 + d2 * 8192 + half * 1024, Osh(d2, jj, half), ab=(OPT['osb'] if d2 else 'RS16'))
                        mf(R('v', ob[2], 16), a, Osh(d2, jj, half), first)
                        if not chain and d2 and jj and half: store(2)
            if not chain and t == 0 and d2: store(0)
        if chain and s.nmf == need + 8: add(1)
        assert s.nmf == p0 + (46 if chain else 40)
        store(1)
        if st < 7 - NF0:
            s.e(f"v_mov_b32 v{vFV}, {st+1}")
            s.vm(f"buffer_store_dword v{vFV}, v{vZ}, {SFL}, s3 offen", cost=8, R=[f"#st{st}{x}{h}" for x in range(3) for h in range(2)],
                 W=[f"#pub{st}"], minage=OPT['pa'], dl=s.nmf + 4 + OPT['pa'])
    s.build()
    s.run(budget=OPT['bud'], maxlg=OPT['maxlg'], delay=OPT['delay'], dsage=OPT['dsage'], maxds=OPT['maxds'])
    stamp()
    red_tail()
    if OPT['ts']:
        k.wait(vm0=True)
        stamp()
        e(f"""s_add_u32 s8, s4, 0x0ff00000
        s_addc_u32 s9, s5, 0
        s_mov_b32 s10, 0x100000
        s_cmp_lg_u32 {sW}, 0
        s_cbranch_scc1 L_exit
        s_mov_b64 exec, 1
        s_lshl_b32 s3, s2, 8
        v_mov_b32 v1, s3
        v_mov_b32 v2, {nst[0]}
        v_mov_b32 v3, 0
        buffer_store_dwordx2 v[2:3], v1, s[8:11], 0 offen""")
        for j in range(nst[0]):
            e(f"v_mov_b32 v4, s{sTS+2*j}\nv_mov_b32 v5, s{sTS+1+2*j}\nbuffer_store_dwordx2 v[4:5], v1, s[8:11], 0 offen offset:{8+8*j}\ns_nop 1")
        e("s_waitcnt vmcnt(0)")
    e("L_exit:\ns_endpgm")
    red_cold()
    for h, (src, mx) in enumerate(hooks):
        e(f"L_fix{h}:\ns_nop 7\ns_nop 7\ns_cmp_eq_u32 {sPASS}, 2\ns_cbranch_scc1 L_sub{h}")
        for q in range(0, 16, 2): e(f"v_max3_f32 v{mx}, v{src+q}, v{src+q+1}, v{mx}")
        e(f"s_branch L_ret{h}\nL_sub{h}:")
        for q in range(16): e(f"v_sub_f32 v{src+q}, v{src+q}, v{mx}")
        e(f"s_branch L_ret{h}")
    e(f"""L_slow:
    s_cmp_eq_u32 {sPASS}, 2
    s_cbranch_scc1 L_checked
    s_nop 7
    s_nop 7
    s_waitcnt vmcnt(0) lgkmcnt(0)
    s_barrier
    s_mov_b64 vcc, -1
    s_cmp_eq_u32 {sPASS}, 1
    s_cbranch_scc1 L_slow2
    s_mov_b32 {sPASS}, 1
    s_mov_b32 {sRNG}, 0
    v_mov_b32 v{vMP}, 0xff800000
    v_mov_b32 v{vMS}, 0xff800000
    s_branch L_start
    L_slow2:
    s_mov_b32 {sPASS}, 2
    s_mov_b32 {sLO}, 0
    s_mov_b32 {sRNG}, -1
    v_mov_b32 v42, v{vMP}
    v_mov_b32 v43, v{vMS}
    s_nop 1
    v_permlane32_swap_b32 v42, v{vMP}
    v_permlane32_swap_b32 v43, v{vMS}
    v_lshlrev_b32 v44, 2, v0
    s_lshl_b32 {sT0}, {sW}, 8
    v_max_f32 v{vMP}, v42, v{vMP}
    v_max_f32 v{vMS}, v43, v{vMS}
    v_add_u32 v45, {sT0}, v44
    ds_write_b32 v45, v{vMS}
    s_waitcnt lgkmcnt(0)
    s_barrier
    ds_read_b32 v42, v44
    ds_read_b32 v43, v44 offset:256
    ds_read_b32 v45, v44 offset:512
    ds_read_b32 v46, v44 offset:768
    s_waitcnt lgkmcnt(0)
    v_max3_f32 v{vMS}, v42, v43, v45
    v_max_f32 v{vMS}, v{vMS}, v46
    s_barrier
    s_branch L_start""")
    txt, added = k.text()
    est = s.est
    per = [sum(est[i:i + 40]) for i in range(0, len(est), 40)]
    print(f"main: {len(k.L)} lines, nops {added}, forced {s.forced}, mfma {len(est)}, est {sum(est)}; per40: {per}", file=sys.stderr)
    if OPT['verbose']:
        print("use:", s.use, file=sys.stderr)
        print("bars:", {n: o.gap for n, o in s.bars.items()}, file=sys.stderr)
    return txt

if __name__ == "__main__":
    out = sys.argv[1]
    sys.argv = sys.argv[:2] + ([f"ts={OPT['ts']}"] if OPT['ts'] else []) + ([f"diag={OPT['diag']}"] if OPT['diag'] else [])
    import gen
    m = main_kernel()
    nm = "mha_main_kernel" if OPT['diag'] else "standalone__mha_block_cached__near_ridge_kernel"
    L = [(nm, 256, 256, 163840)]; KS = [(nm, m, 512, 256)]
    if OPT['dup'] == 1: L.insert(0, L[0])
    if OPT['dup'] == 2:
        L.insert(0, ("mha_copy_kernel", 256, 256, 163840)); KS.append(("mha_copy_kernel", m.replace("L_", "M_"), 512, 256))
    if OPT['diag']:
        L.append(("mha_diag_kernel", 1, 64, 0)); KS.append(("mha_diag_kernel", gen.diag_kernel(), 64, 64))
    write_file(out, HEADER, L, KS)
```

```python
import sys, math, struct
sys.path.insert(0, "work")
from asmlib import K, write_file
from sch import Sched, Op

OPT = dict(arr='L', ts=0, dump='', nt='nt', C=4, ap=8, pl=40, rs=2, pa=12, ca=12, cl=560, sp='13,14,15,15', so=26, sw=4, osb='RS16', nochk=0, vz=0, wop=0, de=0, dm=0, dmo=20, dmp=2, rsd=120, wo0=1, spp=2, p15=0, x='', stc=16, clc=12, cvd=3, bud=24, maxlg=14, delay=3, dsage=4, maxds=3,
           rb=9, wb=0, wage=6, dc=16, wc=16, lc=12,
           kpre=0, k0=0, kp=70, kp2=65, ksw=32, pair=1, tp=0, tpm='', stamps='RA3,RS0,RS8,RS16,RS22',
           w0=14, wp=2,
           dp=2, vp=3, verbose=0, fs=0, spin=20, lo=-20, hi=30, diag='', dup=0, cp=2, cpm='', cpf='RA3:RS1:242,RS3:RS8:16,RS10:RS16:46')
for a in sys.argv[2:]:
    kk, vv = a.split('=')
    assert kk in OPT, kk
    OPT[kk] = int(vv) if vv.lstrip('-').isdigit() else vv

C = OPT['C']; LC = C.bit_length() - 1
TSH = 15 - LC; TS = 1 << TSH
PB = 84 * TS
REG = 16 * PB
NF0 = 1 if C == 4 else 3
HEADER = "".join(l for l in open("standalone__mha_block_cached__near_ridge.s.ref").read().splitlines(True)[:11])
MF = "v_mfma_f32_32x32x16_bf16"
def R(p, lo, n): return f"{p}[{lo}:{lo+n-1}]"
def f2u(x): return struct.unpack('<I', struct.pack('<f', x))[0]
SX, SK, SV, SWQ, SWO, SWS = "s[8:11]", "s[12:15]", "s[16:19]", "s[20:23]", "s[24:27]", "s[28:31]"
sW, sB, sH = "s32", "s33", "s34"
sT0, sT1, sT2 = "s36", "s37", "s38"
sC = "s39"
sWQO, sXO, sM8, sM1, sW16 = "s40", "s41", "s42", "s43", "s44"
sPP = [f"s{47+i}" for i in range(7)]
sQ = ["s20", "s21", "s22", "s23", "s40", "s41", "s45"]
sNF, sPRED, sFAST, sV, sCNT = "s46", "s54", "s94", "s100", "s101"
SCH = "s[16:19]"
sD, sL, sS = "s55", "s56", "s35"
sPASS, sLO, sRNG = "s57", "s58", "s59"
sTS = 68
SFL, SDB = 's[60:63]', 's[64:67]'
FLOFF = C * REG
XB = 96 * 1024
S4 = 128 * 1024
SL = dict(a=32768, b=65536, c=0, d=98304)
def B(i): return 48 + 16 * i
vSP, vSS, vMP, vMS = 38, 39, 40, 41

def main_kernel():
    k = K(); e = k.e
    s = Sched(k)
    nst = [0]
    TSI = 's_memtime' if OPT['ts'] == 2 else 's_memrealtime'
    def stamp():
        if OPT['ts']:
            k.wait(lg0=True)
            e(f"{TSI} s[{sTS+2*nst[0]}:{sTS+1+2*nst[0]}]\ns_waitcnt lgkmcnt(0)")
            nst[0] += 1
    def dump(name, regs):
        if OPT['dump'] != name: return
        def fn(op):
            e("s_nop 7\ns_nop 7\ns_waitcnt vmcnt(0) lgkmcnt(0)")
            e(f"s_mul_i32 {sT0}, {sB}, 64\ns_lshl_b32 {sT1}, {sH}, 2\ns_add_u32 {sT0}, {sT0}, {sT1}\ns_add_u32 {sT0}, {sT0}, {sW}\ns_lshl_b32 {sT0}, {sT0}, 17")
            e("s_add_u32 s8, s4, 0x4000000\ns_addc_u32 s9, s5, 0\ns_mov_b32 s10, 0x8000000\ns_mov_b32 s11, 0x00020000")
            e("v_lshlrev_b32 v0, 2, v0")
            for i, r in enumerate(regs):
                e(f"buffer_store_dword {r}, v0, s[8:11], {sT0} offen\ns_add_u32 {sT0}, {sT0}, 256")
                if i % 32 == 31: e("s_waitcnt vmcnt(0)")
            e("s_waitcnt vmcnt(0)\ns_branch L_exit")
        s.add(Op('e', 's_nop 0', R=regs, W=regs, fn=fn, dl=s.nmf))

    if OPT['ts']:
        e(f"{TSI} s[{sTS}:{sTS+1}]"); nst[0] = 1
    e(f"""
    s_cmp_ge_u32 s2, 256
    s_cbranch_scc1 L_exit
    v_lshrrev_b32 v1, 6, v0
    v_and_b32 v0, 63, v0
    s_mov_b32 {sPASS}, 0
    v_readfirstlane_b32 {sW}, v1
    s_mov_b64 vcc, 0
    s_mov_b32 {sLO}, 0x{(127 + OPT['lo']) << 23:08x}
    s_mov_b32 {sRNG}, 0x{(OPT['hi'] - OPT['lo']) << 23:08x}
    L_start:
    s_load_dwordx2 s[8:9], s[0:1], 0
    s_load_dwordx2 s[20:21], s[0:1], 24
    s_load_dwordx2 s[12:13], s[0:1], 8
    s_load_dwordx2 s[16:17], s[0:1], 16
    s_load_dwordx2 s[24:25], s[0:1], 32
    s_load_dwordx2 s[4:5], s[0:1], 56
    s_load_dwordx2 s[6:7], s[0:1], 40
    s_load_dwordx2 s[64:65], s[0:1], 48
    s_and_b32 {sT0}, s2, 7
    s_lshr_b32 {sT1}, s2, 3
    """)
    arr = OPT['arr']
    if arr == 'N':
        e(f"""s_lshr_b32 {sB}, {sT0}, 1
        s_lshl_b32 {sB}, {sB}, 2
        s_lshr_b32 {sT2}, {sT1}, 3
        s_add_u32 {sB}, {sB}, {sT2}
        s_and_b32 {sH}, {sT0}, 1
        s_lshl_b32 {sH}, {sH}, 3
        s_and_b32 {sT2}, {sT1}, 7
        s_add_u32 {sH}, {sH}, {sT2}""")
    elif arr == 'L':
        e(f"""s_lshl_b32 {sB}, {sT0}, 1
        s_lshr_b32 {sT2}, {sT1}, 4
        s_add_u32 {sB}, {sB}, {sT2}
        s_and_b32 {sH}, {sT1}, 15""")
    elif arr == 'M':
        e(f"""s_lshr_b32 {sB}, {sT0}, 2
        s_lshl_b32 {sB}, {sB}, 3
        s_lshr_b32 {sT2}, {sT1}, 2
        s_add_u32 {sB}, {sB}, {sT2}
        s_and_b32 {sH}, {sT0}, 3
        s_lshl_b32 {sH}, {sH}, 2
        s_and_b32 {sT2}, {sT1}, 3
        s_add_u32 {sH}, {sH}, {sT2}""")
    e(f"""
    s_mov_b32 s10, 143360
    s_mov_b32 s11, 0x00020000
    s_mov_b32 s23, 0x00020000
    s_lshl_b32 {sM8}, {sW}, 13
    s_lshl_b32 {sM1}, {sW}, 10
    s_lshl_b32 {sWQO}, {sW}, 17
    s_mul_i32 {sXO}, {sW}, 7168
    v_lshrrev_b32 v44, 5, v0                 ; hh
    v_and_b32 v45, 31, v0                    ; c
    v_lshlrev_b32 v1, 2, v44
    v_xor_b32 v1, v1, v45
    v_lshlrev_b32 v1, 4, v1
    v_lshl_add_u32 v2, v44, 13, v1
    v_xor_b32 v3, 0x80, v2
    v_add_u32 v3, 15360, v3
    v_add_u32 v4, 30720, v2
    v_add_u32 v5, 30720, v3
    s_and_b32 {sT2}, {sW}, 1
    s_lshl_b32 {sT0}, {sT2}, 2
    v_lshrrev_b32 v6, 4, v0
    v_xor_b32 v6, {sT0}, v6
    v_and_b32 v1, 7, v0
    v_xor_b32 v6, v6, v1
    v_lshlrev_b32 v6, 4, v6
    v_lshrrev_b32 v1, 3, v0
    v_mul_u32_u24 v1, 896, v1
    v_add_u32 v6, v6, v1                     ; x voff
    s_mul_i32 {sT0}, {sB}, 143360
    s_lshl_b32 {sT1}, {sH}, 9
    s_waitcnt lgkmcnt(0)
    s_add_u32 s8, s8, {sT0}
    s_addc_u32 s9, s9, 0
    s_add_u32 s20, s20, {sT1}
    s_addc_u32 s21, s21, 0
    s_sub_u32 s22, 3670016, {sT1}
    """)
    dc, lc = OPT['dc'], OPT['lc']
    def vmop(text, **kw):
        n = text.count('\n')
        return s.vm(text, cost=kw.pop('cost', dc) + 4 * n, chain=kw.pop('chain', 'vm'), **kw)
    def pace(e0, p):
        i = 0
        while True:
            x = e0 + int(i * p)
            yield dict(early=x, dl=x + 2)
            i += 1
    def dma_stage(i, pc=None, **kw):
        L = []
        slot = (i % 3) * 32768; xs = XB + (i % 3) * 20480
        for u in range(2):
            for ii in range(4):
                t = f"s_add_u32 m0, {sM8}, {slot + u*4096}\ns_add_u32 {sD}, {sWQO}, {(i << 19) + u*65536}\n" if ii == 0 else ""
                L.append(t + f"buffer_load_dwordx4 v{2+ii}, {SWQ}, {sD} offen offset:{ii*1024} lds")
        X = []
        for u in range(5):
            X.append(f"s_add_u32 m0, {sM1}, {xs + u*4096}\ns_add_u32 {sD}, {sXO}, {i*128 + u*4*7168}\nbuffer_load_dwordx4 v6, {SX}, {sD} offen lds")
        return [(t, dict(bb=f"RA{i}", **kw)) for t in L + X]
    def dma_tile(n, slot, **kw):
        L = []
        for u in range(2):
            for ii in range(4):
                if n < 16:
                    i, dh = (n >> 1, n & 1) if n < 8 else ((n - 8) & 3, (n - 8) >> 2)
                    if n >= 8 and OPT['vz']: dh = 0
                    so = f"{sW16}, {i*65536 + dh*256 + u*8192}" if n < 8 or 'c' not in OPT['x'] else f"{sM8}, {(n-8)*32768 + u*4096}"; vo = (8 if n < 8 else 2) + ii; srd = SK if n < 8 else SV; m = OPT['nt']
                else:
                    so = f"{sPP[n-16]}, {32*u*896}"; vo = 8 + ii; srd = SWO; m = ''
                t = f"s_add_u32 m0, {sM8}, {SL[slot] + u*4096}\ns_add_u32 {sD}, {so}\n" if ii == 0 else ""
                L.append(t + f"buffer_load_dwordx4 v{vo}, {srd}, {sD} offen offset:{ii*1024} {m} lds")
        return [(t, dict(bb=f"RS{n}", **kw)) for t in L]
    def stage_load(tiles, **kw):
        L = []
        for u in range(2):
            for ii in range(4):
                for x, (n, r) in enumerate(tiles):
                    i, dh = (n >> 1, n & 1) if n < 8 else ((n - 8) & 3, (n - 8) >> 2)
                    if n >= 8 and (OPT['vz'] or 'c' in OPT['x']): dh = 0
                    t = f"s_add_u32 {sL}, {sW16}, {i*65536 + u*8192}\n" if ii == 0 and x == 0 else ""
                    if t and n >= 8 and 'c' in OPT['x']: t = f"s_add_u32 {sL}, {sM8}, {(n-8)*32768 + u*4096}\n"
                    vo = (8 if n < 8 else 2) + ii; srd = SK if n < 8 else SV
                    L.append(t + f"buffer_load_dwordx4 {R('a', 32*r + 16*u + 4*ii, 4)}, v{vo}, {srd}, {sL} offen offset:{ii*1024 + dh*256} {OPT['nt']}")
        return [(t, dict(cost=lc, **kw)) for t in L]
    def stage_wo(n, r, **kw):
        L = []
        for u in range(2):
            for ii in range(4):
                t = f"s_add_u32 {sS}, {sPP[n-16]}, {32*u*896}\n" if ii == 0 else ""
                L.append(t + f"buffer_load_dwordx4 {R('a', 32*r + 16*u + 4*ii, 4)}, v{8+ii}, {SWO}, {sS} offen offset:{ii*1024}")
        return [(t, dict(cost=lc, chain='vm2', **kw)) for t in L]
    def issue(L, pc=None, **kw):
        for t, a in L:
            a = dict(a); a.update(kw)
            if pc is not None: a.update(next(pc))
            vmop(t, **a)
    wbase = [32768]
    def stage_write(n, r, slot, ab, p0, va=7, wp=None):
        for u in range(2):
            for ii in range(4):
                off = SL[slot] - (wbase[0] if va == 7 else 0) + u * 4096 + ii * 1024
                assert 0 <= off < 65536
                x = p0 + OPT['w0'] + (wp or OPT['wp']) * (4 * u + ii)
                s.ds(f"ds_write_b128 v{va}, {R('a', 32*r + 16*u + 4*ii, 4)} offset:{off}", cost=OPT['wc'], ab=ab, bb=f"RS{n}", early=x, dl=x + 1)
    P = dict(pre=True)
    issue(dma_stage(0), **P)
    s.es(f"""
    s_lshl_b32 {sT0}, {sB}, 4
    s_add_u32 {sT0}, {sT0}, {sH}
    s_lshl_b32 {sT0}, {sT0}, 18""", **P)
    s.e(f"s_add_u32 s16, s16, {sT0}\ns_addc_u32 s17, s17, 0\ns_add_u32 s12, s12, {sT0}\ns_addc_u32 s13, s13, 0", **P)
    s.es(f"""
    s_mov_b32 s14, 262144
    s_mov_b32 s15, 0x00020000
    s_mov_b32 s18, 262144
    s_mov_b32 s19, 0x00020000
    s_lshl_b32 {sW16}, {sW}, 14""", **P)
    issue(dma_stage(1), **P)
    s.es(f"""
    v_bfe_u32 v1, v0, 4, 1
    v_and_b32 v8, 7, v0
    v_xor_b32 v8, v8, v1
    v_lshlrev_b32 v8, 4, v8
    v_lshl_add_u32 v8, v44, 7, v8
    v_bfe_u32 v1, v0, 3, 2
    v_lshl_add_u32 v8, v1, 9, v8
    v_xor_b32 v9, {1024+32}, v8
    v_xor_b32 v10, {2048+64}, v8
    v_xor_b32 v11, {3072+96}, v8""".replace(f"v_xor_b32 v9, {1024+32}, v8", "v_xor_b32 v9, 32, v8\nv_add_u32 v9, 1024, v9")
       .replace(f"v_xor_b32 v10, {2048+64}, v8", "v_xor_b32 v10, 64, v8\nv_add_u32 v10, 2048, v10")
       .replace(f"v_xor_b32 v11, {3072+96}, v8", "v_xor_b32 v11, 0x60, v8\nv_add_u32 v11, 3072, v11"), **P)
    KL = stage_load([(0, 0), (1, 1)]) + stage_load([(2, 2), (3, 3)]) + stage_load([(4, 4), (5, 5)]) + stage_load([(6, 6)])
    if not OPT['pair']: KL = sum([stage_load([(n, n)]) for n in range(7)], [])
    if OPT['tp']:
        s.es(f"v_and_b32 v241, 15, v0\nv_lshlrev_b32 v241, 12, v241\ns_lshl_b32 {sL}, {sW}, 16", **P)
        vmop(f"buffer_load_dword v240, v241, {SK}, {sL} offen {OPT['tpm']}", **P)
        if OPT['tp'] > 1: vmop(f"buffer_load_dword v242, v241, {SV}, {sL} offen {OPT['tpm']}", **P)
    def cpref(lab, tmp, st, n=1, **kw):
        a, b = f"v{tmp}", f"v{tmp+1}"
        for j in range(n):
            s.add(Op('e', f"s_lshl_b32 s98, {sW}, {6+st}\ns_add_u32 s98, s98, {lab}-L_pc+{j*(256<<st)}\nv_lshlrev_b32 {a}, {st}, v0\nv_add_u32 {a}, s98, {a}\nv_min_u32 {a}, s95, {a}", cost=20, **kw))
            s.add(Op('e', f"v_mov_b32 {b}, s97\nv_add_co_u32 {a}, s[98:99], s96, {a}\ns_nop 1\nv_addc_co_u32 {b}, s[98:99], 0, {b}, s[98:99]", W=['s98', 's99'], cost=20, **kw))
            s.add(Op('vm', f"global_load_dword {a}, v[{tmp}:{tmp+1}], off {OPT['cpm']}", cost=16, **kw))
    if OPT['cp']:
        s.e(f"s_getpc_b64 s[96:97]\nL_pc:\ns_mov_b32 s95, L_codeend-L_pc-4", **P)
        if OPT['cp'] == 1:
            cpref('L_pc', 242, 7, 1, **P); cpref('L_pc+32768', 244, 7, 1, **P)
        else: cpref('L_pc', 242, 6, 1, **P)
    s.e(f"s_lshl_b32 {sT0}, {sB}, 11\ns_add_u32 {sT0}, {sT0}, {FLOFF}\ns_add_u32 s60, s4, {sT0}\ns_addc_u32 s61, s5, 0", **P)
    s.e(f"s_lshl_b32 {sT0}, {sB}, 4\ns_add_u32 s64, s64, {sT0}\ns_addc_u32 s65, s65, 0", **P)
    s.es(f"""s_mov_b32 s62, 2048
    s_mov_b32 s63, 0x00020000
    s_mov_b32 s66, 16
    s_mov_b32 s67, 0x00020000
    s_lshl_b32 s3, {sH}, 7
    s_lshl_b32 {sT0}, {sW}, 2
    s_add_u32 s3, s3, {sT0}
    v_lshlrev_b32 v247, 23, v0
    v_mov_b32 v245, 0""", **P)
    vmop(f"buffer_store_dword v245, v247, {SFL}, s3 offen", bb='RA2', **P)
    issue(KL[:OPT['kpre']], **P)
    KL = KL[OPT['kpre']:]
    s.e(f"s_mul_i32 {sT0}, {sH}, 229376\ns_add_u32 s24, s24, {sT0}\ns_addc_u32 s25, s25, 0", **P)
    s.e(f"s_mul_i32 {sT0}, {sB}, {PB}\ns_lshr_b32 {sT1}, {sH}, {LC}\ns_lshl_b32 {sT1}, {sT1}, 11\ns_add_u32 {sT0}, {sT0}, {sT1}\ns_add_u32 s28, s4, {sT0}\ns_addc_u32 s29, s5, 0", **P)
    s.es(f"""
    s_mov_b32 s26, 229376
    s_mov_b32 s27, 0x00020000
    s_mov_b32 s30, {PB}
    s_mov_b32 s31, 0x00020000
    s_mov_b32 {sC}, 0x{f2u(math.log2(math.e)/16):08x}
    """, **P)
    s.es(f"""
    v_bfe_u32 v47, v0, 2, 2
    v_lshl_add_u32 v43, v44, 3, v47
    v_bfe_u32 v1, v0, 4, 1
    v_lshlrev_b32 v46, 5, v1
    v_and_b32 v1, 1, v0
    v_lshl_add_u32 v46, v1, 4, v46
    v_bfe_u32 v1, v0, 1, 1
    v_lshl_add_u32 v46, v1, 3, v46
    v_lshl_add_u32 v1, v47, 6, v46
    s_lshl_b32 {sT0}, {sW}, 6
    v_lshl_add_u32 v12, v43, 9, v1
    v_xor_b32 v12, {sT0}, v12
    v_xor_b32 v13, 64, v12
    v_xor_b32 v14, 0x80, v12
    v_xor_b32 v15, 0xc0, v12
    v_bfe_u32 v1, v0, 1, 3
    v_xor_b32 v1, v1, v44
    v_lshlrev_b32 v1, 4, v1
    v_lshl_add_u32 v1, v45, 7, v1
    v_add_u32 v20, {XB + 128*128}, v1
    s_lshl_b32 {sT0}, {sW}, 12
    s_add_u32 {sT0}, {sT0}, {XB}
    v_add_u32 v16, {sT0}, v1
    v_xor_b32 v17, 32, v16
    v_xor_b32 v18, 64, v16
    v_xor_b32 v19, 0x60, v16
    v_xor_b32 v21, 32, v20
    v_xor_b32 v22, 64, v20
    v_xor_b32 v23, 0x60, v20
    """, **P)
    s.es(f"""
    v_and_b32 v42, 0x13, v0
    v_bfe_u32 v1, v0, 2, 1
    v_lshl_or_b32 v42, v1, 3, v42
    v_bfe_u32 v1, v0, 3, 1
    v_lshl_or_b32 v42, v1, 2, v42
    v_bfe_u32 v1, v42, 1, 3
    v_xor_b32 v1, v1, v44
    v_lshlrev_b32 v1, 4, v1
    v_and_b32 v24, 3, v42
    v_lshl_add_u32 v1, v24, 7, v1
    v_lshrrev_b32 v24, 2, v42
    v_lshl_add_u32 v1, v24, 10, v1
    s_add_u32 {sT0}, {sM8}, 32768
    v_add_u32 v32, {sT0}, v1
    v_xor_b32 v33, 32, v32
    v_xor_b32 v34, 64, v32
    v_xor_b32 v35, 0x60, v32
    s_lshr_b32 {sT1}, {sW}, 1
    s_lshl_b32 {sT1}, {sT1}, 9
    s_and_b32 {sT2}, {sW}, 1
    s_lshl_b32 {sT2}, {sT2}, 6
    s_add_u32 {sT1}, {sT1}, {sT2}
    s_add_u32 {sT1}, {sT1}, 32768
    v_xor_b32 v24, {sT1}, v1
    """, **P)
    for jj in range(4):
        for half in range(2):
            if jj or half: s.e(f"v_xor_b32 v{24+2*jj+half}, {(jj>>1)*512 + (jj&1)*64 + half*32}, v24", **P)
    s.es(f"""
    v_lshlrev_b32 v1, 4, v0
    v_add_u32 v7, {sT0}, v1
    v_add_u32 v36, {S4}, v1
    s_lshl_b32 {sT0}, {sW}, 11
    v_add_u32 v37, {sT0}, v36
    """, **P)
    s.es(f"""s_getreg_b32 {sT0}, hwreg(HW_REG_XCC_ID, 0, 3)
    s_mul_i32 {sT1}, {sT0}, {sT0}
    s_lshl_b32 {sT1}, {sT1}, 8
    s_add_u32 {sT0}, {sT0}, {sT1}
    s_lshl_b32 {sT0}, {sT0}, 8
    s_add_u32 {sT0}, {sT0}, 1
    s_lshl_b32 {sFAST}, {sT0}, 4
    s_lshl_b32 {sT1}, {sW}, 29
    v_add_u32 v244, {sT1}, v247""", dl=20)
    if OPT['fs']: s.e(f"s_add_u32 {sFAST}, {sFAST}, 1")
    s.e(f"s_cmp_eq_u32 {sPASS}, 0\ns_cselect_b32 {sT0}, {sT0}, 0", dl=20)
    s.e(f"v_mov_b32 v246, {sT0}", dl=20)

    ringc = [0]
    def ring():
        r = 224 + 4 * (ringc[0] % 8); ringc[0] += 1
        return r
    STAMPS = set(OPT['stamps'].split(','))
    CPF = dict(x.split(':', 1) for x in OPT['cpf'].split(',') if x)
    def RB(name):
        def fn():
            e(f"L_{name}:")
            if name in STAMPS: stamp()
        s.bar(name, fn=fn, early=s.nmf - OPT['rb'])
        if OPT['cp'] > 1 and name in CPF:
            lab, tmp = CPF[name].split(':')
            cpref('L_' + lab, int(tmp), 6, 1, early=s.nmf, dl=s.nmf + 4)
    def WB(name, p0):
        s.bar(name, early=p0 + OPT['wb'], lgage=OPT['wage'], dl=p0 + OPT['wb'] + 2)
    def rebase(regs, delta):
        for r in regs:
            s.e(f"v_add_u32 v{r}, {delta}, v{r}" if delta > 0 else f"v_subrev_u32 v{r}, {-delta}, v{r}")
    def tr(ar, off, d2, **kw):
        r = ring()
        s.rd(f"ds_read_b64_tr_b16 {R('a', r, 2)}, v{ar} offset:{off}", **kw)
        s.rd(f"ds_read_b64_tr_b16 {R('a', r+2, 2)}, v{ar} offset:{off+d2}", **kw)
        return R('a', r, 4)
    def rd128(ar, off, dst=None, **kw):
        if dst is None: dst = R('a', ring(), 4)
        s.rd(f"ds_read_b128 {dst}, v{ar} offset:{off}", **kw)
        return dst
    def mf(acc, a, b, first): s.mf(f"{MF} {acc}, {a}, {b}, {'0' if first else acc}")

    def qconv(src, j):
        for q in range(16): s.e(f"v_mul_f32 v{src+q}, {sC}, v{src+q}")
        for q in range(8): s.e(f"v_cvt_pk_bf16_f32 v{src+2*q}, v{src+2*q}, v{src+2*q+1}")
        for q in range(8): s.e(f"v_accvgpr_write_b32 a{8*j+q}, v{src+2*q}")
    def pack_write(src, off, ab, bb):
        for q in range(8): s.e(f"v_cvt_pk_bf16_f32 v{src+q}, v{src+2*q}, v{src+2*q+1}")
        for half in range(2):
            s.ds(f"ds_write_b128 v37, {R('v', src+4*half, 4)} offset:{off + half*1024}", cost=OPT['wc'], ab=ab, bb=bb)
    JORD = [0, 4, 1, 2, 3, 5, 6, 7]
    trb = 0
    gx = [float(OPT['k0']), 0]
    def gpace(e0, p=0):
        while True:
            gx[0] = max(gx[0], e0)
            x = int(gx[0]); gx[1] += 1
            gx[0] += (p or (OPT['kp'] if gx[1] + OPT['kpre'] < OPT['ksw'] else OPT['kp2'])) / 10
            yield dict(early=x, dl=x + 2)
    kpc = gpace(0)
    kq = [(t, dict(a, **next(kpc))) for t, a in KL]
    def merged(L, upto):
        M = list(L)
        while kq and kq[0][1]['early'] < upto: M.append(kq.pop(0))
        M.sort(key=lambda x: x[1]['early'])
        issue(M)
    for i in range(7):
        p0 = s.nmf
        slot = (i % 3) * 32768; xs = (i % 3) * 20480
        RB(f"RA{i}")
        if i >= 1: WB(f"WA{i}", p0)
        L = []
        if i <= 4:
            pc = pace(p0 + (1 if i else -1), OPT['dp'])
            L = [(t, dict(a, **next(pc))) for t, a in dma_stage(i + 2, ab=(f"WA{i}" if i else None))]
        merged(L, p0 + 40 if i < 6 else 10**9)
        if i == 2: s.vm(f"buffer_atomic_add v246, v244, {SDB}, 0 offen sc1", cost=8, ab='RA2', dl=p0 + 20)
        if i == 5: stage_write(0, 0, 'a', 'WA5', p0)
        if i == 6: stage_write(1, 1, 'b', 'WA6', p0 - OPT['w0'] + 2)
        want = slot & 0x10000
        if want != trb: rebase(range(12, 16), want - trb); trb = want
        kw = dict(ab=f"RA{i}", bb=(f"WA{i+1}" if i < 6 else "WS0"))
        def step(j, T, newx):
            xb = B(10) + 8 * T
            if newx: rd128(16 + T, xs, R('v', xb, 4), **kw)
            a = tr(12 + (j & 3), slot - trb + (j >> 2) * 256 + T * 8192, 2048, **kw)
            mf(R('v', B(j), 16), a, R('v', xb, 4), i == 0 and T == 0)
            if j in (0, 4):
                if newx: rd128(20 + T, xs, R('v', xb + 4, 4), **kw)
                mf(R('v', B(8 + (j >> 2)), 16), a, R('v', xb + 4, 4), i == 0 and T == 0)
        if i < 6:
            for T in range(4):
                for j in JORD: step(j, T, j == 0)
        else:
            for j in range(8):
                for T in range(4): step(j, T, j == 0)
                if OPT['dump'] == 'Q': continue
                if j in (0, 4):
                    sh = B(8 + (j >> 2))
                    for q in range(16): s.e(f"v_mul_f32 v{sh+q}, {sC}, v{sh+q}")
                    pack_write(sh, 16384 + (j >> 2) * 8192, 'WA6', f"RS{j>>2}")
                qconv(B(j), j)
    dump('Q', [f"v{r}" for r in range(B(0), B(10))])
    s.es(f"""
    v_lshrrev_b32 v42, 4, v0
    v_lshlrev_b32 v3, 2, v42
    v_and_b32 v2, 15, v0
    v_xor_b32 v2, v2, v3
    v_lshlrev_b32 v2, 4, v2
    v_lshl_add_u32 v2, v42, {8 if 'c' in OPT['x'] else 9}, v2
    {f"s_lshr_b32 {sT0}, {sH}, {OPT['vz']-1}" if OPT['vz'] else ''}
    {f"s_and_b32 {sT0}, {sT0}, 1" if OPT['vz'] else ''}
    {f"v_lshl_add_u32 v2, {sT0}, 8, v2" if OPT['vz'] else ''}
    v_add_u32 v3, {0 if 'c' in OPT['x'] else 1024}, v2
    v_add_u32 v4, {0 if 'c' in OPT['x'] else 2048}, v2
    v_add_u32 v5, {0 if 'c' in OPT['x'] else 3072}, v2
    v_lshl_add_u32 v45, v47, 6, v46
    v_lshl_add_u32 v45, v43, 8, v45
    s_lshl_b32 {sT0}, {sW}, 6
    s_add_u32 {sT0}, {sT0}, 65536
    v_xor_b32 v12, {sT0}, v45
    v_xor_b32 v13, 64, v12
    v_xor_b32 v14, 0x80, v12
    v_xor_b32 v15, 0xc0, v12
    """)

    SLOT = {0: 'a', 1: 'b', 2: 'a', 3: 'b', 4: 'a', 5: 'b', 6: 'a', 7: 'c', 8: 'd', 9: 'b', 10: 'd', 11: 'b', 12: 'a', 13: 'c', 14: 'd', 15: 'b',
            16: 'a', 17: 'c', 18: 'd', 19: 'b', 20: 'a', 21: 'c', 22: 'd'}
    TB = [[12, 11, 8, 10, 0], [1, 2, 3, 4, 5], [6, 7, 9, 11, 0], [5, 2, 4, 7, 10]]
    hooks = []
    firsts = {vSP: True, vSS: True}
    def softmax(g, t):
        src = B(TB[g][t]); regs = [f"v{src+q}" for q in range(16)]
        mx, sm = (vMP, vSP) if t < 4 else (vMS, vSS)
        h = len(hooks); hooks.append((src, mx))
        s.add(Op('e', f"s_cbranch_vccnz L_fix{h}\nL_ret{h}:", cost=8, R=regs + ['vcc', f"v{mx}"], W=regs + [f"v{mx}"]))
        for q in range(16):
            s.e(f"v_exp_f32 v{src+q}, v{src+q}")
        for q in range(16):
            if firsts[sm]:
                if q == 0: continue
                s.e(f"v_add_f32 v{sm}, v{src}, v{src+1}"); firsts[sm] = False
            else: s.e(f"v_add_f32 v{sm}, v{sm}, v{src+q}")
        if t < 4:
            dst = B(TB[g][t & 2]) + 8 * (t & 1)
            for q in range(8): s.e(f"v_cvt_pk_bf16_f32 v{dst+q}, v{src+2*q}, v{src+2*q+1}")
        else:
            pack_write(src, g * 8192, ['RS0', 'RS0', 'WS7', 'WS8'][g], f"RS{8+g}")
    def Pfrag(g, ks): return R('v', B(TB[g][(ks >> 1) & 2]) + 4 * (ks & 3), 4)
    kb = 32768
    vp = OPT['vp']
    for n in range(8):
        p0 = s.nmf
        g, dh = n >> 1, n & 1
        RB(f"RS{n}")
        if n != 6: WB(f"WS{n}", p0)
        if n == 0: issue(dma_tile(7, 'c', ab='WS0') + dma_tile(8, 'd', ab='WS0'), gpace(p0 + 1))
        if 1 <= n <= 5: stage_write(n + 1, n + 1, SLOT[n + 1], f"WS{n}", p0)
        if 1 <= n <= 3: issue(stage_load([(8 + n, n + 1)]), gpace(p0 + OPT['w0'] + 6))
        if n == 5: rebase([7], 32768); wbase[0] = 65536
        if n == 7 and OPT['vz']: s.es("\n".join(f"v_xor_b32 v{r}, 0x100, v{r}" for r in range(2, 6)))
        if n == 7: issue(dma_tile(12, 'a', ab='WS7'), gpace(p0 + 1))
        off0 = SL[SLOT[n]] - kb
        if not 0 <= off0 < 65536 - 32767:
            rebase(range(24, 36), off0); kb += off0; off0 = 0
        kw = dict(ab=f"RS{n}", bb=(f"WS{n+1}" if n != 5 else "RS7"))
        qkw = dict(ab=f"RS{n}", bb=(f"WS{n+1}" if n >= 6 else None))
        def step(t, ks):
            acc = R('v', B(TB[g][t]), 16); first = (dh == 0 and ks == 0)
            if t < 4:
                a = rd128(24 + ks, off0 + t * 8192, **kw)
                mf(acc, a, R('a', 32 * dh + 4 * ks, 4), first)
            else:
                a = rd128(32 + (ks & 3), off0 + (ks >> 2) * 512, **kw)
                b = rd128(36, 16384 + dh * 8192 + ks * 1024, **qkw)
                mf(acc, a, b, first)
        if n < 2:
            for ks in range(8):
                for t in range(5): step(t, ks)
            if dh and OPT['dump'] != 'S0':
                for t in (4, 0, 1, 2, 3): softmax(g, t)
        else:
            for t in (4, 0, 1, 2, 3):
                for ks in range(8): step(t, ks)
                if dh: softmax(g, t)
        if n == 1: dump('S0', [f"v{B(b)+q}" for b in TB[0] for q in range(16)])
    dump('P', [f"v{B(TB[g][t])+q}" for g in range(4) for t in (0, 2) for q in range(16)] + [f"v{vSP}", f"v{vSS}"])
    s.es(f"""
    v_lshrrev_b32 v16, 1, v47
    v_lshl_add_u32 v16, v16, 6, v46
    v_lshl_add_u32 v16, v43, 7, v16
    s_and_b32 {sT1}, {sW}, 1
    s_lshl_b32 {sT1}, {sT1}, 6
    s_lshl_b32 {sT0}, {sW}, 12
    s_add_u32 {sT0}, {sT0}, {sT1}
    v_xor_b32 v16, {sT0}, v16""")
    assert not OPT['vz'] or 'z' in OPT['x']
    for x in range(1, 8): s.e(f"v_xor_b32 v{16+x}, {(x>>1)*4096 + (x&1)*64}, v16")
    s.es(f"""s_and_b32 {sT2}, {sH}, {C-1}
    s_mul_i32 {sPP[0]}, {sT2}, {128 * (2 if C == 4 else 3)}
    s_add_u32 {sT0}, {sH}, 1
    s_and_b32 {sT0}, {sT0}, {C-1}
    s_sub_u32 {sT0}, {sT0}, {sT2}
    s_lshl_b32 {sT0}, {sT0}, 7
    s_add_u32 {sPRED}, s3, {sT0}
    s_mov_b32 {sCNT}, 0""")
    s.e(f"s_cmp_eq_u32 {sT2}, {C-1}\ns_cselect_b32 {sNF}, {1 if C == 4 else 4}, {2 if C == 4 else 3}")
    for i in range(1, 7): s.e(f"s_add_u32 {sPP[i]}, {sPP[i-1]}, 128\ns_cmp_eq_u32 {sPP[i]}, 896\ns_cselect_b32 {sPP[i]}, 0, {sPP[i]}")
    for i in range(7): s.e(f"s_lshl_b32 {sQ[i]}, {sPP[i]}, {TSH+1-7}")
    s.es(f"""
    s_mul_i32 {sT0}, {sW}, {64*896}
    v_lshrrev_b32 v42, 4, v0
    v_and_b32 v42, 1, v42
    v_lshlrev_b32 v42, 2, v42
    v_and_b32 v8, 7, v0
    v_xor_b32 v8, v8, v42
    v_lshlrev_b32 v8, 4, v8
    v_lshrrev_b32 v42, 3, v0
    v_mul_u32_u24 v42, 896, v42
    v_add3_u32 v8, v8, v42, {sT0}
    v_add_u32 v9, 6144, v8
    v_add_u32 v10, 12288, v8
    v_add_u32 v11, 18432, v8
    """)
    s.es(f"""
    v_mov_b32 v42, v{vSP}
    v_mov_b32 v43, v{vSS}
    v_permlane32_swap_b32 v42, v{vSP}
    v_permlane32_swap_b32 v43, v{vSS}
    v_add_f32 v{vSP}, v42, v{vSP}
    v_add_f32 v{vSS}, v43, v{vSS}
    v_subrev_u32 v42, {sLO}, v{vSP}
    v_mov_b32 v43, 0x7f800000
    v_cmp_le_u32 vcc, {sRNG}, v42
    v_cndmask_b32 v{vSS}, v{vSS}, v43, vcc
    v_rcp_f32 v{vSP}, v{vSP}
    v_lshlrev_b32 v6, 2, v0
    v_add_u32 v6, {S4}, v6
    s_lshl_b32 {sT0}, {sW}, 8
    v_add_u32 v35, {sT0}, v6
    """)
    s.ds(f"ds_write_b32 v35, v{vSS}", ab='WS13', bb='RS14')
    vS = [32, 33, 34]
    SEL = [24, 28]
    vZ, vFV, vPO, vWL, vST = 1, 40, 41, 35, 41
    p12 = s.nmf + 160
    s.es(f"""s_and_b32 {sT1}, {sW}, 1
    s_mul_i32 {sT0}, {sW}, 14
    s_add_u32 {sT0}, {sT0}, {sT1}
    s_lshl_b32 {sT0}, {sT0}, {TSH}
    v_add_u32 v{vS[0]}, {sT0}, v1
    v_xor_b32 v{vS[1]}, {TS}, v{vS[0]}
    s_lshr_b32 {sT0}, {sW}, 1
    s_mul_i32 {sT0}, {sT0}, 14
    s_add_u32 {sT0}, {sT0}, {sT1}
    s_add_u32 {sT0}, {sT0}, 56
    s_lshl_b32 {sT0}, {sT0}, {TSH}
    v_add_u32 v{vS[2]}, {sT0}, v1
    v_lshlrev_b32 v{vZ}, 23, v0
    v_bfe_u32 v42, v0, 3, 2
    v_bfe_u32 v43, v0, 1, 1
    v_lshl_add_u32 v42, v42, 1, v43
    v_lshrrev_b32 v43, 3, v0
    v_xor_b32 v43, v43, v0
    v_and_b32 v43, 4, v43
    v_lshl_add_u32 v42, v43, 1, v42
    v_and_b32 v44, 1, v0
    v_lshlrev_b32 v44, 4, v44
    v_mov_b32 v45, 0x3f80
    v_lshlrev_b32 v45, v44, v45""", dl=p12 + 10)
    for r in range(8):
        s.e(f"v_cmp_eq_u32 s[8:9], {r}, v42\ns_nop 1\nv_cndmask_b32 v{SEL[r >> 2] + (r & 3)}, 0, v45, s[8:9]", cost=12, dl=p12 + 20)

    OA = [[R('a', 16 * j, 16) for j in range(4)] + [R('a', 192, 16)], [R('v', B(b), 16) for b in (0, 11, 2, 7, 10)]]
    tmpc = [0]
    def oconv_a(abase, dst, inv):
        for q in range(8):
            t = 42 + 2 * (tmpc[0] % 3); tmpc[0] += 1
            s.es(f"""v_accvgpr_read_b32 v{t}, a{abase+2*q}
            v_accvgpr_read_b32 v{t+1}, a{abase+2*q+1}
            v_mul_f32 v{t}, v{t}, v{inv}
            v_mul_f32 v{t+1}, v{t+1}, v{inv}
            v_cvt_pk_bf16_f32 v{dst+q}, v{t}, v{t+1}""")
    def oconv_v(src, dst, inv):
        for q in range(16): s.e(f"v_mul_f32 v{src+q}, v{src+q}, v{inv}")
        if dst is not None:
            for q in range(8): s.e(f"v_cvt_pk_bf16_f32 v{dst+q}, v{src+2*q}, v{src+2*q+1}")
    vb = 65536
    SP = [int(x) for x in OPT['sp'].split(',')]
    for n in range(8, 16):
        p0 = s.nmf
        dh, g = (n - 8) >> 2, (n - 8) & 3
        RB(f"RS{n}")
        if n != 11: WB(f"WS{n}", p0)
        if n == 8:
            stage_write(9, 2, 'b', 'RS7', p0)
            issue(dma_tile(13, 'c', ab='WS8') + stage_load([(14, 5)]), gpace(p0 + 1))
        if n == 9: stage_write(10, 3, 'd', 'WS9', p0)
        if n == 10: stage_write(11, 4, 'b', 'WS10', p0)
        if n == 12:
            issue(dma_tile(15, 'b', ab='WS12'), pace(p0 + 1, OPT['p15'] / 10) if OPT['p15'] else gpace(p0 + 1))
            s.es(f"s_mov_b32 s16, s28\ns_mov_b32 s17, s29")
        if n == 13: stage_write(14, 5, 'd', 'RS12', p0)
        if n >= 13: issue(dma_tile(n + 3, SLOT[n + 3], ab=f"WS{n}"), gpace(p0 + 1, OPT['wop']) if OPT['wop'] else pace(p0 + OPT['wo0'], vp))
        SW = sum([stage_wo(19 + x, 2 + x) for x in range(4) if SP[x] == n and not OPT['dm']], [])
        if SW: issue(SW, pace(p0 + OPT['so'], OPT['spp']))
        if n == 14:
            for w_ in range(4): s.ds(f"ds_read_b32 v{44+w_}, v6 offset:{w_*256}", ab='RS14')
            s.es(f"""v_add_f32 v44, v44, v45
            v_add_f32 v46, v46, v47
            v_add_f32 v{vSS}, v44, v46
            v_subrev_u32 v44, {sLO}, v{vSS}""")
            s.add(Op('e', f"v_cmp_le_u32 vcc, {sRNG}, v44\ns_nop 1\ns_cbranch_vccnz L_slow\nL_checked:", cost=16, R=[f"v{vMP}", f"v{vMS}"], W=['#chk'], ab='RS14', bb='RS15'))
            s.e(f"v_rcp_f32 v{vSS}, v{vSS}")
            s.es(f"v_xor_b32 v6, 0x800, v37")
            oconv_a(192, B(1), vSS)
            for half in range(2):
                s.ds(f"ds_write_b128 v37, {R('v', B(1)+4*half, 4)} offset:{8192 + half*1024}", cost=OPT['wc'], ab='WS14', bb='RS16')
        off0 = SL[SLOT[n]] - vb
        if not 0 <= off0 <= 32768:
            nb = SL[SLOT[n]] & 0x10000
            rebase(range(12, 16), nb - vb); vb = nb; off0 = SL[SLOT[n]] - vb
        kw = dict(ab=f"RS{n}", bb=(f"WS{n+1}" if n not in (10, 15) else f"RS{n+2}"))
        pkw = dict(ab=f"RS{n}", bb=(f"WS{n+1}" if 12 <= n < 15 else None))
        for j in range(4):
            for ks in range(8):
                a = tr(12 + j, off0 + ks * 4096, 1024, **kw)
                mf(OA[dh][j], a, Pfrag(g, ks), g == 0 and ks == 0)
                if j == 0:
                    b = rd128(36, g * 8192 + ks * 1024, **pkw)
                    mf(OA[dh][4], a, b, g == 0 and ks == 0)
            if n == 15 and OPT['dump'] != 'O':
                if j == 0:
                    oconv_v(B(10), None, vSS)
                    pack_write(B(10), 16384, 'WS15', OPT['osb'])
                oconv_v(B((0, 11, 2, 7)[j]), B((0, 2)[j >> 1]) + 8 * (j & 1), vSP)
        if n == 12:
            for j in range(4): oconv_a(16 * j, B((12, 8)[j >> 1]) + 8 * (j & 1), vSP)
    dump('O', [f"a{r}" for r in range(64)] + [f"v{B(b)+q}" for b in (0, 11, 2, 7) for q in range(16)] + [f"a{r}" for r in range(192, 208)]
         + [f"v{B(10)+q}" for q in range(16)] + [f"v{vSP}", f"v{vSS}"])

    OB = [(1, 6, 3), (9, 4, 5), (10, 7, 11)]
    def Ofrag(dh, jj, half): return R('v', B(((12, 8), (0, 2))[dh][jj >> 1]) + 8 * (jj & 1) + 4 * half, 4)
    def Osh(dh, jj, half): return R('a', 192 + 16 * dh + 8 * jj + 4 * half, 4)
    QA = [37, 6]
    vPL, vLD, vLD2, vO1, vO2, vO3, vLE, vLE2 = 12, 13, 14, 15, 38, 39, 36, 37
    SELA, SELB = 48, 52
    SRD_R, SRD_O = "s[8:11]", "s[12:15]"
    lP, lG, lS, oP, oG, oS, sHH = "s24", "s25", "s26", "s27", "s44", "s56", "s39"
    p16 = s.nmf
    if not OPT['dm']: s.e(f"v_subrev_u32 v{vWL}, 65536, v7", early=p16 + 40)
    LA = [list(range(16, 24)), [2, 3, 4, 5, 7, 35, 46, 47] if OPT['dm'] else [2, 3, 4, 5, 8, 9, 10, 11]]
    assert not OPT['dm'] or OPT['rs'] >= 5
    for x in range(8): s.e(f"v_add_u32 v{LA[1][x]}, 65536, v{16+x}", early=p16 + 30, dl=p16 + 60)
    if OPT['de']:
        s.vm(f"buffer_load_dword a64, off, {SDB}, 0 sc1", cost=8, lat=0, early=p16 - OPT['de'], dl=p16 - OPT['de'] + 4)
        s.e(f"v_accvgpr_read_b32 v{vST}, a64", early=p16 + 12)
    else: s.vm(f"buffer_load_dword v{vST}, off, {SDB}, 0 sc1", cost=8, lat=0, early=p16 - 20, dl=p16 - 16)
    s.add(Op('e', f"v_readfirstlane_b32 {sV}, v{vST}\ns_nop 0\ns_cmp_lg_u32 {sV}, {sV if 'f' in OPT['x'] else sFAST}\ns_cbranch_scc1 L_decide\nL_decided:", cost=16,
             R=['#chk', sNF, 's28', 's29'], W=['#dec', sNF, 's28', 's29', sT0, 'v42', 'v43', 'v44'], early=p16 + 16, minage=24))
    def col(x): return f"""s_lshr_b32 {sT0}, {sHH}, {x+1}
        s_lshl_b32 {sT0}, {sT0}, {TSH}
        s_bfe_u32 {sT1}, {sHH}, {0x10000 + x}
        s_lshl_b32 {sT1}, {sT1}, 10
        s_add_u32 {sT0}, {sT0}, {sT1}
        s_and_b32 {sT1}, {sHH}, {(1 << x) - 1}
        s_lshl_b32 {sT1}, {sT1}, 8
        s_add_u32 {sT0}, {sT0}, {sT1}"""
    OWN = f"""s_mul_i32 {lG}, {sW}, {14*TS}
        {col(1)}
        s_add_u32 {lP}, {lG}, {sT0}
        {col(2)}
        s_add_u32 {lG}, {lG}, {sT0}
        s_add_u32 {lG}, {lG}, {12*TS}
        s_lshl_b32 {lS}, {sW}, {TSH+1}
        s_add_u32 {lS}, {lS}, {sT0}
        s_add_u32 {lS}, {lS}, {56*TS}
        s_and_b32 {sT1}, {sHH}, 1
        s_mul_i32 {oS}, {sT1}, {16*896}
        s_mul_i32 {oG}, {sW}, {32*896}
        s_add_u32 {oG}, {oG}, {oS}
        s_lshr_b32 {sT0}, {sHH}, 1
        s_lshl_b32 {sT1}, {sT0}, 5
        s_add_u32 {oP}, {oG}, {sT1}
        s_lshl_b32 {sT0}, {sT0}, 4
        s_add_u32 {oG}, {oG}, {sT0}
        s_add_u32 {oS}, {oS}, {sT0}
        s_lshl_b32 {sT1}, {sW}, 7
        s_add_u32 {oS}, {oS}, {sT1}
        s_add_u32 {oS}, {oS}, {128*896}"""
    def red_setup(p0):
        kw = dict(early=p0, dl=p0 + OPT['rsd'])
        s.e(f"s_mul_i32 {sT0}, {sB}, {PB}\ns_add_u32 s8, s4, {sT0}\ns_addc_u32 s9, s5, 0", **kw)
        s.e(f"s_mul_i32 {sT0}, {sB}, 143360\ns_add_u32 s12, s6, {sT0}\ns_addc_u32 s13, s7, 0", **kw)
        s.e(f"s_cmp_eq_u32 {sW}, 3\ns_cselect_b32 {sT1}, 0x40000000, 0\ns_cselect_b32 {sT2}, 0x2000000, 16", **kw)
        s.es(f"""s_mov_b32 s10, {(C-1)*REG + PB}
        s_mov_b32 s14, 143360
        v_and_b32 v42, 15, v0
        v_lshrrev_b32 v43, 4, v0
        v_lshrrev_b32 v44, 2, v0
        v_and_b32 v{vPL}, 3, v0
        v_lshlrev_b32 v{vPL}, 2, v{vPL}
        v_lshl_add_u32 v{vPL}, v44, 7, v{vPL}
        v_lshlrev_b32 v{vLD}, 4, v42
        v_lshl_add_u32 v{vLD}, v43, 11, v{vLD}
        v_add_u32 v{vLD2}, {sT1}, v{vLD}
        v_mul_u32_u24 v{vO1}, 896, v42
        v_and_b32 v44, 1, v43
        v_lshl_add_u32 v{vO2}, v44, 3, v{vO1}
        v_lshl_add_u32 v{vO1}, v43, 3, v{vO1}
        v_and_b32 v44, 32, v0
        v_lshl_add_u32 v{vO3}, v44, 25, v{vO2}
        v_mul_lo_u32 v44, v44, {sT2}
        v_add_u32 v{vO2}, v44, v{vO2}
        v_lshrrev_b32 v42, 1, v42
        v_and_b32 v44, 1, v0
        v_lshlrev_b32 v44, 4, v44
        v_mov_b32 v45, 0x3f80
        v_lshlrev_b32 v45, v44, v45
        s_mov_b32 {sHH}, {sH}""", **kw)
        if C == 2: s.es(f"v_add_u32 v{vLE}, 8192, v{vLD}\nv_add_u32 v{vLE2}, 8192, v{vLD2}", **kw)
        s.es(OWN, **kw)
        for r in range(8):
            s.e(f"v_cmp_eq_u32 s[98:99], {r}, v42\ns_nop 1\nv_cndmask_b32 v43, 0, v45, s[98:99]\nv_accvgpr_write_b32 a{SELA+r}, v43", cost=16, **kw)
    def owner(VL, VL2):
        M16 = "v_mfma_f32_16x16x32_bf16"
        k.vm = []
        cnt = [0]
        def loads(vos, so, offs):
            L = []
            for o in offs:
                for vo in vos:
                    r = 64 + 4 * cnt[0]; cnt[0] += 1
                    k.vmem(f"buffer_load_dwordx4 {R('a', r, 4)}, v{vo}, {SRD_R}, {so} offen offset:{o} sc1", ('r', r))
                    L.append(r)
            return L
        def mm(acc, L, sels, first):
            for i, r in enumerate(L):
                k.wait(vm=[('r', r)])
                e(f"{M16} {R('v', acc, 4)}, {R('a', sels[i * len(sels) // len(L)], 4)}, {R('a', r, 4)}, {'0' if first and i == 0 else R('v', acc, 4)}")
        def outst(acc, vo, so, off):
            e(f"v_cvt_pk_bf16_f32 v{acc}, v{acc}, v{acc+1}\nv_cvt_pk_bf16_f32 v{acc+1}, v{acc+2}, v{acc+3}")
            k.vmem(f"buffer_store_dwordx2 {R('v', acc, 2)}, v{vo}, {SRD_O}, {so} offen offset:{off}", 'o')
        L4 = loads(VL, lS, [0])
        e(f"s_add_u32 {lS}, {lS}, {8*TS}")
        L5 = loads(VL2, lS, [0])
        e(f"s_add_u32 {lS}, {lS}, {6*TS}")
        L4 += loads(VL, lS, [0])
        e(f"s_add_u32 {lS}, {lS}, {8*TS}")
        L5 += loads(VL2, lS, [0])
        L0 = loads(VL, lP, [0, 512])
        e(f"s_add_u32 {lP}, {lP}, {4*TS}")
        L1 = loads(VL, lP, [0, 512])
        e(f"s_add_u32 {lP}, {lP}, {4*TS}")
        L2 = loads(VL, lP, [0, 512])
        L3 = loads(VL, lG, [0])
        D = [24, 28, 40, 44, 48]
        n = len(VL)
        mm(D[4], L4[:n], (SELA,), True); mm(D[4], L5[:n], (SELB,), False); mm(D[4], L4[n:], (SELA,), False); mm(D[4], L5[n:], (SELB,), False)
        mm(D[0], L0, (SELA, SELB), True); mm(D[1], L1, (SELA, SELB), True)
        outst(D[4], vO2, oS, 0)
        mm(D[2], L2, (SELA, SELB), True)
        outst(D[0], vO1, oP, 0)
        mm(D[3], L3, (SELA,), True)
        outst(D[1], vO1, oP, 256); outst(D[2], vO1, oP, 512); outst(D[3], vO3, oG, 768)
    def red_tail():
        e(f"""v_mov_b32 v{vFV}, 7
        s_cmp_gt_u32 {sNF}, 7
        s_waitcnt vmcnt(0)
        s_cbranch_scc1 L_fall
        buffer_store_dword v{vFV}, v{vZ}, {SFL}, s3 offen""")
        stamp()
        e(f"""L_fp:
        buffer_load_dword v{vPO}, v{vPL}, {SFL}, 0 offen sc1
        s_add_u32 {sCNT}, {sCNT}, 1
        s_cmp_ge_u32 {sCNT}, {1 << OPT['spin']}
        s_waitcnt vmcnt(0)
        v_cmp_gt_u32 vcc, 7, v{vPO}
        s_cbranch_scc1 L_fgo
        s_nop 0
        s_cbranch_vccnz L_fp
        L_fgo:""")
        stamp()
        owner([vLD, vLE][:4 // C], [vLD2, vLE2][:4 // C])
    def red_cold():
        for st in range(NF0, 7):
            e(f"""L_sp{st}:
            s_cmp_lt_u32 {st}, {sNF}
            s_cbranch_scc1 L_go{st}
            v_mov_b32 v{vPO}, {st}
            s_waitcnt vmcnt(0)
            buffer_store_dword v{vPO}, v{vZ}, {SFL}, s3 offen
            L_sq{st}:
            buffer_load_dword v{vPO}, off, {SFL}, {sPRED} sc1
            s_add_u32 {sCNT}, {sCNT}, 1
            s_cmp_ge_u32 {sCNT}, {1 << OPT['spin']}
            s_waitcnt vmcnt(0)
            v_cmp_gt_i32 vcc, {sS}, v{vPO}
            s_cbranch_scc1 L_go{st}
            s_nop 0
            s_cbranch_vccnz L_sq{st}
            s_branch L_go{st}""")
        e(f"""L_codeend:
        L_decide:
        s_cmp_lt_i32 {sV}, 0
        s_cbranch_scc1 L_apart
        s_cmp_eq_u32 {sV}, {sFAST}
        s_cbranch_scc1 L_decided
        s_or_b32 {sT0}, {sV}, 0x80000000
        v_mov_b32 v42, {sT0}
        v_mov_b32 v43, {sV}
        v_lshlrev_b32 v44, 23, v0
        buffer_atomic_cmpswap v[42:43], v44, {SDB}, 0 offen sc0 sc1
        s_waitcnt vmcnt(0)
        v_readfirstlane_b32 {sT0}, v42
        s_cmp_eq_u32 {sT0}, {sV}
        s_mov_b32 {sV}, {sT0}
        s_cbranch_scc0 L_decide
        L_apart:
        s_and_b32 {sT0}, {sH}, {C-1}
        s_mul_i32 {sT0}, {sT0}, {REG}
        s_add_u32 s28, s28, {sT0}
        s_addc_u32 s29, s29, 0
        s_mov_b32 {sNF}, 99
        s_branch L_decided
        L_fall:
        s_barrier
        buffer_wbl2 sc1
        s_lshl_b32 {sT0}, {sW}, 29
        v_add_u32 v44, {sT0}, v{vZ}
        v_mov_b32 v42, 1
        s_lshl_b32 {sT0}, {sW}, 8
        v_lshlrev_b32 v43, 2, v0
        s_waitcnt vmcnt(0)
        buffer_atomic_add v42, v44, {SDB}, 0 offen offset:4 sc0 sc1
        v_add_u32 v43, {sT0}, v43
        v_mov_b32 v44, 0
        s_waitcnt vmcnt(0)
        ds_write_b32 v43, v42
        s_waitcnt lgkmcnt(0)
        s_barrier
        ds_read_b32 v42, v44
        s_mov_b32 {sHH}, 0
        s_waitcnt lgkmcnt(0)
        v_readfirstlane_b32 {sT0}, v42
        s_cmp_lg_u32 {sT0}, 15
        s_cbranch_scc1 L_exit
        buffer_inv sc1""")
        offs = [r * REG + j * 8192 for r in range(C) for j in range(4 // C)]
        for i, o in enumerate(offs): e(f"v_add_u32 v{52+i}, {o}, v{vLD}\nv_add_u32 v{56+i}, {o}, v{vLD2}")
        e("s_waitcnt vmcnt(0)\ns_barrier\nL_all:")
        e(OWN)
        owner(range(52, 56), range(56, 60))
        e(f"s_add_u32 {sHH}, {sHH}, 1\ns_cmp_lt_u32 {sHH}, 16\ns_cbranch_scc1 L_all\ns_endpgm")
    for st in range(7):
        n = 16 + st
        p0 = s.nmf
        RB(f"RS{n}")
        if st == 0 and OPT['osb'] == 'WS16': WB('WS16', p0)
        if 1 <= st <= 4 and 'w' not in OPT['x'] and not OPT['dm']: stage_write(n + 2, st + 1, SLOT[n + 2], f"RS{n}", p0 - OPT['w0'] + OPT['sw'], va=(7 if SL[SLOT[n + 2]] >= 65536 else vWL), wp=3)
        if st == OPT['rs']: red_setup(p0)
        kw = dict(ab=f"RS{n}", bb=(f"RS{n+2}" if st <= 2 else None))
        la = LA[SL[SLOT[n]] >> 16]; off0 = SL[SLOT[n]] & 0xffff
        ob = [B(x) for x in OB[st % 3]]
        cb = 24 * (st & 1)
        chain = st >= NF0
        need = p0 + 40 - OPT['ap']
        if chain:
            s.vm(f"buffer_load_dword v{vPO}, off, {SFL}, {sPRED} sc1", cost=8, R=['#dec'], lat=0, early=need - OPT['pl'], dl=need - OPT['pl'] + 1)
            s.e(f"s_cmp_ge_u32 {st}, {sNF}\ns_cselect_b32 s18, {PB}, 0\ns_sub_u32 {sS}, {st+1}, {sNF}")
            if OPT['nochk']: s.add(Op('e', f"v_cmp_gt_i32 vcc, {sS}, v{vPO}\ns_nop 1\nL_go{st}:", cost=12, W=['#go'], minage=OPT['ca'], dl=need - OPT['pl'] + OPT['ca']))
            else: s.add(Op('e', f"v_cmp_gt_i32 vcc, {sS}, v{vPO}\ns_nop 1\ns_cbranch_vccnz L_sp{st}\nL_go{st}:", cost=12,
                     R=[f"#is{st-1}{x}{h}" for x in range(3) for h in range(2)] + [f"#pub{st-2}"], W=['#go', f"v{vPO}", sCNT], minage=OPT['ca'], dl=need - OPT['pl'] + OPT['ca']))
            for x in (0, 2, 1):
                for half in range(2):
                    if 'l' in OPT['x']: continue
                    s.vm(f"buffer_load_dwordx4 {R('a', cb + 8*x + 4*half, 4)}, v{vS[x]}, {SCH}, {sQ[st]} offen offset:{half*1024} sc1", cost=OPT['clc'], R=['#go'], lat=OPT['cl'], chain='vm' if OPT['dm'] else None)
            if OPT['dm'] and st <= 4: issue(dma_tile(n + 2, SLOT[n + 2], ab=f"RS{n}"), pace(p0 + OPT['dmo'], OPT['dmp']), lat=0)
        def add(x):
            for half in range(2): mf(R('v', ob[x], 16), R('v', SEL[half], 4), R('a', cb + 8*x + 4*half, 4), False)
        def store(x):
            for q in range(8): s.e(f"v_cvt_pk_bf16_f32 v{ob[x]+q}, v{ob[x]+2*q}, v{ob[x]+2*q+1}", dl=s.nmf + OPT['cvd'])
            for half in range(2):
                if 's' in OPT['x']: continue
                o = s.vm(f"buffer_store_dwordx4 {R('v', ob[x]+4*half, 4)}, v{vS[x]}, {SWS}, {sQ[st]} offen offset:{half*1024}",
                         cost=OPT['stc'], R=['#dec'], W=[f"#st{st}{x}{half}", f"#is{st}{x}{half}"], dl=s.nmf + OPT['cvd'] + 1, lat=0)
                o.asyncw.add(f"#st{st}{x}{half}")
        order = [(t, d2) for d2 in range(2) for t in range(2)] if st == 0 else [(t, d2) for t in range(2) for d2 in range(2)]
        for t, d2 in order:
            for jj in range(4):
                for half in range(2):
                    first = d2 == 0 and jj == 0 and half == 0
                    if chain:
                        if s.nmf == need: add(0); store(0)
                        if s.nmf == need + 4: add(2); store(2)
                        if s.nmf == need + 8: add(1)
                    a = tr(la[2 * jj + t], off0 + d2 * 16384 + half * 2048, 512, **kw)
                    mf(R('v', ob[t], 16), a, Ofrag(d2, jj, half), first)
                    if t == 0 and jj < 2:
                        if st == 0: rd128(QA[jj], 8192 + d2 * 8192 + half * 1024, Osh(d2, jj, half), ab=(OPT['osb'] if d2 else 'RS16'))
                        mf(R('v', ob[2], 16), a, Osh(d2, jj, half), first)
                        if not chain and d2 and jj and half: store(2)
            if not chain and t == 0 and d2: store(0)
        if chain and s.nmf == need + 8: add(1)
        assert s.nmf == p0 + (46 if chain else 40)
        store(1)
        if st < 7 - NF0:
            s.e(f"v_mov_b32 v{vFV}, {st+1}")
            s.vm(f"buffer_store_dword v{vFV}, v{vZ}, {SFL}, s3 offen", cost=8, R=[f"#st{st}{x}{h}" for x in range(3) for h in range(2)],
                 W=[f"#pub{st}"], minage=OPT['pa'], dl=s.nmf + 4 + OPT['pa'])
    s.build()
    s.run(budget=OPT['bud'], maxlg=OPT['maxlg'], delay=OPT['delay'], dsage=OPT['dsage'], maxds=OPT['maxds'])
    stamp()
    red_tail()
    if OPT['ts']:
        k.wait(vm0=True)
        stamp()
        e(f"""s_add_u32 s8, s4, 0x0ff00000
        s_addc_u32 s9, s5, 0
        s_mov_b32 s10, 0x100000
        s_cmp_lg_u32 {sW}, 0
        s_cbranch_scc1 L_exit
        s_mov_b64 exec, 1
        s_lshl_b32 s3, s2, 8
        v_mov_b32 v1, s3
        v_mov_b32 v2, {nst[0]}
        v_mov_b32 v3, 0
        buffer_store_dwordx2 v[2:3], v1, s[8:11], 0 offen""")
        for j in range(nst[0]):
            e(f"v_mov_b32 v4, s{sTS+2*j}\nv_mov_b32 v5, s{sTS+1+2*j}\nbuffer_store_dwordx2 v[4:5], v1, s[8:11], 0 offen offset:{8+8*j}\ns_nop 1")
        e("s_waitcnt vmcnt(0)")
    e("L_exit:\ns_endpgm")
    red_cold()
    for h, (src, mx) in enumerate(hooks):
        e(f"L_fix{h}:\ns_nop 7\ns_nop 7\ns_cmp_eq_u32 {sPASS}, 2\ns_cbranch_scc1 L_sub{h}")
        for q in range(0, 16, 2): e(f"v_max3_f32 v{mx}, v{src+q}, v{src+q+1}, v{mx}")
        e(f"s_branch L_ret{h}\nL_sub{h}:")
        for q in range(16): e(f"v_sub_f32 v{src+q}, v{src+q}, v{mx}")
        e(f"s_branch L_ret{h}")
    e(f"""L_slow:
    s_cmp_eq_u32 {sPASS}, 2
    s_cbranch_scc1 L_checked
    s_nop 7
    s_nop 7
    s_waitcnt vmcnt(0) lgkmcnt(0)
    s_barrier
    s_mov_b64 vcc, -1
    s_cmp_eq_u32 {sPASS}, 1
    s_cbranch_scc1 L_slow2
    s_mov_b32 {sPASS}, 1
    s_mov_b32 {sRNG}, 0
    v_mov_b32 v{vMP}, 0xff800000
    v_mov_b32 v{vMS}, 0xff800000
    s_branch L_start
    L_slow2:
    s_mov_b32 {sPASS}, 2
    s_mov_b32 {sLO}, 0
    s_mov_b32 {sRNG}, -1
    v_mov_b32 v42, v{vMP}
    v_mov_b32 v43, v{vMS}
    s_nop 1
    v_permlane32_swap_b32 v42, v{vMP}
    v_permlane32_swap_b32 v43, v{vMS}
    v_lshlrev_b32 v44, 2, v0
    s_lshl_b32 {sT0}, {sW}, 8
    v_max_f32 v{vMP}, v42, v{vMP}
    v_max_f32 v{vMS}, v43, v{vMS}
    v_add_u32 v45, {sT0}, v44
    ds_write_b32 v45, v{vMS}
    s_waitcnt lgkmcnt(0)
    s_barrier
    ds_read_b32 v42, v44
    ds_read_b32 v43, v44 offset:256
    ds_read_b32 v45, v44 offset:512
    ds_read_b32 v46, v44 offset:768
    s_waitcnt lgkmcnt(0)
    v_max3_f32 v{vMS}, v42, v43, v45
    v_max_f32 v{vMS}, v{vMS}, v46
    s_barrier
    s_branch L_start""")
    txt, added = k.text()
    est = s.est
    per = [sum(est[i:i + 40]) for i in range(0, len(est), 40)]
    print(f"main: {len(k.L)} lines, nops {added}, forced {s.forced}, mfma {len(est)}, est {sum(est)}; per40: {per}", file=sys.stderr)
    if OPT['verbose']:
        print("use:", s.use, file=sys.stderr)
        print("bars:", {n: o.gap for n, o in s.bars.items()}, file=sys.stderr)
    return txt

if __name__ == "__main__":
    out = sys.argv[1]
    sys.argv = sys.argv[:2] + ([f"ts={OPT['ts']}"] if OPT['ts'] else []) + ([f"diag={OPT['diag']}"] if OPT['diag'] else [])
    import gen
    m = main_kernel()
    nm = "mha_main_kernel" if OPT['diag'] else "standalone__mha_block_cached__near_ridge_kernel"
    L = [(nm, 256, 256, 163840)]; KS = [(nm, m, 512, 256)]
    if OPT['dup'] == 1: L.insert(0, L[0])
    if OPT['dup'] == 2:
        L.insert(0, ("mha_copy_kernel", 256, 256, 163840)); KS.append(("mha_copy_kernel", m.replace("L_", "M_"), 512, 256))
    if OPT['diag']:
        L.append(("mha_diag_kernel", 1, 64, 0)); KS.append(("mha_diag_kernel", gen.diag_kernel(), 64, 64))
    write_file(out, HEADER, L, KS)
```

```python
import sys, math, struct
sys.path.insert(0, "work")
from asmlib import K, write_file
from sch import Sched, Op

OPT = dict(pq=0, pqm='', pw=0, pst=6, rm=0, rot=0, rotm=31, s2p=0, kwin=0, arr='L', ts=0, dump='', nt='nt', C=4, ap=8, pl=40, rs=2, pa=12, ca=12, cl=560, sp='13,14,15,15', so=26, sw=4, osb='RS16', nochk=0, rw=0, om='', fl=0, flm='sc1', vz=0, wop=0, de=0, dm=0, dmo=20, dmp=2, rsd=120, wo0=1, spp=2, p15=0, x='', stc=16, clc=12, cvd=3, bud=24, maxlg=14, delay=3, dsage=4, maxds=3,
           rb=9, wb=0, wage=6, dc=16, wc=16, lc=12,
           kpre=0, k0=0, kp=70, kp2=65, ksw=32, pair=1, tp=0, tpm='', stamps='RA3,RS0,RS8,RS16,RS22',
           w0=14, wp=2,
           dp=2, vp=3, verbose=0, fs=0, spin=20, lo=-20, hi=30, diag='', dup=0, cp=2, cpm='', cpf='RA3:RS1:242,RS3:RS8:16,RS10:RS16:46')
for a in sys.argv[2:]:
    kk, vv = a.split('=')
    assert kk in OPT, kk
    OPT[kk] = int(vv) if vv.lstrip('-').isdigit() else vv

C = OPT['C']; LC = C.bit_length() - 1
TSH = 15 - LC; TS = 1 << TSH
PB = 84 * TS
REG = 16 * PB
NF0 = 1 if C == 4 else 3
IIS, US, WSH = [(2048, 8192, 14), (8192, 32768, 11), (2048, 32768, 13), (16384, 2048, 12)][OPT['rm']]
HEADER = "".join(l for l in open("standalone__mha_block_cached__near_ridge.s.ref").read().splitlines(True)[:11])
MF = "v_mfma_f32_32x32x16_bf16"
def R(p, lo, n): return f"{p}[{lo}:{lo+n-1}]"
def f2u(x): return struct.unpack('<I', struct.pack('<f', x))[0]
SX, SK, SV, SWQ, SWO, SWS = "s[8:11]", "s[12:15]", "s[16:19]", "s[20:23]", "s[24:27]", "s[28:31]"
sW, sB, sH = "s32", "s33", "s34"
sT0, sT1, sT2 = "s36", "s37", "s38"
sC = "s39"
sWQO, sXO, sM8, sM1, sW16 = "s40", "s41", "s42", "s43", "s44"
sPP = [f"s{47+i}" for i in range(7)]
sQ = ["s20", "s21", "s22", "s23", "s40", "s41", "s45"]
sNF, sPRED, sFAST, sV, sCNT = "s46", "s54", "s94", "s100", "s101"
SCH = "s[16:19]"
sD, sL, sS = "s55", "s56", "s35"
sPASS, sLO, sRNG = "s57", "s58", "s59"
sTS = 68
SFL, SDB = 's[60:63]', 's[64:67]'
FLOFF = C * REG
XB = 96 * 1024
S4 = 128 * 1024
SL = dict(a=32768, b=65536, c=0, d=98304)
def B(i): return 48 + 16 * i
vSP, vSS, vMP, vMS = 38, 39, 40, 41

def main_kernel():
    k = K(); e = k.e
    s = Sched(k)
    nst = [0]
    TSI = 's_memtime' if OPT['ts'] == 2 else 's_memrealtime'
    def stamp():
        if OPT['ts']:
            k.wait(lg0=True)
            e(f"{TSI} s[{sTS+2*nst[0]}:{sTS+1+2*nst[0]}]\ns_waitcnt lgkmcnt(0)")
            nst[0] += 1
    def dump(name, regs):
        if OPT['dump'] != name: return
        def fn(op):
            e("s_nop 7\ns_nop 7\ns_waitcnt vmcnt(0) lgkmcnt(0)")
            e(f"s_mul_i32 {sT0}, {sB}, 64\ns_lshl_b32 {sT1}, {sH}, 2\ns_add_u32 {sT0}, {sT0}, {sT1}\ns_add_u32 {sT0}, {sT0}, {sW}\ns_lshl_b32 {sT0}, {sT0}, 17")
            e("s_add_u32 s8, s4, 0x4000000\ns_addc_u32 s9, s5, 0\ns_mov_b32 s10, 0x8000000\ns_mov_b32 s11, 0x00020000")
            e("v_lshlrev_b32 v0, 2, v0")
            for i, r in enumerate(regs):
                e(f"buffer_store_dword {r}, v0, s[8:11], {sT0} offen\ns_add_u32 {sT0}, {sT0}, 256")
                if i % 32 == 31: e("s_waitcnt vmcnt(0)")
            e("s_waitcnt vmcnt(0)\ns_branch L_exit")
        s.add(Op('e', 's_nop 0', R=regs, W=regs, fn=fn, dl=s.nmf))

    if OPT['ts']:
        e(f"{TSI} s[{sTS}:{sTS+1}]"); nst[0] = 1
    e(f"""
    s_cmp_ge_u32 s2, 256
    s_cbranch_scc1 L_exit
    v_lshrrev_b32 v1, 6, v0
    v_and_b32 v0, 63, v0
    s_mov_b32 {sPASS}, 0
    v_readfirstlane_b32 {sW}, v1
    s_mov_b64 vcc, 0
    s_mov_b32 {sLO}, 0x{(127 + OPT['lo']) << 23:08x}
    s_mov_b32 {sRNG}, 0x{(OPT['hi'] - OPT['lo']) << 23:08x}
    L_start:
    s_load_dwordx2 s[8:9], s[0:1], 0
    s_load_dwordx2 s[20:21], s[0:1], 24
    s_load_dwordx2 s[12:13], s[0:1], 8
    s_load_dwordx2 s[16:17], s[0:1], 16
    s_load_dwordx2 s[24:25], s[0:1], 32
    s_load_dwordx2 s[4:5], s[0:1], 56
    s_load_dwordx2 s[6:7], s[0:1], 40
    s_load_dwordx2 s[64:65], s[0:1], 48
    s_and_b32 {sT0}, s2, 7
    s_lshr_b32 {sT1}, s2, 3
    """)
    arr = OPT['arr']
    if arr == 'N':
        e(f"""s_lshr_b32 {sB}, {sT0}, 1
        s_lshl_b32 {sB}, {sB}, 2
        s_lshr_b32 {sT2}, {sT1}, 3
        s_add_u32 {sB}, {sB}, {sT2}
        s_and_b32 {sH}, {sT0}, 1
        s_lshl_b32 {sH}, {sH}, 3
        s_and_b32 {sT2}, {sT1}, 7
        s_add_u32 {sH}, {sH}, {sT2}""")
    elif arr == 'L':
        e(f"""s_lshl_b32 {sB}, {sT0}, 1
        s_lshr_b32 {sT2}, {sT1}, 4
        s_add_u32 {sB}, {sB}, {sT2}
        s_and_b32 {sH}, {sT1}, 15""")
    elif arr == 'M':
        e(f"""s_lshr_b32 {sB}, {sT0}, 2
        s_lshl_b32 {sB}, {sB}, 3
        s_lshr_b32 {sT2}, {sT1}, 2
        s_add_u32 {sB}, {sB}, {sT2}
        s_and_b32 {sH}, {sT0}, 3
        s_lshl_b32 {sH}, {sH}, 2
        s_and_b32 {sT2}, {sT1}, 3
        s_add_u32 {sH}, {sH}, {sT2}""")
    e(f"""
    s_mov_b32 s10, 143360
    s_mov_b32 s11, 0x00020000
    s_mov_b32 s23, 0x00020000
    s_lshl_b32 {sM8}, {sW}, 13
    s_lshl_b32 {sM1}, {sW}, 10
    s_lshl_b32 {sWQO}, {sW}, 17
    s_mul_i32 {sXO}, {sW}, 7168
    v_lshrrev_b32 v44, 5, v0                 ; hh
    v_and_b32 v45, 31, v0                    ; c
    v_lshlrev_b32 v1, 2, v44
    v_xor_b32 v1, v1, v45
    v_lshlrev_b32 v1, 4, v1
    v_lshl_add_u32 v2, v44, 13, v1
    v_xor_b32 v3, 0x80, v2
    v_add_u32 v3, 15360, v3
    v_add_u32 v4, 30720, v2
    v_add_u32 v5, 30720, v3
    s_and_b32 {sT2}, {sW}, 1
    s_lshl_b32 {sT0}, {sT2}, 2
    v_lshrrev_b32 v6, 4, v0
    v_xor_b32 v6, {sT0}, v6
    v_and_b32 v1, 7, v0
    v_xor_b32 v6, v6, v1
    v_lshlrev_b32 v6, 4, v6
    v_lshrrev_b32 v1, 3, v0
    v_mul_u32_u24 v1, 896, v1
    v_add_u32 v6, v6, v1                     ; x voff
    s_mul_i32 {sT0}, {sB}, 143360
    s_lshl_b32 {sT1}, {sH}, 9
    s_waitcnt lgkmcnt(0)
    s_add_u32 s8, s8, {sT0}
    s_addc_u32 s9, s9, 0
    s_add_u32 s20, s20, {sT1}
    s_addc_u32 s21, s21, 0
    s_sub_u32 s22, 3670016, {sT1}
    """)
    dc, lc = OPT['dc'], OPT['lc']
    def vmop(text, **kw):
        n = text.count('\n')
        return s.vm(text, cost=kw.pop('cost', dc) + 4 * n, chain=kw.pop('chain', 'vm'), **kw)
    def pace(e0, p):
        i = 0
        while True:
            x = e0 + int(i * p)
            yield dict(early=x, dl=x + 2)
            i += 1
    def dma_stage(i, pc=None, **kw):
        L = []
        slot = (i % 3) * 32768; xs = XB + (i % 3) * 20480
        for u in range(2):
            for ii in range(4):
                t = f"s_add_u32 m0, {sM8}, {slot + u*4096}\ns_add_u32 {sD}, {sWQO}, {(i << 19) + u*65536}\n" if ii == 0 else ""
                L.append(t + f"buffer_load_dwordx4 v{2+ii}, {SWQ}, {sD} offen offset:{ii*1024} lds")
        X = []
        for u in range(5):
            X.append(f"s_add_u32 m0, {sM1}, {xs + u*4096}\ns_add_u32 {sD}, {sXO}, {i*128 + u*4*7168}\nbuffer_load_dwordx4 v6, {SX}, {sD} offen lds")
        return [(t, dict(bb=f"RA{i}", **kw)) for t in L + X]
    def dma_tile(n, slot, **kw):
        L = []
        for u in range(2):
            for ii in range(4):
                if n < 16:
                    i, dh = (n >> 1, n & 1) if n < 8 else ((n - 8) & 3, (n - 8) >> 2)
                    if n >= 8 and OPT['vz']: dh = 0
                    so = f"{sW16}, {i*65536 + dh*256 + u*US}" if n < 8 or 'c' not in OPT['x'] else f"{sM8}, {(n-8)*32768 + u*4096}"; vo = (8 if n < 8 else 2) + ii; srd = SK if n < 8 else SV; m = OPT['nt']
                else:
                    so = f"{sPP[n-16]}, {32*u*896}"; vo = 8 + ii; srd = SWO; m = ''
                t = f"s_add_u32 m0, {sM8}, {SL[slot] + u*4096}\n{'s_xor_b32' if n < 16 else 's_add_u32'} {sD}, {so}\n" if ii == 0 else ""
                L.append(t + f"buffer_load_dwordx4 v{vo}, {srd}, {sD} offen offset:{ii*1024} {m} lds")
        return [(t, dict(bb=f"RS{n}", **kw)) for t in L]
    def stage_load(tiles, **kw):
        L = []
        for u in range(2):
            for ii in range(4):
                for x, (n, r) in enumerate(tiles):
                    i, dh = (n >> 1, n & 1) if n < 8 else ((n - 8) & 3, (n - 8) >> 2)
                    if n >= 8 and (OPT['vz'] or 'c' in OPT['x']): dh = 0
                    t = f"s_xor_b32 {sL}, {sW16}, {i*65536 + u*US}\n" if ii == 0 and x == 0 else ""
                    if t and n >= 8 and 'c' in OPT['x']: t = f"s_add_u32 {sL}, {sM8}, {(n-8)*32768 + u*4096}\n"
                    vo = (8 if n < 8 else 2) + ii; srd = SK if n < 8 else SV
                    L.append(t + f"buffer_load_dwordx4 {R('a', 32*r + 16*u + 4*ii, 4)}, v{vo}, {srd}, {sL} offen offset:{ii*1024 + dh*256} {OPT['nt']}")
        return [(t, dict(cost=lc, **kw)) for t in L]
    def stage_wo(n, r, **kw):
        L = []
        for u in range(2):
            for ii in range(4):
                t = f"s_add_u32 {sS}, {sPP[n-16]}, {32*u*896}\n" if ii == 0 else ""
                L.append(t + f"buffer_load_dwordx4 {R('a', 32*r + 16*u + 4*ii, 4)}, v{8+ii}, {SWO}, {sS} offen offset:{ii*1024}")
        return [(t, dict(cost=lc, chain='vm2', **kw)) for t in L]
    def issue(L, pc=None, **kw):
        for t, a in L:
            a = dict(a); a.update(kw)
            if pc is not None: a.update(next(pc))
            vmop(t, **a)
    wbase = [32768]
    def stage_write(n, r, slot, ab, p0, va=7, wp=None):
        for u in range(2):
            for ii in range(4):
                off = SL[slot] - (wbase[0] if va == 7 else 0) + u * 4096 + ii * 1024
                assert 0 <= off < 65536
                x = p0 + OPT['w0'] + (wp or OPT['wp']) * (4 * u + ii)
                s.ds(f"ds_write_b128 v{va}, {R('a', 32*r + 16*u + 4*ii, 4)} offset:{off}", cost=OPT['wc'], ab=ab, bb=f"RS{n}", early=x, dl=x + 1)
    P = dict(pre=True)
    def pwq():
        st = OPT['pst']
        s.es(f"""s_lshl_b32 {sT0}, s2, 2
        s_add_u32 {sT0}, {sT0}, {sW}
        s_lshl_b32 {sT0}, {sT0}, {6+st}
        s_lshl_b32 {sT1}, {sH}, 9
        s_sub_u32 {sT0}, {sT0}, {sT1}
        v_lshlrev_b32 v248, {st}, v0
        s_lshl_b32 {sT1}, {sH}, 2
        s_add_u32 {sT1}, {sT1}, {sW}
        s_lshl_b32 {sT1}, {sT1}, {6+st}
        v_add_u32 v249, {sT1}, v248
        v_add_u32 v248, {sT0}, v248""", **P)
        vmop(f"buffer_load_dword v248, v248, {SWQ}, 0 offen {OPT['pqm']}", **P)
        if OPT['pq'] < 4: vmop(f"buffer_load_dword v249, v249, {SX}, 0 offen {OPT['pqm']}", **P)
    if OPT['pq'] & 3 == 1: pwq()
    issue(dma_stage(0), **P)
    if OPT['pq'] & 3 == 2: pwq()
    s.es(f"""
    s_lshl_b32 {sT0}, {sB}, 4
    s_add_u32 {sT0}, {sT0}, {sH}
    s_lshl_b32 {sT0}, {sT0}, 18""", **P)
    s.e(f"s_add_u32 s16, s16, {sT0}\ns_addc_u32 s17, s17, 0\ns_add_u32 s12, s12, {sT0}\ns_addc_u32 s13, s13, 0", **P)
    s.es(f"""
    s_mov_b32 s14, 262144
    s_mov_b32 s15, 0x00020000
    s_mov_b32 s18, 262144
    s_mov_b32 s19, 0x00020000
    s_lshl_b32 {sW16}, {sW}, {WSH}""", **P)
    if OPT['rot']:
        s.es(f"""s_lshr_b32 {sT0}, {sT0}, {18 + OPT['rot'] - 1}
        s_and_b32 {sT0}, {sT0}, {OPT['rotm']}
        s_lshl_b32 {sT0}, {sT0}, {13 if OPT['rotm'] > 3 else 16}
        s_xor_b32 {sW16}, {sW16}, {sT0}""", **P)
    issue(dma_stage(1), **P)
    if OPT['pq'] & 3 == 3: pwq()
    s.es(f"""
    v_bfe_u32 v1, v0, 4, 1
    v_and_b32 v8, 7, v0
    v_xor_b32 v8, v8, v1
    v_lshlrev_b32 v8, 4, v8
    v_lshl_add_u32 v8, v44, 7, v8
    v_bfe_u32 v1, v0, 3, 2
    v_lshl_add_u32 v8, v1, 9, v8
    v_xor_b32 v9, {1024+32}, v8
    v_xor_b32 v10, {2048+64}, v8
    v_xor_b32 v11, {3072+96}, v8""".replace(f"v_xor_b32 v9, {1024+32}, v8", f"v_xor_b32 v9, 32, v8\nv_add_u32 v9, {IIS-1024}, v9")
       .replace(f"v_xor_b32 v10, {2048+64}, v8", f"v_xor_b32 v10, 64, v8\nv_add_u32 v10, {2*(IIS-1024)}, v10")
       .replace(f"v_xor_b32 v11, {3072+96}, v8", f"v_xor_b32 v11, 0x60, v8\nv_add_u32 v11, {3*(IIS-1024)}, v11"), **P)
    KL = stage_load([(0, 0), (1, 1)]) + stage_load([(2, 2), (3, 3)]) + stage_load([(4, 4), (5, 5)]) + stage_load([(6, 6)])
    if not OPT['pair']: KL = sum([stage_load([(n, n)]) for n in range(7)], [])
    if OPT['tp']:
        s.es(f"v_and_b32 v241, 15, v0\nv_lshlrev_b32 v241, 12, v241\ns_lshl_b32 {sL}, {sW}, 16", **P)
        vmop(f"buffer_load_dword v240, v241, {SK}, {sL} offen {OPT['tpm']}", **P)
        if OPT['tp'] > 1: vmop(f"buffer_load_dword v242, v241, {SV}, {sL} offen {OPT['tpm']}", **P)
    def cpref(lab, tmp, st, n=1, **kw):
        a, b = f"v{tmp}", f"v{tmp+1}"
        for j in range(n):
            s.add(Op('e', f"s_lshl_b32 s98, {sW}, {6+st}\ns_add_u32 s98, s98, {lab}-L_pc+{j*(256<<st)}\nv_lshlrev_b32 {a}, {st}, v0\nv_add_u32 {a}, s98, {a}\nv_min_u32 {a}, s95, {a}", cost=20, **kw))
            s.add(Op('e', f"v_mov_b32 {b}, s97\nv_add_co_u32 {a}, s[98:99], s96, {a}\ns_nop 1\nv_addc_co_u32 {b}, s[98:99], 0, {b}, s[98:99]", W=['s98', 's99'], cost=20, **kw))
            s.add(Op('vm', f"global_load_dword {a}, v[{tmp}:{tmp+1}], off {OPT['cpm']}", cost=16, **kw))
    if OPT['cp']:
        s.e(f"s_getpc_b64 s[96:97]\nL_pc:\ns_mov_b32 s95, L_codeend-L_pc-4", **P)
        if OPT['cp'] == 1:
            cpref('L_pc', 242, 7, 1, **P); cpref('L_pc+32768', 244, 7, 1, **P)
        else: cpref('L_pc', 242, 6, 1, **P)
    s.e(f"s_lshl_b32 {sT0}, {sB}, 11\ns_add_u32 {sT0}, {sT0}, {FLOFF}\ns_add_u32 s60, s4, {sT0}\ns_addc_u32 s61, s5, 0", **P)
    s.e(f"s_lshl_b32 {sT0}, {sB}, 4\ns_add_u32 s64, s64, {sT0}\ns_addc_u32 s65, s65, 0", **P)
    s.es(f"""s_mov_b32 s62, 2048
    s_mov_b32 s63, 0x00020000
    s_mov_b32 s66, 16
    s_mov_b32 s67, 0x00020000
    s_lshl_b32 s3, {sH}, 7
    s_lshl_b32 {sT0}, {sW}, 2
    s_add_u32 s3, s3, {sT0}
    v_lshlrev_b32 v247, 23, v0
    v_mov_b32 v245, 0""", **P)
    vmop(f"buffer_store_dword v245, v247, {SFL}, s3 offen", bb='RA2', **P)
    if OPT['s2p']: issue(dma_stage(2), **P)
    issue(KL[:OPT['kpre']], **P)
    KL = KL[OPT['kpre']:]
    s.e(f"s_mul_i32 {sT0}, {sH}, 229376\ns_add_u32 s24, s24, {sT0}\ns_addc_u32 s25, s25, 0", **P)
    s.e(f"s_mul_i32 {sT0}, {sB}, {PB}\ns_lshr_b32 {sT1}, {sH}, {LC}\ns_lshl_b32 {sT1}, {sT1}, 11\ns_add_u32 {sT0}, {sT0}, {sT1}\ns_add_u32 s28, s4, {sT0}\ns_addc_u32 s29, s5, 0", **P)
    s.es(f"""
    s_mov_b32 s26, 229376
    s_mov_b32 s27, 0x00020000
    s_mov_b32 s30, {PB}
    s_mov_b32 s31, 0x00020000
    s_mov_b32 {sC}, 0x{f2u(math.log2(math.e)/16):08x}
    """, **P)
    s.es(f"""
    v_bfe_u32 v47, v0, 2, 2
    v_lshl_add_u32 v43, v44, 3, v47
    v_bfe_u32 v1, v0, 4, 1
    v_lshlrev_b32 v46, 5, v1
    v_and_b32 v1, 1, v0
    v_lshl_add_u32 v46, v1, 4, v46
    v_bfe_u32 v1, v0, 1, 1
    v_lshl_add_u32 v46, v1, 3, v46
    v_lshl_add_u32 v1, v47, 6, v46
    s_lshl_b32 {sT0}, {sW}, 6
    v_lshl_add_u32 v12, v43, 9, v1
    v_xor_b32 v12, {sT0}, v12
    v_xor_b32 v13, 64, v12
    v_xor_b32 v14, 0x80, v12
    v_xor_b32 v15, 0xc0, v12
    v_bfe_u32 v1, v0, 1, 3
    v_xor_b32 v1, v1, v44
    v_lshlrev_b32 v1, 4, v1
    v_lshl_add_u32 v1, v45, 7, v1
    v_add_u32 v20, {XB + 128*128}, v1
    s_lshl_b32 {sT0}, {sW}, 12
    s_add_u32 {sT0}, {sT0}, {XB}
    v_add_u32 v16, {sT0}, v1
    v_xor_b32 v17, 32, v16
    v_xor_b32 v18, 64, v16
    v_xor_b32 v19, 0x60, v16
    v_xor_b32 v21, 32, v20
    v_xor_b32 v22, 64, v20
    v_xor_b32 v23, 0x60, v20
    """, **P)
    s.es(f"""
    v_and_b32 v42, 0x13, v0
    v_bfe_u32 v1, v0, 2, 1
    v_lshl_or_b32 v42, v1, 3, v42
    v_bfe_u32 v1, v0, 3, 1
    v_lshl_or_b32 v42, v1, 2, v42
    v_bfe_u32 v1, v42, 1, 3
    v_xor_b32 v1, v1, v44
    v_lshlrev_b32 v1, 4, v1
    v_and_b32 v24, 3, v42
    v_lshl_add_u32 v1, v24, 7, v1
    v_lshrrev_b32 v24, 2, v42
    v_lshl_add_u32 v1, v24, 10, v1
    s_add_u32 {sT0}, {sM8}, 32768
    v_add_u32 v32, {sT0}, v1
    v_xor_b32 v33, 32, v32
    v_xor_b32 v34, 64, v32
    v_xor_b32 v35, 0x60, v32
    s_lshr_b32 {sT1}, {sW}, 1
    s_lshl_b32 {sT1}, {sT1}, 9
    s_and_b32 {sT2}, {sW}, 1
    s_lshl_b32 {sT2}, {sT2}, 6
    s_add_u32 {sT1}, {sT1}, {sT2}
    s_add_u32 {sT1}, {sT1}, 32768
    v_xor_b32 v24, {sT1}, v1
    """, **P)
    for jj in range(4):
        for half in range(2):
            if jj or half: s.e(f"v_xor_b32 v{24+2*jj+half}, {(jj>>1)*512 + (jj&1)*64 + half*32}, v24", **P)
    s.es(f"""
    v_lshlrev_b32 v1, 4, v0
    v_add_u32 v7, {sT0}, v1
    v_add_u32 v36, {S4}, v1
    s_lshl_b32 {sT0}, {sW}, 11
    v_add_u32 v37, {sT0}, v36
    """, **P)
    s.es(f"""s_getreg_b32 {sT0}, hwreg(HW_REG_XCC_ID, 0, 3)
    s_mul_i32 {sT1}, {sT0}, {sT0}
    s_lshl_b32 {sT1}, {sT1}, 8
    s_add_u32 {sT0}, {sT0}, {sT1}
    s_lshl_b32 {sT0}, {sT0}, 8
    s_add_u32 {sT0}, {sT0}, 1
    s_lshl_b32 {sFAST}, {sT0}, 4
    s_lshl_b32 {sT1}, {sW}, 29
    v_add_u32 v244, {sT1}, v247""", dl=20)
    if OPT['fs']: s.e(f"s_add_u32 {sFAST}, {sFAST}, 1")
    s.e(f"s_cmp_eq_u32 {sPASS}, 0\ns_cselect_b32 {sT0}, {sT0}, 0", dl=20)
    s.e(f"v_mov_b32 v246, {sT0}", dl=20)

    ringc = [0]
    def ring():
        r = 224 + 4 * (ringc[0] % 8); ringc[0] += 1
        return r
    STAMPS = set(OPT['stamps'].split(','))
    CPF = dict(x.split(':', 1) for x in OPT['cpf'].split(',') if x)
    def RB(name):
        def fn():
            e(f"L_{name}:")
            if name in STAMPS: stamp()
        s.bar(name, fn=fn, early=s.nmf - OPT['rb'])
        if OPT['cp'] > 1 and name in CPF:
            lab, tmp = CPF[name].split(':')
            cpref('L_' + lab, int(tmp), 6, 1, early=s.nmf, dl=s.nmf + 4)
    def WB(name, p0):
        s.bar(name, early=p0 + OPT['wb'], lgage=OPT['wage'], dl=p0 + OPT['wb'] + 2)
    def rebase(regs, delta):
        for r in regs:
            s.e(f"v_add_u32 v{r}, {delta}, v{r}" if delta > 0 else f"v_subrev_u32 v{r}, {-delta}, v{r}")
    def tr(ar, off, d2, **kw):
        r = ring()
        s.rd(f"ds_read_b64_tr_b16 {R('a', r, 2)}, v{ar} offset:{off}", **kw)
        s.rd(f"ds_read_b64_tr_b16 {R('a', r+2, 2)}, v{ar} offset:{off+d2}", **kw)
        return R('a', r, 4)
    def rd128(ar, off, dst=None, **kw):
        if dst is None: dst = R('a', ring(), 4)
        s.rd(f"ds_read_b128 {dst}, v{ar} offset:{off}", **kw)
        return dst
    def mf(acc, a, b, first): s.mf(f"{MF} {acc}, {a}, {b}, {'0' if first else acc}")

    def qconv(src, j):
        for q in range(16): s.e(f"v_mul_f32 v{src+q}, {sC}, v{src+q}")
        for q in range(8): s.e(f"v_cvt_pk_bf16_f32 v{src+2*q}, v{src+2*q}, v{src+2*q+1}")
        for q in range(8): s.e(f"v_accvgpr_write_b32 a{8*j+q}, v{src+2*q}")
    def pack_write(src, off, ab, bb):
        for q in range(8): s.e(f"v_cvt_pk_bf16_f32 v{src+q}, v{src+2*q}, v{src+2*q+1}")
        for half in range(2):
            s.ds(f"ds_write_b128 v37, {R('v', src+4*half, 4)} offset:{off + half*1024}", cost=OPT['wc'], ab=ab, bb=bb)
    JORD = [0, 4, 1, 2, 3, 5, 6, 7]
    trb = 0
    gx = [float(OPT['k0']), 0]
    def gpace(e0, p=0):
        while True:
            gx[0] = max(gx[0], e0)
            x = int(gx[0]); gx[1] += 1
            gx[0] += (p or (OPT['kp'] if gx[1] + OPT['kpre'] < OPT['ksw'] else OPT['kp2'])) / 10
            yield dict(early=x, dl=x + 2)
    kpc = gpace(0)
    kq = [(t, dict(a, **next(kpc))) for t, a in KL]
    def merged(L, upto):
        M = list(L)
        while kq and kq[0][1]['early'] < upto:
            t, a = kq.pop(0)
            if L and OPT['kwin']:
                x = upto - 40 + OPT['kwin'] + (a['early'] - upto + 40) * (40 - OPT['kwin']) // 40
                a = dict(a, early=x, dl=x + 2)
            M.append((t, a))
        M.sort(key=lambda x: x[1]['early'])
        issue(M)
    for i in range(7):
        p0 = s.nmf
        slot = (i % 3) * 32768; xs = (i % 3) * 20480
        RB(f"RA{i}")
        if i >= 1: WB(f"WA{i}", p0)
        L = []
        if i <= 4 and not (i == 0 and OPT['s2p']):
            pc = pace(p0 + (1 if i else -1), OPT['dp'])
            L = [(t, dict(a, **next(pc))) for t, a in dma_stage(i + 2, ab=(f"WA{i}" if i else None))]
        merged(L, p0 + 40 if i < 6 else 10**9)
        if i == 2: s.vm(f"buffer_atomic_add v246, v244, {SDB}, 0 offen sc1", cost=8, ab='RA2', dl=p0 + 20)
        if i == 5: stage_write(0, 0, 'a', 'WA5', p0)
        if i == 6: stage_write(1, 1, 'b', 'WA6', p0 - OPT['w0'] + 2)
        want = slot & 0x10000
        if want != trb: rebase(range(12, 16), want - trb); trb = want
        kw = dict(ab=f"RA{i}", bb=(f"WA{i+1}" if i < 6 else "WS0"))
        def step(j, T, newx):
            xb = B(10) + 8 * T
            if newx: rd128(16 + T, xs, R('v', xb, 4), **kw)
            a = tr(12 + (j & 3), slot - trb + (j >> 2) * 256 + T * 8192, 2048, **kw)
            mf(R('v', B(j), 16), a, R('v', xb, 4), i == 0 and T == 0)
            if j in (0, 4):
                if newx: rd128(20 + T, xs, R('v', xb + 4, 4), **kw)
                mf(R('v', B(8 + (j >> 2)), 16), a, R('v', xb + 4, 4), i == 0 and T == 0)
        if i < 6:
            for T in range(4):
                for j in JORD: step(j, T, j == 0)
        else:
            for j in range(8):
                for T in range(4): step(j, T, j == 0)
                if OPT['dump'] == 'Q': continue
                if j in (0, 4):
                    sh = B(8 + (j >> 2))
                    for q in range(16): s.e(f"v_mul_f32 v{sh+q}, {sC}, v{sh+q}")
                    pack_write(sh, 16384 + (j >> 2) * 8192, 'WA6', f"RS{j>>2}")
                qconv(B(j), j)
    dump('Q', [f"v{r}" for r in range(B(0), B(10))])
    s.es(f"""
    v_lshrrev_b32 v42, 4, v0
    v_lshlrev_b32 v3, 2, v42
    v_and_b32 v2, 15, v0
    v_xor_b32 v2, v2, v3
    v_lshlrev_b32 v2, 4, v2
    v_lshl_add_u32 v2, v42, {8 if 'c' in OPT['x'] else 9}, v2
    {f"s_lshr_b32 {sT0}, {sH}, {OPT['vz']-1}" if OPT['vz'] else ''}
    {f"s_and_b32 {sT0}, {sT0}, 1" if OPT['vz'] else ''}
    {f"v_lshl_add_u32 v2, {sT0}, 8, v2" if OPT['vz'] else ''}
    v_add_u32 v3, {0 if 'c' in OPT['x'] else IIS-1024}, v2
    v_add_u32 v4, {0 if 'c' in OPT['x'] else 2*(IIS-1024)}, v2
    v_add_u32 v5, {0 if 'c' in OPT['x'] else 3*(IIS-1024)}, v2
    v_lshl_add_u32 v45, v47, 6, v46
    v_lshl_add_u32 v45, v43, 8, v45
    s_lshl_b32 {sT0}, {sW}, 6
    s_add_u32 {sT0}, {sT0}, 65536
    v_xor_b32 v12, {sT0}, v45
    v_xor_b32 v13, 64, v12
    v_xor_b32 v14, 0x80, v12
    v_xor_b32 v15, 0xc0, v12
    """)

    SLOT = {0: 'a', 1: 'b', 2: 'a', 3: 'b', 4: 'a', 5: 'b', 6: 'a', 7: 'c', 8: 'd', 9: 'b', 10: 'd', 11: 'b', 12: 'a', 13: 'c', 14: 'd', 15: 'b',
            16: 'a', 17: 'c', 18: 'd', 19: 'b', 20: 'a', 21: 'c', 22: 'd'}
    TB = [[12, 11, 8, 10, 0], [1, 2, 3, 4, 5], [6, 7, 9, 11, 0], [5, 2, 4, 7, 10]]
    hooks = []
    firsts = {vSP: True, vSS: True}
    def softmax(g, t):
        src = B(TB[g][t]); regs = [f"v{src+q}" for q in range(16)]
        mx, sm = (vMP, vSP) if t < 4 else (vMS, vSS)
        h = len(hooks); hooks.append((src, mx))
        s.add(Op('e', f"s_cbranch_vccnz L_fix{h}\nL_ret{h}:", cost=8, R=regs + ['vcc', f"v{mx}"], W=regs + [f"v{mx}"]))
        for q in range(16):
            s.e(f"v_exp_f32 v{src+q}, v{src+q}")
        for q in range(16):
            if firsts[sm]:
                if q == 0: continue
                s.e(f"v_add_f32 v{sm}, v{src}, v{src+1}"); firsts[sm] = False
            else: s.e(f"v_add_f32 v{sm}, v{sm}, v{src+q}")
        if t < 4:
            dst = B(TB[g][t & 2]) + 8 * (t & 1)
            for q in range(8): s.e(f"v_cvt_pk_bf16_f32 v{dst+q}, v{src+2*q}, v{src+2*q+1}")
        else:
            pack_write(src, g * 8192, ['RS0', 'RS0', 'WS7', 'WS8'][g], f"RS{8+g}")
    def Pfrag(g, ks): return R('v', B(TB[g][(ks >> 1) & 2]) + 4 * (ks & 3), 4)
    kb = 32768
    vp = OPT['vp']
    for n in range(8):
        p0 = s.nmf
        g, dh = n >> 1, n & 1
        RB(f"RS{n}")
        if n != 6: WB(f"WS{n}", p0)
        if n == 0: issue(dma_tile(7, 'c', ab='WS0') + dma_tile(8, 'd', ab='WS0'), gpace(p0 + 1))
        if 1 <= n <= 5: stage_write(n + 1, n + 1, SLOT[n + 1], f"WS{n}", p0)
        if 1 <= n <= 3: issue(stage_load([(8 + n, n + 1)]), gpace(p0 + OPT['w0'] + 6))
        if n == 5: rebase([7], 32768); wbase[0] = 65536
        if OPT['pw'] and n == OPT['pw']:
            s.es(f"""s_lshl_b32 {sT0}, {sB}, 2
            s_add_u32 {sT0}, {sT0}, {sW}
            s_lshl_b32 {sT0}, {sT0}, {6+OPT['pst']}
            v_lshlrev_b32 v18, {OPT['pst']}, v0
            v_add_u32 v18, {sT0}, v18""", early=p0, dl=p0 + 10)
            s.vm(f"buffer_load_dword v18, v18, {SWO}, 0 offen {OPT['pqm']}", cost=16, early=p0, dl=p0 + 12)
        if n == 7 and OPT['vz']: s.es("\n".join(f"v_xor_b32 v{r}, 0x100, v{r}" for r in range(2, 6)))
        if n == 7: issue(dma_tile(12, 'a', ab='WS7'), gpace(p0 + 1))
        off0 = SL[SLOT[n]] - kb
        if not 0 <= off0 < 65536 - 32767:
            rebase(range(24, 36), off0); kb += off0; off0 = 0
        kw = dict(ab=f"RS{n}", bb=(f"WS{n+1}" if n != 5 else "RS7"))
        qkw = dict(ab=f"RS{n}", bb=(f"WS{n+1}" if n >= 6 else None))
        def step(t, ks):
            acc = R('v', B(TB[g][t]), 16); first = (dh == 0 and ks == 0)
            if t < 4:
                a = rd128(24 + ks, off0 + t * 8192, **kw)
                mf(acc, a, R('a', 32 * dh + 4 * ks, 4), first)
            else:
                a = rd128(32 + (ks & 3), off0 + (ks >> 2) * 512, **kw)
                b = rd128(36, 16384 + dh * 8192 + ks * 1024, **qkw)
                mf(acc, a, b, first)
        if n < 2:
            for ks in range(8):
                for t in range(5): step(t, ks)
            if dh and OPT['dump'] != 'S0':
                for t in (4, 0, 1, 2, 3): softmax(g, t)
        else:
            for t in (4, 0, 1, 2, 3):
                for ks in range(8): step(t, ks)
                if dh: softmax(g, t)
        if n == 1: dump('S0', [f"v{B(b)+q}" for b in TB[0] for q in range(16)])
    dump('P', [f"v{B(TB[g][t])+q}" for g in range(4) for t in (0, 2) for q in range(16)] + [f"v{vSP}", f"v{vSS}"])
    s.es(f"""
    v_lshrrev_b32 v16, 1, v47
    v_lshl_add_u32 v16, v16, 6, v46
    v_lshl_add_u32 v16, v43, 7, v16
    s_and_b32 {sT1}, {sW}, 1
    s_lshl_b32 {sT1}, {sT1}, 6
    s_lshl_b32 {sT0}, {sW}, 12
    s_add_u32 {sT0}, {sT0}, {sT1}
    v_xor_b32 v16, {sT0}, v16""")
    assert not OPT['vz'] or 'z' in OPT['x']
    for x in range(1, 8): s.e(f"v_xor_b32 v{16+x}, {(x>>1)*4096 + (x&1)*64}, v16")
    s.es(f"""s_and_b32 {sT2}, {sH}, {C-1}
    s_mul_i32 {sPP[0]}, {sT2}, {128 * (2 if C == 4 else 3)}
    s_add_u32 {sT0}, {sH}, 1
    s_and_b32 {sT0}, {sT0}, {C-1}
    s_sub_u32 {sT0}, {sT0}, {sT2}
    s_lshl_b32 {sT0}, {sT0}, 7
    s_add_u32 {sPRED}, s3, {sT0}
    s_mov_b32 {sCNT}, 0""")
    s.e(f"s_cmp_eq_u32 {sT2}, {C-1}\ns_cselect_b32 {sNF}, {1 if C == 4 else 4}, {2 if C == 4 else 3}")
    for i in range(1, 7): s.e(f"s_add_u32 {sPP[i]}, {sPP[i-1]}, 128\ns_cmp_eq_u32 {sPP[i]}, 896\ns_cselect_b32 {sPP[i]}, 0, {sPP[i]}")
    for i in range(7): s.e(f"s_lshl_b32 {sQ[i]}, {sPP[i]}, {TSH+1-7}")
    s.es(f"""
    s_mul_i32 {sT0}, {sW}, {64*896}
    v_lshrrev_b32 v42, 4, v0
    v_and_b32 v42, 1, v42
    v_lshlrev_b32 v42, 2, v42
    v_and_b32 v8, 7, v0
    v_xor_b32 v8, v8, v42
    v_lshlrev_b32 v8, 4, v8
    v_lshrrev_b32 v42, 3, v0
    v_mul_u32_u24 v42, 896, v42
    v_add3_u32 v8, v8, v42, {sT0}
    v_add_u32 v9, 6144, v8
    v_add_u32 v10, 12288, v8
    v_add_u32 v11, 18432, v8
    """)
    s.es(f"""
    v_mov_b32 v42, v{vSP}
    v_mov_b32 v43, v{vSS}
    v_permlane32_swap_b32 v42, v{vSP}
    v_permlane32_swap_b32 v43, v{vSS}
    v_add_f32 v{vSP}, v42, v{vSP}
    v_add_f32 v{vSS}, v43, v{vSS}
    v_subrev_u32 v42, {sLO}, v{vSP}
    v_mov_b32 v43, 0x7f800000
    v_cmp_le_u32 vcc, {sRNG}, v42
    v_cndmask_b32 v{vSS}, v{vSS}, v43, vcc
    v_rcp_f32 v{vSP}, v{vSP}
    v_lshlrev_b32 v6, 2, v0
    v_add_u32 v6, {S4}, v6
    s_lshl_b32 {sT0}, {sW}, 8
    v_add_u32 v35, {sT0}, v6
    """)
    s.ds(f"ds_write_b32 v35, v{vSS}", ab='WS13', bb='RS14')
    vS = [32, 33, 34]
    SEL = [24, 28]
    vZ, vFV, vPO, vWL, vST = 1, 40, 41, 35, 41
    p12 = s.nmf + 160
    s.es(f"""s_and_b32 {sT1}, {sW}, 1
    s_mul_i32 {sT0}, {sW}, 14
    s_add_u32 {sT0}, {sT0}, {sT1}
    s_lshl_b32 {sT0}, {sT0}, {TSH}
    v_add_u32 v{vS[0]}, {sT0}, v1
    v_xor_b32 v{vS[1]}, {TS}, v{vS[0]}
    s_lshr_b32 {sT0}, {sW}, 1
    s_mul_i32 {sT0}, {sT0}, 14
    s_add_u32 {sT0}, {sT0}, {sT1}
    s_add_u32 {sT0}, {sT0}, 56
    s_lshl_b32 {sT0}, {sT0}, {TSH}
    v_add_u32 v{vS[2]}, {sT0}, v1
    v_lshlrev_b32 v{vZ}, 23, v0
    v_bfe_u32 v42, v0, 3, 2
    v_bfe_u32 v43, v0, 1, 1
    v_lshl_add_u32 v42, v42, 1, v43
    v_lshrrev_b32 v43, 3, v0
    v_xor_b32 v43, v43, v0
    v_and_b32 v43, 4, v43
    v_lshl_add_u32 v42, v43, 1, v42
    v_and_b32 v44, 1, v0
    v_lshlrev_b32 v44, 4, v44
    v_mov_b32 v45, 0x3f80
    v_lshlrev_b32 v45, v44, v45""", dl=p12 + 10)
    for r in range(8):
        s.e(f"v_cmp_eq_u32 s[8:9], {r}, v42\ns_nop 1\nv_cndmask_b32 v{SEL[r >> 2] + (r & 3)}, 0, v45, s[8:9]", cost=12, dl=p12 + 20)

    OA = [[R('a', 16 * j, 16) for j in range(4)] + [R('a', 192, 16)], [R('v', B(b), 16) for b in (0, 11, 2, 7, 10)]]
    tmpc = [0]
    def oconv_a(abase, dst, inv):
        for q in range(8):
            t = 42 + 2 * (tmpc[0] % 3); tmpc[0] += 1
            s.es(f"""v_accvgpr_read_b32 v{t}, a{abase+2*q}
            v_accvgpr_read_b32 v{t+1}, a{abase+2*q+1}
            v_mul_f32 v{t}, v{t}, v{inv}
            v_mul_f32 v{t+1}, v{t+1}, v{inv}
            v_cvt_pk_bf16_f32 v{dst+q}, v{t}, v{t+1}""")
    def oconv_v(src, dst, inv):
        for q in range(16): s.e(f"v_mul_f32 v{src+q}, v{src+q}, v{inv}")
        if dst is not None:
            for q in range(8): s.e(f"v_cvt_pk_bf16_f32 v{dst+q}, v{src+2*q}, v{src+2*q+1}")
    vb = 65536
    SP = [int(x) for x in OPT['sp'].split(',')]
    for n in range(8, 16):
        p0 = s.nmf
        dh, g = (n - 8) >> 2, (n - 8) & 3
        RB(f"RS{n}")
        if n != 11: WB(f"WS{n}", p0)
        if n == 8:
            stage_write(9, 2, 'b', 'RS7', p0)
            issue(dma_tile(13, 'c', ab='WS8') + stage_load([(14, 5)]), gpace(p0 + 1))
        if n == 9: stage_write(10, 3, 'd', 'WS9', p0)
        if n == 10: stage_write(11, 4, 'b', 'WS10', p0)
        if n == 12:
            issue(dma_tile(15, 'b', ab='WS12'), pace(p0 + 1, OPT['p15'] / 10) if OPT['p15'] else gpace(p0 + 1))
            s.es(f"s_mov_b32 s16, s28\ns_mov_b32 s17, s29")
        if n == 13: stage_write(14, 5, 'd', 'RS12', p0)
        if n >= 13: issue(dma_tile(n + 3, SLOT[n + 3], ab=f"WS{n}"), gpace(p0 + 1, OPT['wop']) if OPT['wop'] else pace(p0 + OPT['wo0'], vp))
        SW = sum([stage_wo(19 + x, 2 + x) for x in range(4) if SP[x] == n and not OPT['dm']], [])
        if SW: issue(SW, pace(p0 + OPT['so'], OPT['spp']))
        if n == 14:
            for w_ in range(4): s.ds(f"ds_read_b32 v{44+w_}, v6 offset:{w_*256}", ab='RS14')
            s.es(f"""v_add_f32 v44, v44, v45
            v_add_f32 v46, v46, v47
            v_add_f32 v{vSS}, v44, v46
            v_subrev_u32 v44, {sLO}, v{vSS}""")
            s.add(Op('e', f"v_cmp_le_u32 vcc, {sRNG}, v44\ns_nop 1\ns_cbranch_vccnz L_slow\nL_checked:", cost=16, R=[f"v{vMP}", f"v{vMS}"], W=['#chk'], ab='RS14', bb='RS15'))
            s.e(f"v_rcp_f32 v{vSS}, v{vSS}")
            s.es(f"v_xor_b32 v6, 0x800, v37")
            oconv_a(192, B(1), vSS)
            for half in range(2):
                s.ds(f"ds_write_b128 v37, {R('v', B(1)+4*half, 4)} offset:{8192 + half*1024}", cost=OPT['wc'], ab='WS14', bb='RS16')
        off0 = SL[SLOT[n]] - vb
        if not 0 <= off0 <= 32768:
            nb = SL[SLOT[n]] & 0x10000
            rebase(range(12, 16), nb - vb); vb = nb; off0 = SL[SLOT[n]] - vb
        kw = dict(ab=f"RS{n}", bb=(f"WS{n+1}" if n not in (10, 15) else f"RS{n+2}"))
        pkw = dict(ab=f"RS{n}", bb=(f"WS{n+1}" if 12 <= n < 15 else None))
        for j in range(4):
            for ks in range(8):
                a = tr(12 + j, off0 + ks * 4096, 1024, **kw)
                mf(OA[dh][j], a, Pfrag(g, ks), g == 0 and ks == 0)
                if j == 0:
                    b = rd128(36, g * 8192 + ks * 1024, **pkw)
                    mf(OA[dh][4], a, b, g == 0 and ks == 0)
            if n == 15 and OPT['dump'] != 'O':
                if j == 0:
                    oconv_v(B(10), None, vSS)
                    pack_write(B(10), 16384, 'WS15', OPT['osb'])
                oconv_v(B((0, 11, 2, 7)[j]), B((0, 2)[j >> 1]) + 8 * (j & 1), vSP)
        if n == 12:
            for j in range(4): oconv_a(16 * j, B((12, 8)[j >> 1]) + 8 * (j & 1), vSP)
    dump('O', [f"a{r}" for r in range(64)] + [f"v{B(b)+q}" for b in (0, 11, 2, 7) for q in range(16)] + [f"a{r}" for r in range(192, 208)]
         + [f"v{B(10)+q}" for q in range(16)] + [f"v{vSP}", f"v{vSS}"])

    OB = [(1, 6, 3), (9, 4, 5), (10, 7, 11)]
    def Ofrag(dh, jj, half): return R('v', B(((12, 8), (0, 2))[dh][jj >> 1]) + 8 * (jj & 1) + 4 * half, 4)
    def Osh(dh, jj, half): return R('a', 192 + 16 * dh + 8 * jj + 4 * half, 4)
    QA = [37, 6]
    vPL, vLD, vLD2, vO1, vO2, vO3, vLE, vLE2 = 12, 13, 14, 15, 38, 39, 36, 37
    SELA, SELB = 48, 52
    SRD_R, SRD_O = "s[8:11]", "s[12:15]"
    lP, lG, lS, oP, oG, oS, sHH = "s24", "s25", "s26", "s27", "s44", "s56", "s39"
    p16 = s.nmf
    if not OPT['dm']: s.e(f"v_subrev_u32 v{vWL}, 65536, v7", early=p16 + 40)
    LA = [list(range(16, 24)), [2, 3, 4, 5, 7, 35, 46, 47] if OPT['dm'] else [2, 3, 4, 5, 8, 9, 10, 11]]
    assert not OPT['dm'] or OPT['rs'] >= 5
    for x in range(8): s.e(f"v_add_u32 v{LA[1][x]}, 65536, v{16+x}", early=p16 + 30, dl=p16 + 60)
    if OPT['de']:
        s.vm(f"buffer_load_dword a64, off, {SDB}, 0 sc1", cost=8, lat=0, early=p16 - OPT['de'], dl=p16 - OPT['de'] + 4)
        s.e(f"v_accvgpr_read_b32 v{vST}, a64", early=p16 + 12)
    else: s.vm(f"buffer_load_dword v{vST}, off, {SDB}, 0 sc1", cost=8, lat=0, early=p16 - 20, dl=p16 - 16)
    s.add(Op('e', f"v_readfirstlane_b32 {sV}, v{vST}\ns_nop 0\ns_cmp_lg_u32 {sV}, {sV if 'f' in OPT['x'] else sFAST}\ns_cbranch_scc1 L_decide\nL_decided:", cost=16,
             R=['#chk', sNF, 's28', 's29'], W=['#dec', sNF, 's28', 's29', sT0, 'v42', 'v43', 'v44'], early=p16 + 16, minage=24))
    def col(x): return f"""s_lshr_b32 {sT0}, {sHH}, {x+1}
        s_lshl_b32 {sT0}, {sT0}, {TSH}
        s_bfe_u32 {sT1}, {sHH}, {0x10000 + x}
        s_lshl_b32 {sT1}, {sT1}, 10
        s_add_u32 {sT0}, {sT0}, {sT1}
        s_and_b32 {sT1}, {sHH}, {(1 << x) - 1}
        s_lshl_b32 {sT1}, {sT1}, 8
        s_add_u32 {sT0}, {sT0}, {sT1}"""
    OWN = f"""s_mul_i32 {lG}, {sW}, {14*TS}
        {col(1)}
        s_add_u32 {lP}, {lG}, {sT0}
        {col(2)}
        s_add_u32 {lG}, {lG}, {sT0}
        s_add_u32 {lG}, {lG}, {12*TS}
        s_lshl_b32 {lS}, {sW}, {TSH+1}
        s_add_u32 {lS}, {lS}, {sT0}
        s_add_u32 {lS}, {lS}, {56*TS}
        s_and_b32 {sT1}, {sHH}, 1
        s_mul_i32 {oS}, {sT1}, {16*896}
        s_mul_i32 {oG}, {sW}, {32*896}
        s_add_u32 {oG}, {oG}, {oS}
        s_lshr_b32 {sT0}, {sHH}, 1
        s_lshl_b32 {sT1}, {sT0}, 5
        s_add_u32 {oP}, {oG}, {sT1}
        s_lshl_b32 {sT0}, {sT0}, 4
        s_add_u32 {oG}, {oG}, {sT0}
        s_add_u32 {oS}, {oS}, {sT0}
        s_lshl_b32 {sT1}, {sW}, 7
        s_add_u32 {oS}, {oS}, {sT1}
        s_add_u32 {oS}, {oS}, {128*896}"""
    def red_setup(p0):
        kw = dict(early=p0, dl=p0 + OPT['rsd'])
        s.e(f"s_mul_i32 {sT0}, {sB}, {PB}\ns_add_u32 s8, s4, {sT0}\ns_addc_u32 s9, s5, 0", **kw)
        s.e(f"s_mul_i32 {sT0}, {sB}, 143360\ns_add_u32 s12, s6, {sT0}\ns_addc_u32 s13, s7, 0", **kw)
        s.e(f"s_cmp_eq_u32 {sW}, 3\ns_cselect_b32 {sT1}, 0x40000000, 0\ns_cselect_b32 {sT2}, 0x2000000, 16", **kw)
        s.es(f"""s_mov_b32 s10, {(C-1)*REG + PB}
        s_mov_b32 s14, 143360
        v_and_b32 v42, 15, v0
        v_lshrrev_b32 v43, 4, v0
        v_lshrrev_b32 v44, 2, v0
        v_and_b32 v{vPL}, 3, v0
        v_lshlrev_b32 v{vPL}, 2, v{vPL}
        v_lshl_add_u32 v{vPL}, v44, 7, v{vPL}
        v_lshlrev_b32 v{vLD}, 4, v42
        v_lshl_add_u32 v{vLD}, v43, 11, v{vLD}
        v_add_u32 v{vLD2}, {sT1}, v{vLD}
        v_mul_u32_u24 v{vO1}, 896, v42
        v_and_b32 v44, 1, v43
        v_lshl_add_u32 v{vO2}, v44, 3, v{vO1}
        v_lshl_add_u32 v{vO1}, v43, 3, v{vO1}
        v_and_b32 v44, 32, v0
        v_lshl_add_u32 v{vO3}, v44, 25, v{vO2}
        v_mul_lo_u32 v44, v44, {sT2}
        v_add_u32 v{vO2}, v44, v{vO2}
        v_lshrrev_b32 v42, 1, v42
        v_and_b32 v44, 1, v0
        v_lshlrev_b32 v44, 4, v44
        v_mov_b32 v45, 0x3f80
        v_lshlrev_b32 v45, v44, v45
        s_mov_b32 {sHH}, {sH}""", **kw)
        if C == 2: s.es(f"v_add_u32 v{vLE}, 8192, v{vLD}\nv_add_u32 v{vLE2}, 8192, v{vLD2}", **kw)
        s.es(OWN, **kw)
        for r in range(8):
            s.e(f"v_cmp_eq_u32 s[98:99], {r}, v42\ns_nop 1\nv_cndmask_b32 v43, 0, v45, s[98:99]\nv_accvgpr_write_b32 a{SELA+r}, v43", cost=16, **kw)
    def owner(VL, VL2, fl=0):
        M16 = "v_mfma_f32_16x16x32_bf16"
        k.vm = []
        cnt = [0]
        def loads(vos, so, offs):
            L = []
            for o in offs:
                for vo in vos:
                    r = 64 + 4 * cnt[0]; cnt[0] += 1
                    k.vmem(f"buffer_load_dwordx4 {R('a', r, 4)}, v{vo}, {SRD_R}, {so} offen offset:{o} sc1", ('r', r))
                    L.append(r)
            return L
        def mm(acc, L, sels, first):
            for i, r in enumerate(L):
                k.wait(vm=[('r', r)])
                e(f"{M16} {R('v', acc, 4)}, {R('a', sels[i * len(sels) // len(L)], 4)}, {R('a', r, 4)}, {'0' if first and i == 0 else R('v', acc, 4)}")
        def outst(acc, vo, so, off):
            e(f"v_cvt_pk_bf16_f32 v{acc}, v{acc}, v{acc+1}\nv_cvt_pk_bf16_f32 v{acc+1}, v{acc+2}, v{acc+3}")
            k.vmem(f"buffer_store_dwordx2 {R('v', acc, 2)}, v{vo}, {SRD_O}, {so} offen offset:{off} {OPT['om'].replace('_', ' ')}", 'o')
        L4 = loads(VL, lS, [0])
        e(f"s_add_u32 {lS}, {lS}, {8*TS}")
        L5 = loads(VL2, lS, [0])
        e(f"s_add_u32 {lS}, {lS}, {6*TS}")
        L4 += loads(VL, lS, [0])
        e(f"s_add_u32 {lS}, {lS}, {8*TS}")
        L5 += loads(VL2, lS, [0])
        L0 = loads(VL, lP, [0, 512])
        e(f"s_add_u32 {lP}, {lP}, {4*TS}")
        L1 = loads(VL, lP, [0, 512])
        e(f"s_add_u32 {lP}, {lP}, {4*TS}")
        L2 = loads(VL, lP, [0, 512])
        L3 = loads(VL, lG, [0])
        if fl == 1:
            e(f"s_and_b32 {sT0}, {sH}, 3\ns_cselect_b32 s18, {PB}, 0")
            for st in (5, 6):
                for x in range(3):
                    for half in range(2):
                        k.vmem(f"buffer_store_dwordx4 {R('v', B(OB[st % 3][x])+4*half, 4)}, v{vS[x]}, {SCH if st == 5 else SWS}, {sQ[st]} offen offset:{half*1024} {OPT['flm'].replace('_', ' ')}", 'wb')
        if fl > 1:
            e(f"s_and_b32 {sT0}, s3, {fl}\ns_cbranch_scc1 L_nwb")
            k.vmem(f"buffer_wbl2 {OPT['flm']}", 'wb')
            e(f"s_branch L_nwb2\nL_nwb:\nbuffer_load_dword v{vPL}, off, {SFL}, 0\nL_nwb2:")
        D = [24, 28, 40, 44, 48]
        n = len(VL)
        mm(D[4], L4[:n], (SELA,), True); mm(D[4], L5[:n], (SELB,), False); mm(D[4], L4[n:], (SELA,), False); mm(D[4], L5[n:], (SELB,), False)
        mm(D[0], L0, (SELA, SELB), True); mm(D[1], L1, (SELA, SELB), True)
        outst(D[4], vO2, oS, 0)
        mm(D[2], L2, (SELA, SELB), True)
        outst(D[0], vO1, oP, 0)
        mm(D[3], L3, (SELA,), True)
        outst(D[1], vO1, oP, 256); outst(D[2], vO1, oP, 512); outst(D[3], vO3, oG, 768)
    def red_tail():
        e(f"""v_mov_b32 v{vFV}, 7
        s_cmp_gt_u32 {sNF}, 7
        s_waitcnt vmcnt(0)
        s_cbranch_scc1 L_fall
        buffer_store_dword v{vFV}, v{vZ}, {SFL}, s3 offen""")
        stamp()
        e(f"""L_fp:
        buffer_load_dword v{vPO}, v{vPL}, {SFL}, 0 offen sc1
        s_add_u32 {sCNT}, {sCNT}, 1
        s_cmp_ge_u32 {sCNT}, {1 << OPT['spin']}
        s_waitcnt vmcnt(0)
        v_cmp_gt_u32 vcc, 7, v{vPO}
        s_cbranch_scc1 L_fgo
        s_nop 0
        s_cbranch_vccnz L_fp
        L_fgo:""")
        stamp()
        owner([vLD, vLE][:4 // C], [vLD2, vLE2][:4 // C], OPT['fl'])
    def red_cold():
        for st in range(NF0, 7):
            e(f"""L_sp{st}:
            s_cmp_lt_u32 {st}, {sNF}
            s_cbranch_scc1 L_go{st}
            v_mov_b32 v{vPO}, {st}
            s_waitcnt vmcnt(0)
            buffer_store_dword v{vPO}, v{vZ}, {SFL}, s3 offen
            L_sq{st}:
            buffer_load_dword v{vPO}, off, {SFL}, {sPRED} sc1
            s_add_u32 {sCNT}, {sCNT}, 1
            s_cmp_ge_u32 {sCNT}, {1 << OPT['spin']}
            s_waitcnt vmcnt(0)
            v_cmp_gt_i32 vcc, {sS}, v{vPO}
            s_cbranch_scc1 L_go{st}
            s_nop 0
            s_cbranch_vccnz L_sq{st}
            s_branch L_go{st}""")
        e(f"""L_codeend:
        L_decide:
        s_cmp_lt_i32 {sV}, 0
        s_cbranch_scc1 L_apart
        s_cmp_eq_u32 {sV}, {sFAST}
        s_cbranch_scc1 L_decided
        s_or_b32 {sT0}, {sV}, 0x80000000
        v_mov_b32 v42, {sT0}
        v_mov_b32 v43, {sV}
        v_lshlrev_b32 v44, 23, v0
        buffer_atomic_cmpswap v[42:43], v44, {SDB}, 0 offen sc0 sc1
        s_waitcnt vmcnt(0)
        v_readfirstlane_b32 {sT0}, v42
        s_cmp_eq_u32 {sT0}, {sV}
        s_mov_b32 {sV}, {sT0}
        s_cbranch_scc0 L_decide
        L_apart:
        s_and_b32 {sT0}, {sH}, {C-1}
        s_mul_i32 {sT0}, {sT0}, {REG}
        s_add_u32 s28, s28, {sT0}
        s_addc_u32 s29, s29, 0
        s_mov_b32 {sNF}, 99
        s_branch L_decided
        L_fall:
        s_barrier
        buffer_wbl2 sc1
        s_lshl_b32 {sT0}, {sW}, 29
        v_add_u32 v44, {sT0}, v{vZ}
        v_mov_b32 v42, 1
        s_lshl_b32 {sT0}, {sW}, 8
        v_lshlrev_b32 v43, 2, v0
        s_waitcnt vmcnt(0)
        buffer_atomic_add v42, v44, {SDB}, 0 offen offset:4 sc0 sc1
        v_add_u32 v43, {sT0}, v43
        v_mov_b32 v44, 0
        s_waitcnt vmcnt(0)
        ds_write_b32 v43, v42
        s_waitcnt lgkmcnt(0)
        s_barrier
        ds_read_b32 v42, v44
        s_mov_b32 {sHH}, 0
        s_waitcnt lgkmcnt(0)
        v_readfirstlane_b32 {sT0}, v42
        s_cmp_lg_u32 {sT0}, 15
        s_cbranch_scc1 L_exit
        buffer_inv sc1""")
        offs = [r * REG + j * 8192 for r in range(C) for j in range(4 // C)]
        for i, o in enumerate(offs): e(f"v_add_u32 v{52+i}, {o}, v{vLD}\nv_add_u32 v{56+i}, {o}, v{vLD2}")
        e("s_waitcnt vmcnt(0)\ns_barrier\nL_all:")
        e(OWN)
        owner(range(52, 56), range(56, 60))
        e(f"s_add_u32 {sHH}, {sHH}, 1\ns_cmp_lt_u32 {sHH}, 16\ns_cbranch_scc1 L_all\ns_endpgm")
    for st in range(7):
        n = 16 + st
        p0 = s.nmf
        RB(f"RS{n}")
        if st == 0 and OPT['osb'] == 'WS16': WB('WS16', p0)
        if 1 <= st <= 4 and 'w' not in OPT['x'] and not OPT['dm']: stage_write(n + 2, st + 1, SLOT[n + 2], f"RS{n}", p0 - OPT['w0'] + OPT['sw'], va=(7 if SL[SLOT[n + 2]] >= 65536 else vWL), wp=3)
        if st == OPT['rs']: red_setup(p0)
        kw = dict(ab=f"RS{n}", bb=(f"RS{n+2}" if st <= 2 else None))
        la = LA[SL[SLOT[n]] >> 16]; off0 = SL[SLOT[n]] & 0xffff
        ob = [B(x) for x in OB[st % 3]]
        cb = 24 * (st & 1)
        chain = st >= NF0
        need = p0 + 40 - OPT['ap']
        if chain:
            s.vm(f"buffer_load_dword v{vPO}, off, {SFL}, {sPRED} sc1", cost=8, R=['#dec'], lat=0, early=need - OPT['pl'], dl=need - OPT['pl'] + 1)
            s.e(f"s_cmp_ge_u32 {st}, {sNF}\ns_cselect_b32 s18, {PB}, 0\ns_sub_u32 {sS}, {st+1}, {sNF}")
            if OPT['nochk']: s.add(Op('e', f"v_cmp_gt_i32 vcc, {sS}, v{vPO}\ns_nop 1\nL_go{st}:", cost=12, W=['#go'], minage=OPT['ca'], dl=need - OPT['pl'] + OPT['ca']))
            else: s.add(Op('e', f"v_cmp_gt_i32 vcc, {sS}, v{vPO}\ns_nop 1\ns_cbranch_vccnz L_sp{st}\nL_go{st}:", cost=12,
                     R=[f"#is{st-1}{x}{h}" for x in range(3) for h in range(2)] + [f"#pub{st-2}"], W=['#go', f"v{vPO}", sCNT], minage=OPT['ca'], dl=need - OPT['pl'] + OPT['ca']))
            for x in (0, 2, 1):
                for half in range(2):
                    if 'l' in OPT['x']: continue
                    s.vm(f"buffer_load_dwordx4 {R('a', cb + 8*x + 4*half, 4)}, v{vS[x]}, {SCH}, {sQ[st]} offen offset:{half*1024} sc1", cost=OPT['clc'], R=['#go'], lat=OPT['cl'], chain='vm' if OPT['dm'] else None)
            if OPT['dm'] and st <= 4: issue(dma_tile(n + 2, SLOT[n + 2], ab=f"RS{n}"), pace(p0 + OPT['dmo'], OPT['dmp']), lat=0)
        def add(x):
            for half in range(2): mf(R('v', ob[x], 16), R('v', SEL[half], 4), R('a', cb + 8*x + 4*half, 4), False)
        def store(x):
            for q in range(8): s.e(f"v_cvt_pk_bf16_f32 v{ob[x]+q}, v{ob[x]+2*q}, v{ob[x]+2*q+1}", dl=s.nmf + OPT['cvd'])
            for half in range(2):
                if 's' in OPT['x']: continue
                o = s.vm(f"buffer_store_dwordx4 {R('v', ob[x]+4*half, 4)}, v{vS[x]}, {SWS}, {sQ[st]} offen offset:{half*1024}",
                         cost=OPT['stc'], R=['#dec'], W=[f"#st{st}{x}{half}", f"#is{st}{x}{half}"], dl=s.nmf + OPT['cvd'] + 1, lat=0)
                o.asyncw.add(f"#st{st}{x}{half}")
        order = [(t, d2) for d2 in range(2) for t in range(2)] if st == 0 else [(t, d2) for t in range(2) for d2 in range(2)]
        for t, d2 in order:
            for jj in range(4):
                for half in range(2):
                    first = d2 == 0 and jj == 0 and half == 0
                    if chain:
                        if s.nmf == need: add(0); store(0)
                        if s.nmf == need + 4: add(2); store(2)
                        if s.nmf == need + 8: add(1)
                    a = tr(la[2 * jj + t], off0 + d2 * 16384 + half * 2048, 512, **kw)
                    mf(R('v', ob[t], 16), a, Ofrag(d2, jj, half), first)
                    if t == 0 and jj < 2:
                        if st == 0: rd128(QA[jj], 8192 + d2 * 8192 + half * 1024, Osh(d2, jj, half), ab=(OPT['osb'] if d2 else 'RS16'))
                        mf(R('v', ob[2], 16), a, Osh(d2, jj, half), first)
                        if not chain and d2 and jj and half: store(2)
            if not chain and t == 0 and d2: store(0)
        if chain and s.nmf == need + 8: add(1)
        assert s.nmf == p0 + (46 if chain else 40)
        store(1)
        if st < 7 - NF0:
            s.e(f"v_mov_b32 v{vFV}, {st+1}")
            s.vm(f"buffer_store_dword v{vFV}, v{vZ}, {SFL}, s3 offen", cost=8, R=[f"#st{st}{x}{h}" for x in range(3) for h in range(2)],
                 W=[f"#pub{st}"], minage=OPT['pa'], dl=s.nmf + 4 + OPT['pa'])
    s.build()
    s.run(budget=OPT['bud'], maxlg=OPT['maxlg'], delay=OPT['delay'], dsage=OPT['dsage'], maxds=OPT['maxds'])
    stamp()
    red_tail()
    if OPT['ts']:
        k.wait(vm0=True)
        stamp()
        e(f"""s_add_u32 s8, s4, 0x0ff00000
        s_addc_u32 s9, s5, 0
        s_mov_b32 s10, 0x100000
        s_cmp_lg_u32 {sW}, 0
        s_cbranch_scc1 L_exit
        s_mov_b64 exec, 1
        s_lshl_b32 s3, s2, 8
        v_mov_b32 v1, s3
        v_mov_b32 v2, {nst[0]}
        v_mov_b32 v3, 0
        buffer_store_dwordx2 v[2:3], v1, s[8:11], 0 offen""")
        for j in range(nst[0]):
            e(f"v_mov_b32 v4, s{sTS+2*j}\nv_mov_b32 v5, s{sTS+1+2*j}\nbuffer_store_dwordx2 v[4:5], v1, s[8:11], 0 offen offset:{8+8*j}\ns_nop 1")
        e("s_waitcnt vmcnt(0)")
    e("L_exit:\ns_endpgm")
    red_cold()
    for h, (src, mx) in enumerate(hooks):
        e(f"L_fix{h}:\ns_nop 7\ns_nop 7\ns_cmp_eq_u32 {sPASS}, 2\ns_cbranch_scc1 L_sub{h}")
        for q in range(0, 16, 2): e(f"v_max3_f32 v{mx}, v{src+q}, v{src+q+1}, v{mx}")
        e(f"s_branch L_ret{h}\nL_sub{h}:")
        for q in range(16): e(f"v_sub_f32 v{src+q}, v{src+q}, v{mx}")
        e(f"s_branch L_ret{h}")
    e(f"""L_slow:
    s_cmp_eq_u32 {sPASS}, 2
    s_cbranch_scc1 L_checked
    s_nop 7
    s_nop 7
    s_waitcnt vmcnt(0) lgkmcnt(0)
    s_barrier
    s_mov_b64 vcc, -1
    s_cmp_eq_u32 {sPASS}, 1
    s_cbranch_scc1 L_slow2
    s_mov_b32 {sPASS}, 1
    s_mov_b32 {sRNG}, 0
    v_mov_b32 v{vMP}, 0xff800000
    v_mov_b32 v{vMS}, 0xff800000
    s_branch L_start
    L_slow2:
    s_mov_b32 {sPASS}, 2
    s_mov_b32 {sLO}, 0
    s_mov_b32 {sRNG}, -1
    v_mov_b32 v42, v{vMP}
    v_mov_b32 v43, v{vMS}
    s_nop 1
    v_permlane32_swap_b32 v42, v{vMP}
    v_permlane32_swap_b32 v43, v{vMS}
    v_lshlrev_b32 v44, 2, v0
    s_lshl_b32 {sT0}, {sW}, 8
    v_max_f32 v{vMP}, v42, v{vMP}
    v_max_f32 v{vMS}, v43, v{vMS}
    v_add_u32 v45, {sT0}, v44
    ds_write_b32 v45, v{vMS}
    s_waitcnt lgkmcnt(0)
    s_barrier
    ds_read_b32 v42, v44
    ds_read_b32 v43, v44 offset:256
    ds_read_b32 v45, v44 offset:512
    ds_read_b32 v46, v44 offset:768
    s_waitcnt lgkmcnt(0)
    v_max3_f32 v{vMS}, v42, v43, v45
    v_max_f32 v{vMS}, v{vMS}, v46
    s_barrier
    s_branch L_start""")
    txt, added = k.text()
    est = s.est
    per = [sum(est[i:i + 40]) for i in range(0, len(est), 40)]
    print(f"main: {len(k.L)} lines, nops {added}, forced {s.forced}, mfma {len(est)}, est {sum(est)}; per40: {per}", file=sys.stderr)
    if OPT['verbose']:
        print("use:", s.use, file=sys.stderr)
        print("bars:", {n: o.gap for n, o in s.bars.items()}, file=sys.stderr)
    return txt

if __name__ == "__main__":
    out = sys.argv[1]
    sys.argv = sys.argv[:2] + ([f"ts={OPT['ts']}"] if OPT['ts'] else []) + ([f"diag={OPT['diag']}"] if OPT['diag'] else [])
    import gen
    m = main_kernel()
    nm = "mha_main_kernel" if OPT['diag'] else "standalone__mha_block_cached__near_ridge_kernel"
    L = [(nm, 256, 256, 163840)]; KS = [(nm, m, 512, 256)]
    if OPT['dup'] == 1: L.insert(0, L[0])
    if OPT['dup'] == 2:
        L.insert(0, ("mha_copy_kernel", 256, 256, 163840)); KS.append(("mha_copy_kernel", m.replace("L_", "M_"), 512, 256))
    if OPT['diag']:
        L.append(("mha_diag_kernel", 1, 64, 0)); KS.append(("mha_diag_kernel", gen.diag_kernel(), 64, 64))
    write_file(out, HEADER, L, KS)
```

```python
import sys, math, struct
sys.path.insert(0, "work")
from asmlib import K, write_file
from sch import Sched, Op

OPT = dict(p2=0, p2o=0, pq=0, pqm='', pw=0, pst=6, rm=0, rot=0, rotm=31, s2p=0, kwin=0, arr='L', ts=0, dump='', nt='nt', C=4, ap=8, pl=40, rs=2, pa=12, ca=12, cl=560, sp='13,14,15,15', so=26, sw=4, osb='RS16', nochk=0, rw=0, om='', fl=0, flm='sc1', vz=0, wop=0, de=0, dm=0, dmo=20, dmp=2, rsd=120, wo0=1, spp=2, p15=0, x='', stc=16, clc=12, cvd=3, bud=24, maxlg=14, delay=3, dsage=4, maxds=3,
           rb=9, wb=0, wage=6, dc=16, wc=16, lc=12,
           kpre=0, k0=0, kp=70, kp2=65, ksw=32, pair=1, tp=0, tpm='', stamps='RA3,RS0,RS8,RS16,RS22',
           w0=14, wp=2,
           dp=2, vp=3, verbose=0, fs=0, spin=20, lo=-20, hi=30, diag='', dup=0, cp=2, cpm='', cpf='RA3:RS1:242,RS3:RS8:16,RS10:RS16:46')
for a in sys.argv[2:]:
    kk, vv = a.split('=')
    assert kk in OPT, kk
    OPT[kk] = int(vv) if vv.lstrip('-').isdigit() else vv

C = OPT['C']; LC = C.bit_length() - 1
TSH = 15 - LC; TS = 1 << TSH
PB = 84 * TS
REG = 16 * PB
NF0 = 1 if C == 4 else 3
IIS, US, WSH = [(2048, 8192, 14), (8192, 32768, 11), (2048, 32768, 13), (16384, 2048, 12)][OPT['rm']]
HEADER = "".join(l for l in open("standalone__mha_block_cached__near_ridge.s.ref").read().splitlines(True)[:11])
MF = "v_mfma_f32_32x32x16_bf16"
def R(p, lo, n): return f"{p}[{lo}:{lo+n-1}]"
def f2u(x): return struct.unpack('<I', struct.pack('<f', x))[0]
SX, SK, SV, SWQ, SWO, SWS = "s[8:11]", "s[12:15]", "s[16:19]", "s[20:23]", "s[24:27]", "s[28:31]"
sW, sB, sH = "s32", "s33", "s34"
sT0, sT1, sT2 = "s36", "s37", "s38"
sC = "s39"
sWQO, sXO, sM8, sM1, sW16 = "s40", "s41", "s42", "s43", "s44"
sPP = [f"s{47+i}" for i in range(7)]
sQ = ["s20", "s21", "s22", "s23", "s40", "s41", "s45"]
sNF, sPRED, sFAST, sV, sCNT = "s46", "s54", "s94", "s100", "s101"
SCH = "s[16:19]"
sD, sL, sS = "s55", "s56", "s35"
sPASS, sLO, sRNG = "s57", "s58", "s59"
sTS = 68
SFL, SDB = 's[60:63]', 's[64:67]'
FLOFF = C * REG
XB = 96 * 1024
S4 = 128 * 1024
SL = dict(a=32768, b=65536, c=0, d=98304)
def B(i): return 48 + 16 * i
vSP, vSS, vMP, vMS = 38, 39, 40, 41

def main_kernel():
    k = K(); e = k.e
    s = Sched(k)
    nst = [0]
    TSI = 's_memtime' if OPT['ts'] == 2 else 's_memrealtime'
    def stamp():
        if OPT['ts']:
            k.wait(lg0=True)
            e(f"{TSI} s[{sTS+2*nst[0]}:{sTS+1+2*nst[0]}]\ns_waitcnt lgkmcnt(0)")
            nst[0] += 1
    def dump(name, regs):
        if OPT['dump'] != name: return
        def fn(op):
            e("s_nop 7\ns_nop 7\ns_waitcnt vmcnt(0) lgkmcnt(0)")
            e(f"s_mul_i32 {sT0}, {sB}, 64\ns_lshl_b32 {sT1}, {sH}, 2\ns_add_u32 {sT0}, {sT0}, {sT1}\ns_add_u32 {sT0}, {sT0}, {sW}\ns_lshl_b32 {sT0}, {sT0}, 17")
            e("s_add_u32 s8, s4, 0x4000000\ns_addc_u32 s9, s5, 0\ns_mov_b32 s10, 0x8000000\ns_mov_b32 s11, 0x00020000")
            e("v_lshlrev_b32 v0, 2, v0")
            for i, r in enumerate(regs):
                e(f"buffer_store_dword {r}, v0, s[8:11], {sT0} offen\ns_add_u32 {sT0}, {sT0}, 256")
                if i % 32 == 31: e("s_waitcnt vmcnt(0)")
            e("s_waitcnt vmcnt(0)\ns_branch L_exit")
        s.add(Op('e', 's_nop 0', R=regs, W=regs, fn=fn, dl=s.nmf))

    if OPT['ts']:
        e(f"{TSI} s[{sTS}:{sTS+1}]"); nst[0] = 1
    e(f"""
    s_cmp_ge_u32 s2, 256
    s_cbranch_scc1 L_exit
    v_lshrrev_b32 v1, 6, v0
    v_and_b32 v0, 63, v0
    s_mov_b32 {sPASS}, 0
    v_readfirstlane_b32 {sW}, v1
    s_mov_b64 vcc, 0
    s_mov_b32 {sLO}, 0x{(127 + OPT['lo']) << 23:08x}
    s_mov_b32 {sRNG}, 0x{(OPT['hi'] - OPT['lo']) << 23:08x}
    L_start:
    s_load_dwordx2 s[8:9], s[0:1], 0
    s_load_dwordx2 s[20:21], s[0:1], 24
    s_load_dwordx2 s[12:13], s[0:1], 8
    s_load_dwordx2 s[16:17], s[0:1], 16
    s_load_dwordx2 s[24:25], s[0:1], 32
    s_load_dwordx2 s[4:5], s[0:1], 56
    s_load_dwordx2 s[6:7], s[0:1], 40
    s_load_dwordx2 s[64:65], s[0:1], 48
    s_and_b32 {sT0}, s2, 7
    s_lshr_b32 {sT1}, s2, 3
    """)
    arr = OPT['arr']
    if arr == 'N':
        e(f"""s_lshr_b32 {sB}, {sT0}, 1
        s_lshl_b32 {sB}, {sB}, 2
        s_lshr_b32 {sT2}, {sT1}, 3
        s_add_u32 {sB}, {sB}, {sT2}
        s_and_b32 {sH}, {sT0}, 1
        s_lshl_b32 {sH}, {sH}, 3
        s_and_b32 {sT2}, {sT1}, 7
        s_add_u32 {sH}, {sH}, {sT2}""")
    elif arr == 'L':
        e(f"""s_lshl_b32 {sB}, {sT0}, 1
        s_lshr_b32 {sT2}, {sT1}, 4
        s_add_u32 {sB}, {sB}, {sT2}
        s_and_b32 {sH}, {sT1}, 15""")
    elif arr == 'M':
        e(f"""s_lshr_b32 {sB}, {sT0}, 2
        s_lshl_b32 {sB}, {sB}, 3
        s_lshr_b32 {sT2}, {sT1}, 2
        s_add_u32 {sB}, {sB}, {sT2}
        s_and_b32 {sH}, {sT0}, 3
        s_lshl_b32 {sH}, {sH}, 2
        s_and_b32 {sT2}, {sT1}, 3
        s_add_u32 {sH}, {sH}, {sT2}""")
    e(f"""
    s_mov_b32 s10, 143360
    s_mov_b32 s11, 0x00020000
    s_mov_b32 s23, 0x00020000
    s_lshl_b32 {sM8}, {sW}, 13
    s_lshl_b32 {sM1}, {sW}, 10
    s_lshl_b32 {sWQO}, {sW}, 17
    s_mul_i32 {sXO}, {sW}, 7168
    v_lshrrev_b32 v44, 5, v0                 ; hh
    v_and_b32 v45, 31, v0                    ; c
    v_lshlrev_b32 v1, 2, v44
    v_xor_b32 v1, v1, v45
    v_lshlrev_b32 v1, 4, v1
    v_lshl_add_u32 v2, v44, 13, v1
    v_xor_b32 v3, 0x80, v2
    v_add_u32 v3, 15360, v3
    v_add_u32 v4, 30720, v2
    v_add_u32 v5, 30720, v3
    s_and_b32 {sT2}, {sW}, 1
    s_lshl_b32 {sT0}, {sT2}, 2
    v_lshrrev_b32 v6, 4, v0
    v_xor_b32 v6, {sT0}, v6
    v_and_b32 v1, 7, v0
    v_xor_b32 v6, v6, v1
    v_lshlrev_b32 v6, 4, v6
    v_lshrrev_b32 v1, 3, v0
    v_mul_u32_u24 v1, 896, v1
    v_add_u32 v6, v6, v1                     ; x voff
    s_mul_i32 {sT0}, {sB}, 143360
    s_lshl_b32 {sT1}, {sH}, 9
    s_waitcnt lgkmcnt(0)
    s_add_u32 s8, s8, {sT0}
    s_addc_u32 s9, s9, 0
    s_add_u32 s20, s20, {sT1}
    s_addc_u32 s21, s21, 0
    s_sub_u32 s22, 3670016, {sT1}
    """)
    dc, lc = OPT['dc'], OPT['lc']
    def vmop(text, **kw):
        n = text.count('\n')
        return s.vm(text, cost=kw.pop('cost', dc) + 4 * n, chain=kw.pop('chain', 'vm'), **kw)
    def pace(e0, p):
        i = 0
        while True:
            x = e0 + int(i * p)
            yield dict(early=x, dl=x + 2)
            i += 1
    def dma_stage(i, pc=None, **kw):
        L = []
        slot = (i % 3) * 32768; xs = XB + (i % 3) * 20480
        for u in range(2):
            for ii in range(4):
                t = f"s_add_u32 m0, {sM8}, {slot + u*4096}\ns_add_u32 {sD}, {sWQO}, {(i << 19) + u*65536}\n" if ii == 0 else ""
                L.append(t + f"buffer_load_dwordx4 v{2+ii}, {SWQ}, {sD} offen offset:{ii*1024} lds")
        X = []
        for u in range(5):
            X.append(f"s_add_u32 m0, {sM1}, {xs + u*4096}\ns_add_u32 {sD}, {sXO}, {i*128 + u*4*7168}\nbuffer_load_dwordx4 v6, {SX}, {sD} offen lds")
        return [(t, dict(bb=f"RA{i}", **kw)) for t in L + X]
    def dma_tile(n, slot, **kw):
        L = []
        for u in range(2):
            for ii in range(4):
                if n < 16:
                    i, dh = (n >> 1, n & 1) if n < 8 else ((n - 8) & 3, (n - 8) >> 2)
                    if n >= 8 and OPT['vz']: dh = 0
                    so = f"{sW16}, {i*65536 + dh*256 + u*US}" if n < 8 or 'c' not in OPT['x'] else f"{sM8}, {(n-8)*32768 + u*4096}"; vo = (8 if n < 8 else 2) + ii; srd = SK if n < 8 else SV; m = OPT['nt']
                else:
                    so = f"{sPP[n-16]}, {32*u*896}"; vo = 8 + ii; srd = SWO; m = ''
                t = f"s_add_u32 m0, {sM8}, {SL[slot] + u*4096}\n{'s_xor_b32' if n < 16 else 's_add_u32'} {sD}, {so}\n" if ii == 0 else ""
                L.append(t + f"buffer_load_dwordx4 v{vo}, {srd}, {sD} offen offset:{ii*1024} {m} lds")
        return [(t, dict(bb=f"RS{n}", **kw)) for t in L]
    def stage_load(tiles, **kw):
        L = []
        for u in range(2):
            for ii in range(4):
                for x, (n, r) in enumerate(tiles):
                    i, dh = (n >> 1, n & 1) if n < 8 else ((n - 8) & 3, (n - 8) >> 2)
                    if n >= 8 and (OPT['vz'] or 'c' in OPT['x']): dh = 0
                    t = f"s_xor_b32 {sL}, {sW16}, {i*65536 + u*US}\n" if ii == 0 and x == 0 else ""
                    if t and n >= 8 and 'c' in OPT['x']: t = f"s_add_u32 {sL}, {sM8}, {(n-8)*32768 + u*4096}\n"
                    vo = (8 if n < 8 else 2) + ii; srd = SK if n < 8 else SV
                    L.append(t + f"buffer_load_dwordx4 {R('a', 32*r + 16*u + 4*ii, 4)}, v{vo}, {srd}, {sL} offen offset:{ii*1024 + dh*256} {OPT['nt']}")
        return [(t, dict(cost=lc, **kw)) for t in L]
    def stage_wo(n, r, **kw):
        L = []
        for u in range(2):
            for ii in range(4):
                t = f"s_add_u32 {sS}, {sPP[n-16]}, {32*u*896}\n" if ii == 0 else ""
                L.append(t + f"buffer_load_dwordx4 {R('a', 32*r + 16*u + 4*ii, 4)}, v{8+ii}, {SWO}, {sS} offen offset:{ii*1024}")
        return [(t, dict(cost=lc, chain='vm2', **kw)) for t in L]
    def issue(L, pc=None, **kw):
        for t, a in L:
            a = dict(a); a.update(kw)
            if pc is not None: a.update(next(pc))
            vmop(t, **a)
    wbase = [32768]
    def stage_write(n, r, slot, ab, p0, va=7, wp=None):
        for u in range(2):
            for ii in range(4):
                off = SL[slot] - (wbase[0] if va == 7 else 0) + u * 4096 + ii * 1024
                assert 0 <= off < 65536
                x = p0 + OPT['w0'] + (wp or OPT['wp']) * (4 * u + ii)
                s.ds(f"ds_write_b128 v{va}, {R('a', 32*r + 16*u + 4*ii, 4)} offset:{off}", cost=OPT['wc'], ab=ab, bb=f"RS{n}", early=x, dl=x + 1)
    P = dict(pre=True)
    def pwq():
        st = OPT['pst']
        s.es(f"""s_lshl_b32 {sT0}, s2, 2
        s_add_u32 {sT0}, {sT0}, {sW}
        s_lshl_b32 {sT0}, {sT0}, {6+st}
        s_lshl_b32 {sT1}, {sH}, 9
        s_sub_u32 {sT0}, {sT0}, {sT1}
        v_lshlrev_b32 v248, {st}, v0
        s_lshl_b32 {sT1}, {sH}, 2
        s_add_u32 {sT1}, {sT1}, {sW}
        s_lshl_b32 {sT1}, {sT1}, {6+st}
        v_add_u32 v249, {sT1}, v248
        v_add_u32 v248, {sT0}, v248""", **P)
        vmop(f"buffer_load_dword v248, v248, {SWQ}, 0 offen {OPT['pqm']}", **P)
        if OPT['pq'] < 4: vmop(f"buffer_load_dword v249, v249, {SX}, 0 offen {OPT['pqm']}", **P)
    if OPT['pq'] & 3 == 1: pwq()
    issue(dma_stage(0), **P)
    if OPT['pq'] & 3 == 2: pwq()
    s.es(f"""
    s_lshl_b32 {sT0}, {sB}, 4
    s_add_u32 {sT0}, {sT0}, {sH}
    s_lshl_b32 {sT0}, {sT0}, 18""", **P)
    s.e(f"s_add_u32 s16, s16, {sT0}\ns_addc_u32 s17, s17, 0\ns_add_u32 s12, s12, {sT0}\ns_addc_u32 s13, s13, 0", **P)
    s.es(f"""
    s_mov_b32 s14, 262144
    s_mov_b32 s15, 0x00020000
    s_mov_b32 s18, 262144
    s_mov_b32 s19, 0x00020000
    s_lshl_b32 {sW16}, {sW}, {WSH}""", **P)
    if OPT['rot']:
        s.es(f"""s_lshr_b32 {sT0}, {sT0}, {18 + OPT['rot'] - 1}
        s_and_b32 {sT0}, {sT0}, {OPT['rotm']}
        s_lshl_b32 {sT0}, {sT0}, {13 if OPT['rotm'] > 3 else 16}
        s_xor_b32 {sW16}, {sW16}, {sT0}""", **P)
    issue(dma_stage(1), **P)
    if OPT['pq'] & 3 == 3: pwq()
    s.es(f"""
    v_bfe_u32 v1, v0, 4, 1
    v_and_b32 v8, 7, v0
    v_xor_b32 v8, v8, v1
    v_lshlrev_b32 v8, 4, v8
    v_lshl_add_u32 v8, v44, 7, v8
    v_bfe_u32 v1, v0, 3, 2
    v_lshl_add_u32 v8, v1, 9, v8
    v_xor_b32 v9, {1024+32}, v8
    v_xor_b32 v10, {2048+64}, v8
    v_xor_b32 v11, {3072+96}, v8""".replace(f"v_xor_b32 v9, {1024+32}, v8", f"v_xor_b32 v9, 32, v8\nv_add_u32 v9, {IIS-1024}, v9")
       .replace(f"v_xor_b32 v10, {2048+64}, v8", f"v_xor_b32 v10, 64, v8\nv_add_u32 v10, {2*(IIS-1024)}, v10")
       .replace(f"v_xor_b32 v11, {3072+96}, v8", f"v_xor_b32 v11, 0x60, v8\nv_add_u32 v11, {3*(IIS-1024)}, v11"), **P)
    KL = stage_load([(0, 0), (1, 1)]) + stage_load([(2, 2), (3, 3)]) + stage_load([(4, 4), (5, 5)]) + stage_load([(6, 6)])
    if not OPT['pair']: KL = sum([stage_load([(n, n)]) for n in range(7)], [])
    if OPT['tp']:
        s.es(f"v_and_b32 v241, 15, v0\nv_lshlrev_b32 v241, 12, v241\ns_lshl_b32 {sL}, {sW}, 16", **P)
        vmop(f"buffer_load_dword v240, v241, {SK}, {sL} offen {OPT['tpm']}", **P)
        if OPT['tp'] > 1: vmop(f"buffer_load_dword v242, v241, {SV}, {sL} offen {OPT['tpm']}", **P)
    def cpref(lab, tmp, st, n=1, **kw):
        a, b = f"v{tmp}", f"v{tmp+1}"
        for j in range(n):
            s.add(Op('e', f"s_lshl_b32 s98, {sW}, {6+st}\ns_add_u32 s98, s98, {lab}-L_pc+{j*(256<<st)}\nv_lshlrev_b32 {a}, {st}, v0\nv_add_u32 {a}, s98, {a}\nv_min_u32 {a}, s95, {a}", cost=20, **kw))
            s.add(Op('e', f"v_mov_b32 {b}, s97\nv_add_co_u32 {a}, s[98:99], s96, {a}\ns_nop 1\nv_addc_co_u32 {b}, s[98:99], 0, {b}, s[98:99]", W=['s98', 's99'], cost=20, **kw))
            s.add(Op('vm', f"global_load_dword {a}, v[{tmp}:{tmp+1}], off {OPT['cpm']}", cost=16, **kw))
    if OPT['cp']:
        s.e(f"s_getpc_b64 s[96:97]\nL_pc:\ns_mov_b32 s95, L_codeend-L_pc-4", **P)
        if OPT['cp'] == 1:
            cpref('L_pc', 242, 7, 1, **P); cpref('L_pc+32768', 244, 7, 1, **P)
        else: cpref('L_pc', 242, 6, 1, **P)
    s.e(f"s_lshl_b32 {sT0}, {sB}, 11\ns_add_u32 {sT0}, {sT0}, {FLOFF}\ns_add_u32 s60, s4, {sT0}\ns_addc_u32 s61, s5, 0", **P)
    s.e(f"s_lshl_b32 {sT0}, {sB}, 4\ns_add_u32 s64, s64, {sT0}\ns_addc_u32 s65, s65, 0", **P)
    s.es(f"""s_mov_b32 s62, 2048
    s_mov_b32 s63, 0x00020000
    s_mov_b32 s66, 16
    s_mov_b32 s67, 0x00020000
    s_lshl_b32 s3, {sH}, 7
    s_lshl_b32 {sT0}, {sW}, 2
    s_add_u32 s3, s3, {sT0}
    v_lshlrev_b32 v247, 23, v0
    v_mov_b32 v245, 0""", **P)
    vmop(f"buffer_store_dword v245, v247, {SFL}, s3 offen", bb='RA2', **P)
    if OPT['s2p']: issue(dma_stage(2), **P)
    issue(KL[:OPT['kpre']], **P)
    KL = KL[OPT['kpre']:]
    s.e(f"s_mul_i32 {sT0}, {sH}, 229376\ns_add_u32 s24, s24, {sT0}\ns_addc_u32 s25, s25, 0", **P)
    s.e(f"s_mul_i32 {sT0}, {sB}, {PB}\ns_lshr_b32 {sT1}, {sH}, {LC}\ns_lshl_b32 {sT1}, {sT1}, 11\ns_add_u32 {sT0}, {sT0}, {sT1}\ns_add_u32 s28, s4, {sT0}\ns_addc_u32 s29, s5, 0", **P)
    s.es(f"""
    s_mov_b32 s26, 229376
    s_mov_b32 s27, 0x00020000
    s_mov_b32 s30, {PB}
    s_mov_b32 s31, 0x00020000
    s_mov_b32 {sC}, 0x{f2u(math.log2(math.e)/16):08x}
    """, **P)
    s.es(f"""
    v_bfe_u32 v47, v0, 2, 2
    v_lshl_add_u32 v43, v44, 3, v47
    v_bfe_u32 v1, v0, 4, 1
    v_lshlrev_b32 v46, 5, v1
    v_and_b32 v1, 1, v0
    v_lshl_add_u32 v46, v1, 4, v46
    v_bfe_u32 v1, v0, 1, 1
    v_lshl_add_u32 v46, v1, 3, v46
    v_lshl_add_u32 v1, v47, 6, v46
    s_lshl_b32 {sT0}, {sW}, 6
    v_lshl_add_u32 v12, v43, 9, v1
    v_xor_b32 v12, {sT0}, v12
    v_xor_b32 v13, 64, v12
    v_xor_b32 v14, 0x80, v12
    v_xor_b32 v15, 0xc0, v12
    v_bfe_u32 v1, v0, 1, 3
    v_xor_b32 v1, v1, v44
    v_lshlrev_b32 v1, 4, v1
    v_lshl_add_u32 v1, v45, 7, v1
    v_add_u32 v20, {XB + 128*128}, v1
    s_lshl_b32 {sT0}, {sW}, 12
    s_add_u32 {sT0}, {sT0}, {XB}
    v_add_u32 v16, {sT0}, v1
    v_xor_b32 v17, 32, v16
    v_xor_b32 v18, 64, v16
    v_xor_b32 v19, 0x60, v16
    v_xor_b32 v21, 32, v20
    v_xor_b32 v22, 64, v20
    v_xor_b32 v23, 0x60, v20
    """, **P)
    s.es(f"""
    v_and_b32 v42, 0x13, v0
    v_bfe_u32 v1, v0, 2, 1
    v_lshl_or_b32 v42, v1, 3, v42
    v_bfe_u32 v1, v0, 3, 1
    v_lshl_or_b32 v42, v1, 2, v42
    v_bfe_u32 v1, v42, 1, 3
    v_xor_b32 v1, v1, v44
    v_lshlrev_b32 v1, 4, v1
    v_and_b32 v24, 3, v42
    v_lshl_add_u32 v1, v24, 7, v1
    v_lshrrev_b32 v24, 2, v42
    v_lshl_add_u32 v1, v24, 10, v1
    s_add_u32 {sT0}, {sM8}, 32768
    v_add_u32 v32, {sT0}, v1
    v_xor_b32 v33, 32, v32
    v_xor_b32 v34, 64, v32
    v_xor_b32 v35, 0x60, v32
    s_lshr_b32 {sT1}, {sW}, 1
    s_lshl_b32 {sT1}, {sT1}, 9
    s_and_b32 {sT2}, {sW}, 1
    s_lshl_b32 {sT2}, {sT2}, 6
    s_add_u32 {sT1}, {sT1}, {sT2}
    s_add_u32 {sT1}, {sT1}, 32768
    v_xor_b32 v24, {sT1}, v1
    """, **P)
    for jj in range(4):
        for half in range(2):
            if jj or half: s.e(f"v_xor_b32 v{24+2*jj+half}, {(jj>>1)*512 + (jj&1)*64 + half*32}, v24", **P)
    s.es(f"""
    v_lshlrev_b32 v1, 4, v0
    v_add_u32 v7, {sT0}, v1
    v_add_u32 v36, {S4}, v1
    s_lshl_b32 {sT0}, {sW}, 11
    v_add_u32 v37, {sT0}, v36
    """, **P)
    s.es(f"""s_getreg_b32 {sT0}, hwreg(HW_REG_XCC_ID, 0, 3)
    s_mul_i32 {sT1}, {sT0}, {sT0}
    s_lshl_b32 {sT1}, {sT1}, 8
    s_add_u32 {sT0}, {sT0}, {sT1}
    s_lshl_b32 {sT0}, {sT0}, 8
    s_add_u32 {sT0}, {sT0}, 1
    s_lshl_b32 {sFAST}, {sT0}, 4
    s_lshl_b32 {sT1}, {sW}, 29
    v_add_u32 v244, {sT1}, v247""", dl=20)
    if OPT['fs']: s.e(f"s_add_u32 {sFAST}, {sFAST}, 1")
    s.e(f"s_cmp_eq_u32 {sPASS}, 0\ns_cselect_b32 {sT0}, {sT0}, 0", dl=20)
    s.e(f"v_mov_b32 v246, {sT0}", dl=20)

    ringc = [0]
    def ring():
        r = 224 + 4 * (ringc[0] % 8); ringc[0] += 1
        return r
    STAMPS = set(OPT['stamps'].split(','))
    CPF = dict(x.split(':', 1) for x in OPT['cpf'].split(',') if x)
    def RB(name):
        def fn():
            e(f"L_{name}:")
            if name in STAMPS: stamp()
        s.bar(name, fn=fn, early=s.nmf - OPT['rb'])
        if OPT['cp'] > 1 and name in CPF:
            lab, tmp = CPF[name].split(':')
            cpref('L_' + lab, int(tmp), 6, 1, early=s.nmf, dl=s.nmf + 4)
    def WB(name, p0):
        s.bar(name, early=p0 + OPT['wb'], lgage=OPT['wage'], dl=p0 + OPT['wb'] + 2)
    def rebase(regs, delta):
        for r in regs:
            s.e(f"v_add_u32 v{r}, {delta}, v{r}" if delta > 0 else f"v_subrev_u32 v{r}, {-delta}, v{r}")
    def tr(ar, off, d2, **kw):
        r = ring()
        s.rd(f"ds_read_b64_tr_b16 {R('a', r, 2)}, v{ar} offset:{off}", **kw)
        s.rd(f"ds_read_b64_tr_b16 {R('a', r+2, 2)}, v{ar} offset:{off+d2}", **kw)
        return R('a', r, 4)
    def rd128(ar, off, dst=None, **kw):
        if dst is None: dst = R('a', ring(), 4)
        s.rd(f"ds_read_b128 {dst}, v{ar} offset:{off}", **kw)
        return dst
    def mf(acc, a, b, first): s.mf(f"{MF} {acc}, {a}, {b}, {'0' if first else acc}")

    def qconv(src, j):
        for q in range(16): s.e(f"v_mul_f32 v{src+q}, {sC}, v{src+q}")
        for q in range(8): s.e(f"v_cvt_pk_bf16_f32 v{src+2*q}, v{src+2*q}, v{src+2*q+1}")
        for q in range(8): s.e(f"v_accvgpr_write_b32 a{8*j+q}, v{src+2*q}")
    def pack_write(src, off, ab, bb):
        for q in range(8): s.e(f"v_cvt_pk_bf16_f32 v{src+q}, v{src+2*q}, v{src+2*q+1}")
        for half in range(2):
            s.ds(f"ds_write_b128 v37, {R('v', src+4*half, 4)} offset:{off + half*1024}", cost=OPT['wc'], ab=ab, bb=bb)
    JORD = [0, 4, 1, 2, 3, 5, 6, 7]
    trb = 0
    gx = [float(OPT['k0']), 0]
    def gpace(e0, p=0):
        while True:
            gx[0] = max(gx[0], e0)
            x = int(gx[0]); gx[1] += 1
            gx[0] += (p or (OPT['kp'] if gx[1] + OPT['kpre'] < OPT['ksw'] else OPT['kp2'])) / 10
            yield dict(early=x, dl=x + 2)
    kpc = gpace(0)
    kq = [(t, dict(a, **next(kpc))) for t, a in KL]
    def merged(L, upto):
        M = list(L)
        while kq and kq[0][1]['early'] < upto:
            t, a = kq.pop(0)
            if L and OPT['kwin']:
                x = upto - 40 + OPT['kwin'] + (a['early'] - upto + 40) * (40 - OPT['kwin']) // 40
                a = dict(a, early=x, dl=x + 2)
            M.append((t, a))
        M.sort(key=lambda x: x[1]['early'])
        issue(M)
    for i in range(7):
        p0 = s.nmf
        slot = (i % 3) * 32768; xs = (i % 3) * 20480
        RB(f"RA{i}")
        if i >= 1: WB(f"WA{i}", p0)
        L = []
        if i <= 4 and not (i == 0 and OPT['s2p']):
            pc = pace(p0 + (1 if i else -1), OPT['dp'])
            L = [(t, dict(a, **next(pc))) for t, a in dma_stage(i + 2, ab=(f"WA{i}" if i else None))]
        merged(L, p0 + 40 if i < 6 else 10**9)
        if i == 2: s.vm(f"buffer_atomic_add v246, v244, {SDB}, 0 offen sc1", cost=8, ab='RA2', dl=p0 + 20)
        if i == 5: stage_write(0, 0, 'a', 'WA5', p0)
        if i == 6: stage_write(1, 1, 'b', 'WA6', p0 - OPT['w0'] + 2)
        want = slot & 0x10000
        if want != trb: rebase(range(12, 16), want - trb); trb = want
        kw = dict(ab=f"RA{i}", bb=(f"WA{i+1}" if i < 6 else "WS0"))
        def step(j, T, newx):
            xb = B(10) + 8 * T
            if newx: rd128(16 + T, xs, R('v', xb, 4), **kw)
            a = tr(12 + (j & 3), slot - trb + (j >> 2) * 256 + T * 8192, 2048, **kw)
            mf(R('v', B(j), 16), a, R('v', xb, 4), i == 0 and T == 0)
            if j in (0, 4):
                if newx: rd128(20 + T, xs, R('v', xb + 4, 4), **kw)
                mf(R('v', B(8 + (j >> 2)), 16), a, R('v', xb + 4, 4), i == 0 and T == 0)
        if i < 6:
            for T in range(4):
                for j in JORD: step(j, T, j == 0)
        else:
            for j in range(8):
                for T in range(4): step(j, T, j == 0)
                if OPT['dump'] == 'Q': continue
                if j in (0, 4):
                    sh = B(8 + (j >> 2))
                    for q in range(16): s.e(f"v_mul_f32 v{sh+q}, {sC}, v{sh+q}")
                    pack_write(sh, 16384 + (j >> 2) * 8192, 'WA6', f"RS{j>>2}")
                qconv(B(j), j)
    dump('Q', [f"v{r}" for r in range(B(0), B(10))])
    s.es(f"""
    v_lshrrev_b32 v42, 4, v0
    v_lshlrev_b32 v3, 2, v42
    v_and_b32 v2, 15, v0
    v_xor_b32 v2, v2, v3
    v_lshlrev_b32 v2, 4, v2
    v_lshl_add_u32 v2, v42, {8 if 'c' in OPT['x'] else 9}, v2
    {f"s_lshr_b32 {sT0}, {sH}, {OPT['vz']-1}" if OPT['vz'] else ''}
    {f"s_and_b32 {sT0}, {sT0}, 1" if OPT['vz'] else ''}
    {f"v_lshl_add_u32 v2, {sT0}, 8, v2" if OPT['vz'] else ''}
    v_add_u32 v3, {0 if 'c' in OPT['x'] else IIS-1024}, v2
    v_add_u32 v4, {0 if 'c' in OPT['x'] else 2*(IIS-1024)}, v2
    v_add_u32 v5, {0 if 'c' in OPT['x'] else 3*(IIS-1024)}, v2
    v_lshl_add_u32 v45, v47, 6, v46
    v_lshl_add_u32 v45, v43, 8, v45
    s_lshl_b32 {sT0}, {sW}, 6
    s_add_u32 {sT0}, {sT0}, 65536
    v_xor_b32 v12, {sT0}, v45
    v_xor_b32 v13, 64, v12
    v_xor_b32 v14, 0x80, v12
    v_xor_b32 v15, 0xc0, v12
    """)

    SLOT = {0: 'a', 1: 'b', 2: 'a', 3: 'b', 4: 'a', 5: 'b', 6: 'a', 7: 'c', 8: 'd', 9: 'b', 10: 'd', 11: 'b', 12: 'a', 13: 'c', 14: 'd', 15: 'b',
            16: 'a', 17: 'c', 18: 'd', 19: 'b', 20: 'a', 21: 'c', 22: 'd'}
    TB = [[12, 11, 8, 10, 0], [1, 2, 3, 4, 5], [6, 7, 9, 11, 0], [5, 2, 4, 7, 10]]
    hooks = []
    firsts = {vSP: True, vSS: True}
    def softmax(g, t):
        src = B(TB[g][t]); regs = [f"v{src+q}" for q in range(16)]
        mx, sm = (vMP, vSP) if t < 4 else (vMS, vSS)
        h = len(hooks); hooks.append((src, mx))
        s.add(Op('e', f"s_cbranch_vccnz L_fix{h}\nL_ret{h}:", cost=8, R=regs + ['vcc', f"v{mx}"], W=regs + [f"v{mx}"]))
        for q in range(16):
            s.e(f"v_exp_f32 v{src+q}, v{src+q}")
        for q in range(16):
            if firsts[sm]:
                if q == 0: continue
                s.e(f"v_add_f32 v{sm}, v{src}, v{src+1}"); firsts[sm] = False
            else: s.e(f"v_add_f32 v{sm}, v{sm}, v{src+q}")
        if t < 4:
            dst = B(TB[g][t & 2]) + 8 * (t & 1)
            for q in range(8): s.e(f"v_cvt_pk_bf16_f32 v{dst+q}, v{src+2*q}, v{src+2*q+1}")
        else:
            pack_write(src, g * 8192, ['RS0', 'RS0', 'WS7', 'WS8'][g], f"RS{8+g}")
    def Pfrag(g, ks): return R('v', B(TB[g][(ks >> 1) & 2]) + 4 * (ks & 3), 4)
    kb = 32768
    vp = OPT['vp']
    for n in range(8):
        p0 = s.nmf
        g, dh = n >> 1, n & 1
        RB(f"RS{n}")
        if n != 6: WB(f"WS{n}", p0)
        if n == 0: issue(dma_tile(7, 'c', ab='WS0') + dma_tile(8, 'd', ab='WS0'), gpace(p0 + 1))
        if 1 <= n <= 5: stage_write(n + 1, n + 1, SLOT[n + 1], f"WS{n}", p0)
        if 1 <= n <= 3: issue(stage_load([(8 + n, n + 1)]), gpace(p0 + OPT['w0'] + 6))
        if n == 5: rebase([7], 32768); wbase[0] = 65536
        if OPT['pw'] and n == OPT['pw']:
            s.es(f"""s_lshl_b32 {sT0}, {sB}, 2
            s_add_u32 {sT0}, {sT0}, {sW}
            s_lshl_b32 {sT0}, {sT0}, {6+OPT['pst']}
            v_lshlrev_b32 v18, {OPT['pst']}, v0
            v_add_u32 v18, {sT0}, v18""", early=p0, dl=p0 + 10)
            s.vm(f"buffer_load_dword v18, v18, {SWO}, 0 offen {OPT['pqm']}", cost=16, early=p0, dl=p0 + 12)
        if n == 7 and OPT['vz']: s.es("\n".join(f"v_xor_b32 v{r}, 0x100, v{r}" for r in range(2, 6)))
        if n == 7: issue(dma_tile(12, 'a', ab='WS7'), gpace(p0 + 1))
        off0 = SL[SLOT[n]] - kb
        if not 0 <= off0 < 65536 - 32767:
            rebase(range(24, 36), off0); kb += off0; off0 = 0
        kw = dict(ab=f"RS{n}", bb=(f"WS{n+1}" if n != 5 else "RS7"))
        qkw = dict(ab=f"RS{n}", bb=(f"WS{n+1}" if n >= 6 else None))
        def step(t, ks):
            acc = R('v', B(TB[g][t]), 16); first = (dh == 0 and ks == 0)
            if t < 4:
                a = rd128(24 + ks, off0 + t * 8192, **kw)
                mf(acc, a, R('a', 32 * dh + 4 * ks, 4), first)
            else:
                a = rd128(32 + (ks & 3), off0 + (ks >> 2) * 512, **kw)
                b = rd128(36, 16384 + dh * 8192 + ks * 1024, **qkw)
                mf(acc, a, b, first)
        if n < 2:
            for ks in range(8):
                for t in range(5): step(t, ks)
            if dh and OPT['dump'] != 'S0':
                for t in (4, 0, 1, 2, 3): softmax(g, t)
        else:
            for t in (4, 0, 1, 2, 3):
                for ks in range(8): step(t, ks)
                if dh: softmax(g, t)
        if n == 1: dump('S0', [f"v{B(b)+q}" for b in TB[0] for q in range(16)])
    dump('P', [f"v{B(TB[g][t])+q}" for g in range(4) for t in (0, 2) for q in range(16)] + [f"v{vSP}", f"v{vSS}"])
    s.es(f"""
    v_lshrrev_b32 v16, 1, v47
    v_lshl_add_u32 v16, v16, 6, v46
    v_lshl_add_u32 v16, v43, 7, v16
    s_and_b32 {sT1}, {sW}, 1
    s_lshl_b32 {sT1}, {sT1}, 6
    s_lshl_b32 {sT0}, {sW}, 12
    s_add_u32 {sT0}, {sT0}, {sT1}
    v_xor_b32 v16, {sT0}, v16""")
    assert not OPT['vz'] or 'z' in OPT['x']
    for x in range(1, 8): s.e(f"v_xor_b32 v{16+x}, {(x>>1)*4096 + (x&1)*64}, v16")
    s.es(f"""s_and_b32 {sT2}, {sH}, {C-1}
    s_mul_i32 {sPP[0]}, {sT2}, {128 * (2 if C == 4 else 3)}
    s_add_u32 {sT0}, {sH}, 1
    s_and_b32 {sT0}, {sT0}, {C-1}
    s_sub_u32 {sT0}, {sT0}, {sT2}
    s_lshl_b32 {sT0}, {sT0}, 7
    s_add_u32 {sPRED}, s3, {sT0}
    s_mov_b32 {sCNT}, 0""")
    s.e(f"s_cmp_eq_u32 {sT2}, {C-1}\ns_cselect_b32 {sNF}, {1 if C == 4 else 4}, {2 if C == 4 else 3}")
    for i in range(1, 7): s.e(f"s_add_u32 {sPP[i]}, {sPP[i-1]}, 128\ns_cmp_eq_u32 {sPP[i]}, 896\ns_cselect_b32 {sPP[i]}, 0, {sPP[i]}")
    for i in range(7): s.e(f"s_lshl_b32 {sQ[i]}, {sPP[i]}, {TSH+1-7}")
    s.es(f"""
    s_mul_i32 {sT0}, {sW}, {64*896}
    v_lshrrev_b32 v42, 4, v0
    v_and_b32 v42, 1, v42
    v_lshlrev_b32 v42, 2, v42
    v_and_b32 v8, 7, v0
    v_xor_b32 v8, v8, v42
    v_lshlrev_b32 v8, 4, v8
    v_lshrrev_b32 v42, 3, v0
    v_mul_u32_u24 v42, 896, v42
    v_add3_u32 v8, v8, v42, {sT0}
    v_add_u32 v9, 6144, v8
    v_add_u32 v10, 12288, v8
    v_add_u32 v11, 18432, v8
    """)
    s.es(f"""
    v_mov_b32 v42, v{vSP}
    v_mov_b32 v43, v{vSS}
    v_permlane32_swap_b32 v42, v{vSP}
    v_permlane32_swap_b32 v43, v{vSS}
    v_add_f32 v{vSP}, v42, v{vSP}
    v_add_f32 v{vSS}, v43, v{vSS}
    v_subrev_u32 v42, {sLO}, v{vSP}
    v_mov_b32 v43, 0x7f800000
    v_cmp_le_u32 vcc, {sRNG}, v42
    v_cndmask_b32 v{vSS}, v{vSS}, v43, vcc
    v_rcp_f32 v{vSP}, v{vSP}
    v_lshlrev_b32 v6, 2, v0
    v_add_u32 v6, {S4}, v6
    s_lshl_b32 {sT0}, {sW}, 8
    v_add_u32 v35, {sT0}, v6
    """)
    s.ds(f"ds_write_b32 v35, v{vSS}", ab='WS13', bb='RS14')
    vS = [32, 33, 34]
    SEL = [24, 28]
    vZ, vFV, vPO, vWL, vST = 1, 40, 41, 35, 41
    p12 = s.nmf + 160
    s.es(f"""s_and_b32 {sT1}, {sW}, 1
    s_mul_i32 {sT0}, {sW}, 14
    s_add_u32 {sT0}, {sT0}, {sT1}
    s_lshl_b32 {sT0}, {sT0}, {TSH}
    v_add_u32 v{vS[0]}, {sT0}, v1
    v_xor_b32 v{vS[1]}, {TS}, v{vS[0]}
    s_lshr_b32 {sT0}, {sW}, 1
    s_mul_i32 {sT0}, {sT0}, 14
    s_add_u32 {sT0}, {sT0}, {sT1}
    s_add_u32 {sT0}, {sT0}, 56
    s_lshl_b32 {sT0}, {sT0}, {TSH}
    v_add_u32 v{vS[2]}, {sT0}, v1
    v_lshlrev_b32 v{vZ}, 23, v0
    v_bfe_u32 v42, v0, 3, 2
    v_bfe_u32 v43, v0, 1, 1
    v_lshl_add_u32 v42, v42, 1, v43
    v_lshrrev_b32 v43, 3, v0
    v_xor_b32 v43, v43, v0
    v_and_b32 v43, 4, v43
    v_lshl_add_u32 v42, v43, 1, v42
    v_and_b32 v44, 1, v0
    v_lshlrev_b32 v44, 4, v44
    v_mov_b32 v45, 0x3f80
    v_lshlrev_b32 v45, v44, v45""", dl=p12 + 10)
    for r in range(8):
        s.e(f"v_cmp_eq_u32 s[8:9], {r}, v42\ns_nop 1\nv_cndmask_b32 v{SEL[r >> 2] + (r & 3)}, 0, v45, s[8:9]", cost=12, dl=p12 + 20)

    OA = [[R('a', 16 * j, 16) for j in range(4)] + [R('a', 192, 16)], [R('v', B(b), 16) for b in (0, 11, 2, 7, 10)]]
    tmpc = [0]
    def oconv_a(abase, dst, inv):
        for q in range(8):
            t = 42 + 2 * (tmpc[0] % 3); tmpc[0] += 1
            s.es(f"""v_accvgpr_read_b32 v{t}, a{abase+2*q}
            v_accvgpr_read_b32 v{t+1}, a{abase+2*q+1}
            v_mul_f32 v{t}, v{t}, v{inv}
            v_mul_f32 v{t+1}, v{t+1}, v{inv}
            v_cvt_pk_bf16_f32 v{dst+q}, v{t}, v{t+1}""")
    def oconv_v(src, dst, inv):
        for q in range(16): s.e(f"v_mul_f32 v{src+q}, v{src+q}, v{inv}")
        if dst is not None:
            for q in range(8): s.e(f"v_cvt_pk_bf16_f32 v{dst+q}, v{src+2*q}, v{src+2*q+1}")
    vb = 65536
    SP = [int(x) for x in OPT['sp'].split(',')]
    for n in range(8, 16):
        p0 = s.nmf
        dh, g = (n - 8) >> 2, (n - 8) & 3
        RB(f"RS{n}")
        if n != 11: WB(f"WS{n}", p0)
        if n == 8:
            stage_write(9, 2, 'b', 'RS7', p0)
            issue(dma_tile(13, 'c', ab='WS8') + stage_load([(14, 5)]), gpace(p0 + 1))
        if n == 9: stage_write(10, 3, 'd', 'WS9', p0)
        if n == 10: stage_write(11, 4, 'b', 'WS10', p0)
        if n == 12:
            issue(dma_tile(15, 'b', ab='WS12'), pace(p0 + 1, OPT['p15'] / 10) if OPT['p15'] else gpace(p0 + 1))
            s.es(f"s_mov_b32 s16, s28\ns_mov_b32 s17, s29")
        if n == 13: stage_write(14, 5, 'd', 'RS12', p0)
        if n >= 13: issue(dma_tile(n + 3, SLOT[n + 3], ab=f"WS{n}"), gpace(p0 + 1, OPT['wop']) if OPT['wop'] else pace(p0 + OPT['wo0'], vp))
        SW = sum([stage_wo(19 + x, 2 + x) for x in range(4) if SP[x] == n and not OPT['dm']], [])
        if SW: issue(SW, pace(p0 + OPT['so'], OPT['spp']))
        if n == 14:
            for w_ in range(4): s.ds(f"ds_read_b32 v{44+w_}, v6 offset:{w_*256}", ab='RS14')
            s.es(f"""v_add_f32 v44, v44, v45
            v_add_f32 v46, v46, v47
            v_add_f32 v{vSS}, v44, v46
            v_subrev_u32 v44, {sLO}, v{vSS}""")
            s.add(Op('e', f"v_cmp_le_u32 vcc, {sRNG}, v44\ns_nop 1\ns_cbranch_vccnz L_slow\nL_checked:", cost=16, R=[f"v{vMP}", f"v{vMS}"], W=['#chk'], ab='RS14', bb='RS15'))
            s.e(f"v_rcp_f32 v{vSS}, v{vSS}")
            s.es(f"v_xor_b32 v6, 0x800, v37")
            oconv_a(192, B(1), vSS)
            for half in range(2):
                s.ds(f"ds_write_b128 v37, {R('v', B(1)+4*half, 4)} offset:{8192 + half*1024}", cost=OPT['wc'], ab='WS14', bb='RS16')
        off0 = SL[SLOT[n]] - vb
        if not 0 <= off0 <= 32768:
            nb = SL[SLOT[n]] & 0x10000
            rebase(range(12, 16), nb - vb); vb = nb; off0 = SL[SLOT[n]] - vb
        kw = dict(ab=f"RS{n}", bb=(f"WS{n+1}" if n not in (10, 15) else f"RS{n+2}"))
        pkw = dict(ab=f"RS{n}", bb=(f"WS{n+1}" if 12 <= n < 15 else None))
        for j in range(4):
            for ks in range(8):
                a = tr(12 + j, off0 + ks * 4096, 1024, **kw)
                mf(OA[dh][j], a, Pfrag(g, ks), g == 0 and ks == 0)
                if j == 0:
                    b = rd128(36, g * 8192 + ks * 1024, **pkw)
                    mf(OA[dh][4], a, b, g == 0 and ks == 0)
            if n == 15 and OPT['dump'] != 'O':
                if j == 0:
                    oconv_v(B(10), None, vSS)
                    pack_write(B(10), 16384, 'WS15', OPT['osb'])
                oconv_v(B((0, 11, 2, 7)[j]), B((0, 2)[j >> 1]) + 8 * (j & 1), vSP)
        if n == 12:
            for j in range(4): oconv_a(16 * j, B((12, 8)[j >> 1]) + 8 * (j & 1), vSP)
    dump('O', [f"a{r}" for r in range(64)] + [f"v{B(b)+q}" for b in (0, 11, 2, 7) for q in range(16)] + [f"a{r}" for r in range(192, 208)]
         + [f"v{B(10)+q}" for q in range(16)] + [f"v{vSP}", f"v{vSS}"])

    OB = [(1, 6, 3), (9, 4, 5), (10, 7, 11)]
    def Ofrag(dh, jj, half): return R('v', B(((12, 8), (0, 2))[dh][jj >> 1]) + 8 * (jj & 1) + 4 * half, 4)
    def Osh(dh, jj, half): return R('a', 192 + 16 * dh + 8 * jj + 4 * half, 4)
    QA = [37, 6]
    vPL, vLD, vLD2, vO1, vO2, vO3, vLE, vLE2 = 12, 13, 14, 15, 38, 39, 36, 37
    SELA, SELB = 48, 52
    SRD_R, SRD_O = "s[8:11]", "s[12:15]"
    lP, lG, lS, oP, oG, oS, sHH = "s24", "s25", "s26", "s27", "s44", "s56", "s39"
    p16 = s.nmf
    if not OPT['dm']: s.e(f"v_subrev_u32 v{vWL}, 65536, v7", early=p16 + 40)
    LA = [list(range(16, 24)), [2, 3, 4, 5, 7, 35, 46, 47] if OPT['dm'] else [2, 3, 4, 5, 8, 9, 10, 11]]
    assert not OPT['dm'] or OPT['rs'] >= 5
    for x in range(8): s.e(f"v_add_u32 v{LA[1][x]}, 65536, v{16+x}", early=p16 + 30, dl=p16 + 60)
    if OPT['p2']:
        x = p16 + OPT['p2o']
        s.e(f"s_lshl_b32 {sT0}, {sW}, 7\ns_add_u32 {sT0}, {sT0}, {sPP[3]}\ns_sub_u32 {sT1}, {sT0}, 896\ns_cselect_b32 {sT0}, {sT0}, {sT1}", early=x - 12, dl=x - 4)
        s.es(f"""s_and_b32 {sT1}, {sB}, 1
        s_mul_i32 {sT1}, {sT1}, {128*896}
        s_add_u32 {sT0}, {sT0}, {sT1}
        v_mul_u32_u24 v45, 896, v0
        v_add_u32 v45, {sT0}, v45
        s_mov_b32 {sT1}, {64*896}""", early=x - 12, dl=x - 2)
        s.vm(f"buffer_load_dword a65, v45, {SWO}, 0 offen", cost=16, early=x, dl=x + 1)
        s.vm(f"buffer_load_dword a66, v45, {SWO}, {sT1} offen", cost=16, early=x + OPT['p2'], dl=x + OPT['p2'] + 1)
    if OPT['de']:
        s.vm(f"buffer_load_dword a64, off, {SDB}, 0 sc1", cost=8, lat=0, early=p16 - OPT['de'], dl=p16 - OPT['de'] + 4)
        s.e(f"v_accvgpr_read_b32 v{vST}, a64", early=p16 + 12)
    else: s.vm(f"buffer_load_dword v{vST}, off, {SDB}, 0 sc1", cost=8, lat=0, early=p16 - 20, dl=p16 - 16)
    s.add(Op('e', f"v_readfirstlane_b32 {sV}, v{vST}\ns_nop 0\ns_cmp_lg_u32 {sV}, {sV if 'f' in OPT['x'] else sFAST}\ns_cbranch_scc1 L_decide\nL_decided:", cost=16,
             R=['#chk', sNF, 's28', 's29'], W=['#dec', sNF, 's28', 's29', sT0, 'v42', 'v43', 'v44'], early=p16 + 16, minage=24))
    def col(x): return f"""s_lshr_b32 {sT0}, {sHH}, {x+1}
        s_lshl_b32 {sT0}, {sT0}, {TSH}
        s_bfe_u32 {sT1}, {sHH}, {0x10000 + x}
        s_lshl_b32 {sT1}, {sT1}, 10
        s_add_u32 {sT0}, {sT0}, {sT1}
        s_and_b32 {sT1}, {sHH}, {(1 << x) - 1}
        s_lshl_b32 {sT1}, {sT1}, 8
        s_add_u32 {sT0}, {sT0}, {sT1}"""
    OWN = f"""s_mul_i32 {lG}, {sW}, {14*TS}
        {col(1)}
        s_add_u32 {lP}, {lG}, {sT0}
        {col(2)}
        s_add_u32 {lG}, {lG}, {sT0}
        s_add_u32 {lG}, {lG}, {12*TS}
        s_lshl_b32 {lS}, {sW}, {TSH+1}
        s_add_u32 {lS}, {lS}, {sT0}
        s_add_u32 {lS}, {lS}, {56*TS}
        s_and_b32 {sT1}, {sHH}, 1
        s_mul_i32 {oS}, {sT1}, {16*896}
        s_mul_i32 {oG}, {sW}, {32*896}
        s_add_u32 {oG}, {oG}, {oS}
        s_lshr_b32 {sT0}, {sHH}, 1
        s_lshl_b32 {sT1}, {sT0}, 5
        s_add_u32 {oP}, {oG}, {sT1}
        s_lshl_b32 {sT0}, {sT0}, 4
        s_add_u32 {oG}, {oG}, {sT0}
        s_add_u32 {oS}, {oS}, {sT0}
        s_lshl_b32 {sT1}, {sW}, 7
        s_add_u32 {oS}, {oS}, {sT1}
        s_add_u32 {oS}, {oS}, {128*896}"""
    def red_setup(p0):
        kw = dict(early=p0, dl=p0 + OPT['rsd'])
        s.e(f"s_mul_i32 {sT0}, {sB}, {PB}\ns_add_u32 s8, s4, {sT0}\ns_addc_u32 s9, s5, 0", **kw)
        s.e(f"s_mul_i32 {sT0}, {sB}, 143360\ns_add_u32 s12, s6, {sT0}\ns_addc_u32 s13, s7, 0", **kw)
        s.e(f"s_cmp_eq_u32 {sW}, 3\ns_cselect_b32 {sT1}, 0x40000000, 0\ns_cselect_b32 {sT2}, 0x2000000, 16", **kw)
        s.es(f"""s_mov_b32 s10, {(C-1)*REG + PB}
        s_mov_b32 s14, 143360
        v_and_b32 v42, 15, v0
        v_lshrrev_b32 v43, 4, v0
        v_lshrrev_b32 v44, 2, v0
        v_and_b32 v{vPL}, 3, v0
        v_lshlrev_b32 v{vPL}, 2, v{vPL}
        v_lshl_add_u32 v{vPL}, v44, 7, v{vPL}
        v_lshlrev_b32 v{vLD}, 4, v42
        v_lshl_add_u32 v{vLD}, v43, 11, v{vLD}
        v_add_u32 v{vLD2}, {sT1}, v{vLD}
        v_mul_u32_u24 v{vO1}, 896, v42
        v_and_b32 v44, 1, v43
        v_lshl_add_u32 v{vO2}, v44, 3, v{vO1}
        v_lshl_add_u32 v{vO1}, v43, 3, v{vO1}
        v_and_b32 v44, 32, v0
        v_lshl_add_u32 v{vO3}, v44, 25, v{vO2}
        v_mul_lo_u32 v44, v44, {sT2}
        v_add_u32 v{vO2}, v44, v{vO2}
        v_lshrrev_b32 v42, 1, v42
        v_and_b32 v44, 1, v0
        v_lshlrev_b32 v44, 4, v44
        v_mov_b32 v45, 0x3f80
        v_lshlrev_b32 v45, v44, v45
        s_mov_b32 {sHH}, {sH}""", **kw)
        if C == 2: s.es(f"v_add_u32 v{vLE}, 8192, v{vLD}\nv_add_u32 v{vLE2}, 8192, v{vLD2}", **kw)
        s.es(OWN, **kw)
        for r in range(8):
            s.e(f"v_cmp_eq_u32 s[98:99], {r}, v42\ns_nop 1\nv_cndmask_b32 v43, 0, v45, s[98:99]\nv_accvgpr_write_b32 a{SELA+r}, v43", cost=16, **kw)
    def owner(VL, VL2, fl=0):
        M16 = "v_mfma_f32_16x16x32_bf16"
        k.vm = []
        cnt = [0]
        def loads(vos, so, offs):
            L = []
            for o in offs:
                for vo in vos:
                    r = 64 + 4 * cnt[0]; cnt[0] += 1
                    k.vmem(f"buffer_load_dwordx4 {R('a', r, 4)}, v{vo}, {SRD_R}, {so} offen offset:{o} sc1", ('r', r))
                    L.append(r)
            return L
        def mm(acc, L, sels, first):
            for i, r in enumerate(L):
                k.wait(vm=[('r', r)])
                e(f"{M16} {R('v', acc, 4)}, {R('a', sels[i * len(sels) // len(L)], 4)}, {R('a', r, 4)}, {'0' if first and i == 0 else R('v', acc, 4)}")
        def outst(acc, vo, so, off):
            e(f"v_cvt_pk_bf16_f32 v{acc}, v{acc}, v{acc+1}\nv_cvt_pk_bf16_f32 v{acc+1}, v{acc+2}, v{acc+3}")
            k.vmem(f"buffer_store_dwordx2 {R('v', acc, 2)}, v{vo}, {SRD_O}, {so} offen offset:{off} {OPT['om'].replace('_', ' ')}", 'o')
        L4 = loads(VL, lS, [0])
        e(f"s_add_u32 {lS}, {lS}, {8*TS}")
        L5 = loads(VL2, lS, [0])
        e(f"s_add_u32 {lS}, {lS}, {6*TS}")
        L4 += loads(VL, lS, [0])
        e(f"s_add_u32 {lS}, {lS}, {8*TS}")
        L5 += loads(VL2, lS, [0])
        L0 = loads(VL, lP, [0, 512])
        e(f"s_add_u32 {lP}, {lP}, {4*TS}")
        L1 = loads(VL, lP, [0, 512])
        e(f"s_add_u32 {lP}, {lP}, {4*TS}")
        L2 = loads(VL, lP, [0, 512])
        L3 = loads(VL, lG, [0])
        if fl == 1:
            e(f"s_and_b32 {sT0}, {sH}, 3\ns_cselect_b32 s18, {PB}, 0")
            for st in (5, 6):
                for x in range(3):
                    for half in range(2):
                        k.vmem(f"buffer_store_dwordx4 {R('v', B(OB[st % 3][x])+4*half, 4)}, v{vS[x]}, {SCH if st == 5 else SWS}, {sQ[st]} offen offset:{half*1024} {OPT['flm'].replace('_', ' ')}", 'wb')
        if fl > 1:
            e(f"s_and_b32 {sT0}, s3, {fl}\ns_cbranch_scc1 L_nwb")
            k.vmem(f"buffer_wbl2 {OPT['flm']}", 'wb')
            e(f"s_branch L_nwb2\nL_nwb:\nbuffer_load_dword v{vPL}, off, {SFL}, 0\nL_nwb2:")
        D = [24, 28, 40, 44, 48]
        n = len(VL)
        mm(D[4], L4[:n], (SELA,), True); mm(D[4], L5[:n], (SELB,), False); mm(D[4], L4[n:], (SELA,), False); mm(D[4], L5[n:], (SELB,), False)
        mm(D[0], L0, (SELA, SELB), True); mm(D[1], L1, (SELA, SELB), True)
        outst(D[4], vO2, oS, 0)
        mm(D[2], L2, (SELA, SELB), True)
        outst(D[0], vO1, oP, 0)
        mm(D[3], L3, (SELA,), True)
        outst(D[1], vO1, oP, 256); outst(D[2], vO1, oP, 512); outst(D[3], vO3, oG, 768)
    def red_tail():
        e(f"""v_mov_b32 v{vFV}, 7
        s_cmp_gt_u32 {sNF}, 7
        s_waitcnt vmcnt(0)
        s_cbranch_scc1 L_fall
        buffer_store_dword v{vFV}, v{vZ}, {SFL}, s3 offen""")
        stamp()
        e(f"""L_fp:
        buffer_load_dword v{vPO}, v{vPL}, {SFL}, 0 offen sc1
        s_add_u32 {sCNT}, {sCNT}, 1
        s_cmp_ge_u32 {sCNT}, {1 << OPT['spin']}
        s_waitcnt vmcnt(0)
        v_cmp_gt_u32 vcc, 7, v{vPO}
        s_cbranch_scc1 L_fgo
        s_nop 0
        s_cbranch_vccnz L_fp
        L_fgo:""")
        stamp()
        owner([vLD, vLE][:4 // C], [vLD2, vLE2][:4 // C], OPT['fl'])
    def red_cold():
        for st in range(NF0, 7):
            e(f"""L_sp{st}:
            s_cmp_lt_u32 {st}, {sNF}
            s_cbranch_scc1 L_go{st}
            v_mov_b32 v{vPO}, {st}
            s_waitcnt vmcnt(0)
            buffer_store_dword v{vPO}, v{vZ}, {SFL}, s3 offen
            L_sq{st}:
            buffer_load_dword v{vPO}, off, {SFL}, {sPRED} sc1
            s_add_u32 {sCNT}, {sCNT}, 1
            s_cmp_ge_u32 {sCNT}, {1 << OPT['spin']}
            s_waitcnt vmcnt(0)
            v_cmp_gt_i32 vcc, {sS}, v{vPO}
            s_cbranch_scc1 L_go{st}
            s_nop 0
            s_cbranch_vccnz L_sq{st}
            s_branch L_go{st}""")
        e(f"""L_codeend:
        L_decide:
        s_cmp_lt_i32 {sV}, 0
        s_cbranch_scc1 L_apart
        s_cmp_eq_u32 {sV}, {sFAST}
        s_cbranch_scc1 L_decided
        s_or_b32 {sT0}, {sV}, 0x80000000
        v_mov_b32 v42, {sT0}
        v_mov_b32 v43, {sV}
        v_lshlrev_b32 v44, 23, v0
        buffer_atomic_cmpswap v[42:43], v44, {SDB}, 0 offen sc0 sc1
        s_waitcnt vmcnt(0)
        v_readfirstlane_b32 {sT0}, v42
        s_cmp_eq_u32 {sT0}, {sV}
        s_mov_b32 {sV}, {sT0}
        s_cbranch_scc0 L_decide
        L_apart:
        s_and_b32 {sT0}, {sH}, {C-1}
        s_mul_i32 {sT0}, {sT0}, {REG}
        s_add_u32 s28, s28, {sT0}
        s_addc_u32 s29, s29, 0
        s_mov_b32 {sNF}, 99
        s_branch L_decided
        L_fall:
        s_barrier
        buffer_wbl2 sc1
        s_lshl_b32 {sT0}, {sW}, 29
        v_add_u32 v44, {sT0}, v{vZ}
        v_mov_b32 v42, 1
        s_lshl_b32 {sT0}, {sW}, 8
        v_lshlrev_b32 v43, 2, v0
        s_waitcnt vmcnt(0)
        buffer_atomic_add v42, v44, {SDB}, 0 offen offset:4 sc0 sc1
        v_add_u32 v43, {sT0}, v43
        v_mov_b32 v44, 0
        s_waitcnt vmcnt(0)
        ds_write_b32 v43, v42
        s_waitcnt lgkmcnt(0)
        s_barrier
        ds_read_b32 v42, v44
        s_mov_b32 {sHH}, 0
        s_waitcnt lgkmcnt(0)
        v_readfirstlane_b32 {sT0}, v42
        s_cmp_lg_u32 {sT0}, 15
        s_cbranch_scc1 L_exit
        buffer_inv sc1""")
        offs = [r * REG + j * 8192 for r in range(C) for j in range(4 // C)]
        for i, o in enumerate(offs): e(f"v_add_u32 v{52+i}, {o}, v{vLD}\nv_add_u32 v{56+i}, {o}, v{vLD2}")
        e("s_waitcnt vmcnt(0)\ns_barrier\nL_all:")
        e(OWN)
        owner(range(52, 56), range(56, 60))
        e(f"s_add_u32 {sHH}, {sHH}, 1\ns_cmp_lt_u32 {sHH}, 16\ns_cbranch_scc1 L_all\ns_endpgm")
    for st in range(7):
        n = 16 + st
        p0 = s.nmf
        RB(f"RS{n}")
        if st == 0 and OPT['osb'] == 'WS16': WB('WS16', p0)
        if 1 <= st <= 4 and 'w' not in OPT['x'] and not OPT['dm']: stage_write(n + 2, st + 1, SLOT[n + 2], f"RS{n}", p0 - OPT['w0'] + OPT['sw'], va=(7 if SL[SLOT[n + 2]] >= 65536 else vWL), wp=3)
        if st == OPT['rs']: red_setup(p0)
        kw = dict(ab=f"RS{n}", bb=(f"RS{n+2}" if st <= 2 else None))
        la = LA[SL[SLOT[n]] >> 16]; off0 = SL[SLOT[n]] & 0xffff
        ob = [B(x) for x in OB[st % 3]]
        cb = 24 * (st & 1)
        chain = st >= NF0
        need = p0 + 40 - OPT['ap']
        if chain:
            s.vm(f"buffer_load_dword v{vPO}, off, {SFL}, {sPRED} sc1", cost=8, R=['#dec'], lat=0, early=need - OPT['pl'], dl=need - OPT['pl'] + 1)
            s.e(f"s_cmp_ge_u32 {st}, {sNF}\ns_cselect_b32 s18, {PB}, 0\ns_sub_u32 {sS}, {st+1}, {sNF}")
            if OPT['nochk']: s.add(Op('e', f"v_cmp_gt_i32 vcc, {sS}, v{vPO}\ns_nop 1\nL_go{st}:", cost=12, W=['#go'], minage=OPT['ca'], dl=need - OPT['pl'] + OPT['ca']))
            else: s.add(Op('e', f"v_cmp_gt_i32 vcc, {sS}, v{vPO}\ns_nop 1\ns_cbranch_vccnz L_sp{st}\nL_go{st}:", cost=12,
                     R=[f"#is{st-1}{x}{h}" for x in range(3) for h in range(2)] + [f"#pub{st-2}"], W=['#go', f"v{vPO}", sCNT], minage=OPT['ca'], dl=need - OPT['pl'] + OPT['ca']))
            for x in (0, 2, 1):
                for half in range(2):
                    if 'l' in OPT['x']: continue
                    s.vm(f"buffer_load_dwordx4 {R('a', cb + 8*x + 4*half, 4)}, v{vS[x]}, {SCH}, {sQ[st]} offen offset:{half*1024} sc1", cost=OPT['clc'], R=['#go'], lat=OPT['cl'], chain='vm' if OPT['dm'] else None)
            if OPT['dm'] and st <= 4: issue(dma_tile(n + 2, SLOT[n + 2], ab=f"RS{n}"), pace(p0 + OPT['dmo'], OPT['dmp']), lat=0)
        def add(x):
            for half in range(2): mf(R('v', ob[x], 16), R('v', SEL[half], 4), R('a', cb + 8*x + 4*half, 4), False)
        def store(x):
            for q in range(8): s.e(f"v_cvt_pk_bf16_f32 v{ob[x]+q}, v{ob[x]+2*q}, v{ob[x]+2*q+1}", dl=s.nmf + OPT['cvd'])
            for half in range(2):
                if 's' in OPT['x']: continue
                o = s.vm(f"buffer_store_dwordx4 {R('v', ob[x]+4*half, 4)}, v{vS[x]}, {SWS}, {sQ[st]} offen offset:{half*1024}",
                         cost=OPT['stc'], R=['#dec'], W=[f"#st{st}{x}{half}", f"#is{st}{x}{half}"], dl=s.nmf + OPT['cvd'] + 1, lat=0)
                o.asyncw.add(f"#st{st}{x}{half}")
        order = [(t, d2) for d2 in range(2) for t in range(2)] if st == 0 else [(t, d2) for t in range(2) for d2 in range(2)]
        for t, d2 in order:
            for jj in range(4):
                for half in range(2):
                    first = d2 == 0 and jj == 0 and half == 0
                    if chain:
                        if s.nmf == need: add(0); store(0)
                        if s.nmf == need + 4: add(2); store(2)
                        if s.nmf == need + 8: add(1)
                    a = tr(la[2 * jj + t], off0 + d2 * 16384 + half * 2048, 512, **kw)
                    mf(R('v', ob[t], 16), a, Ofrag(d2, jj, half), first)
                    if t == 0 and jj < 2:
                        if st == 0: rd128(QA[jj], 8192 + d2 * 8192 + half * 1024, Osh(d2, jj, half), ab=(OPT['osb'] if d2 else 'RS16'))
                        mf(R('v', ob[2], 16), a, Osh(d2, jj, half), first)
                        if not chain and d2 and jj and half: store(2)
            if not chain and t == 0 and d2: store(0)
        if chain and s.nmf == need + 8: add(1)
        assert s.nmf == p0 + (46 if chain else 40)
        store(1)
        if st < 7 - NF0:
            s.e(f"v_mov_b32 v{vFV}, {st+1}")
            s.vm(f"buffer_store_dword v{vFV}, v{vZ}, {SFL}, s3 offen", cost=8, R=[f"#st{st}{x}{h}" for x in range(3) for h in range(2)],
                 W=[f"#pub{st}"], minage=OPT['pa'], dl=s.nmf + 4 + OPT['pa'])
    s.build()
    s.run(budget=OPT['bud'], maxlg=OPT['maxlg'], delay=OPT['delay'], dsage=OPT['dsage'], maxds=OPT['maxds'])
    stamp()
    red_tail()
    if OPT['ts']:
        k.wait(vm0=True)
        stamp()
        e(f"""s_add_u32 s8, s4, 0x0ff00000
        s_addc_u32 s9, s5, 0
        s_mov_b32 s10, 0x100000
        s_cmp_lg_u32 {sW}, 0
        s_cbranch_scc1 L_exit
        s_mov_b64 exec, 1
        s_lshl_b32 s3, s2, 8
        v_mov_b32 v1, s3
        v_mov_b32 v2, {nst[0]}
        v_mov_b32 v3, 0
        buffer_store_dwordx2 v[2:3], v1, s[8:11], 0 offen""")
        for j in range(nst[0]):
            e(f"v_mov_b32 v4, s{sTS+2*j}\nv_mov_b32 v5, s{sTS+1+2*j}\nbuffer_store_dwordx2 v[4:5], v1, s[8:11], 0 offen offset:{8+8*j}\ns_nop 1")
        e("s_waitcnt vmcnt(0)")
    e("L_exit:\ns_endpgm")
    red_cold()
    for h, (src, mx) in enumerate(hooks):
        e(f"L_fix{h}:\ns_nop 7\ns_nop 7\ns_cmp_eq_u32 {sPASS}, 2\ns_cbranch_scc1 L_sub{h}")
        for q in range(0, 16, 2): e(f"v_max3_f32 v{mx}, v{src+q}, v{src+q+1}, v{mx}")
        e(f"s_branch L_ret{h}\nL_sub{h}:")
        for q in range(16): e(f"v_sub_f32 v{src+q}, v{src+q}, v{mx}")
        e(f"s_branch L_ret{h}")
    e(f"""L_slow:
    s_cmp_eq_u32 {sPASS}, 2
    s_cbranch_scc1 L_checked
    s_nop 7
    s_nop 7
    s_waitcnt vmcnt(0) lgkmcnt(0)
    s_barrier
    s_mov_b64 vcc, -1
    s_cmp_eq_u32 {sPASS}, 1
    s_cbranch_scc1 L_slow2
    s_mov_b32 {sPASS}, 1
    s_mov_b32 {sRNG}, 0
    v_mov_b32 v{vMP}, 0xff800000
    v_mov_b32 v{vMS}, 0xff800000
    s_branch L_start
    L_slow2:
    s_mov_b32 {sPASS}, 2
    s_mov_b32 {sLO}, 0
    s_mov_b32 {sRNG}, -1
    v_mov_b32 v42, v{vMP}
    v_mov_b32 v43, v{vMS}
    s_nop 1
    v_permlane32_swap_b32 v42, v{vMP}
    v_permlane32_swap_b32 v43, v{vMS}
    v_lshlrev_b32 v44, 2, v0
    s_lshl_b32 {sT0}, {sW}, 8
    v_max_f32 v{vMP}, v42, v{vMP}
    v_max_f32 v{vMS}, v43, v{vMS}
    v_add_u32 v45, {sT0}, v44
    ds_write_b32 v45, v{vMS}
    s_waitcnt lgkmcnt(0)
    s_barrier
    ds_read_b32 v42, v44
    ds_read_b32 v43, v44 offset:256
    ds_read_b32 v45, v44 offset:512
    ds_read_b32 v46, v44 offset:768
    s_waitcnt lgkmcnt(0)
    v_max3_f32 v{vMS}, v42, v43, v45
    v_max_f32 v{vMS}, v{vMS}, v46
    s_barrier
    s_branch L_start""")
    txt, added = k.text()
    est = s.est
    per = [sum(est[i:i + 40]) for i in range(0, len(est), 40)]
    print(f"main: {len(k.L)} lines, nops {added}, forced {s.forced}, mfma {len(est)}, est {sum(est)}; per40: {per}", file=sys.stderr)
    if OPT['verbose']:
        print("use:", s.use, file=sys.stderr)
        print("bars:", {n: o.gap for n, o in s.bars.items()}, file=sys.stderr)
    return txt

if __name__ == "__main__":
    out = sys.argv[1]
    sys.argv = sys.argv[:2] + ([f"ts={OPT['ts']}"] if OPT['ts'] else []) + ([f"diag={OPT['diag']}"] if OPT['diag'] else [])
    import gen
    m = main_kernel()
    nm = "mha_main_kernel" if OPT['diag'] else "standalone__mha_block_cached__near_ridge_kernel"
    L = [(nm, 256, 256, 163840)]; KS = [(nm, m, 512, 256)]
    if OPT['dup'] == 1: L.insert(0, L[0])
    if OPT['dup'] == 2:
        L.insert(0, ("mha_copy_kernel", 256, 256, 163840)); KS.append(("mha_copy_kernel", m.replace("L_", "M_"), 512, 256))
    if OPT['diag']:
        L.append(("mha_diag_kernel", 1, 64, 0)); KS.append(("mha_diag_kernel", gen.diag_kernel(), 64, 64))
    write_file(out, HEADER, L, KS)
```

```python
import sys, math, struct
sys.path.insert(0, "work")
from asmlib import K, write_file
from sch import Sched, Op

OPT = dict(wqm='', xm='', wom='', hs='', hg=0, p2=0, p2o=0, pq=0, pqm='', pw=0, pst=6, rm=0, rot=0, rotm=31, s2p=0, kwin=0, arr='L', ts=0, dump='', nt='nt', C=4, ap=8, pl=40, rs=2, pa=12, ca=12, cl=560, sp='13,14,15,15', so=26, sw=4, osb='RS16', nochk=0, rw=0, om='', fl=0, flm='sc1', vz=0, wop=0, de=0, dm=0, dmo=20, dmp=2, rsd=120, wo0=1, spp=2, p15=0, x='', stc=16, clc=12, cvd=3, bud=24, maxlg=14, delay=3, dsage=4, maxds=3,
           rb=9, wb=0, wage=6, dc=16, wc=16, lc=12,
           kpre=0, k0=0, kp=70, kp2=65, ksw=32, pair=1, tp=0, tpm='', stamps='RA3,RS0,RS8,RS16,RS22',
           w0=14, wp=2,
           dp=2, vp=3, verbose=0, fs=0, spin=20, lo=-20, hi=30, diag='', dup=0, cp=2, cpm='', cpf='RA3:RS1:242,RS3:RS8:16,RS10:RS16:46')
for a in sys.argv[2:]:
    if a.startswith('nt=') or a.startswith('pqm='): a = a.replace('_', ' ')
    kk, vv = a.split('=')
    assert kk in OPT, kk
    OPT[kk] = int(vv) if vv.lstrip('-').isdigit() else vv

C = OPT['C']; LC = C.bit_length() - 1
TSH = 15 - LC; TS = 1 << TSH
PB = 84 * TS
REG = 16 * PB
NF0 = 1 if C == 4 else 3
IIS, US, WSH = [(2048, 8192, 14), (8192, 32768, 11), (2048, 32768, 13), (16384, 2048, 12)][OPT['rm']]
HEADER = "".join(l for l in open("standalone__mha_block_cached__near_ridge.s.ref").read().splitlines(True)[:11])
MF = "v_mfma_f32_32x32x16_bf16"
def R(p, lo, n): return f"{p}[{lo}:{lo+n-1}]"
def f2u(x): return struct.unpack('<I', struct.pack('<f', x))[0]
SX, SK, SV, SWQ, SWO, SWS = "s[8:11]", "s[12:15]", "s[16:19]", "s[20:23]", "s[24:27]", "s[28:31]"
sW, sB, sH = "s32", "s33", "s34"
sT0, sT1, sT2 = "s36", "s37", "s38"
sC = "s39"
sWQO, sXO, sM8, sM1, sW16 = "s40", "s41", "s42", "s43", "s44"
sPP = [f"s{47+i}" for i in range(7)]
sQ = ["s20", "s21", "s22", "s23", "s40", "s41", "s45"]
sNF, sPRED, sFAST, sV, sCNT = "s46", "s54", "s94", "s100", "s101"
SCH = "s[16:19]"
sD, sL, sS = "s55", "s56", "s35"
sPASS, sLO, sRNG = "s57", "s58", "s59"
sTS = 68
SFL, SDB = 's[60:63]', 's[64:67]'
FLOFF = C * REG
XB = 96 * 1024
S4 = 128 * 1024
SL = dict(a=32768, b=65536, c=0, d=98304)
def B(i): return 48 + 16 * i
vSP, vSS, vMP, vMS = 38, 39, 40, 41

def main_kernel():
    k = K(); e = k.e
    s = Sched(k)
    nst = [0]
    TSI = 's_memtime' if OPT['ts'] == 2 else 's_memrealtime'
    def stamp():
        if OPT['ts']:
            k.wait(lg0=True)
            e(f"{TSI} s[{sTS+2*nst[0]}:{sTS+1+2*nst[0]}]\ns_waitcnt lgkmcnt(0)")
            nst[0] += 1
    def dump(name, regs):
        if OPT['dump'] != name: return
        def fn(op):
            e("s_nop 7\ns_nop 7\ns_waitcnt vmcnt(0) lgkmcnt(0)")
            e(f"s_mul_i32 {sT0}, {sB}, 64\ns_lshl_b32 {sT1}, {sH}, 2\ns_add_u32 {sT0}, {sT0}, {sT1}\ns_add_u32 {sT0}, {sT0}, {sW}\ns_lshl_b32 {sT0}, {sT0}, 17")
            e("s_add_u32 s8, s4, 0x4000000\ns_addc_u32 s9, s5, 0\ns_mov_b32 s10, 0x8000000\ns_mov_b32 s11, 0x00020000")
            e("v_lshlrev_b32 v0, 2, v0")
            for i, r in enumerate(regs):
                e(f"buffer_store_dword {r}, v0, s[8:11], {sT0} offen\ns_add_u32 {sT0}, {sT0}, 256")
                if i % 32 == 31: e("s_waitcnt vmcnt(0)")
            e("s_waitcnt vmcnt(0)\ns_branch L_exit")
        s.add(Op('e', 's_nop 0', R=regs, W=regs, fn=fn, dl=s.nmf))

    if OPT['ts']:
        e(f"{TSI} s[{sTS}:{sTS+1}]"); nst[0] = 1
    e(f"""
    s_cmp_ge_u32 s2, 256
    s_cbranch_scc1 L_exit
    v_lshrrev_b32 v1, 6, v0
    v_and_b32 v0, 63, v0
    s_mov_b32 {sPASS}, 0
    v_readfirstlane_b32 {sW}, v1
    s_mov_b64 vcc, 0
    s_mov_b32 {sLO}, 0x{(127 + OPT['lo']) << 23:08x}
    s_mov_b32 {sRNG}, 0x{(OPT['hi'] - OPT['lo']) << 23:08x}
    L_start:
    s_load_dwordx2 s[8:9], s[0:1], 0
    s_load_dwordx2 s[20:21], s[0:1], 24
    s_load_dwordx2 s[12:13], s[0:1], 8
    s_load_dwordx2 s[16:17], s[0:1], 16
    s_load_dwordx2 s[24:25], s[0:1], 32
    s_load_dwordx2 s[4:5], s[0:1], 56
    s_load_dwordx2 s[6:7], s[0:1], 40
    s_load_dwordx2 s[64:65], s[0:1], 48
    s_and_b32 {sT0}, s2, 7
    s_lshr_b32 {sT1}, s2, 3
    """)
    arr = OPT['arr']
    if arr == 'N':
        e(f"""s_lshr_b32 {sB}, {sT0}, 1
        s_lshl_b32 {sB}, {sB}, 2
        s_lshr_b32 {sT2}, {sT1}, 3
        s_add_u32 {sB}, {sB}, {sT2}
        s_and_b32 {sH}, {sT0}, 1
        s_lshl_b32 {sH}, {sH}, 3
        s_and_b32 {sT2}, {sT1}, 7
        s_add_u32 {sH}, {sH}, {sT2}""")
    elif arr == 'L':
        e(f"""s_lshl_b32 {sB}, {sT0}, 1
        s_lshr_b32 {sT2}, {sT1}, 4
        s_add_u32 {sB}, {sB}, {sT2}
        s_and_b32 {sH}, {sT1}, 15""")
    elif arr == 'M':
        e(f"""s_lshr_b32 {sB}, {sT0}, 2
        s_lshl_b32 {sB}, {sB}, 3
        s_lshr_b32 {sT2}, {sT1}, 2
        s_add_u32 {sB}, {sB}, {sT2}
        s_and_b32 {sH}, {sT0}, 3
        s_lshl_b32 {sH}, {sH}, 2
        s_and_b32 {sT2}, {sT1}, 3
        s_add_u32 {sH}, {sH}, {sT2}""")
    e(f"""
    s_mov_b32 s10, 143360
    s_mov_b32 s11, 0x00020000
    s_mov_b32 s23, 0x00020000
    s_lshl_b32 {sM8}, {sW}, 13
    s_lshl_b32 {sM1}, {sW}, 10
    s_lshl_b32 {sWQO}, {sW}, 17
    s_mul_i32 {sXO}, {sW}, 7168
    v_lshrrev_b32 v44, 5, v0                 ; hh
    v_and_b32 v45, 31, v0                    ; c
    v_lshlrev_b32 v1, 2, v44
    v_xor_b32 v1, v1, v45
    v_lshlrev_b32 v1, 4, v1
    v_lshl_add_u32 v2, v44, 13, v1
    v_xor_b32 v3, 0x80, v2
    v_add_u32 v3, 15360, v3
    v_add_u32 v4, 30720, v2
    v_add_u32 v5, 30720, v3
    s_and_b32 {sT2}, {sW}, 1
    s_lshl_b32 {sT0}, {sT2}, 2
    v_lshrrev_b32 v6, 4, v0
    v_xor_b32 v6, {sT0}, v6
    v_and_b32 v1, 7, v0
    v_xor_b32 v6, v6, v1
    v_lshlrev_b32 v6, 4, v6
    v_lshrrev_b32 v1, 3, v0
    v_mul_u32_u24 v1, 896, v1
    v_add_u32 v6, v6, v1                     ; x voff
    s_mul_i32 {sT0}, {sB}, 143360
    s_lshl_b32 {sT1}, {sH}, 9
    s_waitcnt lgkmcnt(0)
    s_add_u32 s8, s8, {sT0}
    s_addc_u32 s9, s9, 0
    s_add_u32 s20, s20, {sT1}
    s_addc_u32 s21, s21, 0
    s_sub_u32 s22, 3670016, {sT1}
    """)
    dc, lc = OPT['dc'], OPT['lc']
    def vmop(text, **kw):
        n = text.count('\n')
        return s.vm(text, cost=kw.pop('cost', dc) + 4 * n, chain=kw.pop('chain', 'vm'), **kw)
    def pace(e0, p):
        i = 0
        while True:
            x = e0 + int(i * p)
            yield dict(early=x, dl=x + 2)
            i += 1
    def dma_stage(i, pc=None, **kw):
        L = []
        slot = (i % 3) * 32768; xs = XB + (i % 3) * 20480
        for u in range(2):
            for ii in range(4):
                t = f"s_add_u32 m0, {sM8}, {slot + u*4096}\ns_add_u32 {sD}, {sWQO}, {(i << 19) + u*65536}\n" if ii == 0 else ""
                L.append(t + f"buffer_load_dwordx4 v{2+ii}, {SWQ}, {sD} offen offset:{ii*1024} {OPT['wqm']} lds")
        X = []
        for u in range(5):
            X.append(f"s_add_u32 m0, {sM1}, {xs + u*4096}\ns_add_u32 {sD}, {sXO}, {i*128 + u*4*7168}\nbuffer_load_dwordx4 v6, {SX}, {sD} offen {OPT['xm']} lds")
        return [(t, dict(bb=f"RA{i}", **kw)) for t in L + X]
    def dma_tile(n, slot, **kw):
        L = []
        for u in range(2):
            for ii in range(4):
                if n < 16:
                    i, dh = (n >> 1, n & 1) if n < 8 else ((n - 8) & 3, (n - 8) >> 2)
                    if n >= 8 and OPT['vz']: dh = 0
                    so = f"{sW16}, {i*65536 + dh*256 + u*US}" if n < 8 or 'c' not in OPT['x'] else f"{sM8}, {(n-8)*32768 + u*4096}"; vo = (8 if n < 8 else 2) + ii; srd = SK if n < 8 else SV; m = OPT['nt']
                else:
                    so = f"{sPP[n-16]}, {32*u*896}"; vo = 8 + ii; srd = SWO; m = OPT['wom']
                t = f"s_add_u32 m0, {sM8}, {SL[slot] + u*4096}\n{'s_xor_b32' if n < 16 else 's_add_u32'} {sD}, {so}\n" if ii == 0 else ""
                L.append(t + f"buffer_load_dwordx4 v{vo}, {srd}, {sD} offen offset:{ii*1024} {m} lds")
        return [(t, dict(bb=f"RS{n}", **kw)) for t in L]
    def stage_load(tiles, **kw):
        L = []
        for u in range(2):
            for ii in range(4):
                for x, (n, r) in enumerate(tiles):
                    i, dh = (n >> 1, n & 1) if n < 8 else ((n - 8) & 3, (n - 8) >> 2)
                    if n >= 8 and (OPT['vz'] or 'c' in OPT['x']): dh = 0
                    t = f"s_xor_b32 {sL}, {sW16}, {i*65536 + u*US}\n" if ii == 0 and x == 0 else ""
                    if t and n >= 8 and 'c' in OPT['x']: t = f"s_add_u32 {sL}, {sM8}, {(n-8)*32768 + u*4096}\n"
                    vo = (8 if n < 8 else 2) + ii; srd = SK if n < 8 else SV
                    L.append(t + f"buffer_load_dwordx4 {R('a', 32*r + 16*u + 4*ii, 4)}, v{vo}, {srd}, {sL} offen offset:{ii*1024 + dh*256} {OPT['nt']}")
        return [(t, dict(cost=lc, **kw)) for t in L]
    def stage_wo(n, r, **kw):
        L = []
        for u in range(2):
            for ii in range(4):
                t = f"s_add_u32 {sS}, {sPP[n-16]}, {32*u*896}\n" if ii == 0 else ""
                L.append(t + f"buffer_load_dwordx4 {R('a', 32*r + 16*u + 4*ii, 4)}, v{8+ii}, {SWO}, {sS} offen offset:{ii*1024}")
        return [(t, dict(cost=lc, chain='vm2', **kw)) for t in L]
    def issue(L, pc=None, **kw):
        for t, a in L:
            a = dict(a); a.update(kw)
            if pc is not None: a.update(next(pc))
            vmop(t, **a)
    wbase = [32768]
    def stage_write(n, r, slot, ab, p0, va=7, wp=None):
        for u in range(2):
            for ii in range(4):
                off = SL[slot] - (wbase[0] if va == 7 else 0) + u * 4096 + ii * 1024
                assert 0 <= off < 65536
                x = p0 + OPT['w0'] + (wp or OPT['wp']) * (4 * u + ii)
                s.ds(f"ds_write_b128 v{va}, {R('a', 32*r + 16*u + 4*ii, 4)} offset:{off}", cost=OPT['wc'], ab=ab, bb=f"RS{n}", early=x, dl=x + 1)
    P = dict(pre=True)
    def pwq():
        st = OPT['pst']
        s.es(f"""s_lshl_b32 {sT0}, s2, 2
        s_add_u32 {sT0}, {sT0}, {sW}
        s_lshl_b32 {sT0}, {sT0}, {6+st}
        s_lshl_b32 {sT1}, {sH}, 9
        s_sub_u32 {sT0}, {sT0}, {sT1}
        v_lshlrev_b32 v248, {st}, v0
        s_lshl_b32 {sT1}, {sH}, 2
        s_add_u32 {sT1}, {sT1}, {sW}
        s_lshl_b32 {sT1}, {sT1}, {6+st}
        v_add_u32 v249, {sT1}, v248
        v_add_u32 v248, {sT0}, v248""", **P)
        vmop(f"buffer_load_dword v248, v248, {SWQ}, 0 offen {OPT['pqm']}", **P)
        if OPT['pq'] < 4: vmop(f"buffer_load_dword v249, v249, {SX}, 0 offen {OPT['pqm']}", **P)
    if OPT['pq'] & 3 == 1: pwq()
    issue(dma_stage(0), **P)
    if OPT['pq'] & 3 == 2: pwq()
    s.es(f"""
    s_lshl_b32 {sT0}, {sB}, 4
    s_add_u32 {sT0}, {sT0}, {sH}
    s_lshl_b32 {sT0}, {sT0}, 18""", **P)
    s.e(f"s_add_u32 s16, s16, {sT0}\ns_addc_u32 s17, s17, 0\ns_add_u32 s12, s12, {sT0}\ns_addc_u32 s13, s13, 0", **P)
    s.es(f"""
    s_mov_b32 s14, 262144
    s_mov_b32 s15, 0x00020000
    s_mov_b32 s18, 262144
    s_mov_b32 s19, 0x00020000
    s_lshl_b32 {sW16}, {sW}, {WSH}""", **P)
    if OPT['rot']:
        s.es(f"""s_lshr_b32 {sT0}, {sT0}, {18 + OPT['rot'] - 1}
        s_and_b32 {sT0}, {sT0}, {OPT['rotm']}
        s_lshl_b32 {sT0}, {sT0}, {13 if OPT['rotm'] > 3 else 16}
        s_xor_b32 {sW16}, {sW16}, {sT0}""", **P)
    issue(dma_stage(1), **P)
    if OPT['pq'] & 3 == 3: pwq()
    s.es(f"""
    v_bfe_u32 v1, v0, 4, 1
    v_and_b32 v8, 7, v0
    v_xor_b32 v8, v8, v1
    v_lshlrev_b32 v8, 4, v8
    v_lshl_add_u32 v8, v44, 7, v8
    v_bfe_u32 v1, v0, 3, 2
    v_lshl_add_u32 v8, v1, 9, v8
    v_xor_b32 v9, {1024+32}, v8
    v_xor_b32 v10, {2048+64}, v8
    v_xor_b32 v11, {3072+96}, v8""".replace(f"v_xor_b32 v9, {1024+32}, v8", f"v_xor_b32 v9, 32, v8\nv_add_u32 v9, {IIS-1024}, v9")
       .replace(f"v_xor_b32 v10, {2048+64}, v8", f"v_xor_b32 v10, 64, v8\nv_add_u32 v10, {2*(IIS-1024)}, v10")
       .replace(f"v_xor_b32 v11, {3072+96}, v8", f"v_xor_b32 v11, 0x60, v8\nv_add_u32 v11, {3*(IIS-1024)}, v11"), **P)
    KL = stage_load([(0, 0), (1, 1)]) + stage_load([(2, 2), (3, 3)]) + stage_load([(4, 4), (5, 5)]) + stage_load([(6, 6)])
    if not OPT['pair']: KL = sum([stage_load([(n, n)]) for n in range(7)], [])
    if OPT['tp']:
        s.es(f"v_and_b32 v241, 15, v0\nv_lshlrev_b32 v241, 12, v241\ns_lshl_b32 {sL}, {sW}, 16", **P)
        vmop(f"buffer_load_dword v240, v241, {SK}, {sL} offen {OPT['tpm']}", **P)
        if OPT['tp'] > 1: vmop(f"buffer_load_dword v242, v241, {SV}, {sL} offen {OPT['tpm']}", **P)
    def cpref(lab, tmp, st, n=1, **kw):
        a, b = f"v{tmp}", f"v{tmp+1}"
        for j in range(n):
            s.add(Op('e', f"s_lshl_b32 s98, {sW}, {6+st}\ns_add_u32 s98, s98, {lab}-L_pc+{j*(256<<st)}\nv_lshlrev_b32 {a}, {st}, v0\nv_add_u32 {a}, s98, {a}\nv_min_u32 {a}, s95, {a}", cost=20, **kw))
            s.add(Op('e', f"v_mov_b32 {b}, s97\nv_add_co_u32 {a}, s[98:99], s96, {a}\ns_nop 1\nv_addc_co_u32 {b}, s[98:99], 0, {b}, s[98:99]", W=['s98', 's99'], cost=20, **kw))
            s.add(Op('vm', f"global_load_dword {a}, v[{tmp}:{tmp+1}], off {OPT['cpm']}", cost=16, **kw))
    if OPT['cp']:
        s.e(f"s_getpc_b64 s[96:97]\nL_pc:\ns_mov_b32 s95, L_codeend-L_pc-4", **P)
        if OPT['cp'] == 1:
            cpref('L_pc', 242, 7, 1, **P); cpref('L_pc+32768', 244, 7, 1, **P)
        else: cpref('L_pc', 242, 6, 1, **P)
    s.e(f"s_lshl_b32 {sT0}, {sB}, 11\ns_add_u32 {sT0}, {sT0}, {FLOFF}\ns_add_u32 s60, s4, {sT0}\ns_addc_u32 s61, s5, 0", **P)
    s.e(f"s_lshl_b32 {sT0}, {sB}, 4\ns_add_u32 s64, s64, {sT0}\ns_addc_u32 s65, s65, 0", **P)
    s.es(f"""s_mov_b32 s62, 2048
    s_mov_b32 s63, 0x00020000
    s_mov_b32 s66, 16
    s_mov_b32 s67, 0x00020000
    s_lshl_b32 s3, {sH}, 7
    s_lshl_b32 {sT0}, {sW}, 2
    s_add_u32 s3, s3, {sT0}
    v_lshlrev_b32 v247, 23, v0
    v_mov_b32 v245, 0""", **P)
    vmop(f"buffer_store_dword v245, v247, {SFL}, s3 offen", bb='RA2', **P)
    if OPT['s2p']: issue(dma_stage(2), **P)
    issue(KL[:OPT['kpre']], **P)
    KL = KL[OPT['kpre']:]
    s.e(f"s_mul_i32 {sT0}, {sH}, 229376\ns_add_u32 s24, s24, {sT0}\ns_addc_u32 s25, s25, 0", **P)
    s.e(f"s_mul_i32 {sT0}, {sB}, {PB}\ns_lshr_b32 {sT1}, {sH}, {LC}\ns_lshl_b32 {sT1}, {sT1}, 11\ns_add_u32 {sT0}, {sT0}, {sT1}\ns_add_u32 s28, s4, {sT0}\ns_addc_u32 s29, s5, 0", **P)
    s.es(f"""
    s_mov_b32 s26, 229376
    s_mov_b32 s27, 0x00020000
    s_mov_b32 s30, {PB}
    s_mov_b32 s31, 0x00020000
    s_mov_b32 {sC}, 0x{f2u(math.log2(math.e)/16):08x}
    """, **P)
    if OPT['pw'] == -1:
        s.es(f"""s_lshl_b32 {sT0}, {sB}, 2
        s_add_u32 {sT0}, {sT0}, {sW}
        s_lshl_b32 {sT0}, {sT0}, {6+OPT['pst']}
        v_lshlrev_b32 v250, {OPT['pst']}, v0
        v_add_u32 v250, {sT0}, v250""", **P)
        vmop(f"buffer_load_dword v250, v250, {SWO}, 0 offen", **P)
    s.es(f"""
    v_bfe_u32 v47, v0, 2, 2
    v_lshl_add_u32 v43, v44, 3, v47
    v_bfe_u32 v1, v0, 4, 1
    v_lshlrev_b32 v46, 5, v1
    v_and_b32 v1, 1, v0
    v_lshl_add_u32 v46, v1, 4, v46
    v_bfe_u32 v1, v0, 1, 1
    v_lshl_add_u32 v46, v1, 3, v46
    v_lshl_add_u32 v1, v47, 6, v46
    s_lshl_b32 {sT0}, {sW}, 6
    v_lshl_add_u32 v12, v43, 9, v1
    v_xor_b32 v12, {sT0}, v12
    v_xor_b32 v13, 64, v12
    v_xor_b32 v14, 0x80, v12
    v_xor_b32 v15, 0xc0, v12
    v_bfe_u32 v1, v0, 1, 3
    v_xor_b32 v1, v1, v44
    v_lshlrev_b32 v1, 4, v1
    v_lshl_add_u32 v1, v45, 7, v1
    v_add_u32 v20, {XB + 128*128}, v1
    s_lshl_b32 {sT0}, {sW}, 12
    s_add_u32 {sT0}, {sT0}, {XB}
    v_add_u32 v16, {sT0}, v1
    v_xor_b32 v17, 32, v16
    v_xor_b32 v18, 64, v16
    v_xor_b32 v19, 0x60, v16
    v_xor_b32 v21, 32, v20
    v_xor_b32 v22, 64, v20
    v_xor_b32 v23, 0x60, v20
    """, **P)
    s.es(f"""
    v_and_b32 v42, 0x13, v0
    v_bfe_u32 v1, v0, 2, 1
    v_lshl_or_b32 v42, v1, 3, v42
    v_bfe_u32 v1, v0, 3, 1
    v_lshl_or_b32 v42, v1, 2, v42
    v_bfe_u32 v1, v42, 1, 3
    v_xor_b32 v1, v1, v44
    v_lshlrev_b32 v1, 4, v1
    v_and_b32 v24, 3, v42
    v_lshl_add_u32 v1, v24, 7, v1
    v_lshrrev_b32 v24, 2, v42
    v_lshl_add_u32 v1, v24, 10, v1
    s_add_u32 {sT0}, {sM8}, 32768
    v_add_u32 v32, {sT0}, v1
    v_xor_b32 v33, 32, v32
    v_xor_b32 v34, 64, v32
    v_xor_b32 v35, 0x60, v32
    s_lshr_b32 {sT1}, {sW}, 1
    s_lshl_b32 {sT1}, {sT1}, 9
    s_and_b32 {sT2}, {sW}, 1
    s_lshl_b32 {sT2}, {sT2}, 6
    s_add_u32 {sT1}, {sT1}, {sT2}
    s_add_u32 {sT1}, {sT1}, 32768
    v_xor_b32 v24, {sT1}, v1
    """, **P)
    for jj in range(4):
        for half in range(2):
            if jj or half: s.e(f"v_xor_b32 v{24+2*jj+half}, {(jj>>1)*512 + (jj&1)*64 + half*32}, v24", **P)
    s.es(f"""
    v_lshlrev_b32 v1, 4, v0
    v_add_u32 v7, {sT0}, v1
    v_add_u32 v36, {S4}, v1
    s_lshl_b32 {sT0}, {sW}, 11
    v_add_u32 v37, {sT0}, v36
    """, **P)
    s.es(f"""s_getreg_b32 {sT0}, hwreg(HW_REG_XCC_ID, 0, 3)
    s_mul_i32 {sT1}, {sT0}, {sT0}
    s_lshl_b32 {sT1}, {sT1}, 8
    s_add_u32 {sT0}, {sT0}, {sT1}
    s_lshl_b32 {sT0}, {sT0}, 8
    s_add_u32 {sT0}, {sT0}, 1
    s_lshl_b32 {sFAST}, {sT0}, 4
    s_lshl_b32 {sT1}, {sW}, 29
    v_add_u32 v244, {sT1}, v247""", dl=20)
    if OPT['fs']: s.e(f"s_add_u32 {sFAST}, {sFAST}, 1")
    s.e(f"s_cmp_eq_u32 {sPASS}, 0\ns_cselect_b32 {sT0}, {sT0}, 0", dl=20)
    s.e(f"v_mov_b32 v246, {sT0}", dl=20)

    ringc = [0]
    def ring():
        r = 224 + 4 * (ringc[0] % 8); ringc[0] += 1
        return r
    STAMPS = set(OPT['stamps'].split(','))
    CPF = dict(x.split(':', 1) for x in OPT['cpf'].split(',') if x)
    def RB(name):
        def fn():
            e(f"L_{name}:")
            if name in STAMPS: stamp()
        s.bar(name, fn=fn, early=s.nmf - OPT['rb'])
        if OPT['cp'] > 1 and name in CPF:
            lab, tmp = CPF[name].split(':')
            cpref('L_' + lab, int(tmp), 6, 1, early=s.nmf, dl=s.nmf + 4)
    def WB(name, p0):
        s.bar(name, early=p0 + OPT['wb'], lgage=OPT['wage'], dl=p0 + OPT['wb'] + 2)
    def rebase(regs, delta):
        for r in regs:
            s.e(f"v_add_u32 v{r}, {delta}, v{r}" if delta > 0 else f"v_subrev_u32 v{r}, {-delta}, v{r}")
    def tr(ar, off, d2, **kw):
        r = ring()
        s.rd(f"ds_read_b64_tr_b16 {R('a', r, 2)}, v{ar} offset:{off}", **kw)
        s.rd(f"ds_read_b64_tr_b16 {R('a', r+2, 2)}, v{ar} offset:{off+d2}", **kw)
        return R('a', r, 4)
    def rd128(ar, off, dst=None, **kw):
        if dst is None: dst = R('a', ring(), 4)
        s.rd(f"ds_read_b128 {dst}, v{ar} offset:{off}", **kw)
        return dst
    def mf(acc, a, b, first): s.mf(f"{MF} {acc}, {a}, {b}, {'0' if first else acc}")

    def qconv(src, j):
        for q in range(16): s.e(f"v_mul_f32 v{src+q}, {sC}, v{src+q}")
        for q in range(8): s.e(f"v_cvt_pk_bf16_f32 v{src+2*q}, v{src+2*q}, v{src+2*q+1}")
        for q in range(8): s.e(f"v_accvgpr_write_b32 a{8*j+q}, v{src+2*q}")
    def pack_write(src, off, ab, bb):
        for q in range(8): s.e(f"v_cvt_pk_bf16_f32 v{src+q}, v{src+2*q}, v{src+2*q+1}")
        for half in range(2):
            s.ds(f"ds_write_b128 v37, {R('v', src+4*half, 4)} offset:{off + half*1024}", cost=OPT['wc'], ab=ab, bb=bb)
    JORD = [0, 4, 1, 2, 3, 5, 6, 7]
    trb = 0
    gx = [float(OPT['k0']), 0]
    def gpace(e0, p=0):
        while True:
            gx[0] = max(gx[0], e0)
            x = int(gx[0]); gx[1] += 1
            gx[0] += (p or (OPT['kp'] if gx[1] + OPT['kpre'] < OPT['ksw'] else OPT['kp2'])) / 10
            yield dict(early=x, dl=x + 2)
    kpc = gpace(0)
    kq = [(t, dict(a, **next(kpc))) for t, a in KL]
    def merged(L, upto):
        M = list(L)
        while kq and kq[0][1]['early'] < upto:
            t, a = kq.pop(0)
            if L and OPT['kwin']:
                x = upto - 40 + OPT['kwin'] + (a['early'] - upto + 40) * (40 - OPT['kwin']) // 40
                a = dict(a, early=x, dl=x + 2)
            M.append((t, a))
        M.sort(key=lambda x: x[1]['early'])
        issue(M)
    for i in range(7):
        p0 = s.nmf
        slot = (i % 3) * 32768; xs = (i % 3) * 20480
        RB(f"RA{i}")
        if i >= 1: WB(f"WA{i}", p0)
        L = []
        if i <= 4 and not (i == 0 and OPT['s2p']):
            pc = pace(p0 + (1 if i else -1), OPT['dp'])
            L = [(t, dict(a, **next(pc))) for t, a in dma_stage(i + 2, ab=(f"WA{i}" if i else None))]
        merged(L, p0 + 40 if i < 6 else 10**9)
        if i == 2: s.vm(f"buffer_atomic_add v246, v244, {SDB}, 0 offen sc1", cost=8, ab='RA2', dl=p0 + 20)
        if i == 5: stage_write(0, 0, 'a', 'WA5', p0)
        if i == 6: stage_write(1, 1, 'b', 'WA6', p0 - OPT['w0'] + 2)
        want = slot & 0x10000
        if want != trb: rebase(range(12, 16), want - trb); trb = want
        kw = dict(ab=f"RA{i}", bb=(f"WA{i+1}" if i < 6 else "WS0"))
        def step(j, T, newx):
            xb = B(10) + 8 * T
            if newx: rd128(16 + T, xs, R('v', xb, 4), **kw)
            a = tr(12 + (j & 3), slot - trb + (j >> 2) * 256 + T * 8192, 2048, **kw)
            mf(R('v', B(j), 16), a, R('v', xb, 4), i == 0 and T == 0)
            if j in (0, 4):
                if newx: rd128(20 + T, xs, R('v', xb + 4, 4), **kw)
                mf(R('v', B(8 + (j >> 2)), 16), a, R('v', xb + 4, 4), i == 0 and T == 0)
        if i < 6:
            for T in range(4):
                for j in JORD: step(j, T, j == 0)
        else:
            for j in range(8):
                for T in range(4): step(j, T, j == 0)
                if OPT['dump'] == 'Q': continue
                if j in (0, 4):
                    sh = B(8 + (j >> 2))
                    for q in range(16): s.e(f"v_mul_f32 v{sh+q}, {sC}, v{sh+q}")
                    pack_write(sh, 16384 + (j >> 2) * 8192, 'WA6', f"RS{j>>2}")
                qconv(B(j), j)
    dump('Q', [f"v{r}" for r in range(B(0), B(10))])
    s.es(f"""
    v_lshrrev_b32 v42, 4, v0
    v_lshlrev_b32 v3, 2, v42
    v_and_b32 v2, 15, v0
    v_xor_b32 v2, v2, v3
    v_lshlrev_b32 v2, 4, v2
    v_lshl_add_u32 v2, v42, {8 if 'c' in OPT['x'] else 9}, v2
    {f"s_lshr_b32 {sT0}, {sH}, {OPT['vz']-1}" if OPT['vz'] else ''}
    {f"s_and_b32 {sT0}, {sT0}, 1" if OPT['vz'] else ''}
    {f"v_lshl_add_u32 v2, {sT0}, 8, v2" if OPT['vz'] else ''}
    v_add_u32 v3, {0 if 'c' in OPT['x'] else IIS-1024}, v2
    v_add_u32 v4, {0 if 'c' in OPT['x'] else 2*(IIS-1024)}, v2
    v_add_u32 v5, {0 if 'c' in OPT['x'] else 3*(IIS-1024)}, v2
    v_lshl_add_u32 v45, v47, 6, v46
    v_lshl_add_u32 v45, v43, 8, v45
    s_lshl_b32 {sT0}, {sW}, 6
    s_add_u32 {sT0}, {sT0}, 65536
    v_xor_b32 v12, {sT0}, v45
    v_xor_b32 v13, 64, v12
    v_xor_b32 v14, 0x80, v12
    v_xor_b32 v15, 0xc0, v12
    """)

    SLOT = {0: 'a', 1: 'b', 2: 'a', 3: 'b', 4: 'a', 5: 'b', 6: 'a', 7: 'c', 8: 'd', 9: 'b', 10: 'd', 11: 'b', 12: 'a', 13: 'c', 14: 'd', 15: 'b',
            16: 'a', 17: 'c', 18: 'd', 19: 'b', 20: 'a', 21: 'c', 22: 'd'}
    TB = [[12, 11, 8, 10, 0], [1, 2, 3, 4, 5], [6, 7, 9, 11, 0], [5, 2, 4, 7, 10]]
    hooks = []
    firsts = {vSP: True, vSS: True}
    def softmax(g, t):
        src = B(TB[g][t]); regs = [f"v{src+q}" for q in range(16)]
        mx, sm = (vMP, vSP) if t < 4 else (vMS, vSS)
        h = len(hooks); hooks.append((src, mx))
        s.add(Op('e', f"s_cbranch_vccnz L_fix{h}\nL_ret{h}:", cost=8, R=regs + ['vcc', f"v{mx}"], W=regs + [f"v{mx}"]))
        for q in range(16):
            s.e(f"v_exp_f32 v{src+q}, v{src+q}")
        for q in range(16):
            if firsts[sm]:
                if q == 0: continue
                s.e(f"v_add_f32 v{sm}, v{src}, v{src+1}"); firsts[sm] = False
            else: s.e(f"v_add_f32 v{sm}, v{sm}, v{src+q}")
        if t < 4:
            dst = B(TB[g][t & 2]) + 8 * (t & 1)
            for q in range(8): s.e(f"v_cvt_pk_bf16_f32 v{dst+q}, v{src+2*q}, v{src+2*q+1}")
        else:
            pack_write(src, g * 8192, ['RS0', 'RS0', 'WS7', 'WS8'][g], f"RS{8+g}")
    def Pfrag(g, ks): return R('v', B(TB[g][(ks >> 1) & 2]) + 4 * (ks & 3), 4)
    kb = 32768
    vp = OPT['vp']
    for n in range(8):
        p0 = s.nmf
        g, dh = n >> 1, n & 1
        RB(f"RS{n}")
        if n != 6: WB(f"WS{n}", p0)
        if n == 0: issue(dma_tile(7, 'c', ab='WS0') + dma_tile(8, 'd', ab='WS0'), gpace(p0 + 1))
        if 1 <= n <= 5: stage_write(n + 1, n + 1, SLOT[n + 1], f"WS{n}", p0)
        if 1 <= n <= 3: issue(stage_load([(8 + n, n + 1)]), gpace(p0 + OPT['w0'] + 6))
        if n == 5: rebase([7], 32768); wbase[0] = 65536
        if OPT['pw'] and n == OPT['pw']:
            s.es(f"""s_lshl_b32 {sT0}, {sB}, 2
            s_add_u32 {sT0}, {sT0}, {sW}
            s_lshl_b32 {sT0}, {sT0}, {6+OPT['pst']}
            v_lshlrev_b32 v18, {OPT['pst']}, v0
            v_add_u32 v18, {sT0}, v18""", early=p0, dl=p0 + 10)
            s.vm(f"buffer_load_dword v18, v18, {SWO}, 0 offen {OPT['pqm']}", cost=16, early=p0, dl=p0 + 12)
        if n == 7 and OPT['vz']: s.es("\n".join(f"v_xor_b32 v{r}, 0x100, v{r}" for r in range(2, 6)))
        if n == 7: issue(dma_tile(12, 'a', ab='WS7'), gpace(p0 + 1))
        off0 = SL[SLOT[n]] - kb
        if not 0 <= off0 < 65536 - 32767:
            rebase(range(24, 36), off0); kb += off0; off0 = 0
        kw = dict(ab=f"RS{n}", bb=(f"WS{n+1}" if n != 5 else "RS7"))
        qkw = dict(ab=f"RS{n}", bb=(f"WS{n+1}" if n >= 6 else None))
        def step(t, ks):
            acc = R('v', B(TB[g][t]), 16); first = (dh == 0 and ks == 0)
            if t < 4:
                a = rd128(24 + ks, off0 + t * 8192, **kw)
                mf(acc, a, R('a', 32 * dh + 4 * ks, 4), first)
            else:
                a = rd128(32 + (ks & 3), off0 + (ks >> 2) * 512, **kw)
                b = rd128(36, 16384 + dh * 8192 + ks * 1024, **qkw)
                mf(acc, a, b, first)
        if n < 2:
            for ks in range(8):
                for t in range(5): step(t, ks)
            if dh and OPT['dump'] != 'S0':
                for t in (4, 0, 1, 2, 3): softmax(g, t)
        else:
            for t in (4, 0, 1, 2, 3):
                for ks in range(8): step(t, ks)
                if dh: softmax(g, t)
        if n == 1: dump('S0', [f"v{B(b)+q}" for b in TB[0] for q in range(16)])
    dump('P', [f"v{B(TB[g][t])+q}" for g in range(4) for t in (0, 2) for q in range(16)] + [f"v{vSP}", f"v{vSS}"])
    s.es(f"""
    v_lshrrev_b32 v16, 1, v47
    v_lshl_add_u32 v16, v16, 6, v46
    v_lshl_add_u32 v16, v43, 7, v16
    s_and_b32 {sT1}, {sW}, 1
    s_lshl_b32 {sT1}, {sT1}, 6
    s_lshl_b32 {sT0}, {sW}, 12
    s_add_u32 {sT0}, {sT0}, {sT1}
    v_xor_b32 v16, {sT0}, v16""")
    assert not OPT['vz'] or 'z' in OPT['x']
    for x in range(1, 8): s.e(f"v_xor_b32 v{16+x}, {(x>>1)*4096 + (x&1)*64}, v16")
    s.es(f"""s_and_b32 {sT2}, {sH}, {C-1}
    s_mul_i32 {sPP[0]}, {sT2}, {128 * (2 if C == 4 else 3)}
    s_add_u32 {sT0}, {sH}, 1
    s_and_b32 {sT0}, {sT0}, {C-1}
    s_sub_u32 {sT0}, {sT0}, {sT2}
    s_lshl_b32 {sT0}, {sT0}, 7
    s_add_u32 {sPRED}, s3, {sT0}
    s_mov_b32 {sCNT}, 0""")
    s.e(f"s_cmp_eq_u32 {sT2}, {C-1}\ns_cselect_b32 {sNF}, {1 if C == 4 else 4}, {2 if C == 4 else 3}")
    for i in range(1, 7): s.e(f"s_add_u32 {sPP[i]}, {sPP[i-1]}, 128\ns_cmp_eq_u32 {sPP[i]}, 896\ns_cselect_b32 {sPP[i]}, 0, {sPP[i]}")
    for i in range(7): s.e(f"s_lshl_b32 {sQ[i]}, {sPP[i]}, {TSH+1-7}")
    s.es(f"""
    s_mul_i32 {sT0}, {sW}, {64*896}
    v_lshrrev_b32 v42, 4, v0
    v_and_b32 v42, 1, v42
    v_lshlrev_b32 v42, 2, v42
    v_and_b32 v8, 7, v0
    v_xor_b32 v8, v8, v42
    v_lshlrev_b32 v8, 4, v8
    v_lshrrev_b32 v42, 3, v0
    v_mul_u32_u24 v42, 896, v42
    v_add3_u32 v8, v8, v42, {sT0}
    v_add_u32 v9, 6144, v8
    v_add_u32 v10, 12288, v8
    v_add_u32 v11, 18432, v8
    """)
    s.es(f"""
    v_mov_b32 v42, v{vSP}
    v_mov_b32 v43, v{vSS}
    v_permlane32_swap_b32 v42, v{vSP}
    v_permlane32_swap_b32 v43, v{vSS}
    v_add_f32 v{vSP}, v42, v{vSP}
    v_add_f32 v{vSS}, v43, v{vSS}
    v_subrev_u32 v42, {sLO}, v{vSP}
    v_mov_b32 v43, 0x7f800000
    v_cmp_le_u32 vcc, {sRNG}, v42
    v_cndmask_b32 v{vSS}, v{vSS}, v43, vcc
    v_rcp_f32 v{vSP}, v{vSP}
    v_lshlrev_b32 v6, 2, v0
    v_add_u32 v6, {S4}, v6
    s_lshl_b32 {sT0}, {sW}, 8
    v_add_u32 v35, {sT0}, v6
    """)
    s.ds(f"ds_write_b32 v35, v{vSS}", ab='WS13', bb='RS14')
    vS = [32, 33, 34]
    SEL = [24, 28]
    vZ, vFV, vPO, vWL, vST = 1, 40, 41, (45 if OPT['dm'] else 35), 41
    HS = [int(x) for x in str(OPT['hs']).split(',') if x] if OPT['dm'] else [19, 20, 21, 22]
    assert not OPT['dm'] or set(HS) <= {20, 21}
    p12 = s.nmf + 160
    s.es(f"""s_and_b32 {sT1}, {sW}, 1
    s_mul_i32 {sT0}, {sW}, 14
    s_add_u32 {sT0}, {sT0}, {sT1}
    s_lshl_b32 {sT0}, {sT0}, {TSH}
    v_add_u32 v{vS[0]}, {sT0}, v1
    v_xor_b32 v{vS[1]}, {TS}, v{vS[0]}
    s_lshr_b32 {sT0}, {sW}, 1
    s_mul_i32 {sT0}, {sT0}, 14
    s_add_u32 {sT0}, {sT0}, {sT1}
    s_add_u32 {sT0}, {sT0}, 56
    s_lshl_b32 {sT0}, {sT0}, {TSH}
    v_add_u32 v{vS[2]}, {sT0}, v1
    v_lshlrev_b32 v{vZ}, 23, v0
    v_bfe_u32 v42, v0, 3, 2
    v_bfe_u32 v43, v0, 1, 1
    v_lshl_add_u32 v42, v42, 1, v43
    v_lshrrev_b32 v43, 3, v0
    v_xor_b32 v43, v43, v0
    v_and_b32 v43, 4, v43
    v_lshl_add_u32 v42, v43, 1, v42
    v_and_b32 v44, 1, v0
    v_lshlrev_b32 v44, 4, v44
    v_mov_b32 v45, 0x3f80
    v_lshlrev_b32 v45, v44, v45""", dl=p12 + 10)
    for r in range(8):
        s.e(f"v_cmp_eq_u32 s[8:9], {r}, v42\ns_nop 1\nv_cndmask_b32 v{SEL[r >> 2] + (r & 3)}, 0, v45, s[8:9]", cost=12, dl=p12 + 20)

    OA = [[R('a', 16 * j, 16) for j in range(4)] + [R('a', 192, 16)], [R('v', B(b), 16) for b in (0, 11, 2, 7, 10)]]
    tmpc = [0]
    def oconv_a(abase, dst, inv):
        for q in range(8):
            t = 42 + 2 * (tmpc[0] % 3); tmpc[0] += 1
            s.es(f"""v_accvgpr_read_b32 v{t}, a{abase+2*q}
            v_accvgpr_read_b32 v{t+1}, a{abase+2*q+1}
            v_mul_f32 v{t}, v{t}, v{inv}
            v_mul_f32 v{t+1}, v{t+1}, v{inv}
            v_cvt_pk_bf16_f32 v{dst+q}, v{t}, v{t+1}""")
    def oconv_v(src, dst, inv):
        for q in range(16): s.e(f"v_mul_f32 v{src+q}, v{src+q}, v{inv}")
        if dst is not None:
            for q in range(8): s.e(f"v_cvt_pk_bf16_f32 v{dst+q}, v{src+2*q}, v{src+2*q+1}")
    vb = 65536
    SP = [int(x) for x in OPT['sp'].split(',')]
    for n in range(8, 16):
        p0 = s.nmf
        dh, g = (n - 8) >> 2, (n - 8) & 3
        RB(f"RS{n}")
        if n != 11: WB(f"WS{n}", p0)
        if n == 8:
            stage_write(9, 2, 'b', 'RS7', p0)
            issue(dma_tile(13, 'c', ab='WS8') + stage_load([(14, 5)]), gpace(p0 + 1))
        if n == 9: stage_write(10, 3, 'd', 'WS9', p0)
        if n == 10: stage_write(11, 4, 'b', 'WS10', p0)
        if n == 12:
            issue(dma_tile(15, 'b', ab='WS12'), pace(p0 + 1, OPT['p15'] / 10) if OPT['p15'] else gpace(p0 + 1))
            s.es(f"s_mov_b32 s16, s28\ns_mov_b32 s17, s29")
        if n == 13: stage_write(14, 5, 'd', 'RS12', p0)
        if n >= 13: issue(dma_tile(n + 3, SLOT[n + 3], ab=f"WS{n}"), gpace(p0 + 1, OPT['wop']) if OPT['wop'] else pace(p0 + OPT['wo0'], vp))
        SW = sum([stage_wo(19 + x, 2 + x) for x in range(4) if SP[x] == n and 19 + x in HS], [])
        if SW: issue(SW, gpace(p0 + 1, OPT['hg']) if OPT['hg'] else pace(p0 + OPT['so'], OPT['spp']))
        if n == 14:
            for w_ in range(4): s.ds(f"ds_read_b32 v{44+w_}, v6 offset:{w_*256}", ab='RS14')
            s.es(f"""v_add_f32 v44, v44, v45
            v_add_f32 v46, v46, v47
            v_add_f32 v{vSS}, v44, v46
            v_subrev_u32 v44, {sLO}, v{vSS}""")
            s.add(Op('e', f"v_cmp_le_u32 vcc, {sRNG}, v44\ns_nop 1\ns_cbranch_vccnz L_slow\nL_checked:", cost=16, R=[f"v{vMP}", f"v{vMS}"], W=['#chk'], ab='RS14', bb='RS15'))
            s.e(f"v_rcp_f32 v{vSS}, v{vSS}")
            s.es(f"v_xor_b32 v6, 0x800, v37")
            oconv_a(192, B(1), vSS)
            for half in range(2):
                s.ds(f"ds_write_b128 v37, {R('v', B(1)+4*half, 4)} offset:{8192 + half*1024}", cost=OPT['wc'], ab='WS14', bb='RS16')
        off0 = SL[SLOT[n]] - vb
        if not 0 <= off0 <= 32768:
            nb = SL[SLOT[n]] & 0x10000
            rebase(range(12, 16), nb - vb); vb = nb; off0 = SL[SLOT[n]] - vb
        kw = dict(ab=f"RS{n}", bb=(f"WS{n+1}" if n not in (10, 15) else f"RS{n+2}"))
        pkw = dict(ab=f"RS{n}", bb=(f"WS{n+1}" if 12 <= n < 15 else None))
        for j in range(4):
            for ks in range(8):
                a = tr(12 + j, off0 + ks * 4096, 1024, **kw)
                mf(OA[dh][j], a, Pfrag(g, ks), g == 0 and ks == 0)
                if j == 0:
                    b = rd128(36, g * 8192 + ks * 1024, **pkw)
                    mf(OA[dh][4], a, b, g == 0 and ks == 0)
            if n == 15 and OPT['dump'] != 'O':
                if j == 0:
                    oconv_v(B(10), None, vSS)
                    pack_write(B(10), 16384, 'WS15', OPT['osb'])
                oconv_v(B((0, 11, 2, 7)[j]), B((0, 2)[j >> 1]) + 8 * (j & 1), vSP)
        if n == 12:
            for j in range(4): oconv_a(16 * j, B((12, 8)[j >> 1]) + 8 * (j & 1), vSP)
    dump('O', [f"a{r}" for r in range(64)] + [f"v{B(b)+q}" for b in (0, 11, 2, 7) for q in range(16)] + [f"a{r}" for r in range(192, 208)]
         + [f"v{B(10)+q}" for q in range(16)] + [f"v{vSP}", f"v{vSS}"])

    OB = [(1, 6, 3), (9, 4, 5), (10, 7, 11)]
    def Ofrag(dh, jj, half): return R('v', B(((12, 8), (0, 2))[dh][jj >> 1]) + 8 * (jj & 1) + 4 * half, 4)
    def Osh(dh, jj, half): return R('a', 192 + 16 * dh + 8 * jj + 4 * half, 4)
    QA = [37, 6]
    vPL, vLD, vLD2, vO1, vO2, vO3, vLE, vLE2 = 12, 13, 14, 15, 38, 39, 36, 37
    SELA, SELB = 48, 52
    SRD_R, SRD_O = "s[8:11]", "s[12:15]"
    lP, lG, lS, oP, oG, oS, sHH = "s24", "s25", "s26", "s27", "s44", "s56", "s39"
    p16 = s.nmf
    if HS: s.e(f"v_subrev_u32 v{vWL}, 65536, v7", early=p16 + (30 if OPT['dm'] else 40))
    LA = [list(range(16, 24)), [2, 3, 4, 5, 7, 35, 46, 47] if OPT['dm'] else [2, 3, 4, 5, 8, 9, 10, 11]]
    assert not OPT['dm'] or OPT['rs'] >= 5
    for x in range(8): s.e(f"v_add_u32 v{LA[1][x]}, 65536, v{16+x}", early=p16 + 30, dl=p16 + 60)
    if OPT['p2']:
        x = p16 + OPT['p2o']
        s.e(f"s_lshl_b32 {sT0}, {sW}, 7\ns_add_u32 {sT0}, {sT0}, {sPP[3]}\ns_sub_u32 {sT1}, {sT0}, 896\ns_cselect_b32 {sT0}, {sT0}, {sT1}", early=x - 12, dl=x - 4)
        s.es(f"""s_and_b32 {sT1}, {sB}, 1
        s_mul_i32 {sT1}, {sT1}, {128*896}
        s_add_u32 {sT0}, {sT0}, {sT1}
        v_mul_u32_u24 v45, 896, v0
        v_add_u32 v45, {sT0}, v45
        s_mov_b32 {sT1}, {64*896}""", early=x - 12, dl=x - 2)
        s.vm(f"buffer_load_dword a65, v45, {SWO}, 0 offen", cost=16, early=x, dl=x + 1)
        s.vm(f"buffer_load_dword a66, v45, {SWO}, {sT1} offen", cost=16, early=x + OPT['p2'], dl=x + OPT['p2'] + 1)
    if OPT['de']:
        s.vm(f"buffer_load_dword a64, off, {SDB}, 0 sc1", cost=8, lat=0, early=p16 - OPT['de'], dl=p16 - OPT['de'] + 4)
        s.e(f"v_accvgpr_read_b32 v{vST}, a64", early=p16 + 12)
    else: s.vm(f"buffer_load_dword v{vST}, off, {SDB}, 0 sc1", cost=8, lat=0, early=p16 - 20, dl=p16 - 16)
    s.add(Op('e', f"v_readfirstlane_b32 {sV}, v{vST}\ns_nop 0\ns_cmp_lg_u32 {sV}, {sV if 'f' in OPT['x'] else sFAST}\ns_cbranch_scc1 L_decide\nL_decided:", cost=16,
             R=['#chk', sNF, 's28', 's29'], W=['#dec', sNF, 's28', 's29', sT0, 'v42', 'v43', 'v44'], early=p16 + 16, minage=24))
    def col(x): return f"""s_lshr_b32 {sT0}, {sHH}, {x+1}
        s_lshl_b32 {sT0}, {sT0}, {TSH}
        s_bfe_u32 {sT1}, {sHH}, {0x10000 + x}
        s_lshl_b32 {sT1}, {sT1}, 10
        s_add_u32 {sT0}, {sT0}, {sT1}
        s_and_b32 {sT1}, {sHH}, {(1 << x) - 1}
        s_lshl_b32 {sT1}, {sT1}, 8
        s_add_u32 {sT0}, {sT0}, {sT1}"""
    OWN = f"""s_mul_i32 {lG}, {sW}, {14*TS}
        {col(1)}
        s_add_u32 {lP}, {lG}, {sT0}
        {col(2)}
        s_add_u32 {lG}, {lG}, {sT0}
        s_add_u32 {lG}, {lG}, {12*TS}
        s_lshl_b32 {lS}, {sW}, {TSH+1}
        s_add_u32 {lS}, {lS}, {sT0}
        s_add_u32 {lS}, {lS}, {56*TS}
        s_and_b32 {sT1}, {sHH}, 1
        s_mul_i32 {oS}, {sT1}, {16*896}
        s_mul_i32 {oG}, {sW}, {32*896}
        s_add_u32 {oG}, {oG}, {oS}
        s_lshr_b32 {sT0}, {sHH}, 1
        s_lshl_b32 {sT1}, {sT0}, 5
        s_add_u32 {oP}, {oG}, {sT1}
        s_lshl_b32 {sT0}, {sT0}, 4
        s_add_u32 {oG}, {oG}, {sT0}
        s_add_u32 {oS}, {oS}, {sT0}
        s_lshl_b32 {sT1}, {sW}, 7
        s_add_u32 {oS}, {oS}, {sT1}
        s_add_u32 {oS}, {oS}, {128*896}"""
    def red_setup(p0):
        kw = dict(early=p0, dl=p0 + OPT['rsd'])
        s.e(f"s_mul_i32 {sT0}, {sB}, {PB}\ns_add_u32 s8, s4, {sT0}\ns_addc_u32 s9, s5, 0", **kw)
        s.e(f"s_mul_i32 {sT0}, {sB}, 143360\ns_add_u32 s12, s6, {sT0}\ns_addc_u32 s13, s7, 0", **kw)
        s.e(f"s_cmp_eq_u32 {sW}, 3\ns_cselect_b32 {sT1}, 0x40000000, 0\ns_cselect_b32 {sT2}, 0x2000000, 16", **kw)
        s.es(f"""s_mov_b32 s10, {(C-1)*REG + PB}
        s_mov_b32 s14, 143360
        v_and_b32 v42, 15, v0
        v_lshrrev_b32 v43, 4, v0
        v_lshrrev_b32 v44, 2, v0
        v_and_b32 v{vPL}, 3, v0
        v_lshlrev_b32 v{vPL}, 2, v{vPL}
        v_lshl_add_u32 v{vPL}, v44, 7, v{vPL}
        v_lshlrev_b32 v{vLD}, 4, v42
        v_lshl_add_u32 v{vLD}, v43, 11, v{vLD}
        v_add_u32 v{vLD2}, {sT1}, v{vLD}
        v_mul_u32_u24 v{vO1}, 896, v42
        v_and_b32 v44, 1, v43
        v_lshl_add_u32 v{vO2}, v44, 3, v{vO1}
        v_lshl_add_u32 v{vO1}, v43, 3, v{vO1}
        v_and_b32 v44, 32, v0
        v_lshl_add_u32 v{vO3}, v44, 25, v{vO2}
        v_mul_lo_u32 v44, v44, {sT2}
        v_add_u32 v{vO2}, v44, v{vO2}
        v_lshrrev_b32 v42, 1, v42
        v_and_b32 v44, 1, v0
        v_lshlrev_b32 v44, 4, v44
        v_mov_b32 v45, 0x3f80
        v_lshlrev_b32 v45, v44, v45
        s_mov_b32 {sHH}, {sH}""", **kw)
        if C == 2: s.es(f"v_add_u32 v{vLE}, 8192, v{vLD}\nv_add_u32 v{vLE2}, 8192, v{vLD2}", **kw)
        s.es(OWN, **kw)
        for r in range(8):
            s.e(f"v_cmp_eq_u32 s[98:99], {r}, v42\ns_nop 1\nv_cndmask_b32 v43, 0, v45, s[98:99]\nv_accvgpr_write_b32 a{SELA+r}, v43", cost=16, **kw)
    def owner(VL, VL2, fl=0):
        M16 = "v_mfma_f32_16x16x32_bf16"
        k.vm = []
        cnt = [0]
        def loads(vos, so, offs):
            L = []
            for o in offs:
                for vo in vos:
                    r = 64 + 4 * cnt[0]; cnt[0] += 1
                    k.vmem(f"buffer_load_dwordx4 {R('a', r, 4)}, v{vo}, {SRD_R}, {so} offen offset:{o} sc1", ('r', r))
                    L.append(r)
            return L
        def mm(acc, L, sels, first):
            for i, r in enumerate(L):
                k.wait(vm=[('r', r)])
                e(f"{M16} {R('v', acc, 4)}, {R('a', sels[i * len(sels) // len(L)], 4)}, {R('a', r, 4)}, {'0' if first and i == 0 else R('v', acc, 4)}")
        def outst(acc, vo, so, off):
            e(f"v_cvt_pk_bf16_f32 v{acc}, v{acc}, v{acc+1}\nv_cvt_pk_bf16_f32 v{acc+1}, v{acc+2}, v{acc+3}")
            k.vmem(f"buffer_store_dwordx2 {R('v', acc, 2)}, v{vo}, {SRD_O}, {so} offen offset:{off} {OPT['om'].replace('_', ' ')}", 'o')
        L4 = loads(VL, lS, [0])
        e(f"s_add_u32 {lS}, {lS}, {8*TS}")
        L5 = loads(VL2, lS, [0])
        e(f"s_add_u32 {lS}, {lS}, {6*TS}")
        L4 += loads(VL, lS, [0])
        e(f"s_add_u32 {lS}, {lS}, {8*TS}")
        L5 += loads(VL2, lS, [0])
        L0 = loads(VL, lP, [0, 512])
        e(f"s_add_u32 {lP}, {lP}, {4*TS}")
        L1 = loads(VL, lP, [0, 512])
        e(f"s_add_u32 {lP}, {lP}, {4*TS}")
        L2 = loads(VL, lP, [0, 512])
        L3 = loads(VL, lG, [0])
        if fl == 1:
            e(f"s_and_b32 {sT0}, {sH}, 3\ns_cselect_b32 s18, {PB}, 0")
            for st in (5, 6):
                for x in range(3):
                    for half in range(2):
                        k.vmem(f"buffer_store_dwordx4 {R('v', B(OB[st % 3][x])+4*half, 4)}, v{vS[x]}, {SCH if st == 5 else SWS}, {sQ[st]} offen offset:{half*1024} {OPT['flm'].replace('_', ' ')}", 'wb')
        if fl > 1:
            e(f"s_and_b32 {sT0}, s3, {fl}\ns_cbranch_scc1 L_nwb")
            k.vmem(f"buffer_wbl2 {OPT['flm']}", 'wb')
            e(f"s_branch L_nwb2\nL_nwb:\nbuffer_load_dword v{vPL}, off, {SFL}, 0\nL_nwb2:")
        D = [24, 28, 40, 44, 48]
        n = len(VL)
        mm(D[4], L4[:n], (SELA,), True); mm(D[4], L5[:n], (SELB,), False); mm(D[4], L4[n:], (SELA,), False); mm(D[4], L5[n:], (SELB,), False)
        mm(D[0], L0, (SELA, SELB), True); mm(D[1], L1, (SELA, SELB), True)
        outst(D[4], vO2, oS, 0)
        mm(D[2], L2, (SELA, SELB), True)
        outst(D[0], vO1, oP, 0)
        mm(D[3], L3, (SELA,), True)
        outst(D[1], vO1, oP, 256); outst(D[2], vO1, oP, 512); outst(D[3], vO3, oG, 768)
    def red_tail():
        e(f"""v_mov_b32 v{vFV}, 7
        s_cmp_gt_u32 {sNF}, 7
        s_waitcnt vmcnt(0)
        s_cbranch_scc1 L_fall
        buffer_store_dword v{vFV}, v{vZ}, {SFL}, s3 offen""")
        stamp()
        e(f"""L_fp:
        buffer_load_dword v{vPO}, v{vPL}, {SFL}, 0 offen sc1
        s_add_u32 {sCNT}, {sCNT}, 1
        s_cmp_ge_u32 {sCNT}, {1 << OPT['spin']}
        s_waitcnt vmcnt(0)
        v_cmp_gt_u32 vcc, 7, v{vPO}
        s_cbranch_scc1 L_fgo
        s_nop 0
        s_cbranch_vccnz L_fp
        L_fgo:""")
        stamp()
        owner([vLD, vLE][:4 // C], [vLD2, vLE2][:4 // C], OPT['fl'])
    def red_cold():
        for st in range(NF0, 7):
            e(f"""L_sp{st}:
            s_cmp_lt_u32 {st}, {sNF}
            s_cbranch_scc1 L_go{st}
            v_mov_b32 v{vPO}, {st}
            s_waitcnt vmcnt(0)
            buffer_store_dword v{vPO}, v{vZ}, {SFL}, s3 offen
            L_sq{st}:
            buffer_load_dword v{vPO}, off, {SFL}, {sPRED} sc1
            s_add_u32 {sCNT}, {sCNT}, 1
            s_cmp_ge_u32 {sCNT}, {1 << OPT['spin']}
            s_waitcnt vmcnt(0)
            v_cmp_gt_i32 vcc, {sS}, v{vPO}
            s_cbranch_scc1 L_go{st}
            s_nop 0
            s_cbranch_vccnz L_sq{st}
            s_branch L_go{st}""")
        e(f"""L_codeend:
        L_decide:
        s_cmp_lt_i32 {sV}, 0
        s_cbranch_scc1 L_apart
        s_cmp_eq_u32 {sV}, {sFAST}
        s_cbranch_scc1 L_decided
        s_or_b32 {sT0}, {sV}, 0x80000000
        v_mov_b32 v42, {sT0}
        v_mov_b32 v43, {sV}
        v_lshlrev_b32 v44, 23, v0
        buffer_atomic_cmpswap v[42:43], v44, {SDB}, 0 offen sc0 sc1
        s_waitcnt vmcnt(0)
        v_readfirstlane_b32 {sT0}, v42
        s_cmp_eq_u32 {sT0}, {sV}
        s_mov_b32 {sV}, {sT0}
        s_cbranch_scc0 L_decide
        L_apart:
        s_and_b32 {sT0}, {sH}, {C-1}
        s_mul_i32 {sT0}, {sT0}, {REG}
        s_add_u32 s28, s28, {sT0}
        s_addc_u32 s29, s29, 0
        s_mov_b32 {sNF}, 99
        s_branch L_decided
        L_fall:
        s_barrier
        buffer_wbl2 sc1
        s_lshl_b32 {sT0}, {sW}, 29
        v_add_u32 v44, {sT0}, v{vZ}
        v_mov_b32 v42, 1
        s_lshl_b32 {sT0}, {sW}, 8
        v_lshlrev_b32 v43, 2, v0
        s_waitcnt vmcnt(0)
        buffer_atomic_add v42, v44, {SDB}, 0 offen offset:4 sc0 sc1
        v_add_u32 v43, {sT0}, v43
        v_mov_b32 v44, 0
        s_waitcnt vmcnt(0)
        ds_write_b32 v43, v42
        s_waitcnt lgkmcnt(0)
        s_barrier
        ds_read_b32 v42, v44
        s_mov_b32 {sHH}, 0
        s_waitcnt lgkmcnt(0)
        v_readfirstlane_b32 {sT0}, v42
        s_cmp_lg_u32 {sT0}, 15
        s_cbranch_scc1 L_exit
        buffer_inv sc1""")
        offs = [r * REG + j * 8192 for r in range(C) for j in range(4 // C)]
        for i, o in enumerate(offs): e(f"v_add_u32 v{52+i}, {o}, v{vLD}\nv_add_u32 v{56+i}, {o}, v{vLD2}")
        e("s_waitcnt vmcnt(0)\ns_barrier\nL_all:")
        e(OWN)
        owner(range(52, 56), range(56, 60))
        e(f"s_add_u32 {sHH}, {sHH}, 1\ns_cmp_lt_u32 {sHH}, 16\ns_cbranch_scc1 L_all\ns_endpgm")
    for st in range(7):
        n = 16 + st
        p0 = s.nmf
        RB(f"RS{n}")
        if st == 0 and OPT['osb'] == 'WS16': WB('WS16', p0)
        if 1 <= st <= 4 and 'w' not in OPT['x'] and n + 2 in HS: stage_write(n + 2, st + 1, SLOT[n + 2], f"RS{n}", p0 - OPT['w0'] + OPT['sw'], va=(7 if SL[SLOT[n + 2]] >= 65536 else vWL), wp=3)
        if st == OPT['rs']: red_setup(p0)
        kw = dict(ab=f"RS{n}", bb=(f"RS{n+2}" if st <= 2 else None))
        la = LA[SL[SLOT[n]] >> 16]; off0 = SL[SLOT[n]] & 0xffff
        ob = [B(x) for x in OB[st % 3]]
        cb = 24 * (st & 1)
        chain = st >= NF0
        need = p0 + 40 - OPT['ap']
        if chain:
            s.vm(f"buffer_load_dword v{vPO}, off, {SFL}, {sPRED} sc1", cost=8, R=['#dec'], lat=0, early=need - OPT['pl'], dl=need - OPT['pl'] + 1)
            s.e(f"s_cmp_ge_u32 {st}, {sNF}\ns_cselect_b32 s18, {PB}, 0\ns_sub_u32 {sS}, {st+1}, {sNF}")
            if OPT['nochk']: s.add(Op('e', f"v_cmp_gt_i32 vcc, {sS}, v{vPO}\ns_nop 1\nL_go{st}:", cost=12, W=['#go'], minage=OPT['ca'], dl=need - OPT['pl'] + OPT['ca']))
            else: s.add(Op('e', f"v_cmp_gt_i32 vcc, {sS}, v{vPO}\ns_nop 1\ns_cbranch_vccnz L_sp{st}\nL_go{st}:", cost=12,
                     R=[f"#is{st-1}{x}{h}" for x in range(3) for h in range(2)] + [f"#pub{st-2}"], W=['#go', f"v{vPO}", sCNT], minage=OPT['ca'], dl=need - OPT['pl'] + OPT['ca']))
            for x in (0, 2, 1):
                for half in range(2):
                    if 'l' in OPT['x']: continue
                    s.vm(f"buffer_load_dwordx4 {R('a', cb + 8*x + 4*half, 4)}, v{vS[x]}, {SCH}, {sQ[st]} offen offset:{half*1024} sc1", cost=OPT['clc'], R=['#go'], lat=OPT['cl'], chain='vm' if OPT['dm'] else None)
            if OPT['dm'] and st <= 4 and n + 2 not in HS: issue(dma_tile(n + 2, SLOT[n + 2], ab=f"RS{n}"), pace(p0 + OPT['dmo'], OPT['dmp']), lat=0)
        def add(x):
            for half in range(2): mf(R('v', ob[x], 16), R('v', SEL[half], 4), R('a', cb + 8*x + 4*half, 4), False)
        def store(x):
            for q in range(8): s.e(f"v_cvt_pk_bf16_f32 v{ob[x]+q}, v{ob[x]+2*q}, v{ob[x]+2*q+1}", dl=s.nmf + OPT['cvd'])
            for half in range(2):
                if 's' in OPT['x']: continue
                o = s.vm(f"buffer_store_dwordx4 {R('v', ob[x]+4*half, 4)}, v{vS[x]}, {SWS}, {sQ[st]} offen offset:{half*1024}",
                         cost=OPT['stc'], R=['#dec'], W=[f"#st{st}{x}{half}", f"#is{st}{x}{half}"], dl=s.nmf + OPT['cvd'] + 1, lat=0)
                o.asyncw.add(f"#st{st}{x}{half}")
        order = [(t, d2) for d2 in range(2) for t in range(2)] if st == 0 else [(t, d2) for t in range(2) for d2 in range(2)]
        for t, d2 in order:
            for jj in range(4):
                for half in range(2):
                    first = d2 == 0 and jj == 0 and half == 0
                    if chain:
                        if s.nmf == need: add(0); store(0)
                        if s.nmf == need + 4: add(2); store(2)
                        if s.nmf == need + 8: add(1)
                    a = tr(la[2 * jj + t], off0 + d2 * 16384 + half * 2048, 512, **kw)
                    mf(R('v', ob[t], 16), a, Ofrag(d2, jj, half), first)
                    if t == 0 and jj < 2:
                        if st == 0: rd128(QA[jj], 8192 + d2 * 8192 + half * 1024, Osh(d2, jj, half), ab=(OPT['osb'] if d2 else 'RS16'))
                        mf(R('v', ob[2], 16), a, Osh(d2, jj, half), first)
                        if not chain and d2 and jj and half: store(2)
            if not chain and t == 0 and d2: store(0)
        if chain and s.nmf == need + 8: add(1)
        assert s.nmf == p0 + (46 if chain else 40)
        store(1)
        if st < 7 - NF0:
            s.e(f"v_mov_b32 v{vFV}, {st+1}")
            s.vm(f"buffer_store_dword v{vFV}, v{vZ}, {SFL}, s3 offen", cost=8, R=[f"#st{st}{x}{h}" for x in range(3) for h in range(2)],
                 W=[f"#pub{st}"], minage=OPT['pa'], dl=s.nmf + 4 + OPT['pa'])
    s.build()
    s.run(budget=OPT['bud'], maxlg=OPT['maxlg'], delay=OPT['delay'], dsage=OPT['dsage'], maxds=OPT['maxds'])
    stamp()
    red_tail()
    if OPT['ts']:
        k.wait(vm0=True)
        stamp()
        e(f"""s_add_u32 s8, s4, 0x0ff00000
        s_addc_u32 s9, s5, 0
        s_mov_b32 s10, 0x100000
        s_cmp_lg_u32 {sW}, 0
        s_cbranch_scc1 L_exit
        s_mov_b64 exec, 1
        s_lshl_b32 s3, s2, 8
        v_mov_b32 v1, s3
        v_mov_b32 v2, {nst[0]}
        v_mov_b32 v3, 0
        buffer_store_dwordx2 v[2:3], v1, s[8:11], 0 offen""")
        for j in range(nst[0]):
            e(f"v_mov_b32 v4, s{sTS+2*j}\nv_mov_b32 v5, s{sTS+1+2*j}\nbuffer_store_dwordx2 v[4:5], v1, s[8:11], 0 offen offset:{8+8*j}\ns_nop 1")
        e("s_waitcnt vmcnt(0)")
    e("L_exit:\ns_endpgm")
    red_cold()
    for h, (src, mx) in enumerate(hooks):
        e(f"L_fix{h}:\ns_nop 7\ns_nop 7\ns_cmp_eq_u32 {sPASS}, 2\ns_cbranch_scc1 L_sub{h}")
        for q in range(0, 16, 2): e(f"v_max3_f32 v{mx}, v{src+q}, v{src+q+1}, v{mx}")
        e(f"s_branch L_ret{h}\nL_sub{h}:")
        for q in range(16): e(f"v_sub_f32 v{src+q}, v{src+q}, v{mx}")
        e(f"s_branch L_ret{h}")
    e(f"""L_slow:
    s_cmp_eq_u32 {sPASS}, 2
    s_cbranch_scc1 L_checked
    s_nop 7
    s_nop 7
    s_waitcnt vmcnt(0) lgkmcnt(0)
    s_barrier
    s_mov_b64 vcc, -1
    s_cmp_eq_u32 {sPASS}, 1
    s_cbranch_scc1 L_slow2
    s_mov_b32 {sPASS}, 1
    s_mov_b32 {sRNG}, 0
    v_mov_b32 v{vMP}, 0xff800000
    v_mov_b32 v{vMS}, 0xff800000
    s_branch L_start
    L_slow2:
    s_mov_b32 {sPASS}, 2
    s_mov_b32 {sLO}, 0
    s_mov_b32 {sRNG}, -1
    v_mov_b32 v42, v{vMP}
    v_mov_b32 v43, v{vMS}
    s_nop 1
    v_permlane32_swap_b32 v42, v{vMP}
    v_permlane32_swap_b32 v43, v{vMS}
    v_lshlrev_b32 v44, 2, v0
    s_lshl_b32 {sT0}, {sW}, 8
    v_max_f32 v{vMP}, v42, v{vMP}
    v_max_f32 v{vMS}, v43, v{vMS}
    v_add_u32 v45, {sT0}, v44
    ds_write_b32 v45, v{vMS}
    s_waitcnt lgkmcnt(0)
    s_barrier
    ds_read_b32 v42, v44
    ds_read_b32 v43, v44 offset:256
    ds_read_b32 v45, v44 offset:512
    ds_read_b32 v46, v44 offset:768
    s_waitcnt lgkmcnt(0)
    v_max3_f32 v{vMS}, v42, v43, v45
    v_max_f32 v{vMS}, v{vMS}, v46
    s_barrier
    s_branch L_start""")
    txt, added = k.text()
    est = s.est
    per = [sum(est[i:i + 40]) for i in range(0, len(est), 40)]
    print(f"main: {len(k.L)} lines, nops {added}, forced {s.forced}, mfma {len(est)}, est {sum(est)}; per40: {per}", file=sys.stderr)
    if OPT['verbose']:
        print("use:", s.use, file=sys.stderr)
        print("bars:", {n: o.gap for n, o in s.bars.items()}, file=sys.stderr)
    return txt

if __name__ == "__main__":
    out = sys.argv[1]
    sys.argv = sys.argv[:2] + ([f"ts={OPT['ts']}"] if OPT['ts'] else []) + ([f"diag={OPT['diag']}"] if OPT['diag'] else [])
    import gen
    m = main_kernel()
    nm = "mha_main_kernel" if OPT['diag'] else "standalone__mha_block_cached__near_ridge_kernel"
    L = [(nm, 256, 256, 163840)]; KS = [(nm, m, 512, 256)]
    if OPT['dup'] == 1: L.insert(0, L[0])
    if OPT['dup'] == 2:
        L.insert(0, ("mha_copy_kernel", 256, 256, 163840)); KS.append(("mha_copy_kernel", m.replace("L_", "M_"), 512, 256))
    if OPT['diag']:
        L.append(("mha_diag_kernel", 1, 64, 0)); KS.append(("mha_diag_kernel", gen.diag_kernel(), 64, 64))
    write_file(out, HEADER, L, KS)
```

```python
import sys, math, struct
sys.path.insert(0, "work")
from asmlib import K, write_file
from sch import Sched, Op

OPT = dict(hm='', hn=1, hq=0, clm='sc1', hp=0, hpo=0, hpd=20, hpm='', fp=0, fpm='sc1', tw=0, to=0, wqm='', xm='', wom='', hs='', hg=0, p2=0, p2o=0, pq=0, pqm='', pw=0, pst=6, rm=0, rot=0, rotm=31, s2p=0, kwin=0, arr='L', ts=0, dump='', nt='nt', C=4, ap=8, pl=40, rs=2, pa=12, ca=12, cl=560, sp='13,14,15,15', so=26, sw=4, osb='RS16', nochk=0, rw=0, om='', fl=0, flm='sc1', vz=0, wop=0, de=0, dm=0, dmo=20, dmp=2, rsd=120, wo0=1, spp=2, p15=0, x='', stc=16, clc=12, cvd=3, bud=24, maxlg=14, delay=3, dsage=4, maxds=3,
           rb=9, wb=0, wage=6, dc=16, wc=16, lc=12,
           kpre=0, k0=0, kp=70, kp2=65, ksw=32, pair=1, tp=0, tpm='', stamps='RA3,RS0,RS8,RS16,RS22',
           w0=14, wp=2,
           dp=2, vp=3, verbose=0, fs=0, spin=20, lo=-20, hi=30, diag='', dup=0, cp=2, cpm='', cpf='RA3:RS1:242,RS3:RS8:16,RS10:RS16:46')
for a in sys.argv[2:]:
    if a.startswith('nt=') or a.startswith('pqm='): a = a.replace('_', ' ')
    kk, vv = a.split('=')
    assert kk in OPT, kk
    OPT[kk] = int(vv) if vv.lstrip('-').isdigit() else vv

C = OPT['C']; LC = C.bit_length() - 1
TSH = 15 - LC; TS = 1 << TSH
PB = 84 * TS
REG = 16 * PB
NF0 = 1 if C == 4 else 3
IIS, US, WSH = [(2048, 8192, 14), (8192, 32768, 11), (2048, 32768, 13), (16384, 2048, 12)][OPT['rm']]
HEADER = "".join(l for l in open("standalone__mha_block_cached__near_ridge.s.ref").read().splitlines(True)[:11])
MF = "v_mfma_f32_32x32x16_bf16"
def R(p, lo, n): return f"{p}[{lo}:{lo+n-1}]"
def f2u(x): return struct.unpack('<I', struct.pack('<f', x))[0]
SX, SK, SV, SWQ, SWO, SWS = "s[8:11]", "s[12:15]", "s[16:19]", "s[20:23]", "s[24:27]", "s[28:31]"
sW, sB, sH = "s32", "s33", "s34"
sT0, sT1, sT2 = "s36", "s37", "s38"
sC = "s39"
sWQO, sXO, sM8, sM1, sW16 = "s40", "s41", "s42", "s43", "s44"
sPP = [f"s{47+i}" for i in range(7)]
sQ = ["s20", "s21", "s22", "s23", "s40", "s41", "s45"]
sNF, sPRED, sFAST, sV, sCNT = "s46", "s54", "s94", "s100", "s101"
SCH = "s[16:19]"
sD, sL, sS = "s55", "s56", "s35"
sPASS, sLO, sRNG = "s57", "s58", "s59"
sTS = 68
SFL, SDB = 's[60:63]', 's[64:67]'
FLOFF = C * REG
XB = 96 * 1024
S4 = 128 * 1024
SL = dict(a=32768, b=65536, c=0, d=98304)
def B(i): return 48 + 16 * i
vSP, vSS, vMP, vMS = 38, 39, 40, 41

def main_kernel():
    k = K(); e = k.e
    s = Sched(k)
    nst = [0]
    TSI = 's_memtime' if OPT['ts'] == 2 else 's_memrealtime'
    def stamp():
        if OPT['ts']:
            k.wait(lg0=True)
            e(f"{TSI} s[{sTS+2*nst[0]}:{sTS+1+2*nst[0]}]\ns_waitcnt lgkmcnt(0)")
            nst[0] += 1
    def dump(name, regs):
        if OPT['dump'] != name: return
        def fn(op):
            e("s_nop 7\ns_nop 7\ns_waitcnt vmcnt(0) lgkmcnt(0)")
            e(f"s_mul_i32 {sT0}, {sB}, 64\ns_lshl_b32 {sT1}, {sH}, 2\ns_add_u32 {sT0}, {sT0}, {sT1}\ns_add_u32 {sT0}, {sT0}, {sW}\ns_lshl_b32 {sT0}, {sT0}, 17")
            e("s_add_u32 s8, s4, 0x4000000\ns_addc_u32 s9, s5, 0\ns_mov_b32 s10, 0x8000000\ns_mov_b32 s11, 0x00020000")
            e("v_lshlrev_b32 v0, 2, v0")
            for i, r in enumerate(regs):
                e(f"buffer_store_dword {r}, v0, s[8:11], {sT0} offen\ns_add_u32 {sT0}, {sT0}, 256")
                if i % 32 == 31: e("s_waitcnt vmcnt(0)")
            e("s_waitcnt vmcnt(0)\ns_branch L_exit")
        s.add(Op('e', 's_nop 0', R=regs, W=regs, fn=fn, dl=s.nmf))

    if OPT['ts']:
        e(f"{TSI} s[{sTS}:{sTS+1}]"); nst[0] = 1
    e(f"""
    s_cmp_ge_u32 s2, 256
    s_cbranch_scc1 L_exit
    v_lshrrev_b32 v1, 6, v0
    v_and_b32 v0, 63, v0
    s_mov_b32 {sPASS}, 0
    v_readfirstlane_b32 {sW}, v1
    s_mov_b64 vcc, 0
    s_mov_b32 {sLO}, 0x{(127 + OPT['lo']) << 23:08x}
    s_mov_b32 {sRNG}, 0x{(OPT['hi'] - OPT['lo']) << 23:08x}
    L_start:
    s_load_dwordx2 s[8:9], s[0:1], 0
    s_load_dwordx2 s[20:21], s[0:1], 24
    s_load_dwordx2 s[12:13], s[0:1], 8
    s_load_dwordx2 s[16:17], s[0:1], 16
    s_load_dwordx2 s[24:25], s[0:1], 32
    s_load_dwordx2 s[4:5], s[0:1], 56
    s_load_dwordx2 s[6:7], s[0:1], 40
    s_load_dwordx2 s[64:65], s[0:1], 48
    s_and_b32 {sT0}, s2, 7
    s_lshr_b32 {sT1}, s2, 3
    """)
    arr = OPT['arr']
    if arr == 'N':
        e(f"""s_lshr_b32 {sB}, {sT0}, 1
        s_lshl_b32 {sB}, {sB}, 2
        s_lshr_b32 {sT2}, {sT1}, 3
        s_add_u32 {sB}, {sB}, {sT2}
        s_and_b32 {sH}, {sT0}, 1
        s_lshl_b32 {sH}, {sH}, 3
        s_and_b32 {sT2}, {sT1}, 7
        s_add_u32 {sH}, {sH}, {sT2}""")
    elif arr == 'L':
        e(f"""s_lshl_b32 {sB}, {sT0}, 1
        s_lshr_b32 {sT2}, {sT1}, 4
        s_add_u32 {sB}, {sB}, {sT2}
        s_and_b32 {sH}, {sT1}, 15""")
    elif arr == 'M':
        e(f"""s_lshr_b32 {sB}, {sT0}, 2
        s_lshl_b32 {sB}, {sB}, 3
        s_lshr_b32 {sT2}, {sT1}, 2
        s_add_u32 {sB}, {sB}, {sT2}
        s_and_b32 {sH}, {sT0}, 3
        s_lshl_b32 {sH}, {sH}, 2
        s_and_b32 {sT2}, {sT1}, 3
        s_add_u32 {sH}, {sH}, {sT2}""")
    e(f"""
    s_mov_b32 s10, 143360
    s_mov_b32 s11, 0x00020000
    s_mov_b32 s23, 0x00020000
    s_lshl_b32 {sM8}, {sW}, 13
    s_lshl_b32 {sM1}, {sW}, 10
    s_lshl_b32 {sWQO}, {sW}, 17
    s_mul_i32 {sXO}, {sW}, 7168
    v_lshrrev_b32 v44, 5, v0                 ; hh
    v_and_b32 v45, 31, v0                    ; c
    v_lshlrev_b32 v1, 2, v44
    v_xor_b32 v1, v1, v45
    v_lshlrev_b32 v1, 4, v1
    v_lshl_add_u32 v2, v44, 13, v1
    v_xor_b32 v3, 0x80, v2
    v_add_u32 v3, 15360, v3
    v_add_u32 v4, 30720, v2
    v_add_u32 v5, 30720, v3
    s_and_b32 {sT2}, {sW}, 1
    s_lshl_b32 {sT0}, {sT2}, 2
    v_lshrrev_b32 v6, 4, v0
    v_xor_b32 v6, {sT0}, v6
    v_and_b32 v1, 7, v0
    v_xor_b32 v6, v6, v1
    v_lshlrev_b32 v6, 4, v6
    v_lshrrev_b32 v1, 3, v0
    v_mul_u32_u24 v1, 896, v1
    v_add_u32 v6, v6, v1                     ; x voff
    s_mul_i32 {sT0}, {sB}, 143360
    s_lshl_b32 {sT1}, {sH}, 9
    s_waitcnt lgkmcnt(0)
    s_add_u32 s8, s8, {sT0}
    s_addc_u32 s9, s9, 0
    s_add_u32 s20, s20, {sT1}
    s_addc_u32 s21, s21, 0
    s_sub_u32 s22, 3670016, {sT1}
    """)
    dc, lc = OPT['dc'], OPT['lc']
    def vmop(text, **kw):
        n = text.count('\n')
        return s.vm(text, cost=kw.pop('cost', dc) + 4 * n, chain=kw.pop('chain', 'vm'), **kw)
    def pace(e0, p):
        i = 0
        while True:
            x = e0 + int(i * p)
            yield dict(early=x, dl=x + 2)
            i += 1
    def dma_stage(i, pc=None, **kw):
        L = []
        slot = (i % 3) * 32768; xs = XB + (i % 3) * 20480
        for u in range(2):
            for ii in range(4):
                t = f"s_add_u32 m0, {sM8}, {slot + u*4096}\ns_add_u32 {sD}, {sWQO}, {(i << 19) + u*65536}\n" if ii == 0 else ""
                L.append(t + f"buffer_load_dwordx4 v{2+ii}, {SWQ}, {sD} offen offset:{ii*1024} {OPT['wqm']} lds")
        X = []
        for u in range(5):
            X.append(f"s_add_u32 m0, {sM1}, {xs + u*4096}\ns_add_u32 {sD}, {sXO}, {i*128 + u*4*7168}\nbuffer_load_dwordx4 v6, {SX}, {sD} offen {OPT['xm']} lds")
        return [(t, dict(bb=f"RA{i}", **kw)) for t in L + X]
    def dma_tile(n, slot, **kw):
        L = []
        for u in range(2):
            for ii in range(4):
                if n < 16:
                    i, dh = (n >> 1, n & 1) if n < 8 else ((n - 8) & 3, (n - 8) >> 2)
                    if n >= 8 and OPT['vz']: dh = 0
                    so = f"{sW16}, {i*65536 + dh*256 + u*US}" if n < 8 or 'c' not in OPT['x'] else f"{sM8}, {(n-8)*32768 + u*4096}"; vo = (8 if n < 8 else 2) + ii; srd = SK if n < 8 else SV; m = OPT['nt']
                else:
                    so = f"{sPP[n-16]}, {32*u*896}"; vo = 8 + ii; srd = SWO; m = OPT['wom']
                t = f"s_add_u32 m0, {sM8}, {SL[slot] + u*4096}\n{'s_xor_b32' if n < 16 else 's_add_u32'} {sD}, {so}\n" if ii == 0 else ""
                L.append(t + f"buffer_load_dwordx4 v{vo}, {srd}, {sD} offen offset:{ii*1024} {m} lds")
        return [(t, dict(bb=f"RS{n}", **kw)) for t in L]
    def stage_load(tiles, **kw):
        L = []
        for u in range(2):
            for ii in range(4):
                for x, (n, r) in enumerate(tiles):
                    i, dh = (n >> 1, n & 1) if n < 8 else ((n - 8) & 3, (n - 8) >> 2)
                    if n >= 8 and (OPT['vz'] or 'c' in OPT['x']): dh = 0
                    t = f"s_xor_b32 {sL}, {sW16}, {i*65536 + u*US}\n" if ii == 0 and x == 0 else ""
                    if t and n >= 8 and 'c' in OPT['x']: t = f"s_add_u32 {sL}, {sM8}, {(n-8)*32768 + u*4096}\n"
                    vo = (8 if n < 8 else 2) + ii; srd = SK if n < 8 else SV
                    L.append(t + f"buffer_load_dwordx4 {R('a', 32*r + 16*u + 4*ii, 4)}, v{vo}, {srd}, {sL} offen offset:{ii*1024 + dh*256} {OPT['nt']}")
        return [(t, dict(cost=lc, **kw)) for t in L]
    def stage_wo(n, r, **kw):
        L = []
        for u in range(2):
            for ii in range(4):
                t = f"s_add_u32 {sS}, {sPP[n-16]}, {32*u*896}\n" if ii == 0 else ""
                L.append(t + f"buffer_load_dwordx4 {R('a', 32*r + 16*u + 4*ii, 4)}, v{8+ii}, {SWO}, {sS} offen offset:{ii*1024}")
        return [(t, dict(cost=lc, chain='vm2', **kw)) for t in L]
    def issue(L, pc=None, **kw):
        for t, a in L:
            a = dict(a); a.update(kw)
            if pc is not None: a.update(next(pc))
            vmop(t, **a)
    wbase = [32768]
    def stage_write(n, r, slot, ab, p0, va=7, wp=None):
        for u in range(2):
            for ii in range(4):
                off = SL[slot] - (wbase[0] if va == 7 else 0) + u * 4096 + ii * 1024
                assert 0 <= off < 65536
                x = p0 + OPT['w0'] + (wp or OPT['wp']) * (4 * u + ii)
                s.ds(f"ds_write_b128 v{va}, {R('a', 32*r + 16*u + 4*ii, 4)} offset:{off}", cost=OPT['wc'], ab=ab, bb=f"RS{n}", early=x, dl=x + 1)
    P = dict(pre=True)
    def pwq():
        st = OPT['pst']
        s.es(f"""s_lshl_b32 {sT0}, s2, 2
        s_add_u32 {sT0}, {sT0}, {sW}
        s_lshl_b32 {sT0}, {sT0}, {6+st}
        s_lshl_b32 {sT1}, {sH}, 9
        s_sub_u32 {sT0}, {sT0}, {sT1}
        v_lshlrev_b32 v248, {st}, v0
        s_lshl_b32 {sT1}, {sH}, 2
        s_add_u32 {sT1}, {sT1}, {sW}
        s_lshl_b32 {sT1}, {sT1}, {6+st}
        v_add_u32 v249, {sT1}, v248
        v_add_u32 v248, {sT0}, v248""", **P)
        vmop(f"buffer_load_dword v248, v248, {SWQ}, 0 offen {OPT['pqm']}", **P)
        if OPT['pq'] < 4: vmop(f"buffer_load_dword v249, v249, {SX}, 0 offen {OPT['pqm']}", **P)
    if OPT['pq'] & 3 == 1: pwq()
    issue(dma_stage(0), **P)
    if OPT['pq'] & 3 == 2: pwq()
    s.es(f"""
    s_lshl_b32 {sT0}, {sB}, 4
    s_add_u32 {sT0}, {sT0}, {sH}
    s_lshl_b32 {sT0}, {sT0}, 18""", **P)
    s.e(f"s_add_u32 s16, s16, {sT0}\ns_addc_u32 s17, s17, 0\ns_add_u32 s12, s12, {sT0}\ns_addc_u32 s13, s13, 0", **P)
    s.es(f"""
    s_mov_b32 s14, 262144
    s_mov_b32 s15, 0x00020000
    s_mov_b32 s18, 262144
    s_mov_b32 s19, 0x00020000
    s_lshl_b32 {sW16}, {sW}, {WSH}""", **P)
    if OPT['rot']:
        s.es(f"""s_lshr_b32 {sT0}, {sT0}, {18 + OPT['rot'] - 1}
        s_and_b32 {sT0}, {sT0}, {OPT['rotm']}
        s_lshl_b32 {sT0}, {sT0}, {13 if OPT['rotm'] > 3 else 16}
        s_xor_b32 {sW16}, {sW16}, {sT0}""", **P)
    issue(dma_stage(1), **P)
    if OPT['pq'] & 3 == 3: pwq()
    s.es(f"""
    v_bfe_u32 v1, v0, 4, 1
    v_and_b32 v8, 7, v0
    v_xor_b32 v8, v8, v1
    v_lshlrev_b32 v8, 4, v8
    v_lshl_add_u32 v8, v44, 7, v8
    v_bfe_u32 v1, v0, 3, 2
    v_lshl_add_u32 v8, v1, 9, v8
    v_xor_b32 v9, {1024+32}, v8
    v_xor_b32 v10, {2048+64}, v8
    v_xor_b32 v11, {3072+96}, v8""".replace(f"v_xor_b32 v9, {1024+32}, v8", f"v_xor_b32 v9, 32, v8\nv_add_u32 v9, {IIS-1024}, v9")
       .replace(f"v_xor_b32 v10, {2048+64}, v8", f"v_xor_b32 v10, 64, v8\nv_add_u32 v10, {2*(IIS-1024)}, v10")
       .replace(f"v_xor_b32 v11, {3072+96}, v8", f"v_xor_b32 v11, 0x60, v8\nv_add_u32 v11, {3*(IIS-1024)}, v11"), **P)
    KL = stage_load([(0, 0), (1, 1)]) + stage_load([(2, 2), (3, 3)]) + stage_load([(4, 4), (5, 5)]) + stage_load([(6, 6)])
    if not OPT['pair']: KL = sum([stage_load([(n, n)]) for n in range(7)], [])
    if OPT['tp']:
        s.es(f"v_and_b32 v241, 15, v0\nv_lshlrev_b32 v241, 12, v241\ns_lshl_b32 {sL}, {sW}, 16", **P)
        vmop(f"buffer_load_dword v240, v241, {SK}, {sL} offen {OPT['tpm']}", **P)
        if OPT['tp'] > 1: vmop(f"buffer_load_dword v242, v241, {SV}, {sL} offen {OPT['tpm']}", **P)
    def cpref(lab, tmp, st, n=1, **kw):
        a, b = f"v{tmp}", f"v{tmp+1}"
        for j in range(n):
            s.add(Op('e', f"s_lshl_b32 s98, {sW}, {6+st}\ns_add_u32 s98, s98, {lab}-L_pc+{j*(256<<st)}\nv_lshlrev_b32 {a}, {st}, v0\nv_add_u32 {a}, s98, {a}\nv_min_u32 {a}, s95, {a}", cost=20, **kw))
            s.add(Op('e', f"v_mov_b32 {b}, s97\nv_add_co_u32 {a}, s[98:99], s96, {a}\ns_nop 1\nv_addc_co_u32 {b}, s[98:99], 0, {b}, s[98:99]", W=['s98', 's99'], cost=20, **kw))
            s.add(Op('vm', f"global_load_dword {a}, v[{tmp}:{tmp+1}], off {OPT['cpm']}", cost=16, **kw))
    if OPT['cp']:
        s.e(f"s_getpc_b64 s[96:97]\nL_pc:\ns_mov_b32 s95, L_codeend-L_pc-4", **P)
        if OPT['cp'] == 1:
            cpref('L_pc', 242, 7, 1, **P); cpref('L_pc+32768', 244, 7, 1, **P)
        else: cpref('L_pc', 242, 6, 1, **P)
    s.e(f"s_lshl_b32 {sT0}, {sB}, 11\ns_add_u32 {sT0}, {sT0}, {FLOFF}\ns_add_u32 s60, s4, {sT0}\ns_addc_u32 s61, s5, 0", **P)
    s.e(f"s_lshl_b32 {sT0}, {sB}, 4\ns_add_u32 s64, s64, {sT0}\ns_addc_u32 s65, s65, 0", **P)
    s.es(f"""s_mov_b32 s62, 2048
    s_mov_b32 s63, 0x00020000
    s_mov_b32 s66, 16
    s_mov_b32 s67, 0x00020000
    s_lshl_b32 s3, {sH}, 7
    s_lshl_b32 {sT0}, {sW}, 2
    s_add_u32 s3, s3, {sT0}
    v_lshlrev_b32 v247, 23, v0
    v_mov_b32 v245, 0""", **P)
    vmop(f"buffer_store_dword v245, v247, {SFL}, s3 offen", bb='RA2', **P)
    if OPT['s2p']: issue(dma_stage(2), **P)
    issue(KL[:OPT['kpre']], **P)
    KL = KL[OPT['kpre']:]
    s.e(f"s_mul_i32 {sT0}, {sH}, 229376\ns_add_u32 s24, s24, {sT0}\ns_addc_u32 s25, s25, 0", **P)
    s.e(f"s_mul_i32 {sT0}, {sB}, {PB}\ns_lshr_b32 {sT1}, {sH}, {LC}\ns_lshl_b32 {sT1}, {sT1}, 11\ns_add_u32 {sT0}, {sT0}, {sT1}\ns_add_u32 s28, s4, {sT0}\ns_addc_u32 s29, s5, 0", **P)
    s.es(f"""
    s_mov_b32 s26, 229376
    s_mov_b32 s27, 0x00020000
    s_mov_b32 s30, {PB}
    s_mov_b32 s31, 0x00020000
    s_mov_b32 {sC}, 0x{f2u(math.log2(math.e)/16):08x}
    """, **P)
    if OPT['pw'] == -1:
        s.es(f"""s_lshl_b32 {sT0}, {sB}, 2
        s_add_u32 {sT0}, {sT0}, {sW}
        s_lshl_b32 {sT0}, {sT0}, {6+OPT['pst']}
        v_lshlrev_b32 v250, {OPT['pst']}, v0
        v_add_u32 v250, {sT0}, v250""", **P)
        vmop(f"buffer_load_dword v250, v250, {SWO}, 0 offen", **P)
    s.es(f"""
    v_bfe_u32 v47, v0, 2, 2
    v_lshl_add_u32 v43, v44, 3, v47
    v_bfe_u32 v1, v0, 4, 1
    v_lshlrev_b32 v46, 5, v1
    v_and_b32 v1, 1, v0
    v_lshl_add_u32 v46, v1, 4, v46
    v_bfe_u32 v1, v0, 1, 1
    v_lshl_add_u32 v46, v1, 3, v46
    v_lshl_add_u32 v1, v47, 6, v46
    s_lshl_b32 {sT0}, {sW}, 6
    v_lshl_add_u32 v12, v43, 9, v1
    v_xor_b32 v12, {sT0}, v12
    v_xor_b32 v13, 64, v12
    v_xor_b32 v14, 0x80, v12
    v_xor_b32 v15, 0xc0, v12
    v_bfe_u32 v1, v0, 1, 3
    v_xor_b32 v1, v1, v44
    v_lshlrev_b32 v1, 4, v1
    v_lshl_add_u32 v1, v45, 7, v1
    v_add_u32 v20, {XB + 128*128}, v1
    s_lshl_b32 {sT0}, {sW}, 12
    s_add_u32 {sT0}, {sT0}, {XB}
    v_add_u32 v16, {sT0}, v1
    v_xor_b32 v17, 32, v16
    v_xor_b32 v18, 64, v16
    v_xor_b32 v19, 0x60, v16
    v_xor_b32 v21, 32, v20
    v_xor_b32 v22, 64, v20
    v_xor_b32 v23, 0x60, v20
    """, **P)
    s.es(f"""
    v_and_b32 v42, 0x13, v0
    v_bfe_u32 v1, v0, 2, 1
    v_lshl_or_b32 v42, v1, 3, v42
    v_bfe_u32 v1, v0, 3, 1
    v_lshl_or_b32 v42, v1, 2, v42
    v_bfe_u32 v1, v42, 1, 3
    v_xor_b32 v1, v1, v44
    v_lshlrev_b32 v1, 4, v1
    v_and_b32 v24, 3, v42
    v_lshl_add_u32 v1, v24, 7, v1
    v_lshrrev_b32 v24, 2, v42
    v_lshl_add_u32 v1, v24, 10, v1
    s_add_u32 {sT0}, {sM8}, 32768
    v_add_u32 v32, {sT0}, v1
    v_xor_b32 v33, 32, v32
    v_xor_b32 v34, 64, v32
    v_xor_b32 v35, 0x60, v32
    s_lshr_b32 {sT1}, {sW}, 1
    s_lshl_b32 {sT1}, {sT1}, 9
    s_and_b32 {sT2}, {sW}, 1
    s_lshl_b32 {sT2}, {sT2}, 6
    s_add_u32 {sT1}, {sT1}, {sT2}
    s_add_u32 {sT1}, {sT1}, 32768
    v_xor_b32 v24, {sT1}, v1
    """, **P)
    for jj in range(4):
        for half in range(2):
            if jj or half: s.e(f"v_xor_b32 v{24+2*jj+half}, {(jj>>1)*512 + (jj&1)*64 + half*32}, v24", **P)
    s.es(f"""
    v_lshlrev_b32 v1, 4, v0
    v_add_u32 v7, {sT0}, v1
    v_add_u32 v36, {S4}, v1
    s_lshl_b32 {sT0}, {sW}, 11
    v_add_u32 v37, {sT0}, v36
    """, **P)
    s.es(f"""s_getreg_b32 {sT0}, hwreg(HW_REG_XCC_ID, 0, 3)
    s_mul_i32 {sT1}, {sT0}, {sT0}
    s_lshl_b32 {sT1}, {sT1}, 8
    s_add_u32 {sT0}, {sT0}, {sT1}
    s_lshl_b32 {sT0}, {sT0}, 8
    s_add_u32 {sT0}, {sT0}, 1
    s_lshl_b32 {sFAST}, {sT0}, 4
    s_lshl_b32 {sT1}, {sW}, 29
    v_add_u32 v244, {sT1}, v247""", dl=20)
    if OPT['fs']: s.e(f"s_add_u32 {sFAST}, {sFAST}, 1")
    s.e(f"s_cmp_eq_u32 {sPASS}, 0\ns_cselect_b32 {sT0}, {sT0}, 0", dl=20)
    s.e(f"v_mov_b32 v246, {sT0}", dl=20)

    ringc = [0]
    def ring():
        r = 224 + 4 * (ringc[0] % 8); ringc[0] += 1
        return r
    STAMPS = set(OPT['stamps'].split(','))
    CPF = dict(x.split(':', 1) for x in OPT['cpf'].split(',') if x)
    def RB(name):
        def fn():
            e(f"L_{name}:")
            if name in STAMPS: stamp()
        s.bar(name, fn=fn, early=s.nmf - OPT['rb'])
        if OPT['cp'] > 1 and name in CPF:
            lab, tmp = CPF[name].split(':')
            cpref('L_' + lab, int(tmp), 6, 1, early=s.nmf, dl=s.nmf + 4)
    def WB(name, p0):
        s.bar(name, early=p0 + OPT['wb'], lgage=OPT['wage'], dl=p0 + OPT['wb'] + 2)
    def rebase(regs, delta):
        for r in regs:
            s.e(f"v_add_u32 v{r}, {delta}, v{r}" if delta > 0 else f"v_subrev_u32 v{r}, {-delta}, v{r}")
    def tr(ar, off, d2, **kw):
        r = ring()
        s.rd(f"ds_read_b64_tr_b16 {R('a', r, 2)}, v{ar} offset:{off}", **kw)
        s.rd(f"ds_read_b64_tr_b16 {R('a', r+2, 2)}, v{ar} offset:{off+d2}", **kw)
        return R('a', r, 4)
    def rd128(ar, off, dst=None, **kw):
        if dst is None: dst = R('a', ring(), 4)
        s.rd(f"ds_read_b128 {dst}, v{ar} offset:{off}", **kw)
        return dst
    def mf(acc, a, b, first): s.mf(f"{MF} {acc}, {a}, {b}, {'0' if first else acc}")

    def qconv(src, j):
        for q in range(16): s.e(f"v_mul_f32 v{src+q}, {sC}, v{src+q}")
        for q in range(8): s.e(f"v_cvt_pk_bf16_f32 v{src+2*q}, v{src+2*q}, v{src+2*q+1}")
        for q in range(8): s.e(f"v_accvgpr_write_b32 a{8*j+q}, v{src+2*q}")
    def pack_write(src, off, ab, bb):
        for q in range(8): s.e(f"v_cvt_pk_bf16_f32 v{src+q}, v{src+2*q}, v{src+2*q+1}")
        for half in range(2):
            s.ds(f"ds_write_b128 v37, {R('v', src+4*half, 4)} offset:{off + half*1024}", cost=OPT['wc'], ab=ab, bb=bb)
    JORD = [0, 4, 1, 2, 3, 5, 6, 7]
    trb = 0
    gx = [float(OPT['k0']), 0]
    def gpace(e0, p=0):
        while True:
            gx[0] = max(gx[0], e0)
            x = int(gx[0]); gx[1] += 1
            gx[0] += (p or (OPT['kp'] if gx[1] + OPT['kpre'] < OPT['ksw'] else OPT['kp2'])) / 10
            yield dict(early=x, dl=x + 2)
    kpc = gpace(0)
    kq = [(t, dict(a, **next(kpc))) for t, a in KL]
    def merged(L, upto):
        M = list(L)
        while kq and kq[0][1]['early'] < upto:
            t, a = kq.pop(0)
            if L and OPT['kwin']:
                x = upto - 40 + OPT['kwin'] + (a['early'] - upto + 40) * (40 - OPT['kwin']) // 40
                a = dict(a, early=x, dl=x + 2)
            M.append((t, a))
        M.sort(key=lambda x: x[1]['early'])
        issue(M)
    for i in range(7):
        p0 = s.nmf
        slot = (i % 3) * 32768; xs = (i % 3) * 20480
        RB(f"RA{i}")
        if i >= 1: WB(f"WA{i}", p0)
        L = []
        if i <= 4 and not (i == 0 and OPT['s2p']):
            pc = pace(p0 + (1 if i else -1), OPT['dp'])
            L = [(t, dict(a, **next(pc))) for t, a in dma_stage(i + 2, ab=(f"WA{i}" if i else None))]
        merged(L, p0 + 40 if i < 6 else 10**9)
        if i == 2: s.vm(f"buffer_atomic_add v246, v244, {SDB}, 0 offen sc1", cost=8, ab='RA2', dl=p0 + 20)
        if i == 5: stage_write(0, 0, 'a', 'WA5', p0)
        if i == 6: stage_write(1, 1, 'b', 'WA6', p0 - OPT['w0'] + 2)
        want = slot & 0x10000
        if want != trb: rebase(range(12, 16), want - trb); trb = want
        kw = dict(ab=f"RA{i}", bb=(f"WA{i+1}" if i < 6 else "WS0"))
        def step(j, T, newx):
            xb = B(10) + 8 * T
            if newx: rd128(16 + T, xs, R('v', xb, 4), **kw)
            a = tr(12 + (j & 3), slot - trb + (j >> 2) * 256 + T * 8192, 2048, **kw)
            mf(R('v', B(j), 16), a, R('v', xb, 4), i == 0 and T == 0)
            if j in (0, 4):
                if newx: rd128(20 + T, xs, R('v', xb + 4, 4), **kw)
                mf(R('v', B(8 + (j >> 2)), 16), a, R('v', xb + 4, 4), i == 0 and T == 0)
        if i < 6:
            for T in range(4):
                for j in JORD: step(j, T, j == 0)
        else:
            for j in range(8):
                for T in range(4): step(j, T, j == 0)
                if OPT['dump'] == 'Q': continue
                if j in (0, 4):
                    sh = B(8 + (j >> 2))
                    for q in range(16): s.e(f"v_mul_f32 v{sh+q}, {sC}, v{sh+q}")
                    pack_write(sh, 16384 + (j >> 2) * 8192, 'WA6', f"RS{j>>2}")
                qconv(B(j), j)
    dump('Q', [f"v{r}" for r in range(B(0), B(10))])
    s.es(f"""
    v_lshrrev_b32 v42, 4, v0
    v_lshlrev_b32 v3, 2, v42
    v_and_b32 v2, 15, v0
    v_xor_b32 v2, v2, v3
    v_lshlrev_b32 v2, 4, v2
    v_lshl_add_u32 v2, v42, {8 if 'c' in OPT['x'] else 9}, v2
    {f"s_lshr_b32 {sT0}, {sH}, {OPT['vz']-1}" if OPT['vz'] else ''}
    {f"s_and_b32 {sT0}, {sT0}, 1" if OPT['vz'] else ''}
    {f"v_lshl_add_u32 v2, {sT0}, 8, v2" if OPT['vz'] else ''}
    v_add_u32 v3, {0 if 'c' in OPT['x'] else IIS-1024}, v2
    v_add_u32 v4, {0 if 'c' in OPT['x'] else 2*(IIS-1024)}, v2
    v_add_u32 v5, {0 if 'c' in OPT['x'] else 3*(IIS-1024)}, v2
    v_lshl_add_u32 v45, v47, 6, v46
    v_lshl_add_u32 v45, v43, 8, v45
    s_lshl_b32 {sT0}, {sW}, 6
    s_add_u32 {sT0}, {sT0}, 65536
    v_xor_b32 v12, {sT0}, v45
    v_xor_b32 v13, 64, v12
    v_xor_b32 v14, 0x80, v12
    v_xor_b32 v15, 0xc0, v12
    """)

    SLOT = {0: 'a', 1: 'b', 2: 'a', 3: 'b', 4: 'a', 5: 'b', 6: 'a', 7: 'c', 8: 'd', 9: 'b', 10: 'd', 11: 'b', 12: 'a', 13: 'c', 14: 'd', 15: 'b',
            16: 'a', 17: 'c', 18: 'd', 19: 'b', 20: 'a', 21: 'c', 22: 'd'}
    TB = [[12, 11, 8, 10, 0], [1, 2, 3, 4, 5], [6, 7, 9, 11, 0], [5, 2, 4, 7, 10]]
    hooks = []
    firsts = {vSP: True, vSS: True}
    def softmax(g, t):
        src = B(TB[g][t]); regs = [f"v{src+q}" for q in range(16)]
        mx, sm = (vMP, vSP) if t < 4 else (vMS, vSS)
        h = len(hooks); hooks.append((src, mx))
        s.add(Op('e', f"s_cbranch_vccnz L_fix{h}\nL_ret{h}:", cost=8, R=regs + ['vcc', f"v{mx}"], W=regs + [f"v{mx}"]))
        for q in range(16):
            s.e(f"v_exp_f32 v{src+q}, v{src+q}")
        for q in range(16):
            if firsts[sm]:
                if q == 0: continue
                s.e(f"v_add_f32 v{sm}, v{src}, v{src+1}"); firsts[sm] = False
            else: s.e(f"v_add_f32 v{sm}, v{sm}, v{src+q}")
        if t < 4:
            dst = B(TB[g][t & 2]) + 8 * (t & 1)
            for q in range(8): s.e(f"v_cvt_pk_bf16_f32 v{dst+q}, v{src+2*q}, v{src+2*q+1}")
        else:
            pack_write(src, g * 8192, ['RS0', 'RS0', 'WS7', 'WS8'][g], f"RS{8+g}")
    def Pfrag(g, ks): return R('v', B(TB[g][(ks >> 1) & 2]) + 4 * (ks & 3), 4)
    kb = 32768
    vp = OPT['vp']
    for n in range(8):
        p0 = s.nmf
        g, dh = n >> 1, n & 1
        RB(f"RS{n}")
        if n != 6: WB(f"WS{n}", p0)
        if n == 0: issue(dma_tile(7, 'c', ab='WS0') + dma_tile(8, 'd', ab='WS0'), gpace(p0 + 1))
        if 1 <= n <= 5: stage_write(n + 1, n + 1, SLOT[n + 1], f"WS{n}", p0)
        if 1 <= n <= 3: issue(stage_load([(8 + n, n + 1)]), gpace(p0 + OPT['w0'] + 6))
        if n == 5: rebase([7], 32768); wbase[0] = 65536
        if OPT['pw'] and n == OPT['pw']:
            s.es(f"""s_lshl_b32 {sT0}, {sB}, 2
            s_add_u32 {sT0}, {sT0}, {sW}
            s_lshl_b32 {sT0}, {sT0}, {6+OPT['pst']}
            v_lshlrev_b32 v18, {OPT['pst']}, v0
            v_add_u32 v18, {sT0}, v18""", early=p0, dl=p0 + 10)
            s.vm(f"buffer_load_dword v18, v18, {SWO}, 0 offen {OPT['pqm']}", cost=16, early=p0, dl=p0 + 12)
        if OPT['hq'] and n == OPT['hq']:
            x = p0 + OPT['hpo']
            s.es(f"""s_and_b32 {sT0}, {sH}, 3
            s_lshl_b32 {sT0}, {sT0}, 2
            s_add_u32 {sT0}, {sT0}, {sW}
            s_lshl_b32 {sT0}, {sT0}, {TSH+2}
            v_lshrrev_b32 v19, 4, v0
            v_lshlrev_b32 v19, {TSH}, v19
            v_and_b32 v20, 15, v0
            v_lshl_add_u32 v19, v20, 7, v19
            v_add_u32 v19, {sT0}, v19
            v_add_u32 v20, {64*TS}, v19""", early=x, dl=x + 8)
            s.vm(f"buffer_load_dword v19, v19, {SWS}, 0 offen {OPT['hpm']}", cost=16, early=x, dl=x + 10)
            s.vm(f"buffer_load_dword v20, v20, {SWS}, 0 offen {OPT['hpm']}", cost=16, early=x + OPT['hpd'], dl=x + OPT['hpd'] + 10)
        if OPT['tw'] and n == OPT['tw']:
            s.es(f"""s_and_b32 {sT0}, {sW}, 1
            s_mul_i32 {sT0}, {sT0}, {20*TS}
            v_lshlrev_b32 v19, {TSH}, v0
            v_add_u32 v19, {sT0}, v19""", early=p0 + 14, dl=p0 + 20)
            s.vm(f"buffer_load_dword v19, v19, {SWS}, 0 offen", cost=16, early=p0 + 14, dl=p0 + 22)
        if OPT['to'] and n == OPT['to']:
            s.e(f"s_mul_i32 {sT0}, {sB}, 143360\ns_add_u32 s8, s6, {sT0}\ns_addc_u32 s9, s7, 0", early=p0 + 24, dl=p0 + 28)
            s.es(f"s_mov_b32 s10, 143360\nv_lshlrev_b32 v20, 12, v0", early=p0 + 24, dl=p0 + 30)
            s.vm(f"buffer_load_dword v20, v20, s[8:11], 0 offen", cost=16, early=p0 + 24, dl=p0 + 32)
        if n == 7 and OPT['vz']: s.es("\n".join(f"v_xor_b32 v{r}, 0x100, v{r}" for r in range(2, 6)))
        if n == 7: issue(dma_tile(12, 'a', ab='WS7'), gpace(p0 + 1))
        off0 = SL[SLOT[n]] - kb
        if not 0 <= off0 < 65536 - 32767:
            rebase(range(24, 36), off0); kb += off0; off0 = 0
        kw = dict(ab=f"RS{n}", bb=(f"WS{n+1}" if n != 5 else "RS7"))
        qkw = dict(ab=f"RS{n}", bb=(f"WS{n+1}" if n >= 6 else None))
        def step(t, ks):
            acc = R('v', B(TB[g][t]), 16); first = (dh == 0 and ks == 0)
            if t < 4:
                a = rd128(24 + ks, off0 + t * 8192, **kw)
                mf(acc, a, R('a', 32 * dh + 4 * ks, 4), first)
            else:
                a = rd128(32 + (ks & 3), off0 + (ks >> 2) * 512, **kw)
                b = rd128(36, 16384 + dh * 8192 + ks * 1024, **qkw)
                mf(acc, a, b, first)
        if n < 2:
            for ks in range(8):
                for t in range(5): step(t, ks)
            if dh and OPT['dump'] != 'S0':
                for t in (4, 0, 1, 2, 3): softmax(g, t)
        else:
            for t in (4, 0, 1, 2, 3):
                for ks in range(8): step(t, ks)
                if dh: softmax(g, t)
        if n == 1: dump('S0', [f"v{B(b)+q}" for b in TB[0] for q in range(16)])
    dump('P', [f"v{B(TB[g][t])+q}" for g in range(4) for t in (0, 2) for q in range(16)] + [f"v{vSP}", f"v{vSS}"])
    s.es(f"""
    v_lshrrev_b32 v16, 1, v47
    v_lshl_add_u32 v16, v16, 6, v46
    v_lshl_add_u32 v16, v43, 7, v16
    s_and_b32 {sT1}, {sW}, 1
    s_lshl_b32 {sT1}, {sT1}, 6
    s_lshl_b32 {sT0}, {sW}, 12
    s_add_u32 {sT0}, {sT0}, {sT1}
    v_xor_b32 v16, {sT0}, v16""")
    assert not OPT['vz'] or 'z' in OPT['x']
    for x in range(1, 8): s.e(f"v_xor_b32 v{16+x}, {(x>>1)*4096 + (x&1)*64}, v16")
    s.es(f"""s_and_b32 {sT2}, {sH}, {C-1}
    s_mul_i32 {sPP[0]}, {sT2}, {128 * (2 if C == 4 else 3)}
    s_add_u32 {sT0}, {sH}, 1
    s_and_b32 {sT0}, {sT0}, {C-1}
    s_sub_u32 {sT0}, {sT0}, {sT2}
    s_lshl_b32 {sT0}, {sT0}, 7
    s_add_u32 {sPRED}, s3, {sT0}
    s_mov_b32 {sCNT}, 0""")
    s.e(f"s_cmp_eq_u32 {sT2}, {C-1}\ns_cselect_b32 {sNF}, {1 if C == 4 else 4}, {2 if C == 4 else 3}")
    for i in range(1, 7): s.e(f"s_add_u32 {sPP[i]}, {sPP[i-1]}, 128\ns_cmp_eq_u32 {sPP[i]}, 896\ns_cselect_b32 {sPP[i]}, 0, {sPP[i]}")
    for i in range(7): s.e(f"s_lshl_b32 {sQ[i]}, {sPP[i]}, {TSH+1-7}")
    s.es(f"""
    s_mul_i32 {sT0}, {sW}, {64*896}
    v_lshrrev_b32 v42, 4, v0
    v_and_b32 v42, 1, v42
    v_lshlrev_b32 v42, 2, v42
    v_and_b32 v8, 7, v0
    v_xor_b32 v8, v8, v42
    v_lshlrev_b32 v8, 4, v8
    v_lshrrev_b32 v42, 3, v0
    v_mul_u32_u24 v42, 896, v42
    v_add3_u32 v8, v8, v42, {sT0}
    v_add_u32 v9, 6144, v8
    v_add_u32 v10, 12288, v8
    v_add_u32 v11, 18432, v8
    """)
    s.es(f"""
    v_mov_b32 v42, v{vSP}
    v_mov_b32 v43, v{vSS}
    v_permlane32_swap_b32 v42, v{vSP}
    v_permlane32_swap_b32 v43, v{vSS}
    v_add_f32 v{vSP}, v42, v{vSP}
    v_add_f32 v{vSS}, v43, v{vSS}
    v_subrev_u32 v42, {sLO}, v{vSP}
    v_mov_b32 v43, 0x7f800000
    v_cmp_le_u32 vcc, {sRNG}, v42
    v_cndmask_b32 v{vSS}, v{vSS}, v43, vcc
    v_rcp_f32 v{vSP}, v{vSP}
    v_lshlrev_b32 v6, 2, v0
    v_add_u32 v6, {S4}, v6
    s_lshl_b32 {sT0}, {sW}, 8
    v_add_u32 v35, {sT0}, v6
    """)
    s.ds(f"ds_write_b32 v35, v{vSS}", ab='WS13', bb='RS14')
    vS = [32, 33, 34]
    SEL = [24, 28]
    vZ, vFV, vPO, vWL, vST = 1, 40, 41, (45 if OPT['dm'] else 35), 41
    HS = [int(x) for x in str(OPT['hs']).split(',') if x] if OPT['dm'] else [19, 20, 21, 22]
    assert not OPT['dm'] or set(HS) <= {20, 21}
    p12 = s.nmf + 160
    s.es(f"""s_and_b32 {sT1}, {sW}, 1
    s_mul_i32 {sT0}, {sW}, 14
    s_add_u32 {sT0}, {sT0}, {sT1}
    s_lshl_b32 {sT0}, {sT0}, {TSH}
    v_add_u32 v{vS[0]}, {sT0}, v1
    v_xor_b32 v{vS[1]}, {TS}, v{vS[0]}
    s_lshr_b32 {sT0}, {sW}, 1
    s_mul_i32 {sT0}, {sT0}, 14
    s_add_u32 {sT0}, {sT0}, {sT1}
    s_add_u32 {sT0}, {sT0}, 56
    s_lshl_b32 {sT0}, {sT0}, {TSH}
    v_add_u32 v{vS[2]}, {sT0}, v1
    v_lshlrev_b32 v{vZ}, 23, v0
    v_bfe_u32 v42, v0, 3, 2
    v_bfe_u32 v43, v0, 1, 1
    v_lshl_add_u32 v42, v42, 1, v43
    v_lshrrev_b32 v43, 3, v0
    v_xor_b32 v43, v43, v0
    v_and_b32 v43, 4, v43
    v_lshl_add_u32 v42, v43, 1, v42
    v_and_b32 v44, 1, v0
    v_lshlrev_b32 v44, 4, v44
    v_mov_b32 v45, 0x3f80
    v_lshlrev_b32 v45, v44, v45""", dl=p12 + 10)
    for r in range(8):
        s.e(f"v_cmp_eq_u32 s[8:9], {r}, v42\ns_nop 1\nv_cndmask_b32 v{SEL[r >> 2] + (r & 3)}, 0, v45, s[8:9]", cost=12, dl=p12 + 20)

    OA = [[R('a', 16 * j, 16) for j in range(4)] + [R('a', 192, 16)], [R('v', B(b), 16) for b in (0, 11, 2, 7, 10)]]
    tmpc = [0]
    def oconv_a(abase, dst, inv):
        for q in range(8):
            t = 42 + 2 * (tmpc[0] % 3); tmpc[0] += 1
            s.es(f"""v_accvgpr_read_b32 v{t}, a{abase+2*q}
            v_accvgpr_read_b32 v{t+1}, a{abase+2*q+1}
            v_mul_f32 v{t}, v{t}, v{inv}
            v_mul_f32 v{t+1}, v{t+1}, v{inv}
            v_cvt_pk_bf16_f32 v{dst+q}, v{t}, v{t+1}""")
    def oconv_v(src, dst, inv):
        for q in range(16): s.e(f"v_mul_f32 v{src+q}, v{src+q}, v{inv}")
        if dst is not None:
            for q in range(8): s.e(f"v_cvt_pk_bf16_f32 v{dst+q}, v{src+2*q}, v{src+2*q+1}")
    vb = 65536
    SP = [int(x) for x in OPT['sp'].split(',')]
    for n in range(8, 16):
        p0 = s.nmf
        dh, g = (n - 8) >> 2, (n - 8) & 3
        RB(f"RS{n}")
        if n != 11: WB(f"WS{n}", p0)
        if n == 8:
            stage_write(9, 2, 'b', 'RS7', p0)
            issue(dma_tile(13, 'c', ab='WS8') + stage_load([(14, 5)]), gpace(p0 + 1))
        if n == 9: stage_write(10, 3, 'd', 'WS9', p0)
        if n == 10: stage_write(11, 4, 'b', 'WS10', p0)
        if n == 12:
            issue(dma_tile(15, 'b', ab='WS12'), pace(p0 + 1, OPT['p15'] / 10) if OPT['p15'] else gpace(p0 + 1))
            s.es(f"s_mov_b32 s16, s28\ns_mov_b32 s17, s29")
        if n == OPT['hp']:
            x = p0 + OPT['hpo']
            s.e(f"v_cmp_gt_u32 s[8:9], 16, v0\ns_nop 1\nv_cndmask_b32 v45, v{vS[1]}, v{vS[0]}, s[8:9]", cost=12, early=x - 12, dl=x - 4)
            s.e(f"v_cmp_gt_u32 s[8:9], 32, v0\ns_nop 1\nv_cndmask_b32 v45, v{vS[2]}, v45, s[8:9]", cost=12, early=x - 12, dl=x - 3)
            s.es(f"""v_lshlrev_b32 v44, 4, v0
            v_sub_u32 v45, v45, v44
            v_and_b32 v44, 15, v0
            v_lshl_add_u32 v45, v44, 7, v45""", early=x - 12, dl=x - 1)
            s.vm(f"buffer_load_dword a66, v45, {SWS}, {sQ[0]} offen {OPT['hpm']}", cost=16, lat=0, early=x, dl=x + 2)
            s.vm(f"buffer_load_dword a67, v45, {SWS}, {sQ[1]} offen {OPT['hpm']}", cost=16, lat=0, early=x + OPT['hpd'], dl=x + OPT['hpd'] + 2)
        if n == 13: stage_write(14, 5, 'd', 'RS12', p0)
        if n >= 13: issue(dma_tile(n + 3, SLOT[n + 3], ab=f"WS{n}"), gpace(p0 + 1, OPT['wop']) if OPT['wop'] else pace(p0 + OPT['wo0'], vp))
        SW = sum([stage_wo(19 + x, 2 + x) for x in range(4) if SP[x] == n and 19 + x in HS], [])
        if SW: issue(SW, gpace(p0 + 1, OPT['hg']) if OPT['hg'] else pace(p0 + OPT['so'], OPT['spp']))
        if n == 14:
            for w_ in range(4): s.ds(f"ds_read_b32 v{44+w_}, v6 offset:{w_*256}", ab='RS14')
            s.es(f"""v_add_f32 v44, v44, v45
            v_add_f32 v46, v46, v47
            v_add_f32 v{vSS}, v44, v46
            v_subrev_u32 v44, {sLO}, v{vSS}""")
            s.add(Op('e', f"v_cmp_le_u32 vcc, {sRNG}, v44\ns_nop 1\ns_cbranch_vccnz L_slow\nL_checked:", cost=16, R=[f"v{vMP}", f"v{vMS}"], W=['#chk'], ab='RS14', bb='RS15'))
            s.e(f"v_rcp_f32 v{vSS}, v{vSS}")
            s.es(f"v_xor_b32 v6, 0x800, v37")
            oconv_a(192, B(1), vSS)
            for half in range(2):
                s.ds(f"ds_write_b128 v37, {R('v', B(1)+4*half, 4)} offset:{8192 + half*1024}", cost=OPT['wc'], ab='WS14', bb='RS16')
        off0 = SL[SLOT[n]] - vb
        if not 0 <= off0 <= 32768:
            nb = SL[SLOT[n]] & 0x10000
            rebase(range(12, 16), nb - vb); vb = nb; off0 = SL[SLOT[n]] - vb
        kw = dict(ab=f"RS{n}", bb=(f"WS{n+1}" if n not in (10, 15) else f"RS{n+2}"))
        pkw = dict(ab=f"RS{n}", bb=(f"WS{n+1}" if 12 <= n < 15 else None))
        for j in range(4):
            for ks in range(8):
                a = tr(12 + j, off0 + ks * 4096, 1024, **kw)
                mf(OA[dh][j], a, Pfrag(g, ks), g == 0 and ks == 0)
                if j == 0:
                    b = rd128(36, g * 8192 + ks * 1024, **pkw)
                    mf(OA[dh][4], a, b, g == 0 and ks == 0)
            if n == 15 and OPT['dump'] != 'O':
                if j == 0:
                    oconv_v(B(10), None, vSS)
                    pack_write(B(10), 16384, 'WS15', OPT['osb'])
                oconv_v(B((0, 11, 2, 7)[j]), B((0, 2)[j >> 1]) + 8 * (j & 1), vSP)
        if n == 12:
            for j in range(4): oconv_a(16 * j, B((12, 8)[j >> 1]) + 8 * (j & 1), vSP)
    dump('O', [f"a{r}" for r in range(64)] + [f"v{B(b)+q}" for b in (0, 11, 2, 7) for q in range(16)] + [f"a{r}" for r in range(192, 208)]
         + [f"v{B(10)+q}" for q in range(16)] + [f"v{vSP}", f"v{vSS}"])

    OB = [(1, 6, 3), (9, 4, 5), (10, 7, 11)]
    def Ofrag(dh, jj, half): return R('v', B(((12, 8), (0, 2))[dh][jj >> 1]) + 8 * (jj & 1) + 4 * half, 4)
    def Osh(dh, jj, half): return R('a', 192 + 16 * dh + 8 * jj + 4 * half, 4)
    QA = [37, 6]
    vPL, vLD, vLD2, vO1, vO2, vO3, vLE, vLE2 = 12, 13, 14, 15, 38, 39, 36, 37
    SELA, SELB = 48, 52
    SRD_R, SRD_O = "s[8:11]", "s[12:15]"
    lP, lG, lS, oP, oG, oS, sHH = "s24", "s25", "s26", "s27", "s44", "s56", "s39"
    p16 = s.nmf
    if HS: s.e(f"v_subrev_u32 v{vWL}, 65536, v7", early=p16 + (30 if OPT['dm'] else 40))
    LA = [list(range(16, 24)), [2, 3, 4, 5, 7, 35, 46, 47] if OPT['dm'] else [2, 3, 4, 5, 8, 9, 10, 11]]
    assert not OPT['dm'] or OPT['rs'] >= 5
    for x in range(8): s.e(f"v_add_u32 v{LA[1][x]}, 65536, v{16+x}", early=p16 + 30, dl=p16 + 60)
    if OPT['p2']:
        x = p16 + OPT['p2o']
        s.e(f"s_lshl_b32 {sT0}, {sW}, 7\ns_add_u32 {sT0}, {sT0}, {sPP[3]}\ns_sub_u32 {sT1}, {sT0}, 896\ns_cselect_b32 {sT0}, {sT0}, {sT1}", early=x - 12, dl=x - 4)
        s.es(f"""s_and_b32 {sT1}, {sB}, 1
        s_mul_i32 {sT1}, {sT1}, {128*896}
        s_add_u32 {sT0}, {sT0}, {sT1}
        v_mul_u32_u24 v45, 896, v0
        v_add_u32 v45, {sT0}, v45
        s_mov_b32 {sT1}, {64*896}""", early=x - 12, dl=x - 2)
        s.vm(f"buffer_load_dword a65, v45, {SWO}, 0 offen", cost=16, early=x, dl=x + 1)
        s.vm(f"buffer_load_dword a66, v45, {SWO}, {sT1} offen", cost=16, early=x + OPT['p2'], dl=x + OPT['p2'] + 1)
    if OPT['fp']:
        s.vm(f"buffer_load_dword a65, off, {SFL}, s3 {OPT['fpm']}", cost=8, lat=0, early=p16 - OPT['fp'], dl=p16 - OPT['fp'] + 4)
    if OPT['de']:
        s.vm(f"buffer_load_dword a64, off, {SDB}, 0 sc1", cost=8, lat=0, early=p16 - OPT['de'], dl=p16 - OPT['de'] + 4)
        s.e(f"v_accvgpr_read_b32 v{vST}, a64", early=p16 + 12)
    else: s.vm(f"buffer_load_dword v{vST}, off, {SDB}, 0 sc1", cost=8, lat=0, early=p16 - 20, dl=p16 - 16)
    s.add(Op('e', f"v_readfirstlane_b32 {sV}, v{vST}\ns_nop 0\ns_cmp_lg_u32 {sV}, {sV if 'f' in OPT['x'] else sFAST}\ns_cbranch_scc1 L_decide\nL_decided:", cost=16,
             R=['#chk', sNF, 's28', 's29'], W=['#dec', sNF, 's28', 's29', sT0, 'v42', 'v43', 'v44'], early=p16 + 16, minage=24))
    def col(x): return f"""s_lshr_b32 {sT0}, {sHH}, {x+1}
        s_lshl_b32 {sT0}, {sT0}, {TSH}
        s_bfe_u32 {sT1}, {sHH}, {0x10000 + x}
        s_lshl_b32 {sT1}, {sT1}, 10
        s_add_u32 {sT0}, {sT0}, {sT1}
        s_and_b32 {sT1}, {sHH}, {(1 << x) - 1}
        s_lshl_b32 {sT1}, {sT1}, 8
        s_add_u32 {sT0}, {sT0}, {sT1}"""
    OWN = f"""s_mul_i32 {lG}, {sW}, {14*TS}
        {col(1)}
        s_add_u32 {lP}, {lG}, {sT0}
        {col(2)}
        s_add_u32 {lG}, {lG}, {sT0}
        s_add_u32 {lG}, {lG}, {12*TS}
        s_lshl_b32 {lS}, {sW}, {TSH+1}
        s_add_u32 {lS}, {lS}, {sT0}
        s_add_u32 {lS}, {lS}, {56*TS}
        s_and_b32 {sT1}, {sHH}, 1
        s_mul_i32 {oS}, {sT1}, {16*896}
        s_mul_i32 {oG}, {sW}, {32*896}
        s_add_u32 {oG}, {oG}, {oS}
        s_lshr_b32 {sT0}, {sHH}, 1
        s_lshl_b32 {sT1}, {sT0}, 5
        s_add_u32 {oP}, {oG}, {sT1}
        s_lshl_b32 {sT0}, {sT0}, 4
        s_add_u32 {oG}, {oG}, {sT0}
        s_add_u32 {oS}, {oS}, {sT0}
        s_lshl_b32 {sT1}, {sW}, 7
        s_add_u32 {oS}, {oS}, {sT1}
        s_add_u32 {oS}, {oS}, {128*896}"""
    def red_setup(p0):
        kw = dict(early=p0, dl=p0 + OPT['rsd'])
        s.e(f"s_mul_i32 {sT0}, {sB}, {PB}\ns_add_u32 s8, s4, {sT0}\ns_addc_u32 s9, s5, 0", **kw)
        s.e(f"s_mul_i32 {sT0}, {sB}, 143360\ns_add_u32 s12, s6, {sT0}\ns_addc_u32 s13, s7, 0", **kw)
        s.e(f"s_cmp_eq_u32 {sW}, 3\ns_cselect_b32 {sT1}, 0x40000000, 0\ns_cselect_b32 {sT2}, 0x2000000, 16", **kw)
        s.es(f"""s_mov_b32 s10, {(C-1)*REG + PB}
        s_mov_b32 s14, 143360
        v_and_b32 v42, 15, v0
        v_lshrrev_b32 v43, 4, v0
        v_lshrrev_b32 v44, 2, v0
        v_and_b32 v{vPL}, 3, v0
        v_lshlrev_b32 v{vPL}, 2, v{vPL}
        v_lshl_add_u32 v{vPL}, v44, 7, v{vPL}
        v_lshlrev_b32 v{vLD}, 4, v42
        v_lshl_add_u32 v{vLD}, v43, 11, v{vLD}
        v_add_u32 v{vLD2}, {sT1}, v{vLD}
        v_mul_u32_u24 v{vO1}, 896, v42
        v_and_b32 v44, 1, v43
        v_lshl_add_u32 v{vO2}, v44, 3, v{vO1}
        v_lshl_add_u32 v{vO1}, v43, 3, v{vO1}
        v_and_b32 v44, 32, v0
        v_lshl_add_u32 v{vO3}, v44, 25, v{vO2}
        v_mul_lo_u32 v44, v44, {sT2}
        v_add_u32 v{vO2}, v44, v{vO2}
        v_lshrrev_b32 v42, 1, v42
        v_and_b32 v44, 1, v0
        v_lshlrev_b32 v44, 4, v44
        v_mov_b32 v45, 0x3f80
        v_lshlrev_b32 v45, v44, v45
        s_mov_b32 {sHH}, {sH}""", **kw)
        if C == 2: s.es(f"v_add_u32 v{vLE}, 8192, v{vLD}\nv_add_u32 v{vLE2}, 8192, v{vLD2}", **kw)
        s.es(OWN, **kw)
        for r in range(8):
            s.e(f"v_cmp_eq_u32 s[98:99], {r}, v42\ns_nop 1\nv_cndmask_b32 v43, 0, v45, s[98:99]\nv_accvgpr_write_b32 a{SELA+r}, v43", cost=16, **kw)
    def owner(VL, VL2, fl=0):
        M16 = "v_mfma_f32_16x16x32_bf16"
        k.vm = []
        cnt = [0]
        def loads(vos, so, offs):
            L = []
            for o in offs:
                for vo in vos:
                    r = 64 + 4 * cnt[0]; cnt[0] += 1
                    k.vmem(f"buffer_load_dwordx4 {R('a', r, 4)}, v{vo}, {SRD_R}, {so} offen offset:{o} sc1", ('r', r))
                    L.append(r)
            return L
        def mm(acc, L, sels, first):
            for i, r in enumerate(L):
                k.wait(vm=[('r', r)])
                e(f"{M16} {R('v', acc, 4)}, {R('a', sels[i * len(sels) // len(L)], 4)}, {R('a', r, 4)}, {'0' if first and i == 0 else R('v', acc, 4)}")
        def outst(acc, vo, so, off):
            e(f"v_cvt_pk_bf16_f32 v{acc}, v{acc}, v{acc+1}\nv_cvt_pk_bf16_f32 v{acc+1}, v{acc+2}, v{acc+3}")
            k.vmem(f"buffer_store_dwordx2 {R('v', acc, 2)}, v{vo}, {SRD_O}, {so} offen offset:{off} {OPT['om'].replace('_', ' ')}", 'o')
        L4 = loads(VL, lS, [0])
        e(f"s_add_u32 {lS}, {lS}, {8*TS}")
        L5 = loads(VL2, lS, [0])
        e(f"s_add_u32 {lS}, {lS}, {6*TS}")
        L4 += loads(VL, lS, [0])
        e(f"s_add_u32 {lS}, {lS}, {8*TS}")
        L5 += loads(VL2, lS, [0])
        L0 = loads(VL, lP, [0, 512])
        e(f"s_add_u32 {lP}, {lP}, {4*TS}")
        L1 = loads(VL, lP, [0, 512])
        e(f"s_add_u32 {lP}, {lP}, {4*TS}")
        L2 = loads(VL, lP, [0, 512])
        L3 = loads(VL, lG, [0])
        if fl == 1:
            e(f"s_and_b32 {sT0}, {sH}, 3\ns_cselect_b32 s18, {PB}, 0")
            for st in (5, 6):
                for x in range(3):
                    for half in range(2):
                        k.vmem(f"buffer_store_dwordx4 {R('v', B(OB[st % 3][x])+4*half, 4)}, v{vS[x]}, {SCH if st == 5 else SWS}, {sQ[st]} offen offset:{half*1024} {OPT['flm'].replace('_', ' ')}", 'wb')
        if fl > 1:
            e(f"s_and_b32 {sT0}, s3, {fl}\ns_cbranch_scc1 L_nwb")
            k.vmem(f"buffer_wbl2 {OPT['flm']}", 'wb')
            e(f"s_branch L_nwb2\nL_nwb:\nbuffer_load_dword v{vPL}, off, {SFL}, 0\nL_nwb2:")
        D = [24, 28, 40, 44, 48]
        n = len(VL)
        mm(D[4], L4[:n], (SELA,), True); mm(D[4], L5[:n], (SELB,), False); mm(D[4], L4[n:], (SELA,), False); mm(D[4], L5[n:], (SELB,), False)
        mm(D[0], L0, (SELA, SELB), True); mm(D[1], L1, (SELA, SELB), True)
        outst(D[4], vO2, oS, 0)
        mm(D[2], L2, (SELA, SELB), True)
        outst(D[0], vO1, oP, 0)
        mm(D[3], L3, (SELA,), True)
        outst(D[1], vO1, oP, 256); outst(D[2], vO1, oP, 512); outst(D[3], vO3, oG, 768)
    def red_tail():
        e(f"""v_mov_b32 v{vFV}, 7
        s_cmp_gt_u32 {sNF}, 7
        s_waitcnt vmcnt(0)
        s_cbranch_scc1 L_fall
        buffer_store_dword v{vFV}, v{vZ}, {SFL}, s3 offen""")
        stamp()
        e(f"""L_fp:
        buffer_load_dword v{vPO}, v{vPL}, {SFL}, 0 offen sc1
        s_add_u32 {sCNT}, {sCNT}, 1
        s_cmp_ge_u32 {sCNT}, {1 << OPT['spin']}
        s_waitcnt vmcnt(0)
        v_cmp_gt_u32 vcc, 7, v{vPO}
        s_cbranch_scc1 L_fgo
        s_nop 0
        s_cbranch_vccnz L_fp
        L_fgo:""")
        stamp()
        owner([vLD, vLE][:4 // C], [vLD2, vLE2][:4 // C], OPT['fl'])
    def red_cold():
        for st in range(NF0, 7):
            e(f"""L_sp{st}:
            s_cmp_lt_u32 {st}, {sNF}
            s_cbranch_scc1 L_go{st}
            v_mov_b32 v{vPO}, {st}
            s_waitcnt vmcnt(0)
            buffer_store_dword v{vPO}, v{vZ}, {SFL}, s3 offen
            L_sq{st}:
            buffer_load_dword v{vPO}, off, {SFL}, {sPRED} sc1
            s_add_u32 {sCNT}, {sCNT}, 1
            s_cmp_ge_u32 {sCNT}, {1 << OPT['spin']}
            s_waitcnt vmcnt(0)
            v_cmp_gt_i32 vcc, {sS}, v{vPO}
            s_cbranch_scc1 L_go{st}
            s_nop 0
            s_cbranch_vccnz L_sq{st}
            s_branch L_go{st}""")
        e(f"""L_codeend:
        L_decide:
        s_cmp_lt_i32 {sV}, 0
        s_cbranch_scc1 L_apart
        s_cmp_eq_u32 {sV}, {sFAST}
        s_cbranch_scc1 L_decided
        s_or_b32 {sT0}, {sV}, 0x80000000
        v_mov_b32 v42, {sT0}
        v_mov_b32 v43, {sV}
        v_lshlrev_b32 v44, 23, v0
        buffer_atomic_cmpswap v[42:43], v44, {SDB}, 0 offen sc0 sc1
        s_waitcnt vmcnt(0)
        v_readfirstlane_b32 {sT0}, v42
        s_cmp_eq_u32 {sT0}, {sV}
        s_mov_b32 {sV}, {sT0}
        s_cbranch_scc0 L_decide
        L_apart:
        s_and_b32 {sT0}, {sH}, {C-1}
        s_mul_i32 {sT0}, {sT0}, {REG}
        s_add_u32 s28, s28, {sT0}
        s_addc_u32 s29, s29, 0
        s_mov_b32 {sNF}, 99
        s_branch L_decided
        L_fall:
        s_barrier
        buffer_wbl2 sc1
        s_lshl_b32 {sT0}, {sW}, 29
        v_add_u32 v44, {sT0}, v{vZ}
        v_mov_b32 v42, 1
        s_lshl_b32 {sT0}, {sW}, 8
        v_lshlrev_b32 v43, 2, v0
        s_waitcnt vmcnt(0)
        buffer_atomic_add v42, v44, {SDB}, 0 offen offset:4 sc0 sc1
        v_add_u32 v43, {sT0}, v43
        v_mov_b32 v44, 0
        s_waitcnt vmcnt(0)
        ds_write_b32 v43, v42
        s_waitcnt lgkmcnt(0)
        s_barrier
        ds_read_b32 v42, v44
        s_mov_b32 {sHH}, 0
        s_waitcnt lgkmcnt(0)
        v_readfirstlane_b32 {sT0}, v42
        s_cmp_lg_u32 {sT0}, 15
        s_cbranch_scc1 L_exit
        buffer_inv sc1""")
        offs = [r * REG + j * 8192 for r in range(C) for j in range(4 // C)]
        for i, o in enumerate(offs): e(f"v_add_u32 v{52+i}, {o}, v{vLD}\nv_add_u32 v{56+i}, {o}, v{vLD2}")
        e("s_waitcnt vmcnt(0)\ns_barrier\nL_all:")
        e(OWN)
        owner(range(52, 56), range(56, 60))
        e(f"s_add_u32 {sHH}, {sHH}, 1\ns_cmp_lt_u32 {sHH}, 16\ns_cbranch_scc1 L_all\ns_endpgm")
    for st in range(7):
        n = 16 + st
        p0 = s.nmf
        RB(f"RS{n}")
        if st == 0 and OPT['osb'] == 'WS16': WB('WS16', p0)
        if 1 <= st <= 4 and 'w' not in OPT['x'] and n + 2 in HS: stage_write(n + 2, st + 1, SLOT[n + 2], f"RS{n}", p0 - OPT['w0'] + OPT['sw'], va=(7 if SL[SLOT[n + 2]] >= 65536 else vWL), wp=3)
        if st == OPT['rs']: red_setup(p0)
        kw = dict(ab=f"RS{n}", bb=(f"RS{n+2}" if st <= 2 else None))
        la = LA[SL[SLOT[n]] >> 16]; off0 = SL[SLOT[n]] & 0xffff
        ob = [B(x) for x in OB[st % 3]]
        cb = 24 * (st & 1)
        chain = st >= NF0
        need = p0 + 40 - OPT['ap']
        if chain:
            s.vm(f"buffer_load_dword v{vPO}, off, {SFL}, {sPRED} sc1", cost=8, R=['#dec'], lat=0, early=need - OPT['pl'], dl=need - OPT['pl'] + 1)
            s.e(f"s_cmp_ge_u32 {st}, {sNF}\ns_cselect_b32 s18, {PB}, 0\ns_sub_u32 {sS}, {st+1}, {sNF}")
            if OPT['nochk']: s.add(Op('e', f"v_cmp_gt_i32 vcc, {sS}, v{vPO}\ns_nop 1\nL_go{st}:", cost=12, W=['#go'], minage=OPT['ca'], dl=need - OPT['pl'] + OPT['ca']))
            else: s.add(Op('e', f"v_cmp_gt_i32 vcc, {sS}, v{vPO}\ns_nop 1\ns_cbranch_vccnz L_sp{st}\nL_go{st}:", cost=12,
                     R=[f"#is{st-1}{x}{h}" for x in range(3) for h in range(2)] + [f"#pub{st-2}"], W=['#go', f"v{vPO}", sCNT], minage=OPT['ca'], dl=need - OPT['pl'] + OPT['ca']))
            for x in (0, 2, 1):
                for half in range(2):
                    if 'l' in OPT['x']: continue
                    s.vm(f"buffer_load_dwordx4 {R('a', cb + 8*x + 4*half, 4)}, v{vS[x]}, {SCH}, {sQ[st]} offen offset:{half*1024} {OPT['clm'].replace('_', ' ')}", cost=OPT['clc'], R=['#go'], lat=OPT['cl'], chain='vm' if OPT['dm'] else None)
            if OPT['dm'] and st <= 4 and n + 2 not in HS: issue(dma_tile(n + 2, SLOT[n + 2], ab=f"RS{n}"), pace(p0 + OPT['dmo'], OPT['dmp']), lat=0)
        def add(x):
            for half in range(2): mf(R('v', ob[x], 16), R('v', SEL[half], 4), R('a', cb + 8*x + 4*half, 4), False)
        def store(x):
            for q in range(8): s.e(f"v_cvt_pk_bf16_f32 v{ob[x]+q}, v{ob[x]+2*q}, v{ob[x]+2*q+1}", dl=s.nmf + OPT['cvd'])
            for half in range(2):
                if 's' in OPT['x']: continue
                o = s.vm(f"buffer_store_dwordx4 {R('v', ob[x]+4*half, 4)}, v{vS[x]}, {SWS}, {sQ[st]} offen offset:{half*1024} {OPT['hm'].replace('_', ' ') if st <= OPT['hn'] else ''}",
                         cost=OPT['stc'], R=['#dec'], W=[f"#st{st}{x}{half}", f"#is{st}{x}{half}"], dl=s.nmf + OPT['cvd'] + 1, lat=0)
                o.asyncw.add(f"#st{st}{x}{half}")
        order = [(t, d2) for d2 in range(2) for t in range(2)] if st == 0 else [(t, d2) for t in range(2) for d2 in range(2)]
        for t, d2 in order:
            for jj in range(4):
                for half in range(2):
                    first = d2 == 0 and jj == 0 and half == 0
                    if chain:
                        if s.nmf == need: add(0); store(0)
                        if s.nmf == need + 4: add(2); store(2)
                        if s.nmf == need + 8: add(1)
                    a = tr(la[2 * jj + t], off0 + d2 * 16384 + half * 2048, 512, **kw)
                    mf(R('v', ob[t], 16), a, Ofrag(d2, jj, half), first)
                    if t == 0 and jj < 2:
                        if st == 0: rd128(QA[jj], 8192 + d2 * 8192 + half * 1024, Osh(d2, jj, half), ab=(OPT['osb'] if d2 else 'RS16'))
                        mf(R('v', ob[2], 16), a, Osh(d2, jj, half), first)
                        if not chain and d2 and jj and half: store(2)
            if not chain and t == 0 and d2: store(0)
        if chain and s.nmf == need + 8: add(1)
        assert s.nmf == p0 + (46 if chain else 40)
        store(1)
        if st < 7 - NF0:
            s.e(f"v_mov_b32 v{vFV}, {st+1}")
            s.vm(f"buffer_store_dword v{vFV}, v{vZ}, {SFL}, s3 offen", cost=8, R=[f"#st{st}{x}{h}" for x in range(3) for h in range(2)],
                 W=[f"#pub{st}"], minage=OPT['pa'], dl=s.nmf + 4 + OPT['pa'])
    s.build()
    s.run(budget=OPT['bud'], maxlg=OPT['maxlg'], delay=OPT['delay'], dsage=OPT['dsage'], maxds=OPT['maxds'])
    stamp()
    red_tail()
    if OPT['ts']:
        k.wait(vm0=True)
        stamp()
        e(f"""s_add_u32 s8, s4, 0x0ff00000
        s_addc_u32 s9, s5, 0
        s_mov_b32 s10, 0x100000
        s_cmp_lg_u32 {sW}, 0
        s_cbranch_scc1 L_exit
        s_mov_b64 exec, 1
        s_lshl_b32 s3, s2, 8
        v_mov_b32 v1, s3
        v_mov_b32 v2, {nst[0]}
        v_mov_b32 v3, 0
        buffer_store_dwordx2 v[2:3], v1, s[8:11], 0 offen""")
        for j in range(nst[0]):
            e(f"v_mov_b32 v4, s{sTS+2*j}\nv_mov_b32 v5, s{sTS+1+2*j}\nbuffer_store_dwordx2 v[4:5], v1, s[8:11], 0 offen offset:{8+8*j}\ns_nop 1")
        e("s_waitcnt vmcnt(0)")
    e("L_exit:\ns_endpgm")
    red_cold()
    for h, (src, mx) in enumerate(hooks):
        e(f"L_fix{h}:\ns_nop 7\ns_nop 7\ns_cmp_eq_u32 {sPASS}, 2\ns_cbranch_scc1 L_sub{h}")
        for q in range(0, 16, 2): e(f"v_max3_f32 v{mx}, v{src+q}, v{src+q+1}, v{mx}")
        e(f"s_branch L_ret{h}\nL_sub{h}:")
        for q in range(16): e(f"v_sub_f32 v{src+q}, v{src+q}, v{mx}")
        e(f"s_branch L_ret{h}")
    e(f"""L_slow:
    s_cmp_eq_u32 {sPASS}, 2
    s_cbranch_scc1 L_checked
    s_nop 7
    s_nop 7
    s_waitcnt vmcnt(0) lgkmcnt(0)
    s_barrier
    s_mov_b64 vcc, -1
    s_cmp_eq_u32 {sPASS}, 1
    s_cbranch_scc1 L_slow2
    s_mov_b32 {sPASS}, 1
    s_mov_b32 {sRNG}, 0
    v_mov_b32 v{vMP}, 0xff800000
    v_mov_b32 v{vMS}, 0xff800000
    s_branch L_start
    L_slow2:
    s_mov_b32 {sPASS}, 2
    s_mov_b32 {sLO}, 0
    s_mov_b32 {sRNG}, -1
    v_mov_b32 v42, v{vMP}
    v_mov_b32 v43, v{vMS}
    s_nop 1
    v_permlane32_swap_b32 v42, v{vMP}
    v_permlane32_swap_b32 v43, v{vMS}
    v_lshlrev_b32 v44, 2, v0
    s_lshl_b32 {sT0}, {sW}, 8
    v_max_f32 v{vMP}, v42, v{vMP}
    v_max_f32 v{vMS}, v43, v{vMS}
    v_add_u32 v45, {sT0}, v44
    ds_write_b32 v45, v{vMS}
    s_waitcnt lgkmcnt(0)
    s_barrier
    ds_read_b32 v42, v44
    ds_read_b32 v43, v44 offset:256
    ds_read_b32 v45, v44 offset:512
    ds_read_b32 v46, v44 offset:768
    s_waitcnt lgkmcnt(0)
    v_max3_f32 v{vMS}, v42, v43, v45
    v_max_f32 v{vMS}, v{vMS}, v46
    s_barrier
    s_branch L_start""")
    txt, added = k.text()
    est = s.est
    per = [sum(est[i:i + 40]) for i in range(0, len(est), 40)]
    print(f"main: {len(k.L)} lines, nops {added}, forced {s.forced}, mfma {len(est)}, est {sum(est)}; per40: {per}", file=sys.stderr)
    if OPT['verbose']:
        print("use:", s.use, file=sys.stderr)
        print("bars:", {n: o.gap for n, o in s.bars.items()}, file=sys.stderr)
    return txt

if __name__ == "__main__":
    out = sys.argv[1]
    sys.argv = sys.argv[:2] + ([f"ts={OPT['ts']}"] if OPT['ts'] else []) + ([f"diag={OPT['diag']}"] if OPT['diag'] else [])
    import gen
    m = main_kernel()
    nm = "mha_main_kernel" if OPT['diag'] else "standalone__mha_block_cached__near_ridge_kernel"
    L = [(nm, 256, 256, 163840)]; KS = [(nm, m, 512, 256)]
    if OPT['dup'] == 1: L.insert(0, L[0])
    if OPT['dup'] == 2:
        L.insert(0, ("mha_copy_kernel", 256, 256, 163840)); KS.append(("mha_copy_kernel", m.replace("L_", "M_"), 512, 256))
    if OPT['diag']:
        L.append(("mha_diag_kernel", 1, 64, 0)); KS.append(("mha_diag_kernel", gen.diag_kernel(), 64, 64))
    write_file(out, HEADER, L, KS)
```
